```python
import torch

def _softmax(x, axis=-1):
    return torch.softmax(x, dim=axis)
def _gelu(x):
    return torch.nn.functional.gelu(x, approximate="tanh")
def _silu(x):
    return torch.nn.functional.silu(x)
def _sigmoid(x):
    return torch.sigmoid(x)
def _layernorm(x, axis=-1, eps=1e-5):
    m = x.mean(dim=axis, keepdim=True)
    v = x.var(dim=axis, keepdim=True, unbiased=False)
    return (x - m) / torch.sqrt(v + eps)
def _scatter_add(tgt, idx, src, axis=0):
    return tgt.clone().index_add_(axis, idx, src)
def _segment_sum(src, seg, n):
    out = torch.zeros((n,) + src.shape[1:], dtype=src.dtype)
    return out.index_add_(0, seg, src)
def _pad(x, pw):
    flat = tuple(v for pair in reversed(pw) for v in pair)
    return torch.nn.functional.pad(x, flat)

kernel_name = 'gated_mix__mha_block_cached__geglu_ffn__decode'

def setup_inputs():

    _w = (lambda a: (lambda t: t.to(torch.bfloat16) if t.is_floating_point() else t)(torch.as_tensor(a)))
    def _A_setup():
        B, Sq, D = 4, 1, 512
        H, Sk, Dh = 32, 8192, 128
        return {
            "x": _w((lambda *s: torch.randn(*s, dtype=torch.bfloat16) * 0.05)(B, Sq, D)),
            "k_cache": _w((lambda *s: torch.randn(*s, dtype=torch.bfloat16) * 6.4)(B, H, Sk, Dh)),
            "v_cache": _w((lambda *s: torch.randn(*s, dtype=torch.bfloat16) * 0.2)(B, H, Sk, Dh)),
            "wq": _w((lambda *s: torch.randn(*s, dtype=torch.bfloat16) * 6.4)(D, H * Dh) * (D ** -0.5)),
            "wo": _w((lambda *s: torch.randn(*s, dtype=torch.bfloat16) * 0.2)(H * Dh, D) * ((H * Dh) ** -0.5)),
        }
    _A_in = _A_setup()

    def _B_setup():
        B, S, D, F = 4, 1, 512, 1792
        return {
            "x": _w((lambda *s: torch.randn(*s, dtype=torch.bfloat16) * 0.05)(B, S, D)),
            "w_gate": _w((lambda *s: torch.randn(*s, dtype=torch.bfloat16) * 0.05)(D, F)),
            "w_up": _w((lambda *s: torch.randn(*s, dtype=torch.bfloat16) * 0.05)(D, F)),
            "w_down": _w((lambda *s: torch.randn(*s, dtype=torch.bfloat16) * 0.05)(F, D)),
        }
    _B_in = _B_setup()

    return {
        "A_x": _A_in["x"],
        "A_k_cache": _A_in["k_cache"],
        "A_v_cache": _A_in["v_cache"],
        "A_wq": _A_in["wq"],
        "A_wo": _A_in["wo"],
        "B_x": _B_in["x"],
        "B_w_gate": _B_in["w_gate"],
        "B_w_up": _B_in["w_up"],
        "B_w_down": _B_in["w_down"],
        "gate_w": _w((lambda *s: torch.randn(*s, dtype=torch.bfloat16) * 0.05)(512) * 16.0),
    }

def reference(A_x, A_k_cache, A_v_cache, A_wq, A_wo, B_x, B_w_gate, B_w_up, B_w_down, gate_w):
    def _A_ref(x, k_cache, v_cache, wq, wo):
        B, Sq, D = x.shape
        H, Dh = 32, 128
        q = (lambda x, *d: x.permute(*d))((x @ wq).reshape(B, Sq, H, Dh), 0, 2, 1, 3)
        scores = torch.einsum("bhqd,bhkd->bhqk", q, k_cache) * (Dh ** -0.5)
        p = _softmax(scores, axis=-1)
        o = torch.einsum("bhqk,bhkd->bhqd", p, v_cache)
        return (lambda x, *d: x.permute(*d))(o, 0, 2, 1, 3).reshape(B, Sq, H * Dh) @ wo

    def _B_ref(x, w_gate, w_up, w_down):
        return (_gelu(x @ w_gate) * (x @ w_up)) @ w_down

    x = A_x
    g = _sigmoid((x * gate_w).sum(-1, keepdims=True))
    a = _A_ref(x, A_k_cache, A_v_cache, A_wq, A_wo)
    b = _B_ref(x, B_w_gate, B_w_up, B_w_down)
    return g * a + (1 - g) * b
```

```python
import re

TRANS = ("v_exp_f32", "v_log_f32", "v_rcp_f32", "v_rsq_f32", "v_sqrt_f32", "v_sin_f32", "v_cos_f32")

def _regs(op):
    op = op.strip()
    neg = op.lstrip("-")
    m = re.fullmatch(r"abs\((.*)\)", neg) or re.fullmatch(r"\|(.*)\|", neg)
    if m: neg = m.group(1)
    m = re.fullmatch(r"([vsa])\[(\d+):(\d+)\]", neg)
    if m: return [(m.group(1), i) for i in range(int(m.group(2)), int(m.group(3)) + 1)]
    m = re.fullmatch(r"([vsa])(\d+)", neg)
    if m: return [(m.group(1), int(m.group(2)))]
    if neg == "vcc": return [("s", "vcc")]
    if neg == "exec": return [("s", "exec")]
    if neg == "m0": return [("s", "m0")]
    return []

class Ins:
    def __init__(self, text):
        self.text = text
        t = text.split(";")[0].strip()
        self.is_label = t.endswith(":")
        self.is_dir = t.startswith(".") or t == ""
        self.mn = ""
        self.w = set(); self.r = set()
        self.kind = "other"
        self.dpp = False
        self.srcA = self.srcB = self.srcC = set()
        self.nop = 0
        if self.is_label or self.is_dir: return
        parts = t.split(None, 1)
        mn = parts[0]; self.mn = mn
        rest = parts[1] if len(parts) > 1 else ""
        ops = []
        depth = 0; cur = ""
        for ch in rest:
            if ch in "[(": depth += 1
            if ch in "])": depth -= 1
            if ch == "," and depth == 0:
                ops.append(cur.strip()); cur = ""
            else: cur += ch
        if cur.strip(): ops.append(cur.strip())
        if ops:
            last = ops[-1].split()
            mods = " ".join(last[1:]); ops[-1] = last[0]
        else: mods = ""
        self.ops = ops; self.mods = mods
        R = [set(_regs(o)) for o in ops]
        allr = lambda idx: set().union(*[R[i] for i in idx]) if idx else set()
        n = len(ops)
        if mn == "s_nop":
            self.kind = "nop"; self.nop = int(ops[0], 0) + 1
        elif mn.startswith("v_mfma"):
            self.kind = "mfma"; self.w = R[0]
            self.srcA, self.srcB, self.srcC = R[1], R[2], R[3]
            self.r = R[1] | R[2] | R[3]
            self.passes = 8 if "32x32" in mn else (2 if "4x4x4" in mn else 4)
        elif mn.startswith("v_"):
            self.kind = "valu"
            self.dpp = "_dpp" in mn or any(k in mods for k in ("row_", "quad_perm"))
            base = mn.replace("_dpp", "").replace("_e32", "").replace("_e64", "")
            self.base = base
            if base.startswith("v_permlane") and "swap" in base:
                self.w = R[0] | R[1]; self.r = R[0] | R[1]; self.kind = "permlane"
            elif base.startswith("v_cmp"):
                self.w = R[0]; self.r = allr(range(1, n))
            elif base in ("v_add_co_u32", "v_sub_co_u32", "v_addc_co_u32", "v_subb_co_u32"):
                self.w = R[0] | R[1]; self.r = allr(range(2, n))
            else:
                self.w = R[0]; self.r = allr(range(1, n))
                if base in ("v_fmac_f32", "v_dot2c_f32_bf16", "v_writelane_b32") or self.dpp: self.r |= R[0]
                if base == "v_cndmask_b32" and n == 3: self.r |= {("s", "vcc")}
            self.trans = base in TRANS
            self.dot = base.startswith("v_dot")
            self.rdlane = base in ("v_readlane_b32", "v_readfirstlane_b32")
            if self.dot and base == "v_dot2_f32_bf16":
                self.srcA, self.srcB, self.srcC = R[1], R[2], R[3]
        elif mn.startswith(("buffer_", "global_")):
            self.kind = "vmem"
            self.wide_store = False
            if mn.startswith("buffer_load"):
                if "lds" in mods.split(): self.r = allr(range(0, n)) | {("s", "m0")}
                else:
                    self.w = R[0]; self.r = allr(range(1, n))
                    if "d16" in mn: self.r |= R[0]
            elif mn.startswith("buffer_store"):
                self.r = allr(range(0, n)); self.data = R[0]; self.wide_store = "x4" in mn or "x3" in mn
            elif mn.startswith("buffer_atomic"):
                self.r = allr(range(0, n))
                if "sc0" in mods.split(): self.w = R[0]
            elif mn.startswith("global_load"):
                self.w = R[0]; self.r = allr(range(1, n))
            elif mn.startswith("global_store"):
                self.r = allr(range(0, n)); self.data = R[1]; self.wide_store = "x4" in mn or "x3" in mn
            elif mn.startswith("global_atomic"):
                self.r = allr(range(0, n))
                if "sc0" in mods.split(): self.w = R[0]
        elif mn.startswith("ds_"):
            self.kind = "ds"
            if mn.startswith(("ds_read", "ds_bpermute", "ds_swizzle", "ds_permute")) or "rtn" in mn:
                self.w = R[0]; self.r = allr(range(1, n))
            else: self.r = allr(range(0, n))
        elif mn.startswith("s_"):
            self.kind = "salu"
            nodst = ("s_cmp", "s_waitcnt", "s_barrier", "s_branch", "s_cbranch", "s_endpgm", "s_sleep", "s_setprio", "s_setpc", "s_bitcmp")
            if mn.startswith(nodst): self.r = allr(range(0, n))
            else:
                self.w = R[0] if n else set(); self.r = allr(range(1, n))
                if "saveexec" in mn: self.w = self.w | {("s", "exec")}

def vg(s): return {x for x in s if x[0] in "va"}
def sg(s): return {x for x in s if x[0] == "s"}

def need(p, c):
    n = 0
    pv = vg(p.w)
    if p.kind in ("valu", "permlane"):
        isdot = getattr(p, "dot", False)
        if pv:
            if c.kind == "valu" and c.dpp and pv & vg(c.r): n = max(n, 2)
            if c.kind == "mfma" and pv & vg(c.r): n = max(n, 2)
            if c.kind == "permlane" and pv & vg(c.r): n = max(n, 2)
            if c.kind == "valu" and c.rdlane and pv & vg(c.r): n = max(n, 1)
            if getattr(p, "trans", False) and c.kind in ("valu", "permlane") and pv & vg(c.r): n = max(n, 1)
            if isdot:
                same = c.kind == "valu" and getattr(c, "base", "") == p.base
                if same:
                    if pv & (c.srcA | c.srcB): n = max(n, 3)
                elif pv & (vg(c.r) | vg(c.w)): n = max(n, 3)
        ps = sg(p.w)
        if ps:
            if c.kind == "vmem" and ps & sg(c.r): n = max(n, 5)
            if c.kind in ("valu", "permlane") and ps & sg(c.r):
                n = max(n, 4 if (getattr(c, "rdlane", False) or getattr(c, "base", "") == "v_writelane_b32") else 2)
    if p.kind == "mfma":
        P = p.passes
        full = {2: 5, 4: 8, 8: 12}[P]; part = {2: 4, 4: 6, 8: 10}[P]
        if c.kind == "mfma":
            if p.w & (c.srcA | c.srcB): n = max(n, full)
            if p.w & c.srcC:
                n = max(n, (2 if P == 2 else 0) if (p.w == c.srcC and c.passes == P) else part)
            elif p.w & c.w and p.w != c.w: n = max(n, part)
        elif c.kind in ("valu", "permlane"):
            if p.w & (vg(c.r) | vg(c.w)): n = max(n, full)
            if p.srcC & vg(c.w): n = max(n, {2: 1, 4: 3, 8: 7}[P])
        elif c.kind in ("vmem", "ds"):
            if p.w & (vg(c.r) | vg(c.w)): n = max(n, full)
    if p.kind == "vmem" and getattr(p, "wide_store", False):
        if c.kind in ("valu", "permlane", "mfma") and p.data & vg(c.w): n = max(n, 2)
        if c.kind in ("vmem", "ds") and p.data & vg(c.w): n = max(n, 1)
    if p.kind == "salu" and ("s", "m0") in p.w and ("s", "m0") in c.r: n = max(n, 1)
    return n

WINDOW = 14

def pad(instrs, prev=()):
    out = []
    hist = [i for i in prev if not (i.is_label or i.is_dir)]
    for c in instrs:
        if c.is_label or c.is_dir:
            out.append(c); continue
        req = 0; dist = 0
        for p in reversed(hist[-WINDOW:]):
            r = need(p, c)
            if r > dist: req = max(req, r - dist)
            dist += p.nop if p.kind == "nop" else 1
            if dist >= 12: break
        while req > 0:
            k = min(req, 16)
            nop = Ins(f"    s_nop {k-1}")
            out.append(nop); hist.append(nop); req -= k
        out.append(c); hist.append(c)
    return out

class Prog:
    def __init__(self):
        self.ins = []
        self.vmq = []
    def __call__(self, s=""):
        for l in s.split("\n"):
            if l.strip() == "": continue
            t = l.strip()
            self.ins.append(Ins(t if t.split(";")[0].strip().endswith(":") or t.startswith((".", ";")) else "    " + t))
    def vm(self, text, tag):
        self(text); self.vmq.append(tag)
    def wait_vm(self, tag, emit_always=False):
        idx = [i for i, t in enumerate(self.vmq) if t == tag]
        if not idx:
            if emit_always: raise RuntimeError(f"tag {tag} not outstanding")
            return
        n = len(self.vmq) - 1 - idx[-1]
        assert n <= 63, n
        self(f"s_waitcnt vmcnt({n})")
        self.vmq = self.vmq[idx[-1] + 1:]
    def wait_vm_all(self):
        self("s_waitcnt vmcnt(0)"); self.vmq = []
    def finish(self):
        self.ins = pad(self.ins)
    def check_loop(self, label, branch_text):
        li = [i for i, x in enumerate(self.ins) if x.is_label and x.text.strip() == label + ":"][0]
        bi = [i for i, x in enumerate(self.ins) if x.text.strip() == branch_text and i > li][0]
        head = self.ins[li + 1: li + 30]
        padded = pad(head, prev=self.ins[max(li, bi - 30): bi + 1])
        assert len(padded) == len(head), f"hazard across back edge of {label}"
    def text(self):
        return "\n".join(i.text for i in self.ins) + "\n"
```

```python
import sys
from asmlib import Prog, pad

NAME = "gated_mix__mha_block_cached__geglu_ffn__decode"
HEADER = open("gated_mix__mha_block_cached__geglu_ffn__decode.s.ref").read().split("; Override launch")[0]

NATT = 256
NFFN = 28
NWG = NATT + NFFN
L2E = 0x3FB8AA3B
SCALE = 0x3DB504F3
WS_P, WS_ML, WS_Q = 0, 0x80000, 0x100000
WS_BYTES = 0x140000

sX, sK, sV, sWQ, sWO, sBX, sWG, sWU, sWD, sGW, sOUT, sDBG, sWS = 16, 18, 20, 22, 24, 26, 28, 30, 32, 34, 36, 38, 40
srdK, srdV, srdW, srdX, srdWS = 44, 48, 52, 56, 60
sWAVE, sH, sB, sR = 3, 4, 5, 6
sOFF, sCNT, sL2E, sSCALE, sRET = 8, 9, 10, 11, 12
sT0, sT1, sT2 = 14, 15, 7
sHI = 64
vLANE, vKV0, vKV1, vW = 1, 2, 3, 48
vMASK = 4
vQ = 8
vO = 12
vM, vL = 16, 17
vP = 18
vR = 26
vU = 30
vA = 32
vT = 40
vX = 50
vRING_K, vRING_V, vWA = 64, 96, 128

def srd(p, dst, base, off_lo=None, size=None):
    if off_lo is None:
        p(f"s_mov_b32 s{dst}, s{base}")
        p(f"s_and_b32 s{dst+1}, s{base+1}, 0xffff")
    else:
        p(f"s_add_u32 s{dst}, s{base}, s{off_lo}")
        p(f"s_addc_u32 s{dst+1}, s{base+1}, 0")
        p(f"s_and_b32 s{dst+1}, s{dst+1}, 0xffff")
    p(f"s_mov_b32 s{dst+2}, {size}")
    p(f"s_mov_b32 s{dst+3}, 0x20000")

def r4(b): return f"v[{b}:{b+3}]"

def common_prologue(p):
    p(f"""
    s_cmp_ge_u32 s2, {NWG}
    s_cbranch_scc1 L_end
    s_load_dwordx16 s[16:31], s[0:1], 0
    s_load_dwordx8 s[32:39], s[0:1], 64
    s_load_dwordx2 s[40:41], s[0:1], 96
    v_and_b32 v{vLANE}, 63, v0
    v_lshrrev_b32 v{vT}, 6, v0
    s_mov_b32 s{sL2E}, {hex(L2E)}
    v_readfirstlane_b32 s{sWAVE}, v{vT}
    s_mov_b32 s{sSCALE}, {hex(SCALE)}
    s_mov_b32 s{sHI}, 0xffff0000
    v_and_b32 v{vT}, 1, v{vLANE}
    v_lshlrev_b32 v{vT}, 4, v{vT}
    v_mov_b32 v{vT+1}, 0xffff
    v_lshlrev_b32 v{vT+1}, v{vT}, v{vT+1}
    v_bfe_u32 v{vT+2}, v{vLANE}, 1, 3
    """)
    for j in range(4):
        p(f"v_cmp_eq_u32 vcc, {j}, v{vT+2}")
        p(f"v_cndmask_b32 v{vMASK+j}, 0, v{vT+1}, vcc")
    p(f"""
    v_and_b32 v{vT+3}, 15, v{vLANE}
    v_lshlrev_b32 v{vT+3}, 4, v{vT+3}
    v_lshrrev_b32 v{vT+4}, 4, v{vLANE}
    """)

def proj_routine(p, nwait_after):
    p("L_proj:")
    def mk(t):
        for j in range(4):
            p(f"v_and_b32_dpp v{vA + 4*(t&1) + j}, v{vX + (t >> 4)}, v{vMASK+j} row_newbcast:{t & 15} row_mask:0xf bank_mask:0xf")
    mk(0)
    for t in range(32):
        if t + 1 < 32: mk(t + 1)
        if t % 2 == 0: p(f"s_waitcnt vmcnt({nwait_after + 31 - (t + 1)})")
        p(f"v_mfma_f32_16x16x32_bf16 {r4(vO)}, {r4(vA + 4*(t&1))}, {r4(vWA + 4*t)}, {r4(vO)}")
    p("s_nop 7")
    p(f"s_setpc_b64 s[{sRET}:{sRET+1}]")

def kv_load(p, reg, srdn, t, tag):
    p.vm(f"buffer_load_dwordx4 {r4(reg)}, v{vKV0 + (t >> 2)}, s[{srdn}:{srdn+3}], s{sOFF} offen offset:{(t & 3) * 1024} nt", tag)

def body(p, reissue, extra=None):
    for t in range(8):
        if t % 2 == 0: p.wait_vm(("K", t + 1))
        k = vRING_K + 4 * t
        p(f"v_dot2_f32_bf16 v{vP+t}, v{k}, v{vQ}, 0")
        for j in range(1, 4):
            p(f"v_dot2_f32_bf16 v{vP+t}, v{k+j}, v{vQ+j}, v{vP+t}")
        if reissue: kv_load(p, k, srdK, t, ("K", t))
    if extra: extra()
    for a in range(4):
        p(f"v_add_f32_dpp v{vR+a}, v{vP+a}, v{vP+a} row_mirror row_mask:0xf bank_mask:0x3")
    for a in range(4):
        p(f"v_add_f32_dpp v{vR+a}, v{vP+a+4}, v{vP+a+4} row_mirror row_mask:0xf bank_mask:0xc")
    p(f"v_add_f32_dpp v{vU}, v{vR}, v{vR} row_half_mirror row_mask:0xf bank_mask:0x5")
    p(f"v_add_f32_dpp v{vU+1}, v{vR+1}, v{vR+1} row_half_mirror row_mask:0xf bank_mask:0x5")
    p(f"v_add_f32_dpp v{vU}, v{vR+2}, v{vR+2} row_half_mirror row_mask:0xf bank_mask:0xa")
    p(f"v_add_f32_dpp v{vU+1}, v{vR+3}, v{vR+3} row_half_mirror row_mask:0xf bank_mask:0xa")
    for qp in ("[1,0,3,2]", "[2,3,0,1]"):
        for u in range(2):
            p(f"v_add_f32_dpp v{vU+u}, v{vU+u}, v{vU+u} quad_perm:{qp} row_mask:0xf bank_mask:0xf")
    a0, a1, w, mx, neg, al, p0, p1 = vT, vT+1, vT+2, vT+3, vT+4, vT+5, vT+6, vT+7
    p(f"""
    v_cvt_pk_bf16_f32 v{w}, v{vU}, v{vU+1}
    v_lshlrev_b32 v{a0}, 16, v{w}
    v_and_b32 v{a1}, s{sHI}, v{w}
    v_mul_f32 v{a0}, s{sSCALE}, v{a0}
    v_mul_f32 v{a1}, s{sSCALE}, v{a1}
    v_cvt_pk_bf16_f32 v{w}, v{a0}, v{a1}
    v_lshlrev_b32 v{a0}, 16, v{w}
    v_and_b32 v{a1}, s{sHI}, v{w}
    v_max_f32 v{mx}, v{a0}, v{a1}
    v_max_f32_dpp v{mx}, v{mx}, v{mx} row_half_mirror row_mask:0xf bank_mask:0xf
    v_max_f32_dpp v{mx}, v{mx}, v{mx} row_mirror row_mask:0xf bank_mask:0xf
    v_max_f32_dpp v{mx}, v{mx}, v{mx} row_bcast:15 row_mask:0xa bank_mask:0xf
    v_max_f32_dpp v{mx}, v{mx}, v{mx} row_bcast:31 row_mask:0xc bank_mask:0xf
    v_readlane_b32 s{sT0}, v{mx}, 63
    v_max_f32 v{mx}, s{sT0}, v{vM}
    v_mul_f32 v{neg}, s{sL2E}, v{mx}
    v_fma_f32 v{al}, v{vM}, s{sL2E}, -v{neg}
    v_fma_f32 v{p0}, v{a0}, s{sL2E}, -v{neg}
    v_fma_f32 v{p1}, v{a1}, s{sL2E}, -v{neg}
    v_exp_f32 v{al}, v{al}
    v_exp_f32 v{p0}, v{p0}
    v_exp_f32 v{p1}, v{p1}
    v_mov_b32 v{vM}, v{mx}
    v_fma_f32 v{vL}, v{vL}, v{al}, v{p0}
    v_cvt_pk_bf16_f32 v{a0}, v{p0}, v{p0}
    v_cvt_pk_bf16_f32 v{a1}, v{p1}, v{p1}
    v_add_f32 v{vL}, v{vL}, v{p1}
    """)
    for r in range(4):
        p(f"v_mul_f32 v{vO+r}, v{vO+r}, v{al}")
    def mk(t):
        for j in range(4):
            p(f"v_and_b32_dpp v{vA + 4*(t&1) + j}, v{a0 + (t & 1)}, v{vMASK+j} row_newbcast:{4*(t >> 1)} row_mask:0xf bank_mask:0xf")
    mk(0)
    for t in range(8):
        if t + 1 < 8: mk(t + 1)
        if t % 2 == 0: p.wait_vm(("V", t + 1))
        p(f"v_mfma_f32_16x16x32_bf16 {r4(vO)}, {r4(vA + 4*(t&1))}, {r4(vRING_V + 4*t)}, {r4(vO)}")
        if reissue: kv_load(p, vRING_V + 4 * t, srdV, t, ("V", t))

def attention(p):
    p(f"""
    s_and_b32 s{sT0}, s2, 7
    s_lshr_b32 s{sT1}, s2, 3
    s_lshr_b32 s{sH}, s{sT1}, 3
    s_lshl_b32 s{sT0}, s{sT0}, 2
    s_add_u32 s{sH}, s{sH}, s{sT0}
    s_lshr_b32 s{sB}, s{sT1}, 1
    s_and_b32 s{sB}, s{sB}, 3
    s_and_b32 s{sT1}, s{sT1}, 1
    s_lshl_b32 s{sR}, s{sB}, 5
    s_add_u32 s{sR}, s{sR}, s{sH}
    s_lshl_b32 s{sR}, s{sR}, 1
    s_add_u32 s{sR}, s{sR}, s{sT1}
    """)
    srd(p, srdX, sX, None, 4096)
    p(f"""
    s_lshl_b32 s{sT0}, s{sWAVE}, 8
    s_lshl_b32 s{sT1}, s{sB}, 10
    s_add_u32 s{sT0}, s{sT0}, s{sT1}
    v_lshlrev_b32 v{vT}, 1, v{vLANE}
    v_add_u32 v{vT}, s{sT0}, v{vT}
    """)
    p.vm(f"buffer_load_ushort v{vX}, v{vT}, s[{srdX}:{srdX+3}], 0 offen", "x")
    p.vm(f"buffer_load_ushort v{vX+1}, v{vT}, s[{srdX}:{srdX+3}], 0 offen offset:128", "x")
    p(f"s_lshl_b32 s{sT0}, s{sH}, 8")
    p(f"s_sub_u32 s{sT1}, {4 << 20}, s{sT0}")
    srd(p, srdW, sWQ, sT0, f"s{sT1}")
    p(f"""
    s_lshl_b32 s{sT0}, s{sWAVE}, 20
    v_lshlrev_b32 v{vW}, 17, v{vT+4}
    v_add3_u32 v{vW}, v{vW}, v{vT+3}, s{sT0}
    s_mov_b32 s{sOFF}, 0
    """)
    for t in range(32):
        p.vm(f"buffer_load_dwordx4 {r4(vWA + 4*t)}, v{vW}, s[{srdW}:{srdW+3}], s{sOFF} offen", ("W", t))
        if t == 15: p(f"s_add_u32 s{sOFF}, s{sOFF}, {49 * 8192}")
        elif t < 31: p(f"s_add_u32 s{sOFF}, s{sOFF}, 8192")
    p(f"s_lshl_b32 s{sT0}, s{sR}, 20")
    p(f"s_lshr_b32 s{sT1}, s{sR}, 12")
    for (d, b) in ((srdK, sK), (srdV, sV)):
        p(f"s_add_u32 s{d}, s{b}, s{sT0}")
        p(f"s_addc_u32 s{d+1}, s{b+1}, s{sT1}")
        p(f"s_and_b32 s{d+1}, s{d+1}, 0xffff")
        p(f"s_mov_b32 s{d+2}, {1 << 20}")
        p(f"s_mov_b32 s{d+3}, 0x20000")
    p(f"""
    s_lshl_b32 s{sT0}, s{sWAVE}, 13
    v_lshlrev_b32 v{vKV0}, 4, v{vLANE}
    v_add_u32 v{vKV0}, s{sT0}, v{vKV0}
    v_add_u32 v{vKV1}, 4096, v{vKV0}
    s_mov_b32 s{sOFF}, 0
    """)
    for t in range(8): kv_load(p, vRING_K + 4*t, srdK, t, ("K", t))
    for t in range(8): kv_load(p, vRING_V + 4*t, srdV, t, ("V", t))
    p(f"s_mov_b32 s{sOFF}, 32768")
    p(f"""
    s_lshl_b32 s{sT0}, s{sWAVE}, 8
    """)
    p.wait_vm("x")
    p(f"""
    v_lshl_or_b32 v{vX}, v{vX}, 16, v{vX}
    v_lshl_or_b32 v{vX+1}, v{vX+1}, 16, v{vX+1}
    v_mov_b32 v{vO}, 0
    v_mov_b32 v{vO+1}, 0
    v_mov_b32 v{vO+2}, 0
    v_mov_b32 v{vO+3}, 0
    s_nop 1
    s_call_b64 s[{sRET}:{sRET+1}], L_proj
    """)
    p.vmq = [t for t in p.vmq if t[0] != "W"]
    p(f"""
    v_lshlrev_b32 v{vT}, 1, v{vT+3}
    v_lshl_add_u32 v{vT+1}, v{vT+4}, 4, v{vT}
    s_lshl_b32 s{sT1}, s{sWAVE}, 9
    v_add_u32 v{vT+1}, s{sT1}, v{vT+1}
    s_mov_b64 exec, 0xffffffff
    ds_write_b128 v{vT+1}, {r4(vO)}
    s_mov_b64 exec, -1
    v_lshlrev_b32 v{vW}, 14, v{vT+4}
    v_add3_u32 v{vW}, v{vW}, v{vT+3}, s{sT0}
    s_lshl_b32 s{sT0}, s{sH}, 17
    s_sub_u32 s{sT1}, {4 << 20}, s{sT0}
    """)
    srd(p, srdW, sWO, sT0, f"s{sT1}")
    p(f"""
    s_waitcnt lgkmcnt(0)
    s_barrier
    """)
    for w in range(4):
        p(f"ds_read_b128 {r4(vWA + 8*w)}, v{vT} offset:{w*512}")
        p(f"ds_read_b128 {r4(vWA + 8*w + 4)}, v{vT} offset:{w*512 + 16}")
    p(f"""
    v_mov_b32 v{vM}, 0xff7fffff
    v_mov_b32 v{vL}, 0
    v_mov_b32 v{vO}, 0
    v_mov_b32 v{vO+1}, 0
    v_mov_b32 v{vO+2}, 0
    v_mov_b32 v{vO+3}, 0
    s_waitcnt lgkmcnt(0)
    """)
    for i in range(8):
        p(f"v_add_f32 v{vWA+i}, v{vWA+i}, v{vWA+8+i}")
        p(f"v_add_f32 v{vWA+16+i}, v{vWA+16+i}, v{vWA+24+i}")
    for i in range(8):
        p(f"v_add_f32 v{vWA+i}, v{vWA+i}, v{vWA+16+i}")
    for j in range(4):
        p(f"v_cvt_pk_bf16_f32 v{vQ+j}, v{vWA+2*j}, v{vWA+2*j+1}")
    body(p, True)
    p(f"s_add_u32 s{sOFF}, s{sOFF}, 32768")
    def wo_loads():
        for t in range(32):
            u, tt = t >> 4, t & 15
            so = (64 * u + (tt & ~3)) * 1024
            if tt & 3 == 0: p(f"s_mov_b32 s{sT2}, {so}")
            p.vm(f"buffer_load_dwordx4 {r4(vWA + 4*t)}, v{vW}, s[{srdW}:{srdW+3}], s{sT2} offen offset:{(tt & 3) * 1024}", ("W", t))
    body(p, True, extra=wo_loads)
    p(f"s_add_u32 s{sOFF}, s{sOFF}, 32768")
    body(p, True)
    p(f"s_add_u32 s{sOFF}, s{sOFF}, 32768")
    q0 = list(p.vmq)
    assert q0 == [("K", t) for t in range(8)] + [("V", t) for t in range(8)], q0
    p(f"s_mov_b32 s{sCNT}, 28")
    p("L_loop:")
    body(p, True)
    assert p.vmq == q0
    p(f"""
    s_add_u32 s{sOFF}, s{sOFF}, 32768
    s_sub_u32 s{sCNT}, s{sCNT}, 1
    s_cmp_lg_u32 s{sCNT}, 0
    s_cbranch_scc1 L_loop
    """)
    body(p, False)
    assert p.vmq == []
    p(f"""
    v_add_f32_dpp v{vL}, v{vL}, v{vL} row_half_mirror row_mask:0xf bank_mask:0xf
    v_add_f32_dpp v{vL}, v{vL}, v{vL} row_mirror row_mask:0xf bank_mask:0xf
    v_add_f32_dpp v{vL}, v{vL}, v{vL} row_bcast:15 row_mask:0xa bank_mask:0xf
    v_add_f32_dpp v{vL}, v{vL}, v{vL} row_bcast:31 row_mask:0xc bank_mask:0xf
    v_readlane_b32 s{sT0}, v{vL}, 63
    v_and_b32 v{vT+3}, 15, v{vLANE}
    v_lshrrev_b32 v{vT+4}, 4, v{vLANE}
    v_mov_b32 v{vL}, s{sT0}
    v_lshlrev_b32 v{vT}, 5, v{vT+3}
    v_lshl_add_u32 v{vT+1}, v{vT+4}, 4, v{vT}
    s_lshl_b32 s{sT1}, s{sWAVE}, 9
    s_lshl_b32 s{sT0}, s{sWAVE}, 3
    v_add_u32 v{vT+2}, s{sT1}, v{vT+1}
    v_mov_b32 v{vT+5}, s{sT0}
    s_mov_b64 exec, 0xffffffff
    ds_write_b128 v{vT+2}, {r4(vO)} offset:2048
    s_mov_b64 exec, -1
    ds_write_b64 v{vT+5}, v[{vM}:{vM+1}] offset:4096
    v_lshlrev_b32 v{vT+6}, 2, v{vLANE}
    v_mov_b32 v{vT+5}, 0
    s_waitcnt lgkmcnt(0)
    s_barrier
    ds_read_b128 {r4(vP)}, v{vT+5} offset:4096
    ds_read_b128 {r4(vP+4)}, v{vT+5} offset:4112
    """)
    for w in range(4):
        p(f"ds_read_b32 v{vRING_K+2*w}, v{vT+6} offset:{2048 + w*512}")
        p(f"ds_read_b32 v{vRING_K+2*w+1}, v{vT+6} offset:{2048 + w*512 + 256}")
    m = [vP, vP+2, vP+4, vP+6]; l = [vP+1, vP+3, vP+5, vP+7]
    p(f"""
    s_waitcnt lgkmcnt(8)
    v_max_f32 v{vM}, v{m[0]}, v{m[1]}
    v_max3_f32 v{vM}, v{vM}, v{m[2]}, v{m[3]}
    v_mul_f32 v{vT+7}, s{sL2E}, v{vM}
    """)
    for w in range(4): p(f"v_fma_f32 v{m[w]}, v{m[w]}, s{sL2E}, -v{vT+7}")
    for w in range(4): p(f"v_exp_f32 v{m[w]}, v{m[w]}")
    p(f"v_mul_f32 v{vL}, v{m[0]}, v{l[0]}")
    for w in range(1, 4): p(f"v_fma_f32 v{vL}, v{m[w]}, v{l[w]}, v{vL}")
    p("s_waitcnt lgkmcnt(0)")
    for u in range(2):
        p(f"v_mul_f32 v{vX+u}, v{m[0]}, v{vRING_K+u}")
    for w in range(1, 4):
        for u in range(2):
            p(f"v_fma_f32 v{vX+u}, v{m[w]}, v{vRING_K+2*w+u}, v{vX+u}")
    p(f"""
    v_cvt_pk_bf16_f32 v{vX}, v{vX}, v{vX}
    v_cvt_pk_bf16_f32 v{vX+1}, v{vX+1}, v{vX+1}
    v_mov_b32 v{vO}, 0
    v_mov_b32 v{vO+1}, 0
    v_mov_b32 v{vO+2}, 0
    v_mov_b32 v{vO+3}, 0
    s_nop 1
    s_call_b64 s[{sRET}:{sRET+1}], L_proj
    """)
    srd(p, srdWS, sWS, None, WS_BYTES)
    p(f"""
    s_lshl_b32 s{sT0}, s{sR}, 11
    s_lshl_b32 s{sT1}, s{sWAVE}, 9
    s_add_u32 s{sT0}, s{sT0}, s{sT1}
    v_add_u32 v{vT+1}, s{sT0}, v{vT+1}
    s_mov_b64 exec, 0xffffffff
    buffer_store_dwordx4 {r4(vO)}, v{vT+1}, s[{srdWS}:{srdWS+3}], 0 offen
    s_mov_b64 exec, 1
    s_lshl_b32 s{sT0}, s{sR}, 3
    s_add_u32 s{sT0}, s{sT0}, {WS_ML}
    v_mov_b32 v{vT+2}, s{sT0}
    s_cmp_lg_u32 s{sWAVE}, 0
    s_cbranch_scc1 L_end
    buffer_store_dwordx2 v[{vM}:{vM+1}], v{vT+2}, s[{srdWS}:{srdWS+3}], 0 offen
    s_branch L_end
    """)

def ffn(p):
    sJ = sH
    vXP = 50
    vSEL = 4
    vD0, vD1 = 12, 16
    vAD = 20
    vWD = 64
    p.vmq = []
    p("L_ffn:")
    p(f"s_sub_u32 s{sJ}, s2, {NATT}")
    srd(p, srdX, sX, None, 4096)
    p(f"""
    s_lshl_b32 s{sT0}, s{sWAVE}, 8
    v_lshlrev_b32 v{vT}, 1, v{vLANE}
    v_add_u32 v{vT}, s{sT0}, v{vT}
    v_add_u32 v{vT+1}, 2048, v{vT}
    """)
    xr = 22
    for b in range(4):
        for u in range(2):
            p.vm(f"buffer_load_ushort v{xr + 2*b + u}, v{vT + (b >> 1)}, s[{srdX}:{srdX+3}], 0 offen offset:{(b & 1) * 1024 + u * 128}", "x")
    p(f"""
    v_and_b32 v{vT+5}, 8, v{vLANE}
    v_cmp_eq_u32 vcc, 0, v{vT+5}
    v_mov_b32 v{vAD}, s{sWU}
    v_mov_b32 v{vAD+1}, s{sWU+1}
    v_mov_b32 v{vT+6}, s{sWG}
    v_mov_b32 v{vT+7}, s{sWG+1}
    v_cndmask_b32 v{vAD}, v{vAD}, v{vT+6}, vcc
    v_cndmask_b32 v{vAD+1}, v{vAD+1}, v{vT+7}, vcc
    s_lshl_b32 s{sT0}, s{sWAVE}, 3
    v_add_u32 v{vT+5}, s{sT0}, v{vT+4}
    v_mul_u32_u24 v{vT+5}, {16 * 3584}, v{vT+5}
    v_and_b32 v{vT+6}, 7, v{vLANE}
    v_lshlrev_b32 v{vT+6}, 4, v{vT+6}
    s_lshl_b32 s{sT0}, s{sJ}, 7
    v_add3_u32 v{vT+5}, v{vT+5}, v{vT+6}, s{sT0}
    v_add_co_u32 v{vAD}, vcc, v{vAD}, v{vT+5}
    v_addc_co_u32 v{vAD+1}, vcc, 0, v{vAD+1}, vcc
    """)
    for t in range(32):
        p.vm(f"global_load_dwordx4 {r4(vWA + 4*t)}, v[{vAD}:{vAD+1}], off", ("W", t))
        if t < 31:
            step = 49 * 3584 if t == 15 else 3584
            p(f"v_add_co_u32 v{vAD}, vcc, {step}, v{vAD}")
            p(f"v_addc_co_u32 v{vAD+1}, vcc, 0, v{vAD+1}, vcc")
    p(f"s_lshl_b32 s{sT0}, s{sJ}, 16")
    p(f"s_sub_u32 s{sT1}, {1792 * 1024}, s{sT0}")
    srd(p, srdW, sWD, sT0, f"s{sT1}")
    p(f"""
    s_lshl_b32 s{sT0}, s{sWAVE}, 8
    v_lshlrev_b32 v{vW}, 14, v{vT+4}
    v_add3_u32 v{vW}, v{vW}, v{vT+3}, s{sT0}
    """)
    for t in range(16):
        if t & 3 == 0: p(f"s_mov_b32 s{sT2}, {(t & ~3) * 1024}")
        p.vm(f"buffer_load_dwordx4 {r4(vWD + 4*t)}, v{vW}, s[{srdW}:{srdW+3}], s{sT2} offen offset:{(t & 3) * 1024}", ("D", t))
    p(f"""
    v_and_b32 v{vT+5}, 8, v{vLANE}
    v_mov_b32 v{vT+6}, 0x0100
    v_mov_b32 v{vT+7}, 0x0302
    v_cmp_eq_u32 vcc, 0, v{vT+5}
    v_cndmask_b32 v{vT+6}, v{vT+7}, v{vT+6}, vcc
    v_lshlrev_b32 v{vT+7}, 16, v{vT+6}
    v_or_b32 v{vT+7}, 0x0c0c, v{vT+7}
    v_or_b32 v{vT+6}, 0x0c0c0000, v{vT+6}
    v_and_b32 v{vT+5}, 1, v{vLANE}
    v_cmp_eq_u32 vcc, 0, v{vT+5}
    v_cndmask_b32 v{vT+6}, v{vT+7}, v{vT+6}, vcc
    v_bfe_u32 v{vT+5}, v{vLANE}, 1, 2
    v_mov_b32 v{vT+7}, 0x0c0c0c0c
    """)
    for j in range(4):
        p(f"v_cmp_eq_u32 vcc, {j}, v{vT+5}")
        p(f"v_cndmask_b32 v{vSEL+j}, v{vT+7}, v{vT+6}, vcc")
    p.wait_vm("x")
    for pr in range(2):
        for u in range(2):
            p(f"v_lshl_or_b32 v{vXP + 2*pr + u}, v{xr + 2*(2*pr+1) + u}, 16, v{xr + 2*(2*pr) + u}")
    for r in range(8): p(f"v_mov_b32 v{vD0 + r}, 0")
    vBC = 30
    def step(t, wreg, src_of_pair, lane):
        for pr in range(2):
            p(f"v_mov_b32_dpp v{vBC+pr}, v{src_of_pair(pr)} row_newbcast:{lane} row_mask:0xf bank_mask:0xf")
        for pr in range(2):
            for j in range(4):
                p(f"v_perm_b32 v{vA + 4*pr + j}, v{vBC+pr}, v{vBC+pr}, v{vSEL+j}")
        return
    for t in range(32):
        step(t, None, lambda pr: vXP + 2*pr + (t >> 4), t & 15)
        if t % 2 == 0: p.wait_vm(("W", t + 1))
        p(f"v_mfma_f32_16x16x32_bf16 {r4(vD0)}, {r4(vA)}, {r4(vWA + 4*t)}, {r4(vD0)}")
        p(f"v_mfma_f32_16x16x32_bf16 {r4(vD1)}, {r4(vA+4)}, {r4(vWA + 4*t)}, {r4(vD1)}")
    p(f"""
    s_lshl_b32 s{sT0}, s{sWAVE}, 11
    v_lshlrev_b32 v{vT}, 4, v{vLANE}
    v_add_u32 v{vT}, s{sT0}, v{vT}
    ds_write_b128 v{vT}, {r4(vD0)}
    ds_write_b128 v{vT}, {r4(vD1)} offset:1024
    """)
    p(f"""
    s_lshr_b32 s{sT0}, s{sWAVE}, 1
    s_lshl_b32 s{sT0}, s{sT0}, 10
    s_and_b32 s{sT1}, s{sWAVE}, 1
    s_lshl_b32 s{sT2}, s{sT1}, 9
    s_add_u32 s{sT0}, s{sT0}, s{sT2}
    v_bfe_u32 v{vT+1}, v{vLANE}, 2, 1
    v_lshlrev_b32 v{vT+1}, 8, v{vT+1}
    v_lshrrev_b32 v{vT+2}, 3, v{vLANE}
    v_lshl_add_u32 v{vT+1}, v{vT+2}, 4, v{vT+1}
    v_and_b32 v{vT+2}, 3, v{vLANE}
    v_lshl_add_u32 v{vT+1}, v{vT+2}, 2, v{vT+1}
    v_add_u32 v{vT+1}, s{sT0}, v{vT+1}
    s_waitcnt lgkmcnt(0)
    s_barrier
    """)
    for w in range(4):
        p(f"ds_read_b32 v{vP+w}, v{vT+1} offset:{w*2048}")
        p(f"ds_read_b32 v{vP+4+w}, v{vT+1} offset:{w*2048 + 128}")
    h1, h2, t0, t1 = vP, vP+4, vP+1, vP+2
    C0 = 0x3F4C422A
    C1 = 0x3D372713
    p(f"""
    s_waitcnt lgkmcnt(0)
    v_add_f32 v{vP}, v{vP}, v{vP+1}
    v_add_f32 v{vP+2}, v{vP+2}, v{vP+3}
    v_add_f32 v{vP+4}, v{vP+4}, v{vP+5}
    v_add_f32 v{vP+6}, v{vP+6}, v{vP+7}
    v_add_f32 v{h1}, v{vP}, v{vP+2}
    v_add_f32 v{h2}, v{vP+4}, v{vP+6}
    v_cvt_pk_bf16_f32 v{t0}, v{h1}, v{h2}
    v_lshlrev_b32 v{h1}, 16, v{t0}
    v_and_b32 v{h2}, s{sHI}, v{t0}
    v_mul_f32 v{t0}, v{h1}, v{h1}
    v_mul_f32 v{t0}, v{t0}, v{h1}
    v_mov_b32 v{t1}, {hex(C1)}
    v_fma_f32 v{t0}, v{t0}, v{t1}, v{h1}
    v_mul_f32 v{t0}, {hex(C0)}, v{t0}
    v_mul_f32 v{t0}, s{sL2E}, v{t0}
    v_mul_f32 v{t0}, -2.0, v{t0}
    v_exp_f32 v{t0}, v{t0}
    v_add_f32 v{t0}, 1.0, v{t0}
    v_rcp_f32 v{t0}, v{t0}
    v_mul_f32 v{t0}, v{h1}, v{t0}
    v_cvt_pk_bf16_f32 v{t0}, v{t0}, v{t0}
    v_lshlrev_b32 v{t0}, 16, v{t0}
    v_mul_f32 v{t0}, v{t0}, v{h2}
    v_cvt_pk_bf16_f32 v{t0}, v{t0}, v{t0}
    s_lshr_b32 s{sT0}, s{sWAVE}, 1
    s_lshl_b32 s{sT0}, s{sT0}, 8
    s_lshl_b32 s{sT1}, s{sT1}, 1
    s_add_u32 s{sT0}, s{sT0}, s{sT1}
    v_lshlrev_b32 v{vT+2}, 2, v{vLANE}
    v_add_u32 v{vT+3}, s{sT0}, v{vT+2}
    ds_write_b16 v{vT+3}, v{t0} offset:8192
    s_waitcnt lgkmcnt(0)
    s_barrier
    ds_read_b32 v{vXP}, v{vT+2} offset:8192
    ds_read_b32 v{vXP+1}, v{vT+2} offset:8448
    """)
    for r in range(8): p(f"v_mov_b32 v{vD0 + r}, 0")
    p("s_waitcnt lgkmcnt(0)")
    for t in range(16):
        step(t, None, lambda pr: vXP + pr, t)
        if t % 2 == 0: p.wait_vm(("D", t + 1))
        p(f"v_mfma_f32_16x16x32_bf16 {r4(vD0)}, {r4(vA)}, {r4(vWD + 4*t)}, {r4(vD0)}")
        p(f"v_mfma_f32_16x16x32_bf16 {r4(vD1)}, {r4(vA+4)}, {r4(vWD + 4*t)}, {r4(vD1)}")
    srd(p, srdWS, sWS, None, WS_BYTES)
    p(f"""
    s_lshl_b32 s{sT0}, s{sJ}, 13
    s_lshl_b32 s{sT1}, s{sWAVE}, 9
    s_add_u32 s{sT0}, s{sT0}, s{sT1}
    s_add_u32 s{sT0}, s{sT0}, {WS_Q}
    v_lshrrev_b32 v{vT}, 5, v{vLANE}
    v_lshlrev_b32 v{vT}, 11, v{vT}
    v_bfe_u32 v{vT+1}, v{vLANE}, 4, 1
    v_lshl_add_u32 v{vT}, v{vT+1}, 4, v{vT}
    v_and_b32 v{vT+1}, 15, v{vLANE}
    v_lshl_add_u32 v{vT}, v{vT+1}, 5, v{vT}
    v_add_u32 v{vT}, s{sT0}, v{vT}
    s_mov_b32 s{sT2}, 4096
    buffer_store_dwordx4 {r4(vD0)}, v{vT}, s[{srdWS}:{srdWS+3}], 0 offen
    buffer_store_dwordx4 {r4(vD1)}, v{vT}, s[{srdWS}:{srdWS+3}], s{sT2} offen
    """)

def kernel1():
    p = Prog()
    common_prologue(p)
    p(f"""
    s_waitcnt lgkmcnt(0)
    s_cmp_ge_u32 s2, {NATT}
    s_cbranch_scc1 L_ffn
    """)
    attention(p)
    proj_routine(p, 16)
    ffn(p)
    p("L_end:")
    p("s_endpgm")
    p.finish()
    p.check_loop("L_loop", "s_cbranch_scc1 L_loop")
    return p

def kernel2():
    p = Prog()
    vCOL, vG = 1, 2
    p(f"""
    s_cmp_ge_u32 s2, 64
    s_cbranch_scc1 R_end
    s_load_dwordx2 s[16:17], s[0:1], 0
    s_load_dwordx4 s[36:39], s[0:1], 72
    s_load_dwordx2 s[40:41], s[0:1], 96
    v_and_b32 v{vCOL}, 31, v0
    v_lshrrev_b32 v{vG}, 5, v0
    s_lshr_b32 s4, s2, 4
    s_and_b32 s5, s2, 15
    s_mov_b32 s{sL2E}, {hex(L2E)}
    s_mov_b32 s{sHI}, 0xffff0000
    s_waitcnt lgkmcnt(0)
    """)
    srd(p, srdWS, 40, None, WS_BYTES)
    srd(p, srdX, 16, None, 4096)
    srd(p, srdW, 36, None, 1024)
    srd(p, srdK, 38, None, 4096)
    p(f"""
    s_lshl_b32 s6, s4, 6
    v_lshl_add_u32 v3, v{vG}, 3, s6
    v_lshlrev_b32 v4, 11, v3
    s_lshl_b32 s7, s5, 7
    v_lshl_add_u32 v5, v{vCOL}, 2, s7
    v_add_u32 v4, v4, v5
    v_lshlrev_b32 v6, 3, v3
    v_add_u32 v6, {WS_ML}, v6
    """)
    for k in range(8):
        p(f"s_mov_b32 s8, {k * 2048}")
        p.vm(f"buffer_load_dword v{16+k}, v4, s[{srdWS}:{srdWS+3}], s8 offen", "P")
    for i in range(4):
        p.vm(f"buffer_load_dwordx4 v[{24+4*i}:{27+4*i}], v6, s[{srdWS}:{srdWS+3}], 0 offen offset:{16*i}", "ML")
    p(f"""
    s_add_u32 s48, s40, {WS_Q}
    s_addc_u32 s49, s41, 0
    s_and_b32 s49, s49, 0xffff
    s_mov_b32 s50, {NFFN * 8192}
    s_mov_b32 s51, 0x20000
    s_lshl_b32 s9, s4, 11
    v_lshlrev_b32 v7, 15, v{vG}
    v_add3_u32 v7, v7, v5, s9
    """)
    for i in range(4):
        p(f"s_mov_b32 s8, {i * 8192}")
        p.vm(f"buffer_load_dword v{40+i}, v7, s[48:51], s8 offen", "Q")
    p(f"""
    s_lshl_b32 s9, s4, 10
    v_lshlrev_b32 v8, 2, v0
    v_add_u32 v9, s9, v8
    """)
    p.vm(f"buffer_load_dword v44, v9, s[{srdX}:{srdX+3}], 0 offen", "G")
    p.vm(f"buffer_load_dword v45, v8, s[{srdW}:{srdW+3}], 0 offen", "G")
    p.wait_vm("ML")
    p("v_mov_b32 v10, 0")
    for i in range(4):
        m0, l0, m1, l1 = 24+4*i, 25+4*i, 26+4*i, 27+4*i
        p(f"""
        v_max_f32 v11, v{m0}, v{m1}
        v_sub_f32 v{m0}, v{m0}, v11
        v_sub_f32 v{m1}, v{m1}, v11
        v_mul_f32 v{m0}, s{sL2E}, v{m0}
        v_mul_f32 v{m1}, s{sL2E}, v{m1}
        v_exp_f32 v{m0}, v{m0}
        v_exp_f32 v{m1}, v{m1}
        v_mul_f32 v12, v{m0}, v{l0}
        v_fma_f32 v12, v{m1}, v{l1}, v12
        v_rcp_f32 v12, v12
        v_mul_f32 v13, v{m0}, v{16+2*i}
        v_fma_f32 v13, v{m1}, v{17+2*i}, v13
        v_fma_f32 v10, v13, v12, v10
        """)
    p.wait_vm("Q")
    p(f"""
    v_add_f32 v40, v40, v41
    v_add_f32 v42, v42, v43
    v_add_f32 v11, v40, v42
    v_lshlrev_b32 v12, 2, v0
    ds_write_b32 v12, v10
    ds_write_b32 v12, v11 offset:1024
    """)
    p.wait_vm("G")
    p(f"""
    v_lshlrev_b32 v46, 16, v44
    v_and_b32 v47, s{sHI}, v44
    v_lshlrev_b32 v48, 16, v45
    v_and_b32 v49, s{sHI}, v45
    v_mul_f32 v46, v46, v48
    v_mul_f32 v47, v47, v49
    v_cvt_pk_bf16_f32 v46, v46, v47
    v_lshlrev_b32 v47, 16, v46
    v_and_b32 v46, s{sHI}, v46
    v_add_f32 v46, v46, v47
    v_add_f32_dpp v46, v46, v46 quad_perm:[1,0,3,2] row_mask:0xf bank_mask:0xf
    v_add_f32_dpp v46, v46, v46 quad_perm:[2,3,0,1] row_mask:0xf bank_mask:0xf
    v_add_f32_dpp v46, v46, v46 row_half_mirror row_mask:0xf bank_mask:0xf
    v_add_f32_dpp v46, v46, v46 row_mirror row_mask:0xf bank_mask:0xf
    v_add_f32_dpp v46, v46, v46 row_bcast:15 row_mask:0xa bank_mask:0xf
    v_add_f32_dpp v46, v46, v46 row_bcast:31 row_mask:0xc bank_mask:0xf
    v_readlane_b32 s9, v46, 63
    v_lshrrev_b32 v47, 6, v0
    v_lshlrev_b32 v47, 2, v47
    v_mov_b32 v46, s9
    ds_write_b32 v47, v46 offset:2048
    s_waitcnt lgkmcnt(0)
    s_barrier
    v_cmp_gt_u32 vcc, 32, v0
    s_and_saveexec_b64 s[12:13], vcc
    s_cbranch_execz R_end
    v_lshlrev_b32 v12, 2, v{vCOL}
    v_mov_b32 v13, 0
    ds_read_b128 v[20:23], v13 offset:2048
    """)
    for g in range(8):
        p(f"ds_read_b32 v{24+g}, v12 offset:{g*128}")
        p(f"ds_read_b32 v{32+g}, v12 offset:{1024 + g*128}")
    p("s_waitcnt lgkmcnt(0)")
    for base in (24, 32):
        p(f"""
        v_add_f32 v{base}, v{base}, v{base+1}
        v_add_f32 v{base+2}, v{base+2}, v{base+3}
        v_add_f32 v{base+4}, v{base+4}, v{base+5}
        v_add_f32 v{base+6}, v{base+6}, v{base+7}
        v_add_f32 v{base}, v{base}, v{base+2}
        v_add_f32 v{base+4}, v{base+4}, v{base+6}
        v_add_f32 v{base}, v{base}, v{base+4}
        """)
    p(f"""
    v_add_f32 v20, v20, v21
    v_add_f32 v22, v22, v23
    v_add_f32 v20, v20, v22
    v_cvt_pk_bf16_f32 v20, v20, v20
    v_lshlrev_b32 v20, 16, v20
    v_mul_f32 v20, s{sL2E}, v20
    v_sub_f32 v20, 0, v20
    v_exp_f32 v20, v20
    v_add_f32 v20, 1.0, v20
    v_rcp_f32 v20, v20
    v_cvt_pk_bf16_f32 v21, v24, v32
    v_cvt_pk_bf16_f32 v20, v20, v20
    v_lshlrev_b32 v20, 16, v20
    v_sub_f32 v22, 1.0, v20
    v_cvt_pk_bf16_f32 v22, v22, v22
    v_lshlrev_b32 v22, 16, v22
    v_lshlrev_b32 v24, 16, v21
    v_and_b32 v32, s{sHI}, v21
    v_mul_f32 v24, v20, v24
    v_mul_f32 v32, v22, v32
    v_cvt_pk_bf16_f32 v21, v24, v32
    v_lshlrev_b32 v24, 16, v21
    v_and_b32 v32, s{sHI}, v21
    v_add_f32 v24, v24, v32
    v_cvt_pk_bf16_f32 v24, v24, v24
    s_lshl_b32 s9, s4, 10
    s_lshl_b32 s8, s5, 6
    s_add_u32 s9, s9, s8
    v_lshlrev_b32 v12, 1, v{vCOL}
    v_add_u32 v12, s9, v12
    buffer_store_short v24, v12, s[{srdK}:{srdK+3}], 0 offen
    R_end:
    s_endpgm
    """)
    p.finish()
    return p

def desc(name, vgpr, sgpr):
    acc = (vgpr + 3) // 4 * 4
    return f""".amdhsa_kernel {name}
  .amdhsa_next_free_vgpr {vgpr}
  .amdhsa_next_free_sgpr {sgpr}
  .amdhsa_accum_offset {acc}
  .amdhsa_group_segment_fixed_size 0
  .amdhsa_kernarg_size 104
  .amdhsa_user_sgpr_count 2
  .amdhsa_user_sgpr_kernarg_segment_ptr 1
  .amdhsa_system_sgpr_workgroup_id_x 1
  .amdhsa_float_denorm_mode_32 3
.end_amdhsa_kernel
"""

def gen():
    k1, k2 = NAME + "_kernel", "reduce_kernel"
    out = HEADER
    out += f"; @launch kernel={k1} grid=({NWG},1,1) block=(256,1,1) lds=16384\n"
    out += f"; @launch kernel={k2} grid=(64,1,1) block=(256,1,1) lds=4096\n"
    out += '.amdgcn_target "amdgcn-amd-amdhsa--gfx950"\n.text\n'
    for name, prog in ((k1, kernel1()), (k2, kernel2())):
        out += f".globl {name}\n.p2align 8\n.type {name},@function\n{name}:\n" + prog.text()
    out += '.section .rodata,"a"\n.p2align 6\n' + desc(k1, 256, 72) + ".p2align 6\n" + desc(k2, 64, 72)
    return out

if __name__ == "__main__":
    open(sys.argv[1], "w").write(gen())
```

```python
import sys
from asmlib import Prog, pad

NAME = "gated_mix__mha_block_cached__geglu_ffn__decode"
HEADER = open("gated_mix__mha_block_cached__geglu_ffn__decode.s.ref").read().split("; Override launch")[0]

NATT = 256
NFFN = 28
NWG = NATT + NFFN
L2E = 0x3FB8AA3B
SCALE = 0x3DB504F3
WS_P, WS_ML, WS_Q = 0, 0x80000, 0x100000
WS_BYTES = 0x140000

sX, sK, sV, sWQ, sWO, sBX, sWG, sWU, sWD, sGW, sOUT, sDBG, sWS = 16, 18, 20, 22, 24, 26, 28, 30, 32, 34, 36, 38, 40
srdK, srdV, srdW, srdX, srdWS = 44, 48, 52, 56, 60
sWAVE, sH, sB, sR = 3, 4, 5, 6
sOFF, sCNT, sL2E, sSCALE, sRET = 8, 9, 10, 11, 12
sT0, sT1, sT2 = 14, 15, 7
sHI = 64
vLANE, vKV0, vKV1, vW = 1, 2, 3, 48
vMASK = 4
vQ = 8
vO = 12
vM, vL = 16, 17
vP = 18
vR = 26
vU = 30
vA = 32
vT = 40
vX = 50
vRING_K, vRING_V, vWA = 64, 96, 128

def srd(p, dst, base, off_lo=None, size=None):
    if off_lo is None:
        p(f"s_mov_b32 s{dst}, s{base}")
        p(f"s_and_b32 s{dst+1}, s{base+1}, 0xffff")
    else:
        p(f"s_add_u32 s{dst}, s{base}, s{off_lo}")
        p(f"s_addc_u32 s{dst+1}, s{base+1}, 0")
        p(f"s_and_b32 s{dst+1}, s{dst+1}, 0xffff")
    p(f"s_mov_b32 s{dst+2}, {size}")
    p(f"s_mov_b32 s{dst+3}, 0x20000")

def r4(b): return f"v[{b}:{b+3}]"

STAMPS = False
WPOL = ""
OPT = set()
sST = 70
WS_ST = 0x200000
def stamp(p, k):
    if STAMPS: p(f"s_memrealtime s[{sST+2*k}:{sST+2*k+1}]")
def write_stamps(p, n, base, idx_expr):
    if not STAMPS: return
    p("s_mov_b64 exec, 1")
    p(f"s_getreg_b32 s{sST+20}, hwreg(HW_REG_HW_ID)")
    p(f"s_getreg_b32 s{sST+21}, hwreg(HW_REG_XCC_ID)")
    p("s_waitcnt lgkmcnt(0)")
    p(idx_expr)
    p(f"s_lshl_b32 s{sST+22}, s{sST+22}, 6")
    p(f"s_add_u32 s{sST+22}, s{sST+22}, {base}")
    p(f"v_mov_b32 v60, s{sST+22}")
    p(f"s_mov_b32 s92, s40")
    p(f"s_and_b32 s93, s41, 0xffff")
    p(f"s_mov_b32 s94, 0x400000")
    p(f"s_mov_b32 s95, 0x20000")
    for k in range(n):
        p(f"v_mov_b32 v61, s{sST+2*k}")
        p(f"buffer_store_dword v61, v60, s[92:95], 0 offen offset:{4*k}")
    p(f"v_mov_b32 v61, s{sST+20}")
    p(f"buffer_store_dword v61, v60, s[92:95], 0 offen offset:56")
    p(f"v_mov_b32 v61, s{sST+21}")
    p(f"buffer_store_dword v61, v60, s[92:95], 0 offen offset:60")


def common_prologue(p):
    p(f"""
    s_cmp_ge_u32 s2, {NWG}
    s_cbranch_scc1 L_end
    """)
    stamp(p, 0)
    p(f"""
    s_load_dwordx16 s[16:31], s[0:1], 0
    s_load_dwordx8 s[32:39], s[0:1], 64
    s_load_dwordx2 s[40:41], s[0:1], 96
    v_and_b32 v{vLANE}, 63, v0
    v_lshrrev_b32 v{vT}, 6, v0
    s_mov_b32 s{sL2E}, {hex(L2E)}
    v_readfirstlane_b32 s{sWAVE}, v{vT}
    s_mov_b32 s{sSCALE}, {hex(SCALE)}
    s_mov_b32 s{sHI}, 0xffff0000
    v_and_b32 v{vT}, 1, v{vLANE}
    v_lshlrev_b32 v{vT}, 4, v{vT}
    v_mov_b32 v{vT+1}, 0xffff
    v_lshlrev_b32 v{vT+1}, v{vT}, v{vT+1}
    v_bfe_u32 v{vT+2}, v{vLANE}, 1, 3
    """)
    for j in range(4):
        p(f"v_cmp_eq_u32 vcc, {j}, v{vT+2}")
        p(f"v_cndmask_b32 v{vMASK+j}, 0, v{vT+1}, vcc")
    p(f"""
    v_and_b32 v{vT+3}, 15, v{vLANE}
    v_lshlrev_b32 v{vT+3}, 4, v{vT+3}
    v_lshrrev_b32 v{vT+4}, 4, v{vLANE}
    """)

def proj_routine(p, nwait_after):
    p("L_proj:")
    def mk(t):
        for j in range(4):
            p(f"v_and_b32_dpp v{vA + 4*(t&1) + j}, v{vX + (t >> 4)}, v{vMASK+j} row_newbcast:{t & 15} row_mask:0xf bank_mask:0xf")
    mk(0)
    for t in range(32):
        if t + 1 < 32: mk(t + 1)
        if t % 2 == 0: p(f"s_waitcnt vmcnt({nwait_after + 31 - (t + 1)})")
        p(f"v_mfma_f32_16x16x32_bf16 {r4(vO)}, {r4(vA + 4*(t&1))}, {r4(vWA + 4*t)}, {r4(vO)}")
    p("s_nop 7")
    p(f"s_setpc_b64 s[{sRET}:{sRET+1}]")

def kv_load(p, reg, srdn, t, tag):
    p.vm(f"buffer_load_dwordx4 {r4(reg)}, v{vKV0 + (t >> 2)}, s[{srdn}:{srdn+3}], s{sOFF} offen offset:{(t & 3) * 1024} nt", tag)

def body(p, reissue, extra=None):
    for t in range(8):
        if t % 2 == 0: p.wait_vm(("K", t + 1))
        k = vRING_K + 4 * t
        p(f"v_dot2_f32_bf16 v{vP+t}, v{k}, v{vQ}, 0")
        for j in range(1, 4):
            p(f"v_dot2_f32_bf16 v{vP+t}, v{k+j}, v{vQ+j}, v{vP+t}")
        if reissue: kv_load(p, k, srdK, t, ("K", t))
    if extra: extra()
    for a in range(4):
        p(f"v_add_f32_dpp v{vR+a}, v{vP+a}, v{vP+a} row_mirror row_mask:0xf bank_mask:0x3")
    for a in range(4):
        p(f"v_add_f32_dpp v{vR+a}, v{vP+a+4}, v{vP+a+4} row_mirror row_mask:0xf bank_mask:0xc")
    p(f"v_add_f32_dpp v{vU}, v{vR}, v{vR} row_half_mirror row_mask:0xf bank_mask:0x5")
    p(f"v_add_f32_dpp v{vU+1}, v{vR+1}, v{vR+1} row_half_mirror row_mask:0xf bank_mask:0x5")
    p(f"v_add_f32_dpp v{vU}, v{vR+2}, v{vR+2} row_half_mirror row_mask:0xf bank_mask:0xa")
    p(f"v_add_f32_dpp v{vU+1}, v{vR+3}, v{vR+3} row_half_mirror row_mask:0xf bank_mask:0xa")
    for qp in ("[1,0,3,2]", "[2,3,0,1]"):
        for u in range(2):
            p(f"v_add_f32_dpp v{vU+u}, v{vU+u}, v{vU+u} quad_perm:{qp} row_mask:0xf bank_mask:0xf")
    a0, a1, w, mx, neg, al, p0, p1 = vT, vT+1, vT+2, vT+3, vT+4, vT+5, vT+6, vT+7
    p(f"""
    v_cvt_pk_bf16_f32 v{w}, v{vU}, v{vU+1}
    v_lshlrev_b32 v{a0}, 16, v{w}
    v_and_b32 v{a1}, s{sHI}, v{w}
    v_mul_f32 v{a0}, s{sSCALE}, v{a0}
    v_mul_f32 v{a1}, s{sSCALE}, v{a1}
    v_cvt_pk_bf16_f32 v{w}, v{a0}, v{a1}
    v_lshlrev_b32 v{a0}, 16, v{w}
    v_and_b32 v{a1}, s{sHI}, v{w}
    v_max_f32 v{mx}, v{a0}, v{a1}
    v_max_f32_dpp v{mx}, v{mx}, v{mx} row_half_mirror row_mask:0xf bank_mask:0xf
    v_max_f32_dpp v{mx}, v{mx}, v{mx} row_mirror row_mask:0xf bank_mask:0xf
    v_max_f32_dpp v{mx}, v{mx}, v{mx} row_bcast:15 row_mask:0xa bank_mask:0xf
    v_max_f32_dpp v{mx}, v{mx}, v{mx} row_bcast:31 row_mask:0xc bank_mask:0xf
    v_readlane_b32 s{sT0}, v{mx}, 63
    v_max_f32 v{mx}, s{sT0}, v{vM}
    v_mul_f32 v{neg}, s{sL2E}, v{mx}
    v_fma_f32 v{al}, v{vM}, s{sL2E}, -v{neg}
    v_fma_f32 v{p0}, v{a0}, s{sL2E}, -v{neg}
    v_fma_f32 v{p1}, v{a1}, s{sL2E}, -v{neg}
    v_exp_f32 v{al}, v{al}
    v_exp_f32 v{p0}, v{p0}
    v_exp_f32 v{p1}, v{p1}
    v_mov_b32 v{vM}, v{mx}
    v_fma_f32 v{vL}, v{vL}, v{al}, v{p0}
    v_cvt_pk_bf16_f32 v{a0}, v{p0}, v{p0}
    v_cvt_pk_bf16_f32 v{a1}, v{p1}, v{p1}
    v_add_f32 v{vL}, v{vL}, v{p1}
    """)
    for r in range(4):
        p(f"v_mul_f32 v{vO+r}, v{vO+r}, v{al}")
    def mk(t):
        for j in range(4):
            p(f"v_and_b32_dpp v{vA + 4*(t&1) + j}, v{a0 + (t & 1)}, v{vMASK+j} row_newbcast:{4*(t >> 1)} row_mask:0xf bank_mask:0xf")
    mk(0)
    for t in range(8):
        if t + 1 < 8: mk(t + 1)
        if t % 2 == 0: p.wait_vm(("V", t + 1))
        p(f"v_mfma_f32_16x16x32_bf16 {r4(vO)}, {r4(vA + 4*(t&1))}, {r4(vRING_V + 4*t)}, {r4(vO)}")
        if reissue: kv_load(p, vRING_V + 4 * t, srdV, t, ("V", t))

def attention(p):
    p(f"""
    s_and_b32 s{sT0}, s2, 7
    s_lshr_b32 s{sT1}, s2, 3
    s_lshr_b32 s{sH}, s{sT1}, 3
    s_lshl_b32 s{sT0}, s{sT0}, 2
    s_add_u32 s{sH}, s{sH}, s{sT0}
    s_lshr_b32 s{sB}, s{sT1}, 1
    s_and_b32 s{sB}, s{sB}, 3
    s_and_b32 s{sT1}, s{sT1}, 1
    s_lshl_b32 s{sR}, s{sB}, 5
    s_add_u32 s{sR}, s{sR}, s{sH}
    s_lshl_b32 s{sR}, s{sR}, 1
    s_add_u32 s{sR}, s{sR}, s{sT1}
    """)
    srd(p, srdX, sX, None, 4096)
    p(f"""
    s_lshl_b32 s{sT0}, s{sWAVE}, 8
    s_lshl_b32 s{sT1}, s{sB}, 10
    s_add_u32 s{sT0}, s{sT0}, s{sT1}
    v_lshlrev_b32 v{vT}, 1, v{vLANE}
    v_add_u32 v{vT}, s{sT0}, v{vT}
    """)
    p.vm(f"buffer_load_ushort v{vX}, v{vT}, s[{srdX}:{srdX+3}], 0 offen", "x")
    p.vm(f"buffer_load_ushort v{vX+1}, v{vT}, s[{srdX}:{srdX+3}], 0 offen offset:128", "x")
    p(f"s_lshl_b32 s{sT0}, s{sH}, 8")
    p(f"s_sub_u32 s{sT1}, {4 << 20}, s{sT0}")
    srd(p, srdW, sWQ, sT0, f"s{sT1}")
    p(f"""
    s_lshl_b32 s{sT0}, s{sWAVE}, 20
    v_lshlrev_b32 v{vW}, 17, v{vT+4}
    v_add3_u32 v{vW}, v{vW}, v{vT+3}, s{sT0}
    s_mov_b32 s{sOFF}, 0
    """)
    for t in range(32):
        if "nowq" in OPT: p.vm(f"buffer_load_dwordx4 {r4(vWA + 4*t)}, v{vW}, s[{srdW}:{srdW+3}], s{sOFF} offen offset:4095", ("W", t)) if False else p.vm(f"buffer_load_dword v{vWA + 4*t}, v{vLANE}, s[{srdX}:{srdX+3}], 0 offen", ("W", t))
        else: p.vm(f"buffer_load_dwordx4 {r4(vWA + 4*t)}, v{vW}, s[{srdW}:{srdW+3}], s{sOFF} offen {WPOL}", ("W", t))
        if t == 15: p(f"s_add_u32 s{sOFF}, s{sOFF}, {49 * 8192}")
        elif t < 31: p(f"s_add_u32 s{sOFF}, s{sOFF}, 8192")
    p(f"s_lshl_b32 s{sT0}, s{sR}, 20")
    p(f"s_lshr_b32 s{sT1}, s{sR}, 12")
    for (d, b) in ((srdK, sK), (srdV, sV)):
        p(f"s_add_u32 s{d}, s{b}, s{sT0}")
        p(f"s_addc_u32 s{d+1}, s{b+1}, s{sT1}")
        p(f"s_and_b32 s{d+1}, s{d+1}, 0xffff")
        p(f"s_mov_b32 s{d+2}, {1 << 20}")
        p(f"s_mov_b32 s{d+3}, 0x20000")
    p(f"""
    s_lshl_b32 s{sT0}, s{sWAVE}, 13
    v_lshlrev_b32 v{vKV0}, 4, v{vLANE}
    v_add_u32 v{vKV0}, s{sT0}, v{vKV0}
    v_add_u32 v{vKV1}, 4096, v{vKV0}
    s_mov_b32 s{sOFF}, 0
    """)
    for t in range(8): kv_load(p, vRING_K + 4*t, srdK, t, ("K", t))
    for t in range(8): kv_load(p, vRING_V + 4*t, srdV, t, ("V", t))
    p(f"s_mov_b32 s{sOFF}, 32768")
    p(f"""
    s_lshl_b32 s{sT0}, s{sWAVE}, 8
    """)
    p.wait_vm("x")
    p(f"""
    v_lshl_or_b32 v{vX}, v{vX}, 16, v{vX}
    v_lshl_or_b32 v{vX+1}, v{vX+1}, 16, v{vX+1}
    v_mov_b32 v{vO}, 0
    v_mov_b32 v{vO+1}, 0
    v_mov_b32 v{vO+2}, 0
    v_mov_b32 v{vO+3}, 0
    s_nop 1
    s_call_b64 s[{sRET}:{sRET+1}], L_proj
    """)
    p.vmq = [t for t in p.vmq if t[0] != "W"]
    stamp(p, 2)
    p(f"""
    v_lshlrev_b32 v{vT}, 1, v{vT+3}
    v_lshl_add_u32 v{vT+1}, v{vT+4}, 4, v{vT}
    s_lshl_b32 s{sT1}, s{sWAVE}, 9
    v_add_u32 v{vT+1}, s{sT1}, v{vT+1}
    s_mov_b64 exec, 0xffffffff
    ds_write_b128 v{vT+1}, {r4(vO)}
    s_mov_b64 exec, -1
    v_lshlrev_b32 v{vW}, 14, v{vT+4}
    v_add3_u32 v{vW}, v{vW}, v{vT+3}, s{sT0}
    s_lshl_b32 s{sT0}, s{sH}, 17
    s_sub_u32 s{sT1}, {4 << 20}, s{sT0}
    """)
    srd(p, srdW, sWO, sT0, f"s{sT1}")
    p(f"""
    s_waitcnt lgkmcnt(0)
    s_barrier
    """)
    for w in range(4):
        p(f"ds_read_b128 {r4(vWA + 8*w)}, v{vT} offset:{w*512}")
        p(f"ds_read_b128 {r4(vWA + 8*w + 4)}, v{vT} offset:{w*512 + 16}")
    p(f"""
    v_mov_b32 v{vM}, 0xff7fffff
    v_mov_b32 v{vL}, 0
    v_mov_b32 v{vO}, 0
    v_mov_b32 v{vO+1}, 0
    v_mov_b32 v{vO+2}, 0
    v_mov_b32 v{vO+3}, 0
    s_waitcnt lgkmcnt(0)
    """)
    for i in range(8):
        p(f"v_add_f32 v{vWA+i}, v{vWA+i}, v{vWA+8+i}")
        p(f"v_add_f32 v{vWA+16+i}, v{vWA+16+i}, v{vWA+24+i}")
    for i in range(8):
        p(f"v_add_f32 v{vWA+i}, v{vWA+i}, v{vWA+16+i}")
    for j in range(4):
        p(f"v_cvt_pk_bf16_f32 v{vQ+j}, v{vWA+2*j}, v{vWA+2*j+1}")
    stamp(p, 3)
    body(p, True)
    stamp(p, 4)
    p(f"s_add_u32 s{sOFF}, s{sOFF}, 32768")
    def wo_loads():
        for t in range(32):
            u, tt = t >> 4, t & 15
            so = (64 * u + (tt & ~3)) * 1024
            if tt & 3 == 0: p(f"s_mov_b32 s{sT2}, {so}")
            p.vm(f"buffer_load_dwordx4 {r4(vWA + 4*t)}, v{vW}, s[{srdW}:{srdW+3}], s{sT2} offen offset:{(tt & 3) * 1024} {WPOL}", ("W", t))
    body(p, True, extra=None if "nowo" in OPT else wo_loads)
    p(f"s_add_u32 s{sOFF}, s{sOFF}, 32768")
    body(p, True)
    p(f"s_add_u32 s{sOFF}, s{sOFF}, 32768")
    q0 = list(p.vmq)
    assert q0 == [("K", t) for t in range(8)] + [("V", t) for t in range(8)], q0
    p(f"s_mov_b32 s{sCNT}, 28")
    p("L_loop:")
    body(p, True)
    assert p.vmq == q0
    p(f"""
    s_add_u32 s{sOFF}, s{sOFF}, 32768
    s_sub_u32 s{sCNT}, s{sCNT}, 1
    s_cmp_lg_u32 s{sCNT}, 0
    s_cbranch_scc1 L_loop
    """)
    stamp(p, 5)
    body(p, False)
    stamp(p, 6)
    assert p.vmq == []
    p(f"""
    v_add_f32_dpp v{vL}, v{vL}, v{vL} row_half_mirror row_mask:0xf bank_mask:0xf
    v_add_f32_dpp v{vL}, v{vL}, v{vL} row_mirror row_mask:0xf bank_mask:0xf
    v_add_f32_dpp v{vL}, v{vL}, v{vL} row_bcast:15 row_mask:0xa bank_mask:0xf
    v_add_f32_dpp v{vL}, v{vL}, v{vL} row_bcast:31 row_mask:0xc bank_mask:0xf
    v_readlane_b32 s{sT0}, v{vL}, 63
    v_and_b32 v{vT+3}, 15, v{vLANE}
    v_lshrrev_b32 v{vT+4}, 4, v{vLANE}
    v_mov_b32 v{vL}, s{sT0}
    v_lshlrev_b32 v{vT}, 5, v{vT+3}
    v_lshl_add_u32 v{vT+1}, v{vT+4}, 4, v{vT}
    s_lshl_b32 s{sT1}, s{sWAVE}, 9
    s_lshl_b32 s{sT0}, s{sWAVE}, 3
    v_add_u32 v{vT+2}, s{sT1}, v{vT+1}
    v_mov_b32 v{vT+5}, s{sT0}
    s_mov_b64 exec, 0xffffffff
    ds_write_b128 v{vT+2}, {r4(vO)} offset:2048
    s_mov_b64 exec, -1
    ds_write_b64 v{vT+5}, v[{vM}:{vM+1}] offset:4096
    v_lshlrev_b32 v{vT+6}, 2, v{vLANE}
    v_mov_b32 v{vT+5}, 0
    s_waitcnt lgkmcnt(0)
    s_barrier
    ds_read_b128 {r4(vP)}, v{vT+5} offset:4096
    ds_read_b128 {r4(vP+4)}, v{vT+5} offset:4112
    """)
    for w in range(4):
        p(f"ds_read_b32 v{vRING_K+2*w}, v{vT+6} offset:{2048 + w*512}")
        p(f"ds_read_b32 v{vRING_K+2*w+1}, v{vT+6} offset:{2048 + w*512 + 256}")
    m = [vP, vP+2, vP+4, vP+6]; l = [vP+1, vP+3, vP+5, vP+7]
    p(f"""
    s_waitcnt lgkmcnt(8)
    v_max_f32 v{vM}, v{m[0]}, v{m[1]}
    v_max3_f32 v{vM}, v{vM}, v{m[2]}, v{m[3]}
    v_mul_f32 v{vT+7}, s{sL2E}, v{vM}
    """)
    for w in range(4): p(f"v_fma_f32 v{m[w]}, v{m[w]}, s{sL2E}, -v{vT+7}")
    for w in range(4): p(f"v_exp_f32 v{m[w]}, v{m[w]}")
    p(f"v_mul_f32 v{vL}, v{m[0]}, v{l[0]}")
    for w in range(1, 4): p(f"v_fma_f32 v{vL}, v{m[w]}, v{l[w]}, v{vL}")
    p("s_waitcnt lgkmcnt(0)")
    for u in range(2):
        p(f"v_mul_f32 v{vX+u}, v{m[0]}, v{vRING_K+u}")
    for w in range(1, 4):
        for u in range(2):
            p(f"v_fma_f32 v{vX+u}, v{m[w]}, v{vRING_K+2*w+u}, v{vX+u}")
    p(f"""
    v_cvt_pk_bf16_f32 v{vX}, v{vX}, v{vX}
    v_cvt_pk_bf16_f32 v{vX+1}, v{vX+1}, v{vX+1}
    v_mov_b32 v{vO}, 0
    v_mov_b32 v{vO+1}, 0
    v_mov_b32 v{vO+2}, 0
    v_mov_b32 v{vO+3}, 0
    s_nop 1
    s_call_b64 s[{sRET}:{sRET+1}], L_proj
    """)
    srd(p, srdWS, sWS, None, WS_BYTES)
    p(f"""
    s_lshl_b32 s{sT0}, s{sR}, 11
    s_lshl_b32 s{sT1}, s{sWAVE}, 9
    s_add_u32 s{sT0}, s{sT0}, s{sT1}
    v_add_u32 v{vT+1}, s{sT0}, v{vT+1}
    s_mov_b64 exec, 0xffffffff
    buffer_store_dwordx4 {r4(vO)}, v{vT+1}, s[{srdWS}:{srdWS+3}], 0 offen
    s_mov_b64 exec, 1
    s_lshl_b32 s{sT0}, s{sR}, 3
    s_add_u32 s{sT0}, s{sT0}, {WS_ML}
    v_mov_b32 v{vT+2}, s{sT0}
    s_cmp_lg_u32 s{sWAVE}, 0
    s_cbranch_scc1 L_fin
    buffer_store_dwordx2 v[{vM}:{vM+1}], v{vT+2}, s[{srdWS}:{srdWS+3}], 0 offen
    s_branch L_fin
    """)

def ffn(p):
    sJ = sH
    vXP = 50
    vSEL = 4
    vD0, vD1 = 12, 16
    vAD = 20
    vWD = 64
    p.vmq = []
    p("L_ffn:")
    if "prio" in OPT: p("s_setprio 3")
    if "ffnexit" in OPT: p("s_branch L_fin")
    p(f"s_sub_u32 s{sJ}, s2, {NATT}")
    srd(p, srdX, sX, None, 4096)
    p(f"""
    s_lshl_b32 s{sT0}, s{sWAVE}, 8
    v_lshlrev_b32 v{vT}, 1, v{vLANE}
    v_add_u32 v{vT}, s{sT0}, v{vT}
    v_add_u32 v{vT+1}, 2048, v{vT}
    """)
    xr = 22
    for b in range(4):
        for u in range(2):
            p.vm(f"buffer_load_ushort v{xr + 2*b + u}, v{vT + (b >> 1)}, s[{srdX}:{srdX+3}], 0 offen offset:{(b & 1) * 1024 + u * 128}", "x")
    p(f"""
    v_and_b32 v{vT+5}, 8, v{vLANE}
    v_cmp_eq_u32 vcc, 0, v{vT+5}
    v_mov_b32 v{vAD}, s{sWU}
    v_mov_b32 v{vAD+1}, s{sWU+1}
    v_mov_b32 v{vT+6}, s{sWG}
    v_mov_b32 v{vT+7}, s{sWG+1}
    v_cndmask_b32 v{vAD}, v{vAD}, v{vT+6}, vcc
    v_cndmask_b32 v{vAD+1}, v{vAD+1}, v{vT+7}, vcc
    s_lshl_b32 s{sT0}, s{sWAVE}, 3
    v_add_u32 v{vT+5}, s{sT0}, v{vT+4}
    v_mul_u32_u24 v{vT+5}, {16 * 3584}, v{vT+5}
    v_and_b32 v{vT+6}, 7, v{vLANE}
    v_lshlrev_b32 v{vT+6}, 4, v{vT+6}
    s_lshl_b32 s{sT0}, s{sJ}, 7
    v_add3_u32 v{vT+5}, v{vT+5}, v{vT+6}, s{sT0}
    v_add_co_u32 v{vAD}, vcc, v{vAD}, v{vT+5}
    v_addc_co_u32 v{vAD+1}, vcc, 0, v{vAD+1}, vcc
    """)
    for t in range(32):
        p.vm(f"global_load_dwordx4 {r4(vWA + 4*t)}, v[{vAD}:{vAD+1}], off {WPOL}", ("W", t))
        if t < 31:
            step = 49 * 3584 if t == 15 else 3584
            p(f"v_add_co_u32 v{vAD}, vcc, {step}, v{vAD}")
            p(f"v_addc_co_u32 v{vAD+1}, vcc, 0, v{vAD+1}, vcc")
    p(f"s_lshl_b32 s{sT0}, s{sJ}, 16")
    p(f"s_sub_u32 s{sT1}, {1792 * 1024}, s{sT0}")
    srd(p, srdW, sWD, sT0, f"s{sT1}")
    p(f"""
    s_lshl_b32 s{sT0}, s{sWAVE}, 8
    v_lshlrev_b32 v{vW}, 14, v{vT+4}
    v_add3_u32 v{vW}, v{vW}, v{vT+3}, s{sT0}
    """)
    for t in range(16):
        if t & 3 == 0: p(f"s_mov_b32 s{sT2}, {(t & ~3) * 1024}")
        p.vm(f"buffer_load_dwordx4 {r4(vWD + 4*t)}, v{vW}, s[{srdW}:{srdW+3}], s{sT2} offen offset:{(t & 3) * 1024} {WPOL}", ("D", t))
    p(f"""
    v_and_b32 v{vT+5}, 8, v{vLANE}
    v_mov_b32 v{vT+6}, 0x0100
    v_mov_b32 v{vT+7}, 0x0302
    v_cmp_eq_u32 vcc, 0, v{vT+5}
    v_cndmask_b32 v{vT+6}, v{vT+7}, v{vT+6}, vcc
    v_lshlrev_b32 v{vT+7}, 16, v{vT+6}
    v_or_b32 v{vT+7}, 0x0c0c, v{vT+7}
    v_or_b32 v{vT+6}, 0x0c0c0000, v{vT+6}
    v_and_b32 v{vT+5}, 1, v{vLANE}
    v_cmp_eq_u32 vcc, 0, v{vT+5}
    v_cndmask_b32 v{vT+6}, v{vT+7}, v{vT+6}, vcc
    v_bfe_u32 v{vT+5}, v{vLANE}, 1, 2
    v_mov_b32 v{vT+7}, 0x0c0c0c0c
    """)
    for j in range(4):
        p(f"v_cmp_eq_u32 vcc, {j}, v{vT+5}")
        p(f"v_cndmask_b32 v{vSEL+j}, v{vT+7}, v{vT+6}, vcc")
    stamp(p, 2)
    p.wait_vm("x")
    stamp(p, 3)
    for pr in range(2):
        for u in range(2):
            p(f"v_lshl_or_b32 v{vXP + 2*pr + u}, v{xr + 2*(2*pr+1) + u}, 16, v{xr + 2*(2*pr) + u}")
    for r in range(8): p(f"v_mov_b32 v{vD0 + r}, 0")
    vBC = 30
    def step(t, wreg, src_of_pair, lane):
        for pr in range(2):
            p(f"v_mov_b32_dpp v{vBC+pr}, v{src_of_pair(pr)} row_newbcast:{lane} row_mask:0xf bank_mask:0xf")
        for pr in range(2):
            for j in range(4):
                p(f"v_perm_b32 v{vA + 4*pr + j}, v{vBC+pr}, v{vBC+pr}, v{vSEL+j}")
        return
    for t in range(32):
        step(t, None, lambda pr: vXP + 2*pr + (t >> 4), t & 15)
        if t % 2 == 0: p.wait_vm(("W", t + 1))
        p(f"v_mfma_f32_16x16x32_bf16 {r4(vD0)}, {r4(vA)}, {r4(vWA + 4*t)}, {r4(vD0)}")
        p(f"v_mfma_f32_16x16x32_bf16 {r4(vD1)}, {r4(vA+4)}, {r4(vWA + 4*t)}, {r4(vD1)}")
    stamp(p, 4)
    p(f"""
    s_lshl_b32 s{sT0}, s{sWAVE}, 11
    v_lshlrev_b32 v{vT}, 4, v{vLANE}
    v_add_u32 v{vT}, s{sT0}, v{vT}
    ds_write_b128 v{vT}, {r4(vD0)}
    ds_write_b128 v{vT}, {r4(vD1)} offset:1024
    """)
    p(f"""
    s_lshr_b32 s{sT0}, s{sWAVE}, 1
    s_lshl_b32 s{sT0}, s{sT0}, 10
    s_and_b32 s{sT1}, s{sWAVE}, 1
    s_lshl_b32 s{sT2}, s{sT1}, 9
    s_add_u32 s{sT0}, s{sT0}, s{sT2}
    v_bfe_u32 v{vT+1}, v{vLANE}, 2, 1
    v_lshlrev_b32 v{vT+1}, 8, v{vT+1}
    v_lshrrev_b32 v{vT+2}, 3, v{vLANE}
    v_lshl_add_u32 v{vT+1}, v{vT+2}, 4, v{vT+1}
    v_and_b32 v{vT+2}, 3, v{vLANE}
    v_lshl_add_u32 v{vT+1}, v{vT+2}, 2, v{vT+1}
    v_add_u32 v{vT+1}, s{sT0}, v{vT+1}
    s_waitcnt lgkmcnt(0)
    s_barrier
    """)
    for w in range(4):
        p(f"ds_read_b32 v{vP+w}, v{vT+1} offset:{w*2048}")
        p(f"ds_read_b32 v{vP+4+w}, v{vT+1} offset:{w*2048 + 128}")
    h1, h2, t0, t1 = vP, vP+4, vP+1, vP+2
    C0 = 0x3F4C422A
    C1 = 0x3D372713
    p(f"""
    s_waitcnt lgkmcnt(0)
    v_add_f32 v{vP}, v{vP}, v{vP+1}
    v_add_f32 v{vP+2}, v{vP+2}, v{vP+3}
    v_add_f32 v{vP+4}, v{vP+4}, v{vP+5}
    v_add_f32 v{vP+6}, v{vP+6}, v{vP+7}
    v_add_f32 v{h1}, v{vP}, v{vP+2}
    v_add_f32 v{h2}, v{vP+4}, v{vP+6}
    v_cvt_pk_bf16_f32 v{t0}, v{h1}, v{h2}
    v_lshlrev_b32 v{h1}, 16, v{t0}
    v_and_b32 v{h2}, s{sHI}, v{t0}
    v_mul_f32 v{t0}, v{h1}, v{h1}
    v_mul_f32 v{t0}, v{t0}, v{h1}
    v_mov_b32 v{t1}, {hex(C1)}
    v_fma_f32 v{t0}, v{t0}, v{t1}, v{h1}
    v_mul_f32 v{t0}, {hex(C0)}, v{t0}
    v_mul_f32 v{t0}, s{sL2E}, v{t0}
    v_mul_f32 v{t0}, -2.0, v{t0}
    v_exp_f32 v{t0}, v{t0}
    v_add_f32 v{t0}, 1.0, v{t0}
    v_rcp_f32 v{t0}, v{t0}
    v_mul_f32 v{t0}, v{h1}, v{t0}
    v_cvt_pk_bf16_f32 v{t0}, v{t0}, v{t0}
    v_lshlrev_b32 v{t0}, 16, v{t0}
    v_mul_f32 v{t0}, v{t0}, v{h2}
    v_cvt_pk_bf16_f32 v{t0}, v{t0}, v{t0}
    s_lshr_b32 s{sT0}, s{sWAVE}, 1
    s_lshl_b32 s{sT0}, s{sT0}, 8
    s_lshl_b32 s{sT1}, s{sT1}, 1
    s_add_u32 s{sT0}, s{sT0}, s{sT1}
    v_lshlrev_b32 v{vT+2}, 2, v{vLANE}
    v_add_u32 v{vT+3}, s{sT0}, v{vT+2}
    ds_write_b16 v{vT+3}, v{t0} offset:8192
    s_waitcnt lgkmcnt(0)
    s_barrier
    ds_read_b32 v{vXP}, v{vT+2} offset:8192
    ds_read_b32 v{vXP+1}, v{vT+2} offset:8448
    """)
    for r in range(8): p(f"v_mov_b32 v{vD0 + r}, 0")
    p("s_waitcnt lgkmcnt(0)")
    stamp(p, 5)
    for t in range(16):
        step(t, None, lambda pr: vXP + pr, t)
        if t % 2 == 0: p.wait_vm(("D", t + 1))
        p(f"v_mfma_f32_16x16x32_bf16 {r4(vD0)}, {r4(vA)}, {r4(vWD + 4*t)}, {r4(vD0)}")
        p(f"v_mfma_f32_16x16x32_bf16 {r4(vD1)}, {r4(vA+4)}, {r4(vWD + 4*t)}, {r4(vD1)}")
    stamp(p, 6)
    srd(p, srdWS, sWS, None, WS_BYTES)
    p(f"""
    s_lshl_b32 s{sT0}, s{sJ}, 13
    s_lshl_b32 s{sT1}, s{sWAVE}, 9
    s_add_u32 s{sT0}, s{sT0}, s{sT1}
    s_add_u32 s{sT0}, s{sT0}, {WS_Q}
    v_lshrrev_b32 v{vT}, 5, v{vLANE}
    v_lshlrev_b32 v{vT}, 11, v{vT}
    v_bfe_u32 v{vT+1}, v{vLANE}, 4, 1
    v_lshl_add_u32 v{vT}, v{vT+1}, 4, v{vT}
    v_and_b32 v{vT+1}, 15, v{vLANE}
    v_lshl_add_u32 v{vT}, v{vT+1}, 5, v{vT}
    v_add_u32 v{vT}, s{sT0}, v{vT}
    s_mov_b32 s{sT2}, 4096
    buffer_store_dwordx4 {r4(vD0)}, v{vT}, s[{srdWS}:{srdWS+3}], 0 offen
    buffer_store_dwordx4 {r4(vD1)}, v{vT}, s[{srdWS}:{srdWS+3}], s{sT2} offen
    """)

def kernel1():
    p = Prog()
    common_prologue(p)
    p(f"""
    s_waitcnt lgkmcnt(0)
    """)
    stamp(p, 1)
    p(f"""
    s_cmp_ge_u32 s2, {NATT}
    s_cbranch_scc1 L_ffn
    """)
    attention(p)
    proj_routine(p, 16)
    ffn(p)
    p("L_fin:")
    if STAMPS:
        stamp(p, 7)
        p("s_waitcnt vmcnt(0)")
        stamp(p, 8)
        write_stamps(p, 9, WS_ST, f"s_lshl_b32 s{sST+22}, s2, 2\ns_add_u32 s{sST+22}, s{sST+22}, s{sWAVE}")
    p("L_end:")
    p("s_endpgm")
    p.finish()
    p.check_loop("L_loop", "s_cbranch_scc1 L_loop")
    return p

def kernel2():
    p = Prog()
    vCOL, vG = 1, 2
    p(f"""
    s_cmp_ge_u32 s2, 64
    s_cbranch_scc1 R_end
    """)
    stamp(p, 0)
    p(f"""
    s_load_dwordx2 s[16:17], s[0:1], 0
    s_load_dwordx4 s[36:39], s[0:1], 72
    s_load_dwordx2 s[40:41], s[0:1], 96
    v_and_b32 v{vCOL}, 31, v0
    v_lshrrev_b32 v{vG}, 5, v0
    s_lshr_b32 s4, s2, 4
    s_and_b32 s5, s2, 15
    s_mov_b32 s{sL2E}, {hex(L2E)}
    s_mov_b32 s{sHI}, 0xffff0000
    s_waitcnt lgkmcnt(0)
    """)
    srd(p, srdWS, 40, None, WS_BYTES)
    srd(p, srdX, 16, None, 4096)
    srd(p, srdW, 36, None, 1024)
    srd(p, srdK, 38, None, 4096)
    p(f"""
    s_lshl_b32 s6, s4, 6
    v_lshl_add_u32 v3, v{vG}, 3, s6
    v_lshlrev_b32 v4, 11, v3
    s_lshl_b32 s7, s5, 7
    v_lshl_add_u32 v5, v{vCOL}, 2, s7
    v_add_u32 v4, v4, v5
    v_lshlrev_b32 v6, 3, v3
    v_add_u32 v6, {WS_ML}, v6
    """)
    for k in range(8):
        p(f"s_mov_b32 s8, {k * 2048}")
        p.vm(f"buffer_load_dword v{16+k}, v4, s[{srdWS}:{srdWS+3}], s8 offen", "P")
    for i in range(4):
        p.vm(f"buffer_load_dwordx4 v[{24+4*i}:{27+4*i}], v6, s[{srdWS}:{srdWS+3}], 0 offen offset:{16*i}", "ML")
    p(f"""
    s_add_u32 s48, s40, {WS_Q}
    s_addc_u32 s49, s41, 0
    s_and_b32 s49, s49, 0xffff
    s_mov_b32 s50, {NFFN * 8192}
    s_mov_b32 s51, 0x20000
    s_lshl_b32 s9, s4, 11
    v_lshlrev_b32 v7, 15, v{vG}
    v_add3_u32 v7, v7, v5, s9
    """)
    for i in range(4):
        p(f"s_mov_b32 s8, {i * 8192}")
        p.vm(f"buffer_load_dword v{40+i}, v7, s[48:51], s8 offen", "Q")
    p(f"""
    s_lshl_b32 s9, s4, 10
    v_lshlrev_b32 v8, 2, v0
    v_add_u32 v9, s9, v8
    """)
    p.vm(f"buffer_load_dword v44, v9, s[{srdX}:{srdX+3}], 0 offen", "G")
    p.vm(f"buffer_load_dword v45, v8, s[{srdW}:{srdW+3}], 0 offen", "G")
    p.wait_vm("ML")
    p("v_mov_b32 v10, 0")
    for i in range(4):
        m0, l0, m1, l1 = 24+4*i, 25+4*i, 26+4*i, 27+4*i
        p(f"""
        v_max_f32 v11, v{m0}, v{m1}
        v_sub_f32 v{m0}, v{m0}, v11
        v_sub_f32 v{m1}, v{m1}, v11
        v_mul_f32 v{m0}, s{sL2E}, v{m0}
        v_mul_f32 v{m1}, s{sL2E}, v{m1}
        v_exp_f32 v{m0}, v{m0}
        v_exp_f32 v{m1}, v{m1}
        v_mul_f32 v12, v{m0}, v{l0}
        v_fma_f32 v12, v{m1}, v{l1}, v12
        v_rcp_f32 v12, v12
        v_mul_f32 v13, v{m0}, v{16+2*i}
        v_fma_f32 v13, v{m1}, v{17+2*i}, v13
        v_fma_f32 v10, v13, v12, v10
        """)
    p.wait_vm("Q")
    p(f"""
    v_add_f32 v40, v40, v41
    v_add_f32 v42, v42, v43
    v_add_f32 v11, v40, v42
    v_lshlrev_b32 v12, 2, v0
    ds_write_b32 v12, v10
    ds_write_b32 v12, v11 offset:1024
    """)
    p.wait_vm("G")
    p(f"""
    v_lshlrev_b32 v46, 16, v44
    v_and_b32 v47, s{sHI}, v44
    v_lshlrev_b32 v48, 16, v45
    v_and_b32 v49, s{sHI}, v45
    v_mul_f32 v46, v46, v48
    v_mul_f32 v47, v47, v49
    v_cvt_pk_bf16_f32 v46, v46, v47
    v_lshlrev_b32 v47, 16, v46
    v_and_b32 v46, s{sHI}, v46
    v_add_f32 v46, v46, v47
    v_add_f32_dpp v46, v46, v46 quad_perm:[1,0,3,2] row_mask:0xf bank_mask:0xf
    v_add_f32_dpp v46, v46, v46 quad_perm:[2,3,0,1] row_mask:0xf bank_mask:0xf
    v_add_f32_dpp v46, v46, v46 row_half_mirror row_mask:0xf bank_mask:0xf
    v_add_f32_dpp v46, v46, v46 row_mirror row_mask:0xf bank_mask:0xf
    v_add_f32_dpp v46, v46, v46 row_bcast:15 row_mask:0xa bank_mask:0xf
    v_add_f32_dpp v46, v46, v46 row_bcast:31 row_mask:0xc bank_mask:0xf
    v_readlane_b32 s9, v46, 63
    v_lshrrev_b32 v47, 6, v0
    v_lshlrev_b32 v47, 2, v47
    v_mov_b32 v46, s9
    ds_write_b32 v47, v46 offset:2048
    s_waitcnt lgkmcnt(0)
    s_barrier
    v_cmp_gt_u32 vcc, 32, v0
    s_and_saveexec_b64 s[12:13], vcc
    s_cbranch_execz R_end
    v_lshlrev_b32 v12, 2, v{vCOL}
    v_mov_b32 v13, 0
    ds_read_b128 v[20:23], v13 offset:2048
    """)
    for g in range(8):
        p(f"ds_read_b32 v{24+g}, v12 offset:{g*128}")
        p(f"ds_read_b32 v{32+g}, v12 offset:{1024 + g*128}")
    p("s_waitcnt lgkmcnt(0)")
    for base in (24, 32):
        p(f"""
        v_add_f32 v{base}, v{base}, v{base+1}
        v_add_f32 v{base+2}, v{base+2}, v{base+3}
        v_add_f32 v{base+4}, v{base+4}, v{base+5}
        v_add_f32 v{base+6}, v{base+6}, v{base+7}
        v_add_f32 v{base}, v{base}, v{base+2}
        v_add_f32 v{base+4}, v{base+4}, v{base+6}
        v_add_f32 v{base}, v{base}, v{base+4}
        """)
    p(f"""
    v_add_f32 v20, v20, v21
    v_add_f32 v22, v22, v23
    v_add_f32 v20, v20, v22
    v_cvt_pk_bf16_f32 v20, v20, v20
    v_lshlrev_b32 v20, 16, v20
    v_mul_f32 v20, s{sL2E}, v20
    v_sub_f32 v20, 0, v20
    v_exp_f32 v20, v20
    v_add_f32 v20, 1.0, v20
    v_rcp_f32 v20, v20
    v_cvt_pk_bf16_f32 v21, v24, v32
    v_cvt_pk_bf16_f32 v20, v20, v20
    v_lshlrev_b32 v20, 16, v20
    v_sub_f32 v22, 1.0, v20
    v_cvt_pk_bf16_f32 v22, v22, v22
    v_lshlrev_b32 v22, 16, v22
    v_lshlrev_b32 v24, 16, v21
    v_and_b32 v32, s{sHI}, v21
    v_mul_f32 v24, v20, v24
    v_mul_f32 v32, v22, v32
    v_cvt_pk_bf16_f32 v21, v24, v32
    v_lshlrev_b32 v24, 16, v21
    v_and_b32 v32, s{sHI}, v21
    v_add_f32 v24, v24, v32
    v_cvt_pk_bf16_f32 v24, v24, v24
    s_lshl_b32 s9, s4, 10
    s_lshl_b32 s8, s5, 6
    s_add_u32 s9, s9, s8
    v_lshlrev_b32 v12, 1, v{vCOL}
    v_add_u32 v12, s9, v12
    buffer_store_short v24, v12, s[{srdK}:{srdK+3}], 0 offen
    """)
    if STAMPS:
        p("s_waitcnt vmcnt(0)")
        stamp(p, 1)
        write_stamps(p, 2, WS_ST + 0x40000, f"s_mov_b32 s{sST+22}, s2")
    p("""
    R_end:
    s_endpgm
    """)
    p.finish()
    return p

def desc(name, vgpr, sgpr):
    acc = (vgpr + 3) // 4 * 4
    return f""".amdhsa_kernel {name}
  .amdhsa_next_free_vgpr {vgpr}
  .amdhsa_next_free_sgpr {sgpr}
  .amdhsa_accum_offset {acc}
  .amdhsa_group_segment_fixed_size 0
  .amdhsa_kernarg_size 104
  .amdhsa_user_sgpr_count 2
  .amdhsa_user_sgpr_kernarg_segment_ptr 1
  .amdhsa_system_sgpr_workgroup_id_x 1
  .amdhsa_float_denorm_mode_32 3
.end_amdhsa_kernel
"""

def gen():
    k1, k2 = NAME + "_kernel", "reduce_kernel"
    out = HEADER
    out += f"; @launch kernel={k1} grid=({NATT if 'noffn' in OPT else NWG},1,1) block=(256,1,1) lds=16384\n"
    out += f"; @launch kernel={k2} grid=(64,1,1) block=(256,1,1) lds=4096\n"
    out += '.amdgcn_target "amdgcn-amd-amdhsa--gfx950"\n.text\n'
    for name, prog in ((k1, kernel1()), (k2, kernel2())):
        out += f".globl {name}\n.p2align 8\n.type {name},@function\n{name}:\n" + prog.text()
    out += '.section .rodata,"a"\n.p2align 6\n' + desc(k1, 256, 100) + ".p2align 6\n" + desc(k2, 64, 100)
    return out

if __name__ == "__main__":
    STAMPS = "stamps" in sys.argv[2:]
    if "nt" in sys.argv[2:]: WPOL = "nt"
    OPT = set(sys.argv[2:])
    open(sys.argv[1], "w").write(gen())
```

```python
import sys
from asmlib import Prog, pad

NAME = "gated_mix__mha_block_cached__geglu_ffn__decode"
HEADER = open("gated_mix__mha_block_cached__geglu_ffn__decode.s.ref").read().split("; Override launch")[0]

NATT = 256
NFFN = 28
NWG = NATT + NFFN
L2E = 0x3FB8AA3B
SCALE = 0x3DB504F3
WS_P, WS_ML, WS_Q = 0, 0x80000, 0x100000
WS_BYTES = 0x140000

sX, sK, sV, sWQ, sWO, sBX, sWG, sWU, sWD, sGW, sOUT, sDBG, sWS = 16, 18, 20, 22, 24, 26, 28, 30, 32, 34, 36, 38, 40
srdK, srdV, srdW, srdX, srdWS = 44, 48, 52, 56, 60
sWAVE, sH, sB, sR = 3, 4, 5, 6
sOFF, sCNT, sL2E, sSCALE, sRET = 8, 9, 10, 11, 12
sT0, sT1, sT2 = 14, 15, 7
sHI = 64
vLANE, vKV0, vKV1, vW = 1, 2, 3, 48
vMASK = 4
vQ = 8
vO = 12
vM, vL = 16, 17
vP = 18
vR = 26
vU = 30
vA = 32
vT = 40
vX = 50
vRING_K, vRING_V, vWA = 64, 96, 128

def srd(p, dst, base, off_lo=None, size=None):
    if off_lo is None:
        p(f"s_mov_b32 s{dst}, s{base}")
        p(f"s_and_b32 s{dst+1}, s{base+1}, 0xffff")
    else:
        p(f"s_add_u32 s{dst}, s{base}, s{off_lo}")
        p(f"s_addc_u32 s{dst+1}, s{base+1}, 0")
        p(f"s_and_b32 s{dst+1}, s{dst+1}, 0xffff")
    p(f"s_mov_b32 s{dst+2}, {size}")
    p(f"s_mov_b32 s{dst+3}, 0x20000")

def r4(b): return f"v[{b}:{b+3}]"

STAMPS = False
WPOL = ""
KVPOL = "nt"
OPT = set()
sST = 70
WS_ST = 0x200000
def stamp(p, k):
    if STAMPS: p(f"s_memrealtime s[{sST+2*k}:{sST+2*k+1}]")
def write_stamps(p, n, base, idx_expr):
    if not STAMPS: return
    p("s_mov_b64 exec, 1")
    p(f"s_getreg_b32 s{sST+20}, hwreg(HW_REG_HW_ID)")
    p(f"s_getreg_b32 s{sST+21}, hwreg(HW_REG_XCC_ID)")
    p("s_waitcnt lgkmcnt(0)")
    p(idx_expr)
    p(f"s_lshl_b32 s{sST+22}, s{sST+22}, 6")
    p(f"s_add_u32 s{sST+22}, s{sST+22}, {base}")
    p(f"v_mov_b32 v60, s{sST+22}")
    p(f"s_mov_b32 s92, s40")
    p(f"s_and_b32 s93, s41, 0xffff")
    p(f"s_mov_b32 s94, 0x400000")
    p(f"s_mov_b32 s95, 0x20000")
    for k in range(n):
        p(f"v_mov_b32 v61, s{sST+2*k}")
        p(f"buffer_store_dword v61, v60, s[92:95], 0 offen offset:{4*k}")
    p(f"v_mov_b32 v61, s{sST+20}")
    p(f"buffer_store_dword v61, v60, s[92:95], 0 offen offset:56")
    p(f"v_mov_b32 v61, s{sST+21}")
    p(f"buffer_store_dword v61, v60, s[92:95], 0 offen offset:60")


def common_prologue(p):
    p(f"""
    s_cmp_ge_u32 s2, {NWG}
    s_cbranch_scc1 L_end
    """)
    stamp(p, 0)
    p(f"""
    s_load_dwordx16 s[16:31], s[0:1], 0
    s_load_dwordx8 s[32:39], s[0:1], 64
    s_load_dwordx2 s[40:41], s[0:1], 96
    v_and_b32 v{vLANE}, 63, v0
    v_lshrrev_b32 v{vT}, 6, v0
    s_mov_b32 s{sL2E}, {hex(L2E)}
    v_readfirstlane_b32 s{sWAVE}, v{vT}
    s_mov_b32 s{sSCALE}, {hex(SCALE)}
    s_mov_b32 s{sHI}, 0xffff0000
    v_and_b32 v{vT}, 1, v{vLANE}
    v_lshlrev_b32 v{vT}, 4, v{vT}
    v_mov_b32 v{vT+1}, 0xffff
    v_lshlrev_b32 v{vT+1}, v{vT}, v{vT+1}
    v_bfe_u32 v{vT+2}, v{vLANE}, 1, 3
    """)
    for j in range(4):
        p(f"v_cmp_eq_u32 vcc, {j}, v{vT+2}")
        p(f"v_cndmask_b32 v{vMASK+j}, 0, v{vT+1}, vcc")
    p(f"""
    v_and_b32 v{vT+3}, 15, v{vLANE}
    v_lshlrev_b32 v{vT+3}, 4, v{vT+3}
    v_lshrrev_b32 v{vT+4}, 4, v{vLANE}
    """)

def proj_routine(p, nwait_after):
    p("L_proj:")
    def mk(t):
        for j in range(4):
            p(f"v_and_b32_dpp v{vA + 4*(t&1) + j}, v{vX + (t >> 4)}, v{vMASK+j} row_newbcast:{t & 15} row_mask:0xf bank_mask:0xf")
    mk(0)
    for t in range(32):
        if t + 1 < 32: mk(t + 1)
        if t % 2 == 0: p(f"s_waitcnt vmcnt({nwait_after + 31 - (t + 1)})")
        p(f"v_mfma_f32_16x16x32_bf16 {r4(vO)}, {r4(vA + 4*(t&1))}, {r4(vWA + 4*t)}, {r4(vO)}")
    p("s_nop 7")
    p(f"s_setpc_b64 s[{sRET}:{sRET+1}]")

def kv_load(p, reg, srdn, t, tag):
    p.vm(f"buffer_load_dwordx4 {r4(reg)}, v{vKV0 + (t >> 2)}, s[{srdn}:{srdn+3}], s{sOFF} offen offset:{(t & 3) * 1024} {KVPOL}", tag)

def body(p, reissue, extra=None):
    for t in range(8):
        if t % 2 == 0: p.wait_vm(("K", t + 1))
        k = vRING_K + 4 * t
        p(f"v_dot2_f32_bf16 v{vP+t}, v{k}, v{vQ}, 0")
        for j in range(1, 4):
            p(f"v_dot2_f32_bf16 v{vP+t}, v{k+j}, v{vQ+j}, v{vP+t}")
        if reissue: kv_load(p, k, srdK, t, ("K", t))
    if extra: extra()
    for a in range(4):
        p(f"v_add_f32_dpp v{vR+a}, v{vP+a}, v{vP+a} row_mirror row_mask:0xf bank_mask:0x3")
    for a in range(4):
        p(f"v_add_f32_dpp v{vR+a}, v{vP+a+4}, v{vP+a+4} row_mirror row_mask:0xf bank_mask:0xc")
    p(f"v_add_f32_dpp v{vU}, v{vR}, v{vR} row_half_mirror row_mask:0xf bank_mask:0x5")
    p(f"v_add_f32_dpp v{vU+1}, v{vR+1}, v{vR+1} row_half_mirror row_mask:0xf bank_mask:0x5")
    p(f"v_add_f32_dpp v{vU}, v{vR+2}, v{vR+2} row_half_mirror row_mask:0xf bank_mask:0xa")
    p(f"v_add_f32_dpp v{vU+1}, v{vR+3}, v{vR+3} row_half_mirror row_mask:0xf bank_mask:0xa")
    for qp in ("[1,0,3,2]", "[2,3,0,1]"):
        for u in range(2):
            p(f"v_add_f32_dpp v{vU+u}, v{vU+u}, v{vU+u} quad_perm:{qp} row_mask:0xf bank_mask:0xf")
    a0, a1, w, mx, neg, al, p0, p1 = vT, vT+1, vT+2, vT+3, vT+4, vT+5, vT+6, vT+7
    p(f"""
    v_cvt_pk_bf16_f32 v{w}, v{vU}, v{vU+1}
    v_lshlrev_b32 v{a0}, 16, v{w}
    v_and_b32 v{a1}, s{sHI}, v{w}
    v_mul_f32 v{a0}, s{sSCALE}, v{a0}
    v_mul_f32 v{a1}, s{sSCALE}, v{a1}
    v_cvt_pk_bf16_f32 v{w}, v{a0}, v{a1}
    v_lshlrev_b32 v{a0}, 16, v{w}
    v_and_b32 v{a1}, s{sHI}, v{w}
    v_max_f32 v{mx}, v{a0}, v{a1}
    v_max_f32_dpp v{mx}, v{mx}, v{mx} row_half_mirror row_mask:0xf bank_mask:0xf
    v_max_f32_dpp v{mx}, v{mx}, v{mx} row_mirror row_mask:0xf bank_mask:0xf
    v_max_f32_dpp v{mx}, v{mx}, v{mx} row_bcast:15 row_mask:0xa bank_mask:0xf
    v_max_f32_dpp v{mx}, v{mx}, v{mx} row_bcast:31 row_mask:0xc bank_mask:0xf
    v_readlane_b32 s{sT0}, v{mx}, 63
    v_max_f32 v{mx}, s{sT0}, v{vM}
    v_mul_f32 v{neg}, s{sL2E}, v{mx}
    v_fma_f32 v{al}, v{vM}, s{sL2E}, -v{neg}
    v_fma_f32 v{p0}, v{a0}, s{sL2E}, -v{neg}
    v_fma_f32 v{p1}, v{a1}, s{sL2E}, -v{neg}
    v_exp_f32 v{al}, v{al}
    v_exp_f32 v{p0}, v{p0}
    v_exp_f32 v{p1}, v{p1}
    v_mov_b32 v{vM}, v{mx}
    v_fma_f32 v{vL}, v{vL}, v{al}, v{p0}
    v_cvt_pk_bf16_f32 v{a0}, v{p0}, v{p0}
    v_cvt_pk_bf16_f32 v{a1}, v{p1}, v{p1}
    v_add_f32 v{vL}, v{vL}, v{p1}
    """)
    for r in range(4):
        p(f"v_mul_f32 v{vO+r}, v{vO+r}, v{al}")
    def mk(t):
        for j in range(4):
            p(f"v_and_b32_dpp v{vA + 4*(t&1) + j}, v{a0 + (t & 1)}, v{vMASK+j} row_newbcast:{4*(t >> 1)} row_mask:0xf bank_mask:0xf")
    mk(0)
    for t in range(8):
        if t + 1 < 8: mk(t + 1)
        if t % 2 == 0: p.wait_vm(("V", t + 1))
        p(f"v_mfma_f32_16x16x32_bf16 {r4(vO)}, {r4(vA + 4*(t&1))}, {r4(vRING_V + 4*t)}, {r4(vO)}")
        if reissue: kv_load(p, vRING_V + 4 * t, srdV, t, ("V", t))

def attention(p):
    p(f"""
    s_and_b32 s{sT0}, s2, 7
    s_lshr_b32 s{sT1}, s2, 3
    s_lshr_b32 s{sH}, s{sT1}, 3
    s_lshl_b32 s{sT0}, s{sT0}, 2
    s_add_u32 s{sH}, s{sH}, s{sT0}
    s_lshr_b32 s{sB}, s{sT1}, 1
    s_and_b32 s{sB}, s{sB}, 3
    s_and_b32 s{sT1}, s{sT1}, 1
    s_lshl_b32 s{sR}, s{sB}, 5
    s_add_u32 s{sR}, s{sR}, s{sH}
    s_lshl_b32 s{sR}, s{sR}, 1
    s_add_u32 s{sR}, s{sR}, s{sT1}
    """)
    srd(p, srdX, sX, None, 4096)
    p(f"""
    s_lshl_b32 s{sT0}, s{sWAVE}, 8
    s_lshl_b32 s{sT1}, s{sB}, 10
    s_add_u32 s{sT0}, s{sT0}, s{sT1}
    v_lshlrev_b32 v{vT}, 1, v{vLANE}
    v_add_u32 v{vT}, s{sT0}, v{vT}
    """)
    p.vm(f"buffer_load_ushort v{vX}, v{vT}, s[{srdX}:{srdX+3}], 0 offen", "x")
    p.vm(f"buffer_load_ushort v{vX+1}, v{vT}, s[{srdX}:{srdX+3}], 0 offen offset:128", "x")
    p(f"s_lshl_b32 s{sT0}, s{sH}, 8")
    p(f"s_sub_u32 s{sT1}, {4 << 20}, s{sT0}")
    srd(p, srdW, sWQ, sT0, f"s{sT1}")
    p(f"""
    s_lshl_b32 s{sT0}, s{sWAVE}, 20
    v_lshlrev_b32 v{vW}, 17, v{vT+4}
    v_add3_u32 v{vW}, v{vW}, v{vT+3}, s{sT0}
    s_mov_b32 s{sOFF}, 0
    """)
    for t in range(32):
        if "nowq" in OPT: p.vm(f"buffer_load_dwordx4 {r4(vWA + 4*t)}, v{vW}, s[{srdW}:{srdW+3}], s{sOFF} offen offset:4095", ("W", t)) if False else p.vm(f"buffer_load_dword v{vWA + 4*t}, v{vLANE}, s[{srdX}:{srdX+3}], 0 offen", ("W", t))
        else: p.vm(f"buffer_load_dwordx4 {r4(vWA + 4*t)}, v{vW}, s[{srdW}:{srdW+3}], s{sOFF} offen {WPOL}", ("W", t))
        if t == 15: p(f"s_add_u32 s{sOFF}, s{sOFF}, {49 * 8192}")
        elif t < 31: p(f"s_add_u32 s{sOFF}, s{sOFF}, 8192")
    p(f"s_lshl_b32 s{sT0}, s{sR}, 20")
    p(f"s_lshr_b32 s{sT1}, s{sR}, 12")
    for (d, b) in ((srdK, sK), (srdV, sV)):
        p(f"s_add_u32 s{d}, s{b}, s{sT0}")
        p(f"s_addc_u32 s{d+1}, s{b+1}, s{sT1}")
        p(f"s_and_b32 s{d+1}, s{d+1}, 0xffff")
        p(f"s_mov_b32 s{d+2}, {1 << 20}")
        p(f"s_mov_b32 s{d+3}, 0x20000")
    p(f"""
    s_lshl_b32 s{sT0}, s{sWAVE}, 13
    v_lshlrev_b32 v{vKV0}, 4, v{vLANE}
    v_add_u32 v{vKV0}, s{sT0}, v{vKV0}
    v_add_u32 v{vKV1}, 4096, v{vKV0}
    s_mov_b32 s{sOFF}, 0
    """)
    for t in range(8): kv_load(p, vRING_K + 4*t, srdK, t, ("K", t))
    for t in range(8): kv_load(p, vRING_V + 4*t, srdV, t, ("V", t))
    p(f"s_mov_b32 s{sOFF}, 32768")
    p(f"""
    s_lshl_b32 s{sT0}, s{sWAVE}, 8
    """)
    p.wait_vm("x")
    p(f"""
    v_lshl_or_b32 v{vX}, v{vX}, 16, v{vX}
    v_lshl_or_b32 v{vX+1}, v{vX+1}, 16, v{vX+1}
    v_mov_b32 v{vO}, 0
    v_mov_b32 v{vO+1}, 0
    v_mov_b32 v{vO+2}, 0
    v_mov_b32 v{vO+3}, 0
    s_nop 1
    s_call_b64 s[{sRET}:{sRET+1}], L_proj
    """)
    p.vmq = [t for t in p.vmq if t[0] != "W"]
    stamp(p, 2)
    p(f"""
    v_lshlrev_b32 v{vT}, 1, v{vT+3}
    v_lshl_add_u32 v{vT+1}, v{vT+4}, 4, v{vT}
    s_lshl_b32 s{sT1}, s{sWAVE}, 9
    v_add_u32 v{vT+1}, s{sT1}, v{vT+1}
    s_mov_b64 exec, 0xffffffff
    ds_write_b128 v{vT+1}, {r4(vO)}
    s_mov_b64 exec, -1
    v_lshlrev_b32 v{vW}, 14, v{vT+4}
    v_add3_u32 v{vW}, v{vW}, v{vT+3}, s{sT0}
    s_lshl_b32 s{sT0}, s{sH}, 17
    s_sub_u32 s{sT1}, {4 << 20}, s{sT0}
    """)
    srd(p, srdW, sWO, sT0, f"s{sT1}")
    p(f"""
    s_waitcnt lgkmcnt(0)
    s_barrier
    """)
    for w in range(4):
        p(f"ds_read_b128 {r4(vWA + 8*w)}, v{vT} offset:{w*512}")
        p(f"ds_read_b128 {r4(vWA + 8*w + 4)}, v{vT} offset:{w*512 + 16}")
    p(f"""
    v_mov_b32 v{vM}, 0xff7fffff
    v_mov_b32 v{vL}, 0
    v_mov_b32 v{vO}, 0
    v_mov_b32 v{vO+1}, 0
    v_mov_b32 v{vO+2}, 0
    v_mov_b32 v{vO+3}, 0
    s_waitcnt lgkmcnt(0)
    """)
    for i in range(8):
        p(f"v_add_f32 v{vWA+i}, v{vWA+i}, v{vWA+8+i}")
        p(f"v_add_f32 v{vWA+16+i}, v{vWA+16+i}, v{vWA+24+i}")
    for i in range(8):
        p(f"v_add_f32 v{vWA+i}, v{vWA+i}, v{vWA+16+i}")
    for j in range(4):
        p(f"v_cvt_pk_bf16_f32 v{vQ+j}, v{vWA+2*j}, v{vWA+2*j+1}")
    stamp(p, 3)
    body(p, True)
    stamp(p, 4)
    p(f"s_add_u32 s{sOFF}, s{sOFF}, 32768")
    def wo_loads():
        for t in range(32):
            u, tt = t >> 4, t & 15
            so = (64 * u + (tt & ~3)) * 1024
            if tt & 3 == 0: p(f"s_mov_b32 s{sT2}, {so}")
            p.vm(f"buffer_load_dwordx4 {r4(vWA + 4*t)}, v{vW}, s[{srdW}:{srdW+3}], s{sT2} offen offset:{(tt & 3) * 1024} {WPOL}", ("W", t))
    body(p, True, extra=None if "nowo" in OPT else wo_loads)
    p(f"s_add_u32 s{sOFF}, s{sOFF}, 32768")
    body(p, True)
    p(f"s_add_u32 s{sOFF}, s{sOFF}, 32768")
    q0 = list(p.vmq)
    assert q0 == [("K", t) for t in range(8)] + [("V", t) for t in range(8)], q0
    p(f"s_mov_b32 s{sCNT}, 28")
    p("L_loop:")
    body(p, True)
    assert p.vmq == q0
    p(f"""
    s_add_u32 s{sOFF}, s{sOFF}, 32768
    s_sub_u32 s{sCNT}, s{sCNT}, 1
    s_cmp_lg_u32 s{sCNT}, 0
    s_cbranch_scc1 L_loop
    """)
    stamp(p, 5)
    body(p, False)
    stamp(p, 6)
    assert p.vmq == []
    p(f"""
    v_add_f32_dpp v{vL}, v{vL}, v{vL} row_half_mirror row_mask:0xf bank_mask:0xf
    v_add_f32_dpp v{vL}, v{vL}, v{vL} row_mirror row_mask:0xf bank_mask:0xf
    v_add_f32_dpp v{vL}, v{vL}, v{vL} row_bcast:15 row_mask:0xa bank_mask:0xf
    v_add_f32_dpp v{vL}, v{vL}, v{vL} row_bcast:31 row_mask:0xc bank_mask:0xf
    v_readlane_b32 s{sT0}, v{vL}, 63
    v_and_b32 v{vT+3}, 15, v{vLANE}
    v_lshrrev_b32 v{vT+4}, 4, v{vLANE}
    v_mov_b32 v{vL}, s{sT0}
    v_lshlrev_b32 v{vT}, 5, v{vT+3}
    v_lshl_add_u32 v{vT+1}, v{vT+4}, 4, v{vT}
    s_lshl_b32 s{sT1}, s{sWAVE}, 9
    s_lshl_b32 s{sT0}, s{sWAVE}, 3
    v_add_u32 v{vT+2}, s{sT1}, v{vT+1}
    v_mov_b32 v{vT+5}, s{sT0}
    s_mov_b64 exec, 0xffffffff
    ds_write_b128 v{vT+2}, {r4(vO)} offset:2048
    s_mov_b64 exec, -1
    ds_write_b64 v{vT+5}, v[{vM}:{vM+1}] offset:4096
    v_lshlrev_b32 v{vT+6}, 2, v{vLANE}
    v_mov_b32 v{vT+5}, 0
    s_waitcnt lgkmcnt(0)
    s_barrier
    ds_read_b128 {r4(vP)}, v{vT+5} offset:4096
    ds_read_b128 {r4(vP+4)}, v{vT+5} offset:4112
    """)
    for w in range(4):
        p(f"ds_read_b32 v{vRING_K+2*w}, v{vT+6} offset:{2048 + w*512}")
        p(f"ds_read_b32 v{vRING_K+2*w+1}, v{vT+6} offset:{2048 + w*512 + 256}")
    m = [vP, vP+2, vP+4, vP+6]; l = [vP+1, vP+3, vP+5, vP+7]
    p(f"""
    s_waitcnt lgkmcnt(8)
    v_max_f32 v{vM}, v{m[0]}, v{m[1]}
    v_max3_f32 v{vM}, v{vM}, v{m[2]}, v{m[3]}
    v_mul_f32 v{vT+7}, s{sL2E}, v{vM}
    """)
    for w in range(4): p(f"v_fma_f32 v{m[w]}, v{m[w]}, s{sL2E}, -v{vT+7}")
    for w in range(4): p(f"v_exp_f32 v{m[w]}, v{m[w]}")
    p(f"v_mul_f32 v{vL}, v{m[0]}, v{l[0]}")
    for w in range(1, 4): p(f"v_fma_f32 v{vL}, v{m[w]}, v{l[w]}, v{vL}")
    p("s_waitcnt lgkmcnt(0)")
    for u in range(2):
        p(f"v_mul_f32 v{vX+u}, v{m[0]}, v{vRING_K+u}")
    for w in range(1, 4):
        for u in range(2):
            p(f"v_fma_f32 v{vX+u}, v{m[w]}, v{vRING_K+2*w+u}, v{vX+u}")
    p(f"""
    v_cvt_pk_bf16_f32 v{vX}, v{vX}, v{vX}
    v_cvt_pk_bf16_f32 v{vX+1}, v{vX+1}, v{vX+1}
    v_mov_b32 v{vO}, 0
    v_mov_b32 v{vO+1}, 0
    v_mov_b32 v{vO+2}, 0
    v_mov_b32 v{vO+3}, 0
    s_nop 1
    s_call_b64 s[{sRET}:{sRET+1}], L_proj
    """)
    srd(p, srdWS, sWS, None, WS_BYTES)
    p(f"""
    s_lshl_b32 s{sT0}, s{sR}, 11
    s_lshl_b32 s{sT1}, s{sWAVE}, 9
    s_add_u32 s{sT0}, s{sT0}, s{sT1}
    v_add_u32 v{vT+1}, s{sT0}, v{vT+1}
    s_mov_b64 exec, 0xffffffff
    buffer_store_dwordx4 {r4(vO)}, v{vT+1}, s[{srdWS}:{srdWS+3}], 0 offen
    s_mov_b64 exec, 1
    s_lshl_b32 s{sT0}, s{sR}, 3
    s_add_u32 s{sT0}, s{sT0}, {WS_ML}
    v_mov_b32 v{vT+2}, s{sT0}
    s_cmp_lg_u32 s{sWAVE}, 0
    s_cbranch_scc1 L_fin
    buffer_store_dwordx2 v[{vM}:{vM+1}], v{vT+2}, s[{srdWS}:{srdWS+3}], 0 offen
    s_branch L_fin
    """)

def ffn(p):
    sJ = sH
    vXP = 50
    vSEL = 4
    vD0, vD1 = 12, 16
    vAD = 20
    vWD = 64
    p.vmq = []
    p("L_ffn:")
    if "prio" in OPT: p("s_setprio 3")
    if "ffnexit" in OPT: p("s_branch L_fin")
    p(f"s_sub_u32 s{sJ}, s2, {NATT}")
    srd(p, srdX, sX, None, 4096)
    p(f"""
    s_lshl_b32 s{sT0}, s{sWAVE}, 8
    v_lshlrev_b32 v{vT}, 1, v{vLANE}
    v_add_u32 v{vT}, s{sT0}, v{vT}
    v_add_u32 v{vT+1}, 2048, v{vT}
    """)
    xr = 22
    for b in range(4):
        for u in range(2):
            p.vm(f"buffer_load_ushort v{xr + 2*b + u}, v{vT + (b >> 1)}, s[{srdX}:{srdX+3}], 0 offen offset:{(b & 1) * 1024 + u * 128}", "x")
    p(f"""
    v_and_b32 v{vT+5}, 8, v{vLANE}
    v_cmp_eq_u32 vcc, 0, v{vT+5}
    v_mov_b32 v{vAD}, s{sWU}
    v_mov_b32 v{vAD+1}, s{sWU+1}
    v_mov_b32 v{vT+6}, s{sWG}
    v_mov_b32 v{vT+7}, s{sWG+1}
    v_cndmask_b32 v{vAD}, v{vAD}, v{vT+6}, vcc
    v_cndmask_b32 v{vAD+1}, v{vAD+1}, v{vT+7}, vcc
    s_lshl_b32 s{sT0}, s{sWAVE}, 3
    v_add_u32 v{vT+5}, s{sT0}, v{vT+4}
    v_mul_u32_u24 v{vT+5}, {16 * 3584}, v{vT+5}
    v_and_b32 v{vT+6}, 7, v{vLANE}
    v_lshlrev_b32 v{vT+6}, 4, v{vT+6}
    s_lshl_b32 s{sT0}, s{sJ}, 7
    v_add3_u32 v{vT+5}, v{vT+5}, v{vT+6}, s{sT0}
    v_add_co_u32 v{vAD}, vcc, v{vAD}, v{vT+5}
    v_addc_co_u32 v{vAD+1}, vcc, 0, v{vAD+1}, vcc
    """)
    for t in range(32):
        p.vm(f"global_load_dwordx4 {r4(vWA + 4*t)}, v[{vAD}:{vAD+1}], off {WPOL}", ("W", t))
        if t < 31:
            step = 49 * 3584 if t == 15 else 3584
            p(f"v_add_co_u32 v{vAD}, vcc, {step}, v{vAD}")
            p(f"v_addc_co_u32 v{vAD+1}, vcc, 0, v{vAD+1}, vcc")
    p(f"s_lshl_b32 s{sT0}, s{sJ}, 16")
    p(f"s_sub_u32 s{sT1}, {1792 * 1024}, s{sT0}")
    srd(p, srdW, sWD, sT0, f"s{sT1}")
    p(f"""
    s_lshl_b32 s{sT0}, s{sWAVE}, 8
    v_lshlrev_b32 v{vW}, 14, v{vT+4}
    v_add3_u32 v{vW}, v{vW}, v{vT+3}, s{sT0}
    """)
    for t in range(16):
        if t & 3 == 0: p(f"s_mov_b32 s{sT2}, {(t & ~3) * 1024}")
        p.vm(f"buffer_load_dwordx4 {r4(vWD + 4*t)}, v{vW}, s[{srdW}:{srdW+3}], s{sT2} offen offset:{(t & 3) * 1024} {WPOL}", ("D", t))
    p(f"""
    v_and_b32 v{vT+5}, 8, v{vLANE}
    v_mov_b32 v{vT+6}, 0x0100
    v_mov_b32 v{vT+7}, 0x0302
    v_cmp_eq_u32 vcc, 0, v{vT+5}
    v_cndmask_b32 v{vT+6}, v{vT+7}, v{vT+6}, vcc
    v_lshlrev_b32 v{vT+7}, 16, v{vT+6}
    v_or_b32 v{vT+7}, 0x0c0c, v{vT+7}
    v_or_b32 v{vT+6}, 0x0c0c0000, v{vT+6}
    v_and_b32 v{vT+5}, 1, v{vLANE}
    v_cmp_eq_u32 vcc, 0, v{vT+5}
    v_cndmask_b32 v{vT+6}, v{vT+7}, v{vT+6}, vcc
    v_bfe_u32 v{vT+5}, v{vLANE}, 1, 2
    v_mov_b32 v{vT+7}, 0x0c0c0c0c
    """)
    for j in range(4):
        p(f"v_cmp_eq_u32 vcc, {j}, v{vT+5}")
        p(f"v_cndmask_b32 v{vSEL+j}, v{vT+7}, v{vT+6}, vcc")
    stamp(p, 2)
    p.wait_vm("x")
    stamp(p, 3)
    for pr in range(2):
        for u in range(2):
            p(f"v_lshl_or_b32 v{vXP + 2*pr + u}, v{xr + 2*(2*pr+1) + u}, 16, v{xr + 2*(2*pr) + u}")
    for r in range(8): p(f"v_mov_b32 v{vD0 + r}, 0")
    vBC = 30
    def step(t, wreg, src_of_pair, lane):
        for pr in range(2):
            p(f"v_mov_b32_dpp v{vBC+pr}, v{src_of_pair(pr)} row_newbcast:{lane} row_mask:0xf bank_mask:0xf")
        for pr in range(2):
            for j in range(4):
                p(f"v_perm_b32 v{vA + 4*pr + j}, v{vBC+pr}, v{vBC+pr}, v{vSEL+j}")
        return
    for t in range(32):
        step(t, None, lambda pr: vXP + 2*pr + (t >> 4), t & 15)
        if t % 2 == 0: p.wait_vm(("W", t + 1))
        p(f"v_mfma_f32_16x16x32_bf16 {r4(vD0)}, {r4(vA)}, {r4(vWA + 4*t)}, {r4(vD0)}")
        p(f"v_mfma_f32_16x16x32_bf16 {r4(vD1)}, {r4(vA+4)}, {r4(vWA + 4*t)}, {r4(vD1)}")
    stamp(p, 4)
    p(f"""
    s_lshl_b32 s{sT0}, s{sWAVE}, 11
    v_lshlrev_b32 v{vT}, 4, v{vLANE}
    v_add_u32 v{vT}, s{sT0}, v{vT}
    ds_write_b128 v{vT}, {r4(vD0)}
    ds_write_b128 v{vT}, {r4(vD1)} offset:1024
    """)
    p(f"""
    s_lshr_b32 s{sT0}, s{sWAVE}, 1
    s_lshl_b32 s{sT0}, s{sT0}, 10
    s_and_b32 s{sT1}, s{sWAVE}, 1
    s_lshl_b32 s{sT2}, s{sT1}, 9
    s_add_u32 s{sT0}, s{sT0}, s{sT2}
    v_bfe_u32 v{vT+1}, v{vLANE}, 2, 1
    v_lshlrev_b32 v{vT+1}, 8, v{vT+1}
    v_lshrrev_b32 v{vT+2}, 3, v{vLANE}
    v_lshl_add_u32 v{vT+1}, v{vT+2}, 4, v{vT+1}
    v_and_b32 v{vT+2}, 3, v{vLANE}
    v_lshl_add_u32 v{vT+1}, v{vT+2}, 2, v{vT+1}
    v_add_u32 v{vT+1}, s{sT0}, v{vT+1}
    s_waitcnt lgkmcnt(0)
    s_barrier
    """)
    for w in range(4):
        p(f"ds_read_b32 v{vP+w}, v{vT+1} offset:{w*2048}")
        p(f"ds_read_b32 v{vP+4+w}, v{vT+1} offset:{w*2048 + 128}")
    h1, h2, t0, t1 = vP, vP+4, vP+1, vP+2
    C0 = 0x3F4C422A
    C1 = 0x3D372713
    p(f"""
    s_waitcnt lgkmcnt(0)
    v_add_f32 v{vP}, v{vP}, v{vP+1}
    v_add_f32 v{vP+2}, v{vP+2}, v{vP+3}
    v_add_f32 v{vP+4}, v{vP+4}, v{vP+5}
    v_add_f32 v{vP+6}, v{vP+6}, v{vP+7}
    v_add_f32 v{h1}, v{vP}, v{vP+2}
    v_add_f32 v{h2}, v{vP+4}, v{vP+6}
    v_cvt_pk_bf16_f32 v{t0}, v{h1}, v{h2}
    v_lshlrev_b32 v{h1}, 16, v{t0}
    v_and_b32 v{h2}, s{sHI}, v{t0}
    v_mul_f32 v{t0}, v{h1}, v{h1}
    v_mul_f32 v{t0}, v{t0}, v{h1}
    v_mov_b32 v{t1}, {hex(C1)}
    v_fma_f32 v{t0}, v{t0}, v{t1}, v{h1}
    v_mul_f32 v{t0}, {hex(C0)}, v{t0}
    v_mul_f32 v{t0}, s{sL2E}, v{t0}
    v_mul_f32 v{t0}, -2.0, v{t0}
    v_exp_f32 v{t0}, v{t0}
    v_add_f32 v{t0}, 1.0, v{t0}
    v_rcp_f32 v{t0}, v{t0}
    v_mul_f32 v{t0}, v{h1}, v{t0}
    v_cvt_pk_bf16_f32 v{t0}, v{t0}, v{t0}
    v_lshlrev_b32 v{t0}, 16, v{t0}
    v_mul_f32 v{t0}, v{t0}, v{h2}
    v_cvt_pk_bf16_f32 v{t0}, v{t0}, v{t0}
    s_lshr_b32 s{sT0}, s{sWAVE}, 1
    s_lshl_b32 s{sT0}, s{sT0}, 8
    s_lshl_b32 s{sT1}, s{sT1}, 1
    s_add_u32 s{sT0}, s{sT0}, s{sT1}
    v_lshlrev_b32 v{vT+2}, 2, v{vLANE}
    v_add_u32 v{vT+3}, s{sT0}, v{vT+2}
    ds_write_b16 v{vT+3}, v{t0} offset:8192
    s_waitcnt lgkmcnt(0)
    s_barrier
    ds_read_b32 v{vXP}, v{vT+2} offset:8192
    ds_read_b32 v{vXP+1}, v{vT+2} offset:8448
    """)
    for r in range(8): p(f"v_mov_b32 v{vD0 + r}, 0")
    p("s_waitcnt lgkmcnt(0)")
    stamp(p, 5)
    for t in range(16):
        step(t, None, lambda pr: vXP + pr, t)
        if t % 2 == 0: p.wait_vm(("D", t + 1))
        p(f"v_mfma_f32_16x16x32_bf16 {r4(vD0)}, {r4(vA)}, {r4(vWD + 4*t)}, {r4(vD0)}")
        p(f"v_mfma_f32_16x16x32_bf16 {r4(vD1)}, {r4(vA+4)}, {r4(vWD + 4*t)}, {r4(vD1)}")
    stamp(p, 6)
    srd(p, srdWS, sWS, None, WS_BYTES)
    p(f"""
    s_lshl_b32 s{sT0}, s{sJ}, 13
    s_lshl_b32 s{sT1}, s{sWAVE}, 9
    s_add_u32 s{sT0}, s{sT0}, s{sT1}
    s_add_u32 s{sT0}, s{sT0}, {WS_Q}
    v_lshrrev_b32 v{vT}, 5, v{vLANE}
    v_lshlrev_b32 v{vT}, 11, v{vT}
    v_bfe_u32 v{vT+1}, v{vLANE}, 4, 1
    v_lshl_add_u32 v{vT}, v{vT+1}, 4, v{vT}
    v_and_b32 v{vT+1}, 15, v{vLANE}
    v_lshl_add_u32 v{vT}, v{vT+1}, 5, v{vT}
    v_add_u32 v{vT}, s{sT0}, v{vT}
    s_mov_b32 s{sT2}, 4096
    buffer_store_dwordx4 {r4(vD0)}, v{vT}, s[{srdWS}:{srdWS+3}], 0 offen
    buffer_store_dwordx4 {r4(vD1)}, v{vT}, s[{srdWS}:{srdWS+3}], s{sT2} offen
    """)

def kernel1():
    p = Prog()
    common_prologue(p)
    p(f"""
    s_waitcnt lgkmcnt(0)
    """)
    stamp(p, 1)
    p(f"""
    s_cmp_ge_u32 s2, {NATT}
    s_cbranch_scc1 L_ffn
    """)
    attention(p)
    proj_routine(p, 16)
    ffn(p)
    p("L_fin:")
    if STAMPS:
        stamp(p, 7)
        p("s_waitcnt vmcnt(0)")
        stamp(p, 8)
        write_stamps(p, 9, WS_ST, f"s_lshl_b32 s{sST+22}, s2, 2\ns_add_u32 s{sST+22}, s{sST+22}, s{sWAVE}")
    p("L_end:")
    p("s_endpgm")
    p.finish()
    p.check_loop("L_loop", "s_cbranch_scc1 L_loop")
    return p

def kernel2():
    p = Prog()
    vCOL, vG = 1, 2
    p(f"""
    s_cmp_ge_u32 s2, 64
    s_cbranch_scc1 R_end
    """)
    stamp(p, 0)
    p(f"""
    s_load_dwordx2 s[16:17], s[0:1], 0
    s_load_dwordx4 s[36:39], s[0:1], 72
    s_load_dwordx2 s[40:41], s[0:1], 96
    v_and_b32 v{vCOL}, 31, v0
    v_lshrrev_b32 v{vG}, 5, v0
    s_lshr_b32 s4, s2, 4
    s_and_b32 s5, s2, 15
    s_mov_b32 s{sL2E}, {hex(L2E)}
    s_mov_b32 s{sHI}, 0xffff0000
    s_waitcnt lgkmcnt(0)
    """)
    srd(p, srdWS, 40, None, WS_BYTES)
    srd(p, srdX, 16, None, 4096)
    srd(p, srdW, 36, None, 1024)
    srd(p, srdK, 38, None, 4096)
    p(f"""
    s_lshl_b32 s6, s4, 6
    v_lshl_add_u32 v3, v{vG}, 3, s6
    v_lshlrev_b32 v4, 11, v3
    s_lshl_b32 s7, s5, 7
    v_lshl_add_u32 v5, v{vCOL}, 2, s7
    v_add_u32 v4, v4, v5
    v_lshlrev_b32 v6, 3, v3
    v_add_u32 v6, {WS_ML}, v6
    """)
    for k in range(8):
        p(f"s_mov_b32 s8, {k * 2048}")
        p.vm(f"buffer_load_dword v{16+k}, v4, s[{srdWS}:{srdWS+3}], s8 offen", "P")
    for i in range(4):
        p.vm(f"buffer_load_dwordx4 v[{24+4*i}:{27+4*i}], v6, s[{srdWS}:{srdWS+3}], 0 offen offset:{16*i}", "ML")
    p(f"""
    s_add_u32 s48, s40, {WS_Q}
    s_addc_u32 s49, s41, 0
    s_and_b32 s49, s49, 0xffff
    s_mov_b32 s50, {NFFN * 8192}
    s_mov_b32 s51, 0x20000
    s_lshl_b32 s9, s4, 11
    v_lshlrev_b32 v7, 15, v{vG}
    v_add3_u32 v7, v7, v5, s9
    """)
    for i in range(4):
        p(f"s_mov_b32 s8, {i * 8192}")
        p.vm(f"buffer_load_dword v{40+i}, v7, s[48:51], s8 offen", "Q")
    p(f"""
    s_lshl_b32 s9, s4, 10
    v_lshlrev_b32 v8, 2, v0
    v_add_u32 v9, s9, v8
    """)
    p.vm(f"buffer_load_dword v44, v9, s[{srdX}:{srdX+3}], 0 offen", "G")
    p.vm(f"buffer_load_dword v45, v8, s[{srdW}:{srdW+3}], 0 offen", "G")
    p.wait_vm("ML")
    p("v_mov_b32 v10, 0")
    for i in range(4):
        m0, l0, m1, l1 = 24+4*i, 25+4*i, 26+4*i, 27+4*i
        p(f"""
        v_max_f32 v11, v{m0}, v{m1}
        v_sub_f32 v{m0}, v{m0}, v11
        v_sub_f32 v{m1}, v{m1}, v11
        v_mul_f32 v{m0}, s{sL2E}, v{m0}
        v_mul_f32 v{m1}, s{sL2E}, v{m1}
        v_exp_f32 v{m0}, v{m0}
        v_exp_f32 v{m1}, v{m1}
        v_mul_f32 v12, v{m0}, v{l0}
        v_fma_f32 v12, v{m1}, v{l1}, v12
        v_rcp_f32 v12, v12
        v_mul_f32 v13, v{m0}, v{16+2*i}
        v_fma_f32 v13, v{m1}, v{17+2*i}, v13
        v_fma_f32 v10, v13, v12, v10
        """)
    p.wait_vm("Q")
    p(f"""
    v_add_f32 v40, v40, v41
    v_add_f32 v42, v42, v43
    v_add_f32 v11, v40, v42
    v_lshlrev_b32 v12, 2, v0
    ds_write_b32 v12, v10
    ds_write_b32 v12, v11 offset:1024
    """)
    p.wait_vm("G")
    p(f"""
    v_lshlrev_b32 v46, 16, v44
    v_and_b32 v47, s{sHI}, v44
    v_lshlrev_b32 v48, 16, v45
    v_and_b32 v49, s{sHI}, v45
    v_mul_f32 v46, v46, v48
    v_mul_f32 v47, v47, v49
    v_cvt_pk_bf16_f32 v46, v46, v47
    v_lshlrev_b32 v47, 16, v46
    v_and_b32 v46, s{sHI}, v46
    v_add_f32 v46, v46, v47
    v_add_f32_dpp v46, v46, v46 quad_perm:[1,0,3,2] row_mask:0xf bank_mask:0xf
    v_add_f32_dpp v46, v46, v46 quad_perm:[2,3,0,1] row_mask:0xf bank_mask:0xf
    v_add_f32_dpp v46, v46, v46 row_half_mirror row_mask:0xf bank_mask:0xf
    v_add_f32_dpp v46, v46, v46 row_mirror row_mask:0xf bank_mask:0xf
    v_add_f32_dpp v46, v46, v46 row_bcast:15 row_mask:0xa bank_mask:0xf
    v_add_f32_dpp v46, v46, v46 row_bcast:31 row_mask:0xc bank_mask:0xf
    v_readlane_b32 s9, v46, 63
    v_lshrrev_b32 v47, 6, v0
    v_lshlrev_b32 v47, 2, v47
    v_mov_b32 v46, s9
    ds_write_b32 v47, v46 offset:2048
    s_waitcnt lgkmcnt(0)
    s_barrier
    v_cmp_gt_u32 vcc, 32, v0
    s_and_saveexec_b64 s[12:13], vcc
    s_cbranch_execz R_end
    v_lshlrev_b32 v12, 2, v{vCOL}
    v_mov_b32 v13, 0
    ds_read_b128 v[20:23], v13 offset:2048
    """)
    for g in range(8):
        p(f"ds_read_b32 v{24+g}, v12 offset:{g*128}")
        p(f"ds_read_b32 v{32+g}, v12 offset:{1024 + g*128}")
    p("s_waitcnt lgkmcnt(0)")
    for base in (24, 32):
        p(f"""
        v_add_f32 v{base}, v{base}, v{base+1}
        v_add_f32 v{base+2}, v{base+2}, v{base+3}
        v_add_f32 v{base+4}, v{base+4}, v{base+5}
        v_add_f32 v{base+6}, v{base+6}, v{base+7}
        v_add_f32 v{base}, v{base}, v{base+2}
        v_add_f32 v{base+4}, v{base+4}, v{base+6}
        v_add_f32 v{base}, v{base}, v{base+4}
        """)
    p(f"""
    v_add_f32 v20, v20, v21
    v_add_f32 v22, v22, v23
    v_add_f32 v20, v20, v22
    v_cvt_pk_bf16_f32 v20, v20, v20
    v_lshlrev_b32 v20, 16, v20
    v_mul_f32 v20, s{sL2E}, v20
    v_sub_f32 v20, 0, v20
    v_exp_f32 v20, v20
    v_add_f32 v20, 1.0, v20
    v_rcp_f32 v20, v20
    v_cvt_pk_bf16_f32 v21, v24, v32
    v_cvt_pk_bf16_f32 v20, v20, v20
    v_lshlrev_b32 v20, 16, v20
    v_sub_f32 v22, 1.0, v20
    v_cvt_pk_bf16_f32 v22, v22, v22
    v_lshlrev_b32 v22, 16, v22
    v_lshlrev_b32 v24, 16, v21
    v_and_b32 v32, s{sHI}, v21
    v_mul_f32 v24, v20, v24
    v_mul_f32 v32, v22, v32
    v_cvt_pk_bf16_f32 v21, v24, v32
    v_lshlrev_b32 v24, 16, v21
    v_and_b32 v32, s{sHI}, v21
    v_add_f32 v24, v24, v32
    v_cvt_pk_bf16_f32 v24, v24, v24
    s_lshl_b32 s9, s4, 10
    s_lshl_b32 s8, s5, 6
    s_add_u32 s9, s9, s8
    v_lshlrev_b32 v12, 1, v{vCOL}
    v_add_u32 v12, s9, v12
    buffer_store_short v24, v12, s[{srdK}:{srdK+3}], 0 offen
    """)
    if STAMPS:
        p("s_waitcnt vmcnt(0)")
        stamp(p, 1)
        write_stamps(p, 2, WS_ST + 0x40000, f"s_mov_b32 s{sST+22}, s2")
    p("""
    R_end:
    s_endpgm
    """)
    p.finish()
    return p

def desc(name, vgpr, sgpr):
    acc = (vgpr + 3) // 4 * 4
    return f""".amdhsa_kernel {name}
  .amdhsa_next_free_vgpr {vgpr}
  .amdhsa_next_free_sgpr {sgpr}
  .amdhsa_accum_offset {acc}
  .amdhsa_group_segment_fixed_size 0
  .amdhsa_kernarg_size 104
  .amdhsa_user_sgpr_count 2
  .amdhsa_user_sgpr_kernarg_segment_ptr 1
  .amdhsa_system_sgpr_workgroup_id_x 1
  .amdhsa_float_denorm_mode_32 3
.end_amdhsa_kernel
"""

def gen():
    k1, k2 = NAME + "_kernel", "reduce_kernel"
    out = HEADER
    out += f"; @launch kernel={k1} grid=({NATT if 'noffn' in OPT else NWG},1,1) block=(256,1,1) lds=16384\n"
    out += f"; @launch kernel={k2} grid=(64,1,1) block=(256,1,1) lds=4096\n"
    out += '.amdgcn_target "amdgcn-amd-amdhsa--gfx950"\n.text\n'
    for name, prog in ((k1, kernel1()), (k2, kernel2())):
        out += f".globl {name}\n.p2align 8\n.type {name},@function\n{name}:\n" + prog.text()
    out += '.section .rodata,"a"\n.p2align 6\n' + desc(k1, 256, 100) + ".p2align 6\n" + desc(k2, 64, 100)
    return out

if __name__ == "__main__":
    STAMPS = "stamps" in sys.argv[2:]
    if "nt" in sys.argv[2:]: WPOL = "nt"
    OPT = set(sys.argv[2:])
    if "kvdef" in OPT: KVPOL = ""
    if "kvsc1" in OPT: KVPOL = "sc1"
    if "kvsc1nt" in OPT: KVPOL = "sc1 nt"
    if "kvsc01nt" in OPT: KVPOL = "sc0 sc1 nt"
    open(sys.argv[1], "w").write(gen())
```

```python
import sys
from asmlib import Prog

NAME = "gated_mix__mha_block_cached__geglu_ffn__decode"
HEADER = open("gated_mix__mha_block_cached__geglu_ffn__decode.s.ref").read().split("; Override launch")[0]

NATT = 256
NFFN = 28
L2E = 0x3FB8AA3B
SCALE = 0x3DB504F3
WS_P, WS_ML, WS_Q = 0, 0x80000, 0x100000
WS_BYTES = 0x140000
WS_ST = 0x200000
SPIN_MAX = 1 << 22

class O:
    stamps = False
    wpol = ""
    kvpol = "nt"
    ffn_even = False
    prio = True
    noffn = False
    sleep = 16

sX, sK, sV, sWQ, sWO, sBX, sWG, sWU, sWD, sGW, sOUT, sDBG, sWS = 16, 18, 20, 22, 24, 26, 28, 30, 32, 34, 36, 38, 40
srdK, srdV, srdW, srdX, srdWS, srdD = 44, 48, 52, 56, 60, 64
sWAVE, sH, sB, sR = 3, 4, 5, 6
sOFF, sCNT, sL2E, sSCALE, sRET = 8, 9, 10, 11, 12
sT0, sT1, sT2 = 14, 15, 7
sHI, sOFF1, sOFF2, sSPIN = 68, 69, 42, 43
sST = 70
vLANE, vKV0, vKV1 = 1, 2, 3
vMASK, vQ, vO = 4, 8, 12
vM, vL = 16, 17
vP, vR, vU, vA, vT = 18, 26, 30, 32, 40
vW, vWO, vX = 48, 49, 50
vG = 52
BANK_A, BANK_B, BANK_C = 64, 128, 192
vWA = 128

def nwg(): return NATT if O.noffn else NATT + (2 * NFFN if O.ffn_even else NFFN)

def srd(p, dst, base, off_lo=None, size=None):
    if off_lo is None:
        p(f"s_mov_b32 s{dst}, s{base}")
        p(f"s_and_b32 s{dst+1}, s{base+1}, 0xffff")
    else:
        p(f"s_add_u32 s{dst}, s{base}, {off_lo}")
        p(f"s_addc_u32 s{dst+1}, s{base+1}, 0")
        p(f"s_and_b32 s{dst+1}, s{dst+1}, 0xffff")
    p(f"s_mov_b32 s{dst+2}, {size}")
    p(f"s_mov_b32 s{dst+3}, 0x20000")

def r4(b): return f"v[{b}:{b+3}]"

def stamp(p, k):
    if O.stamps: p(f"s_memrealtime s[{sST+2*k}:{sST+2*k+1}]")

def write_stamps(p, n):
    if not O.stamps: return
    p("s_mov_b64 exec, 1")
    p(f"s_getreg_b32 s{sST+22}, hwreg(HW_REG_HW_ID)")
    p(f"s_getreg_b32 s{sST+23}, hwreg(HW_REG_XCC_ID)")
    p("s_waitcnt lgkmcnt(0)")
    p(f"s_lshl_b32 s{sST+24}, s2, 2")
    p(f"s_add_u32 s{sST+24}, s{sST+24}, s{sWAVE}")
    p(f"s_lshl_b32 s{sST+24}, s{sST+24}, 6")
    p(f"s_add_u32 s{sST+24}, s{sST+24}, {WS_ST}")
    p(f"v_mov_b32 v60, s{sST+24}")
    p("s_mov_b32 s96, s40")
    p("s_and_b32 s97, s41, 0xffff")
    p("s_mov_b32 s98, 0x400000")
    p("s_mov_b32 s99, 0x20000")
    for k in range(n):
        p(f"v_mov_b32 v61, s{sST+2*k}")
        p(f"buffer_store_dword v61, v60, s[96:99], 0 offen offset:{4*k}")
    p(f"v_mov_b32 v61, s{sST+22}")
    p("buffer_store_dword v61, v60, s[96:99], 0 offen offset:56")
    p(f"v_mov_b32 v61, s{sST+23}")
    p("buffer_store_dword v61, v60, s[96:99], 0 offen offset:60")

def common_prologue(p):
    p(f"""
    s_cmp_ge_u32 s2, {nwg()}
    s_cbranch_scc1 L_end
    """)
    stamp(p, 0)
    p(f"""
    s_load_dwordx16 s[16:31], s[0:1], 0
    s_load_dwordx8 s[32:39], s[0:1], 64
    s_load_dwordx2 s[40:41], s[0:1], 96
    v_and_b32 v{vLANE}, 63, v0
    v_lshrrev_b32 v{vT}, 6, v0
    s_mov_b32 s{sL2E}, {hex(L2E)}
    v_readfirstlane_b32 s{sWAVE}, v{vT}
    s_mov_b32 s{sSCALE}, {hex(SCALE)}
    s_mov_b32 s{sHI}, 0xffff0000
    v_and_b32 v{vT}, 1, v{vLANE}
    v_lshlrev_b32 v{vT}, 4, v{vT}
    v_mov_b32 v{vT+1}, 0xffff
    v_lshlrev_b32 v{vT+1}, v{vT}, v{vT+1}
    v_bfe_u32 v{vT+2}, v{vLANE}, 1, 3
    """)
    for j in range(4):
        p(f"v_cmp_eq_u32 vcc, {j}, v{vT+2}")
        p(f"v_cndmask_b32 v{vMASK+j}, 0, v{vT+1}, vcc")
    p(f"""
    v_and_b32 v{vT+3}, 15, v{vLANE}
    v_lshlrev_b32 v{vT+3}, 4, v{vT+3}
    v_lshrrev_b32 v{vT+4}, 4, v{vLANE}
    """)

def kv_load(p, reg, isv, t, soff, tag):
    d = srdV if isv else srdK
    p.vm(f"buffer_load_dwordx4 {r4(reg)}, v{vKV0 + (t >> 2)}, s[{d}:{d+3}], s{soff} offen offset:{(t & 3) * 1024} {O.kvpol}", tag)

def wo_load(p, t):
    u, tt = t >> 4, t & 15
    if tt & 3 == 0: p(f"s_mov_b32 s{sT2}, {(64 * u + (tt & ~3)) * 1024}")
    p.vm(f"buffer_load_dwordx4 {r4(vWA + 4*t)}, v{vWO}, s[{srdW}:{srdW+3}], s{sT2} offen offset:{(tt & 3) * 1024} {O.wpol}", ("W", t))

def proj_routine(p):
    p("L_proj:")
    def mk(t):
        for j in range(4):
            p(f"v_and_b32_dpp v{vA + 4*(t&1) + j}, v{vX + (t >> 4)}, v{vMASK+j} row_newbcast:{t & 15} row_mask:0xf bank_mask:0xf")
    mk(0)
    for t in range(32):
        if t + 1 < 32: mk(t + 1)
        if t % 2 == 0: p.wait_vm(("W", t + 1))
        p(f"v_mfma_f32_16x16x32_bf16 {r4(vO)}, {r4(vA + 4*(t&1))}, {r4(vWA + 4*t)}, {r4(vO)}")
        bank = "B" if t < 16 else "C"
        isv = (t >> 3) & 1
        kv_load(p, vWA + 4*t, isv, t & 7, sOFF1 if t < 16 else sOFF2, (bank, "V" if isv else "K", t & 7))
    p("s_nop 7")
    p(f"s_setpc_b64 s[{sRET}:{sRET+1}]")

def body(p, bank, refill, pre=None):
    base = {"A": BANK_A, "B": BANK_B, "C": BANK_C}[bank]
    kb, vb = base, base + 32
    if pre: pre()
    for t in range(8):
        if t % 2 == 0: p.wait_vm((bank, "K", t + 1))
        k = kb + 4 * t
        p(f"v_dot2_f32_bf16 v{vP+t}, v{k}, v{vQ}, 0")
        for j in range(1, 4):
            p(f"v_dot2_f32_bf16 v{vP+t}, v{k+j}, v{vQ+j}, v{vP+t}")
        refill(0, t)
    for a in range(4):
        p(f"v_add_f32_dpp v{vR+a}, v{vP+a}, v{vP+a} row_mirror row_mask:0xf bank_mask:0x3")
    for a in range(4):
        p(f"v_add_f32_dpp v{vR+a}, v{vP+a+4}, v{vP+a+4} row_mirror row_mask:0xf bank_mask:0xc")
    p(f"v_add_f32_dpp v{vU}, v{vR}, v{vR} row_half_mirror row_mask:0xf bank_mask:0x5")
    p(f"v_add_f32_dpp v{vU+1}, v{vR+1}, v{vR+1} row_half_mirror row_mask:0xf bank_mask:0x5")
    p(f"v_add_f32_dpp v{vU}, v{vR+2}, v{vR+2} row_half_mirror row_mask:0xf bank_mask:0xa")
    p(f"v_add_f32_dpp v{vU+1}, v{vR+3}, v{vR+3} row_half_mirror row_mask:0xf bank_mask:0xa")
    for qp in ("[1,0,3,2]", "[2,3,0,1]"):
        for u in range(2):
            p(f"v_add_f32_dpp v{vU+u}, v{vU+u}, v{vU+u} quad_perm:{qp} row_mask:0xf bank_mask:0xf")
    a0, a1, w, mx, neg, al, p0, p1 = vT, vT+1, vT+2, vT+3, vT+4, vT+5, vT+6, vT+7
    p(f"""
    v_cvt_pk_bf16_f32 v{w}, v{vU}, v{vU+1}
    v_lshlrev_b32 v{a0}, 16, v{w}
    v_and_b32 v{a1}, s{sHI}, v{w}
    v_mul_f32 v{a0}, s{sSCALE}, v{a0}
    v_mul_f32 v{a1}, s{sSCALE}, v{a1}
    v_cvt_pk_bf16_f32 v{w}, v{a0}, v{a1}
    v_lshlrev_b32 v{a0}, 16, v{w}
    v_and_b32 v{a1}, s{sHI}, v{w}
    v_max_f32 v{mx}, v{a0}, v{a1}
    v_max_f32_dpp v{mx}, v{mx}, v{mx} row_half_mirror row_mask:0xf bank_mask:0xf
    v_max_f32_dpp v{mx}, v{mx}, v{mx} row_mirror row_mask:0xf bank_mask:0xf
    v_max_f32_dpp v{mx}, v{mx}, v{mx} row_bcast:15 row_mask:0xa bank_mask:0xf
    v_max_f32_dpp v{mx}, v{mx}, v{mx} row_bcast:31 row_mask:0xc bank_mask:0xf
    v_readlane_b32 s{sT0}, v{mx}, 63
    v_max_f32 v{mx}, s{sT0}, v{vM}
    v_mul_f32 v{neg}, s{sL2E}, v{mx}
    v_fma_f32 v{al}, v{vM}, s{sL2E}, -v{neg}
    v_fma_f32 v{p0}, v{a0}, s{sL2E}, -v{neg}
    v_fma_f32 v{p1}, v{a1}, s{sL2E}, -v{neg}
    v_exp_f32 v{al}, v{al}
    v_exp_f32 v{p0}, v{p0}
    v_exp_f32 v{p1}, v{p1}
    v_mov_b32 v{vM}, v{mx}
    v_fma_f32 v{vL}, v{vL}, v{al}, v{p0}
    v_cvt_pk_bf16_f32 v{a0}, v{p0}, v{p0}
    v_cvt_pk_bf16_f32 v{a1}, v{p1}, v{p1}
    v_add_f32 v{vL}, v{vL}, v{p1}
    """)
    for r in range(4):
        p(f"v_mul_f32 v{vO+r}, v{vO+r}, v{al}")
    def mk(t):
        for j in range(4):
            p(f"v_and_b32_dpp v{vA + 4*(t&1) + j}, v{a0 + (t & 1)}, v{vMASK+j} row_newbcast:{4*(t >> 1)} row_mask:0xf bank_mask:0xf")
    mk(0)
    for t in range(8):
        if t + 1 < 8: mk(t + 1)
        if t % 2 == 0: p.wait_vm((bank, "V", t + 1))
        p(f"v_mfma_f32_16x16x32_bf16 {r4(vO)}, {r4(vA + 4*(t&1))}, {r4(vb + 4*t)}, {r4(vO)}")
        refill(1, t)

def gate_math(p, z, t0, t1):
    p(f"""
    v_cvt_pk_bf16_f32 v{z}, v{z}, v{z}
    v_lshlrev_b32 v{z}, 16, v{z}
    v_mul_f32 v{z}, s{sL2E}, v{z}
    v_sub_f32 v{z}, 0, v{z}
    v_exp_f32 v{z}, v{z}
    v_add_f32 v{z}, 1.0, v{z}
    v_rcp_f32 v{z}, v{z}
    v_cvt_pk_bf16_f32 v{z}, v{z}, v{z}
    v_lshlrev_b32 v{z}, 16, v{z}
    v_sub_f32 v{t1}, 1.0, v{z}
    v_cvt_pk_bf16_f32 v{t1}, v{t1}, v{t1}
    v_lshlrev_b32 v{t1}, 16, v{t1}
    """)

def attention(p):
    sRED = 88
    p(f"""
    s_and_b32 s{sT0}, s2, 7
    s_lshr_b32 s{sT1}, s2, 3
    s_lshr_b32 s{sH}, s{sT1}, 3
    s_lshl_b32 s{sT0}, s{sT0}, 2
    s_add_u32 s{sH}, s{sH}, s{sT0}
    s_lshr_b32 s{sB}, s{sT1}, 1
    s_and_b32 s{sB}, s{sB}, 3
    s_and_b32 s{sT1}, s{sT1}, 1
    s_lshl_b32 s{sR}, s{sB}, 5
    s_add_u32 s{sR}, s{sR}, s{sH}
    s_lshl_b32 s{sR}, s{sR}, 1
    s_add_u32 s{sR}, s{sR}, s{sT1}
    s_and_b32 s{sRED}, s{sR}, 3
    """)
    srd(p, srdWS, sWS, None, WS_BYTES)
    p(f"""
    s_lshl_b32 s{sT0}, s{sR}, 11
    s_lshl_b32 s{sT1}, s{sWAVE}, 9
    s_add_u32 s{sT0}, s{sT0}, s{sT1}
    v_lshlrev_b32 v{vT}, 3, v{vLANE}
    v_add_u32 v{vT}, s{sT0}, v{vT}
    v_mov_b32 v{vP}, -1
    v_mov_b32 v{vP+1}, -1
    s_lshl_b32 s{sT0}, s{sR}, 3
    s_add_u32 s{sT0}, s{sT0}, {WS_ML}
    v_mov_b32 v{vT+1}, s{sT0}
    """)
    p.vm(f"buffer_store_dwordx2 v[{vP}:{vP+1}], v{vT}, s[{srdWS}:{srdWS+3}], 0 offen sc1", "inv")
    p.vm(f"buffer_store_dwordx2 v[{vP}:{vP+1}], v{vT+1}, s[{srdWS}:{srdWS+3}], 0 offen sc1", "inv")
    srd(p, srdX, sX, None, 4096)
    p(f"""
    s_lshl_b32 s{sT0}, s{sWAVE}, 8
    s_lshl_b32 s{sT1}, s{sB}, 10
    s_add_u32 s{sT0}, s{sT0}, s{sT1}
    v_lshlrev_b32 v{vT}, 1, v{vLANE}
    v_add_u32 v{vT}, s{sT0}, v{vT}
    """)
    p.vm(f"buffer_load_ushort v{vX}, v{vT}, s[{srdX}:{srdX+3}], 0 offen", "x")
    p.vm(f"buffer_load_ushort v{vX+1}, v{vT}, s[{srdX}:{srdX+3}], 0 offen offset:128", "x")
    p(f"s_lshl_b32 s{sT0}, s{sH}, 8")
    p(f"s_sub_u32 s{sT1}, {4 << 20}, s{sT0}")
    srd(p, srdW, sWQ, f"s{sT0}", f"s{sT1}")
    p(f"""
    s_lshl_b32 s{sT0}, s{sWAVE}, 20
    v_lshlrev_b32 v{vW}, 17, v{vT+4}
    v_add3_u32 v{vW}, v{vW}, v{vT+3}, s{sT0}
    s_lshl_b32 s{sT0}, s{sR}, 20
    s_lshr_b32 s{sT1}, s{sR}, 12
    """)
    for (d, b) in ((srdK, sK), (srdV, sV)):
        p(f"s_add_u32 s{d}, s{b}, s{sT0}")
        p(f"s_addc_u32 s{d+1}, s{b+1}, s{sT1}")
        p(f"s_and_b32 s{d+1}, s{d+1}, 0xffff")
        p(f"s_mov_b32 s{d+2}, {1 << 20}")
        p(f"s_mov_b32 s{d+3}, 0x20000")
    p(f"""
    s_lshl_b32 s{sT0}, s{sWAVE}, 13
    v_lshlrev_b32 v{vKV0}, 4, v{vLANE}
    v_add_u32 v{vKV0}, s{sT0}, v{vKV0}
    v_add_u32 v{vKV1}, 4096, v{vKV0}
    s_mov_b32 s{sOFF}, 0
    s_mov_b32 s{sT2}, 0
    s_mov_b32 s{sOFF1}, 32768
    s_mov_b32 s{sOFF2}, 65536
    """)
    for t in range(32):
        p.vm(f"buffer_load_dwordx4 {r4(vWA + 4*t)}, v{vW}, s[{srdW}:{srdW+3}], s{sT2} offen {O.wpol}", ("W", t))
        if t == 15: p(f"s_add_u32 s{sT2}, s{sT2}, {49 * 8192}")
        elif t < 31: p(f"s_add_u32 s{sT2}, s{sT2}, 8192")
        if t % 2 == 1:
            i = t >> 1
            kv_load(p, BANK_A + 4*i, i >> 3, i & 7, sOFF, ("A", "V" if i >> 3 else "K", i & 7))
    p(f"""
    s_lshl_b32 s{sT0}, s{sWAVE}, 8
    v_lshlrev_b32 v{vWO}, 14, v{vT+4}
    v_add3_u32 v{vWO}, v{vWO}, v{vT+3}, s{sT0}
    v_lshlrev_b32 v{vG}, 1, v{vT+3}
    v_lshl_add_u32 v{vG+1}, v{vT+4}, 4, v{vG}
    s_lshl_b32 s{sT1}, s{sWAVE}, 9
    v_add_u32 v{vG+1}, s{sT1}, v{vG+1}
    v_mov_b32 v{vO}, 0
    v_mov_b32 v{vO+1}, 0
    v_mov_b32 v{vO+2}, 0
    v_mov_b32 v{vO+3}, 0
    """)
    p.wait_vm("x")
    p(f"""
    v_lshl_or_b32 v{vX}, v{vX}, 16, v{vX}
    v_lshl_or_b32 v{vX+1}, v{vX+1}, 16, v{vX+1}
    s_nop 1
    s_call_b64 s[{sRET}:{sRET+1}], L_proj
    """)
    mark = len(p.ins)
    proj_routine(p)
    routine = p.ins[mark:]
    p.ins = p.ins[:mark]
    stamp(p, 2)
    p(f"""
    s_mov_b64 exec, 0xffffffff
    ds_write_b128 v{vG+1}, {r4(vO)}
    s_mov_b64 exec, -1
    s_lshl_b32 s{sT0}, s{sH}, 17
    s_sub_u32 s{sT1}, {4 << 20}, s{sT0}
    """)
    srd(p, srdW, sWO, f"s{sT0}", f"s{sT1}")
    p(f"""
    s_waitcnt lgkmcnt(0)
    s_barrier
    """)
    qa = vP
    regs = [18, 26, 34, 52]
    for w in range(4):
        p(f"ds_read_b128 {r4(regs[w])}, v{vG} offset:{w*512}" if w < 3 else f"ds_read_b128 {r4(56)}, v{vG} offset:{w*512}")
        p(f"ds_read_b128 {r4(regs[w] + 4)}, v{vG} offset:{w*512 + 16}" if w < 3 else f"ds_read_b128 {r4(60)}, v{vG} offset:{w*512 + 16}")
    regs[3] = 56
    p(f"""
    v_mov_b32 v{vM}, 0xff7fffff
    v_mov_b32 v{vL}, 0
    v_mov_b32 v{vO}, 0
    v_mov_b32 v{vO+1}, 0
    v_mov_b32 v{vO+2}, 0
    v_mov_b32 v{vO+3}, 0
    s_waitcnt lgkmcnt(0)
    """)
    for i in range(8):
        p(f"v_add_f32 v{regs[0]+i}, v{regs[0]+i}, v{regs[1]+i}")
        p(f"v_add_f32 v{regs[2]+i}, v{regs[2]+i}, v{regs[3]+i}")
    for i in range(8):
        p(f"v_add_f32 v{regs[0]+i}, v{regs[0]+i}, v{regs[2]+i}")
    for j in range(4):
        p(f"v_cvt_pk_bf16_f32 v{vQ+j}, v{regs[0]+2*j}, v{regs[0]+2*j+1}")
    stamp(p, 3)
    step = 32768
    def kv_refill(bank, soff):
        base = {"A": BANK_A, "B": BANK_B, "C": BANK_C}[bank]
        return lambda isv, t: kv_load(p, base + 32*isv + 4*t, isv, t, soff, (bank, "V" if isv else "K", t))
    def wo_refill(first):
        return lambda isv, t: wo_load(p, first + 8*isv + t)
    none = lambda isv, t: None
    p(f"s_mov_b32 s{sOFF}, {3*step}")
    body(p, "A", kv_refill("A", sOFF))
    stamp(p, 4)
    p(f"s_mov_b32 s{sOFF}, {4*step}")
    body(p, "B", kv_refill("B", sOFF))
    body(p, "C", wo_refill(16))
    p(f"s_mov_b32 s{sOFF}, {5*step}")
    body(p, "A", kv_refill("A", sOFF))
    body(p, "B", wo_refill(0))
    p(f"s_mov_b32 s{sOFF}, {6*step}")
    body(p, "A", kv_refill("A", sOFF))
    p(f"s_mov_b32 s{sOFF}, {7*step}")
    body(p, "A", kv_refill("A", sOFF))
    q0 = list(p.vmq)
    assert q0 == [("A", "K", t) for t in range(8)] + [("A", "V", t) for t in range(8)], q0
    p(f"s_mov_b32 s{sOFF}, {8*step}")
    p(f"s_mov_b32 s{sCNT}, 24")
    p("L_loop:")
    body(p, "A", kv_refill("A", sOFF))
    assert p.vmq == q0
    p(f"""
    s_add_u32 s{sOFF}, s{sOFF}, {step}
    s_sub_u32 s{sCNT}, s{sCNT}, 1
    s_cmp_lg_u32 s{sCNT}, 0
    s_cbranch_scc1 L_loop
    """)
    stamp(p, 5)
    srd(p, srdD, sDBG, None, 256)
    srd(p, srdX, sX, None, 4096)
    p(f"""
    s_mov_b32 s{srdW}, s{sGW}
    s_and_b32 s{srdW+1}, s{sGW+1}, 0xffff
    s_mov_b32 s{srdW+2}, 1024
    s_lshl_b32 s{sT0}, s{sB}, 10
    v_lshlrev_b32 v{vG+2}, 2, v0
    v_add_u32 v{vG+3}, s{sT0}, v{vG+2}
    s_lshl_b32 s{sT0}, s{sB}, 6
    v_mov_b32 v{vG}, s{sT0}
    v_mov_b32 v{vG+1}, 1
    """)
    p.vm(f"buffer_load_dword v{vG+5}, v{vG+3}, s[{srdX}:{srdX+3}], 0 offen", "G")
    p.vm(f"buffer_load_dword v{vG+6}, v{vG+2}, s[{srdW}:{srdW+3}], 0 offen", "G")
    p(f"""
    s_cmp_lg_u32 s{sWAVE}, 0
    s_cbranch_scc1 L_noarr
    s_mov_b64 exec, 1
    buffer_atomic_add v{vG+1}, v{vG}, s[{srdD}:{srdD+3}], 0 offen sc1
    s_mov_b64 exec, -1
    L_noarr:
    """)
    body(p, "A", none)
    stamp(p, 6)
    p(f"""
    v_add_f32_dpp v{vL}, v{vL}, v{vL} row_half_mirror row_mask:0xf bank_mask:0xf
    v_add_f32_dpp v{vL}, v{vL}, v{vL} row_mirror row_mask:0xf bank_mask:0xf
    v_add_f32_dpp v{vL}, v{vL}, v{vL} row_bcast:15 row_mask:0xa bank_mask:0xf
    v_add_f32_dpp v{vL}, v{vL}, v{vL} row_bcast:31 row_mask:0xc bank_mask:0xf
    v_readlane_b32 s{sT0}, v{vL}, 63
    v_and_b32 v{vT+3}, 15, v{vLANE}
    v_lshrrev_b32 v{vT+4}, 4, v{vLANE}
    v_mov_b32 v{vL}, s{sT0}
    v_lshlrev_b32 v{vT}, 5, v{vT+3}
    v_lshl_add_u32 v{vT+1}, v{vT+4}, 4, v{vT}
    s_lshl_b32 s{sT1}, s{sWAVE}, 9
    s_lshl_b32 s{sT0}, s{sWAVE}, 3
    v_add_u32 v{vT+2}, s{sT1}, v{vT+1}
    v_mov_b32 v{vT+5}, s{sT0}
    s_mov_b64 exec, 0xffffffff
    ds_write_b128 v{vT+2}, {r4(vO)} offset:2048
    s_mov_b64 exec, -1
    ds_write_b64 v{vT+5}, v[{vM}:{vM+1}] offset:4096
    v_lshlrev_b32 v{vT+6}, 2, v{vLANE}
    v_mov_b32 v{vT+5}, 0
    s_waitcnt lgkmcnt(0)
    s_barrier
    ds_read_b128 {r4(vP)}, v{vT+5} offset:4096
    ds_read_b128 {r4(vP+4)}, v{vT+5} offset:4112
    """)
    ob = BANK_A
    for w in range(4):
        p(f"ds_read_b32 v{ob+2*w}, v{vT+6} offset:{2048 + w*512}")
        p(f"ds_read_b32 v{ob+2*w+1}, v{vT+6} offset:{2048 + w*512 + 256}")
    m = [vP, vP+2, vP+4, vP+6]; l = [vP+1, vP+3, vP+5, vP+7]
    p(f"""
    s_waitcnt lgkmcnt(8)
    v_max_f32 v{vM}, v{m[0]}, v{m[1]}
    v_max3_f32 v{vM}, v{vM}, v{m[2]}, v{m[3]}
    v_mul_f32 v{vT+7}, s{sL2E}, v{vM}
    """)
    for w in range(4): p(f"v_fma_f32 v{m[w]}, v{m[w]}, s{sL2E}, -v{vT+7}")
    for w in range(4): p(f"v_exp_f32 v{m[w]}, v{m[w]}")
    p(f"v_mul_f32 v{vL}, v{m[0]}, v{l[0]}")
    for w in range(1, 4): p(f"v_fma_f32 v{vL}, v{m[w]}, v{l[w]}, v{vL}")
    p("s_waitcnt lgkmcnt(0)")
    for u in range(2):
        p(f"v_mul_f32 v{vX+u}, v{m[0]}, v{ob+u}")
    for w in range(1, 4):
        for u in range(2):
            p(f"v_fma_f32 v{vX+u}, v{m[w]}, v{ob+2*w+u}, v{vX+u}")
    p(f"""
    v_cvt_pk_bf16_f32 v{vX}, v{vX}, v{vX}
    v_cvt_pk_bf16_f32 v{vX+1}, v{vX+1}, v{vX+1}
    v_mov_b32 v{vO}, 0
    v_mov_b32 v{vO+1}, 0
    v_mov_b32 v{vO+2}, 0
    v_mov_b32 v{vO+3}, 0
    s_mov_b32 s{sOFF1}, {1 << 20}
    s_mov_b32 s{sOFF2}, {1 << 20}
    s_nop 1
    s_call_b64 s[{sRET}:{sRET+1}], L_proj
    """)
    p(f"""
    s_lshl_b32 s{sT0}, s{sR}, 11
    s_lshl_b32 s{sT1}, s{sWAVE}, 9
    s_add_u32 s{sT0}, s{sT0}, s{sT1}
    v_add_u32 v{vT+1}, s{sT0}, v{vT+1}
    s_mov_b64 exec, 0xffffffff
    buffer_store_dwordx4 {r4(vO)}, v{vT+1}, s[{srdWS}:{srdWS+3}], 0 offen sc1
    s_mov_b64 exec, 1
    s_lshl_b32 s{sT0}, s{sR}, 3
    s_add_u32 s{sT0}, s{sT0}, {WS_ML}
    v_mov_b32 v{vT+2}, s{sT0}
    s_cmp_lg_u32 s{sWAVE}, 0
    s_cbranch_scc1 L_noml
    buffer_store_dwordx2 v[{vM}:{vM+1}], v{vT+2}, s[{srdWS}:{srdWS+3}], 0 offen sc1
    L_noml:
    s_mov_b64 exec, -1
    """)
    stamp(p, 7)
    p(f"""
    s_cmp_lg_u32 s{sRED}, 0
    s_cbranch_scc1 L_fin
    """)
    reducer(p)
    p("s_branch L_fin")
    return routine

def reducer(p):
    p.vmq = []
    vCOL, vGRP = 64, 65
    aP, aML, aQ = 66, 67, 68
    dP, dML, dQ = 72, 80, 96
    acc, accq = 100, 101
    sCB = sH
    gx, gw = vG+5, vG+6
    p(f"""
    s_waitcnt vmcnt(33)
    s_lshr_b32 s{sCB}, s{sH}, 1
    v_and_b32 v{vCOL}, 31, v0
    v_lshrrev_b32 v{vGRP}, 5, v0
    s_lshl_b32 s{sT0}, s{sB}, 6
    v_lshl_add_u32 v{aML}, v{vGRP}, 3, s{sT0}
    v_lshlrev_b32 v{aP}, 11, v{aML}
    s_lshl_b32 s{sT1}, s{sCB}, 7
    v_lshl_add_u32 v{aQ}, v{vCOL}, 2, s{sT1}
    v_add_u32 v{aP}, v{aP}, v{aQ}
    v_lshlrev_b32 v{aML}, 3, v{aML}
    v_add_u32 v{aML}, {WS_ML}, v{aML}
    s_lshl_b32 s{sT0}, s{sB}, 11
    v_lshlrev_b32 v102, 15, v{vGRP}
    v_add3_u32 v{aQ}, v{aQ}, v102, s{sT0}
    s_mov_b32 s{sSPIN}, 0
    v_lshlrev_b32 v104, 16, v{gx}
    v_and_b32 v105, s{sHI}, v{gx}
    v_lshlrev_b32 v106, 16, v{gw}
    v_and_b32 v107, s{sHI}, v{gw}
    v_mul_f32 v104, v104, v106
    v_mul_f32 v105, v105, v107
    v_cvt_pk_bf16_f32 v104, v104, v105
    v_lshlrev_b32 v105, 16, v104
    v_and_b32 v104, s{sHI}, v104
    v_add_f32 v104, v104, v105
    v_add_f32_dpp v104, v104, v104 quad_perm:[1,0,3,2] row_mask:0xf bank_mask:0xf
    v_add_f32_dpp v104, v104, v104 quad_perm:[2,3,0,1] row_mask:0xf bank_mask:0xf
    v_add_f32_dpp v104, v104, v104 row_half_mirror row_mask:0xf bank_mask:0xf
    v_add_f32_dpp v104, v104, v104 row_mirror row_mask:0xf bank_mask:0xf
    v_add_f32_dpp v104, v104, v104 row_bcast:15 row_mask:0xa bank_mask:0xf
    v_add_f32_dpp v104, v104, v104 row_bcast:31 row_mask:0xc bank_mask:0xf
    v_readlane_b32 s{sT1}, v104, 63
    s_lshl_b32 s{sT2}, s{sWAVE}, 2
    v_mov_b32 v105, s{sT2}
    v_mov_b32 v104, s{sT1}
    ds_write_b32 v105, v104 offset:8192
    s_add_u32 s{srdV}, s{sWS}, {WS_Q}
    s_addc_u32 s{srdV+1}, s{sWS+1}, 0
    s_and_b32 s{srdV+1}, s{srdV+1}, 0xffff
    s_mov_b32 s{srdV+2}, {NFFN * 8192}
    s_mov_b32 s{srdV+3}, 0x20000
    s_cmp_lg_u32 s{sWAVE}, 0
    s_cbranch_scc1 L_pollok
    s_lshl_b32 s{sT0}, s{sB}, 6
    v_mov_b32 v103, s{sT0}
    v_mov_b32 v108, 32
    s_mov_b64 exec, 1
    L_apoll:
    buffer_load_dword v109, v103, s[{srdD}:{srdD+3}], 0 offen sc1
    buffer_load_dword v110, v108, s[{srdD}:{srdD+3}], 0 offen sc1
    s_waitcnt vmcnt(0)
    v_readfirstlane_b32 s{sT0}, v109
    v_readfirstlane_b32 s{sT1}, v110
    s_cmp_ge_u32 s{sT0}, 64
    s_cselect_b32 s{sT0}, 1, 0
    s_cmp_ge_u32 s{sT1}, {0 if O.noffn else NFFN}
    s_cselect_b32 s{sT0}, s{sT0}, 0
    s_cmp_lg_u32 s{sT0}, 0
    s_cbranch_scc1 L_aok
    s_add_u32 s{sSPIN}, s{sSPIN}, 1
    s_cmp_ge_u32 s{sSPIN}, {SPIN_MAX}
    s_cbranch_scc1 L_fin
    s_sleep {O.sleep}
    s_branch L_apoll
    L_aok:
    s_mov_b64 exec, -1
    L_pollok:
    s_barrier
    """)
    for i in range(4):
        p(f"s_mov_b32 s{sT2}, {i * 8192}")
        p(f"buffer_load_dword v{dQ+i}, v{aQ}, s[{srdV}:{srdV+3}], s{sT2} offen sc1")
    p("L_dpoll:")
    for k in range(8):
        p(f"s_mov_b32 s{sT2}, {k * 2048}")
        p(f"buffer_load_dword v{dP+k}, v{aP}, s[{srdWS}:{srdWS+3}], s{sT2} offen sc1")
    for i in range(4):
        p(f"buffer_load_dwordx4 {r4(dML+4*i)}, v{aML}, s[{srdWS}:{srdWS+3}], 0 offen offset:{16*i} sc1")
    p("s_waitcnt vmcnt(0)")
    p(f"v_max_u32 v102, v{dP}, v{dP+1}")
    for k in range(2, 8, 2): p(f"v_max3_u32 v102, v102, v{dP+k}, v{dP+k+1}")
    for k in range(0, 16, 2): p(f"v_max3_u32 v102, v102, v{dML+k}, v{dML+k+1}")
    p(f"""
    v_cmp_eq_u32 vcc, -1, v102
    s_cbranch_vccz L_dok
    s_add_u32 s{sSPIN}, s{sSPIN}, 1
    s_cmp_ge_u32 s{sSPIN}, {SPIN_MAX}
    s_cbranch_scc1 L_fin
    s_branch L_dpoll
    L_dok:
    v_mov_b32 v{acc}, 0
    """)
    for i in range(4):
        m0, l0, m1, l1 = dML+4*i, dML+4*i+1, dML+4*i+2, dML+4*i+3
        p(f"""
        v_max_f32 v102, v{m0}, v{m1}
        v_sub_f32 v{m0}, v{m0}, v102
        v_sub_f32 v{m1}, v{m1}, v102
        v_mul_f32 v{m0}, s{sL2E}, v{m0}
        v_mul_f32 v{m1}, s{sL2E}, v{m1}
        v_exp_f32 v{m0}, v{m0}
        v_exp_f32 v{m1}, v{m1}
        v_mul_f32 v102, v{m0}, v{l0}
        v_fma_f32 v102, v{m1}, v{l1}, v102
        v_rcp_f32 v102, v102
        v_mul_f32 v104, v{m0}, v{dP+2*i}
        v_fma_f32 v104, v{m1}, v{dP+2*i+1}, v104
        v_fma_f32 v{acc}, v104, v102, v{acc}
        """)
    p(f"""
    v_add_f32 v{dQ}, v{dQ}, v{dQ+1}
    v_add_f32 v{dQ+2}, v{dQ+2}, v{dQ+3}
    v_add_f32 v{accq}, v{dQ}, v{dQ+2}
    v_lshlrev_b32 v102, 2, v0
    ds_write_b32 v102, v{acc} offset:5120
    ds_write_b32 v102, v{accq} offset:6144
    s_waitcnt lgkmcnt(0)
    s_barrier
    s_cmp_lg_u32 s{sWAVE}, 0
    s_cbranch_scc1 L_fin
    v_lshlrev_b32 v102, 2, v{vCOL}
    v_mov_b32 v103, 0
    ds_read_b128 v[104:107], v103 offset:8192
    """)
    for g in range(8):
        p(f"ds_read_b32 v{dP+g}, v102 offset:{5120 + g*128}")
        p(f"ds_read_b32 v{dML+g}, v102 offset:{6144 + g*128}")
    p("s_waitcnt lgkmcnt(0)")
    for base in (dP, dML):
        p(f"""
        v_add_f32 v{base}, v{base}, v{base+1}
        v_add_f32 v{base+2}, v{base+2}, v{base+3}
        v_add_f32 v{base+4}, v{base+4}, v{base+5}
        v_add_f32 v{base+6}, v{base+6}, v{base+7}
        v_add_f32 v{base}, v{base}, v{base+2}
        v_add_f32 v{base+4}, v{base+4}, v{base+6}
        v_add_f32 v{base}, v{base}, v{base+4}
        """)
    p(f"""
    v_add_f32 v104, v104, v105
    v_add_f32 v106, v106, v107
    v_add_f32 v104, v104, v106
    """)
    gate_math(p, 104, None, 105)
    srd(p, srdK, sOUT, None, 4096)
    p(f"""
    v_cvt_pk_bf16_f32 v106, v{dP}, v{dML}
    v_lshlrev_b32 v107, 16, v106
    v_and_b32 v106, s{sHI}, v106
    v_mul_f32 v107, v104, v107
    v_mul_f32 v106, v105, v106
    v_cvt_pk_bf16_f32 v106, v107, v106
    v_lshlrev_b32 v107, 16, v106
    v_and_b32 v106, s{sHI}, v106
    v_add_f32 v106, v106, v107
    v_cvt_pk_bf16_f32 v106, v106, v106
    s_lshl_b32 s{sT0}, s{sB}, 10
    s_lshl_b32 s{sT1}, s{sCB}, 6
    s_add_u32 s{sT0}, s{sT0}, s{sT1}
    v_lshlrev_b32 v102, 1, v{vCOL}
    v_add_u32 v102, s{sT0}, v102
    s_mov_b64 exec, 0xffffffff
    buffer_store_short v106, v102, s[{srdK}:{srdK+3}], 0 offen
    s_mov_b64 exec, -1
    """)

def ffn(p):
    sJ = sH
    vXP = 50
    vSEL = 4
    vD0, vD1 = 12, 16
    vWD = 64
    srdG, srdU = srdK, srdV
    p.vmq = []
    p("L_ffn:")
    if O.prio: p("s_setprio 3")
    p(f"s_sub_u32 s{sJ}, s2, {NATT}")
    if O.ffn_even:
        p(f"""
        s_and_b32 s{sT0}, s{sJ}, 1
        s_cmp_lg_u32 s{sT0}, 0
        s_cbranch_scc1 L_end
        s_lshr_b32 s{sJ}, s{sJ}, 1
        """)
    srd(p, srdX, sX, None, 4096)
    p(f"""
    s_lshl_b32 s{sT0}, s{sWAVE}, 8
    v_lshlrev_b32 v{vT}, 1, v{vLANE}
    v_add_u32 v{vT}, s{sT0}, v{vT}
    v_add_u32 v{vT+1}, 2048, v{vT}
    """)
    xr = 22
    for b in range(4):
        for u in range(2):
            p.vm(f"buffer_load_ushort v{xr + 2*b + u}, v{vT + (b >> 1)}, s[{srdX}:{srdX+3}], 0 offen offset:{(b & 1) * 1024 + u * 128}", "x")
    srd(p, srdG, sWG, None, 512 * 3584)
    srd(p, srdU, sWU, None, 512 * 3584)
    p(f"""
    s_lshl_b32 s{sT0}, s{sWAVE}, 3
    v_add_u32 v{vT+5}, s{sT0}, v{vT+4}
    v_mul_u32_u24 v{vT+5}, {16 * 3584}, v{vT+5}
    v_and_b32 v{vT+6}, 7, v{vLANE}
    v_lshlrev_b32 v{vT+6}, 4, v{vT+6}
    s_lshl_b32 s{sT0}, s{sJ}, 7
    v_add3_u32 v20, v{vT+5}, v{vT+6}, s{sT0}
    s_mov_b32 s{sOFF1}, 0x00ff00ff
    s_mov_b32 s{sOFF2}, 0xff00ff00
    """)
    for half, (sr, mk) in enumerate(((srdG, sOFF1), (srdU, sOFF2))):
        p(f"s_mov_b32 exec_lo, s{mk}")
        p(f"s_mov_b32 exec_hi, s{mk}")
        p(f"s_mov_b32 s{sT2}, 0")
        for t in range(32):
            p.vm(f"buffer_load_dwordx4 {r4(vWA + 4*t)}, v20, s[{sr}:{sr+3}], s{sT2} offen {O.wpol}", ("W", half, t))
            if t == 15: p(f"s_add_u32 s{sT2}, s{sT2}, {49 * 3584}")
            elif t < 31: p(f"s_add_u32 s{sT2}, s{sT2}, 3584")
        if half == 0: p.wait_vm(("W", 0, 15))
    p("s_mov_b64 exec, -1")
    p(f"s_lshl_b32 s{sT0}, s{sJ}, 16")
    p(f"s_sub_u32 s{sT1}, {1792 * 1024}, s{sT0}")
    srd(p, srdW, sWD, f"s{sT0}", f"s{sT1}")
    p(f"""
    s_lshl_b32 s{sT0}, s{sWAVE}, 8
    v_lshlrev_b32 v{vW}, 14, v{vT+4}
    v_add3_u32 v{vW}, v{vW}, v{vT+3}, s{sT0}
    v_and_b32 v{vT+5}, 8, v{vLANE}
    v_mov_b32 v{vT+6}, 0x0100
    v_mov_b32 v{vT+7}, 0x0302
    v_cmp_eq_u32 vcc, 0, v{vT+5}
    v_cndmask_b32 v{vT+6}, v{vT+7}, v{vT+6}, vcc
    v_lshlrev_b32 v{vT+7}, 16, v{vT+6}
    v_or_b32 v{vT+7}, 0x0c0c, v{vT+7}
    v_or_b32 v{vT+6}, 0x0c0c0000, v{vT+6}
    v_and_b32 v{vT+5}, 1, v{vLANE}
    v_cmp_eq_u32 vcc, 0, v{vT+5}
    v_cndmask_b32 v{vT+6}, v{vT+7}, v{vT+6}, vcc
    v_bfe_u32 v{vT+5}, v{vLANE}, 1, 2
    v_mov_b32 v{vT+7}, 0x0c0c0c0c
    """)
    for j in range(4):
        p(f"v_cmp_eq_u32 vcc, {j}, v{vT+5}")
        p(f"v_cndmask_b32 v{vSEL+j}, v{vT+7}, v{vT+6}, vcc")
    for pr in range(2):
        for u in range(2):
            p(f"v_lshl_or_b32 v{vXP + 2*pr + u}, v{xr + 2*(2*pr+1) + u}, 16, v{xr + 2*(2*pr) + u}")
    for r in range(8): p(f"v_mov_b32 v{vD0 + r}, 0")
    p.wait_vm(("W", 1, 7))
    for t in range(16):
        if t & 3 == 0: p(f"s_mov_b32 s{sT2}, {(t & ~3) * 1024}")
        p.vm(f"buffer_load_dwordx4 {r4(vWD + 4*t)}, v{vW}, s[{srdW}:{srdW+3}], s{sT2} offen offset:{(t & 3) * 1024} {O.wpol}", ("D", t))
    stamp(p, 2)
    vBC = 30
    def step(src_of_pair, lane):
        for pr in range(2):
            p(f"v_mov_b32_dpp v{vBC+pr}, v{src_of_pair(pr)} row_newbcast:{lane} row_mask:0xf bank_mask:0xf")
        for pr in range(2):
            for j in range(4):
                p(f"v_perm_b32 v{vA + 4*pr + j}, v{vBC+pr}, v{vBC+pr}, v{vSEL+j}")
    for t in range(32):
        step(lambda pr: vXP + 2*pr + (t >> 4), t & 15)
        if t % 2 == 0: p.wait_vm(("W", 1, t + 1))
        p(f"v_mfma_f32_16x16x32_bf16 {r4(vD0)}, {r4(vA)}, {r4(vWA + 4*t)}, {r4(vD0)}")
        p(f"v_mfma_f32_16x16x32_bf16 {r4(vD1)}, {r4(vA+4)}, {r4(vWA + 4*t)}, {r4(vD1)}")
    stamp(p, 4)
    p(f"""
    s_lshl_b32 s{sT0}, s{sWAVE}, 11
    v_lshlrev_b32 v{vT}, 4, v{vLANE}
    v_add_u32 v{vT}, s{sT0}, v{vT}
    ds_write_b128 v{vT}, {r4(vD0)}
    ds_write_b128 v{vT}, {r4(vD1)} offset:1024
    s_lshr_b32 s{sT0}, s{sWAVE}, 1
    s_lshl_b32 s{sT0}, s{sT0}, 10
    s_and_b32 s{sT1}, s{sWAVE}, 1
    s_lshl_b32 s{sT2}, s{sT1}, 9
    s_add_u32 s{sT0}, s{sT0}, s{sT2}
    v_bfe_u32 v{vT+1}, v{vLANE}, 2, 1
    v_lshlrev_b32 v{vT+1}, 8, v{vT+1}
    v_lshrrev_b32 v{vT+2}, 3, v{vLANE}
    v_lshl_add_u32 v{vT+1}, v{vT+2}, 4, v{vT+1}
    v_and_b32 v{vT+2}, 3, v{vLANE}
    v_lshl_add_u32 v{vT+1}, v{vT+2}, 2, v{vT+1}
    v_add_u32 v{vT+1}, s{sT0}, v{vT+1}
    s_waitcnt lgkmcnt(0)
    s_barrier
    """)
    for w in range(4):
        p(f"ds_read_b32 v{vP+w}, v{vT+1} offset:{w*2048}")
        p(f"ds_read_b32 v{vP+4+w}, v{vT+1} offset:{w*2048 + 128}")
    h1, h2, t0, t1 = vP, vP+4, vP+1, vP+2
    C0 = 0x3F4C422A
    C1 = 0x3D372713
    p(f"""
    s_waitcnt lgkmcnt(0)
    v_add_f32 v{vP}, v{vP}, v{vP+1}
    v_add_f32 v{vP+2}, v{vP+2}, v{vP+3}
    v_add_f32 v{vP+4}, v{vP+4}, v{vP+5}
    v_add_f32 v{vP+6}, v{vP+6}, v{vP+7}
    v_add_f32 v{h1}, v{vP}, v{vP+2}
    v_add_f32 v{h2}, v{vP+4}, v{vP+6}
    v_cvt_pk_bf16_f32 v{t0}, v{h1}, v{h2}
    v_lshlrev_b32 v{h1}, 16, v{t0}
    v_and_b32 v{h2}, s{sHI}, v{t0}
    v_mul_f32 v{t0}, v{h1}, v{h1}
    v_mul_f32 v{t0}, v{t0}, v{h1}
    v_mov_b32 v{t1}, {hex(C1)}
    v_fma_f32 v{t0}, v{t0}, v{t1}, v{h1}
    v_mul_f32 v{t0}, {hex(C0)}, v{t0}
    v_mul_f32 v{t0}, s{sL2E}, v{t0}
    v_mul_f32 v{t0}, -2.0, v{t0}
    v_exp_f32 v{t0}, v{t0}
    v_add_f32 v{t0}, 1.0, v{t0}
    v_rcp_f32 v{t0}, v{t0}
    v_mul_f32 v{t0}, v{h1}, v{t0}
    v_cvt_pk_bf16_f32 v{t0}, v{t0}, v{t0}
    v_lshlrev_b32 v{t0}, 16, v{t0}
    v_mul_f32 v{t0}, v{t0}, v{h2}
    v_cvt_pk_bf16_f32 v{t0}, v{t0}, v{t0}
    s_lshr_b32 s{sT0}, s{sWAVE}, 1
    s_lshl_b32 s{sT0}, s{sT0}, 8
    s_lshl_b32 s{sT1}, s{sT1}, 1
    s_add_u32 s{sT0}, s{sT0}, s{sT1}
    v_lshlrev_b32 v{vT+2}, 2, v{vLANE}
    v_add_u32 v{vT+3}, s{sT0}, v{vT+2}
    ds_write_b16 v{vT+3}, v{t0} offset:8192
    s_waitcnt lgkmcnt(0)
    s_barrier
    ds_read_b32 v{vXP}, v{vT+2} offset:8192
    ds_read_b32 v{vXP+1}, v{vT+2} offset:8448
    """)
    for r in range(8): p(f"v_mov_b32 v{vD0 + r}, 0")
    p("s_waitcnt lgkmcnt(0)")
    stamp(p, 5)
    for t in range(16):
        step(lambda pr: vXP + pr, t)
        if t % 2 == 0: p.wait_vm(("D", t + 1))
        p(f"v_mfma_f32_16x16x32_bf16 {r4(vD0)}, {r4(vA)}, {r4(vWD + 4*t)}, {r4(vD0)}")
        p(f"v_mfma_f32_16x16x32_bf16 {r4(vD1)}, {r4(vA+4)}, {r4(vWD + 4*t)}, {r4(vD1)}")
    stamp(p, 6)
    srd(p, srdWS, sWS, None, WS_BYTES)
    srd(p, srdD, sDBG, None, 256)
    p(f"""
    s_lshl_b32 s{sT0}, s{sJ}, 13
    s_lshl_b32 s{sT1}, s{sWAVE}, 9
    s_add_u32 s{sT0}, s{sT0}, s{sT1}
    s_add_u32 s{sT0}, s{sT0}, {WS_Q}
    v_lshrrev_b32 v{vT}, 5, v{vLANE}
    v_lshlrev_b32 v{vT}, 11, v{vT}
    v_bfe_u32 v{vT+1}, v{vLANE}, 4, 1
    v_lshl_add_u32 v{vT}, v{vT+1}, 4, v{vT}
    v_and_b32 v{vT+1}, 15, v{vLANE}
    v_lshl_add_u32 v{vT}, v{vT+1}, 5, v{vT}
    v_add_u32 v{vT}, s{sT0}, v{vT}
    s_mov_b32 s{sT2}, 4096
    buffer_store_dwordx4 {r4(vD0)}, v{vT}, s[{srdWS}:{srdWS+3}], 0 offen sc1
    buffer_store_dwordx4 {r4(vD1)}, v{vT}, s[{srdWS}:{srdWS+3}], s{sT2} offen sc1
    v_mov_b32 v{vT+1}, 32
    v_mov_b32 v{vT+2}, 1
    s_waitcnt vmcnt(0)
    s_barrier
    s_cmp_lg_u32 s{sWAVE}, 0
    s_cbranch_scc1 L_fin
    s_mov_b64 exec, 1
    buffer_atomic_add v{vT+2}, v{vT+1}, s[{srdD}:{srdD+3}], 0 offen sc1
    s_mov_b64 exec, -1
    """)

def kernel1():
    p = Prog()
    common_prologue(p)
    p("s_waitcnt lgkmcnt(0)")
    stamp(p, 1)
    p(f"""
    s_cmp_ge_u32 s2, {NATT}
    s_cbranch_scc1 L_ffn
    """)
    routine = attention(p)
    p.ins += routine
    ffn(p)
    p("L_fin:")
    if O.stamps:
        p("s_waitcnt vmcnt(0)")
        stamp(p, 8)
        write_stamps(p, 9)
    p("L_end:")
    p("s_endpgm")
    p.finish()
    p.check_loop("L_loop", "s_cbranch_scc1 L_loop")
    return p

def desc(name, vgpr, sgpr):
    acc = (vgpr + 3) // 4 * 4
    return f""".amdhsa_kernel {name}
  .amdhsa_next_free_vgpr {vgpr}
  .amdhsa_next_free_sgpr {sgpr}
  .amdhsa_accum_offset {acc}
  .amdhsa_group_segment_fixed_size 0
  .amdhsa_kernarg_size 104
  .amdhsa_user_sgpr_count 2
  .amdhsa_user_sgpr_kernarg_segment_ptr 1
  .amdhsa_system_sgpr_workgroup_id_x 1
  .amdhsa_float_denorm_mode_32 3
.end_amdhsa_kernel
"""

def gen():
    k1 = NAME + "_kernel"
    out = HEADER
    out += f"; @launch grid=({nwg()},1,1) block=(256,1,1) lds=16384\n"
    out += '.amdgcn_target "amdgcn-amd-amdhsa--gfx950"\n.text\n'
    out += f".globl {k1}\n.p2align 8\n.type {k1},@function\n{k1}:\n" + kernel1().text()
    out += '.section .rodata,"a"\n.p2align 6\n' + desc(k1, 256, 102 if O.stamps else 90)
    return out

if __name__ == "__main__":
    for a in sys.argv[2:]:
        if "=" in a:
            k, v = a.split("=", 1); setattr(O, k, v.replace("_", " ") if k.endswith("pol") else eval(v))
        else: setattr(O, a, True)
    open(sys.argv[1], "w").write(gen())
```

```python
import sys
from asmlib import Prog

NAME = "gated_mix__mha_block_cached__geglu_ffn__decode"
HEADER = open("gated_mix__mha_block_cached__geglu_ffn__decode.s.ref").read().split("; Override launch")[0]

NATT = 256
NFFN = 28
L2E = 0x3FB8AA3B
SCALE = 0x3DB504F3
WS_P, WS_ML, WS_Q = 0, 0x80000, 0x100000
WS_BYTES = 0x140000
WS_ST = 0x200000
SPIN_MAX = 1 << 22

class O:
    stamps = False
    wpol = ""
    kvpol = "nt"
    ffn_even = False
    prio = True
    noffn = False
    sleep = 16
    rot = 0
    nb = 2

sX, sK, sV, sWQ, sWO, sBX, sWG, sWU, sWD, sGW, sOUT, sDBG, sWS = 16, 18, 20, 22, 24, 26, 28, 30, 32, 34, 36, 38, 40
srdK, srdV, srdW, srdX, srdWS, srdD = 44, 48, 52, 56, 60, 64
sWAVE, sH, sB, sR = 3, 4, 5, 6
sOFF, sCNT, sL2E, sSCALE, sRET = 8, 9, 10, 11, 12
sT0, sT1, sT2 = 14, 15, 7
sHI, sOFF1, sOFF2, sSPIN = 68, 69, 42, 43
sST = 70
sROT = 89
vLANE, vKV0, vKV1 = 1, 2, 3
vMASK, vQ, vO = 4, 8, 12
vM, vL = 16, 17
vP, vR, vU, vA, vT = 18, 26, 30, 32, 40
vW, vWO, vX = 48, 49, 50
vSC, vW0, vW1 = 62, 60, 61
LDS_SC = 16384
vG = 52
BANK_A, BANK_B, BANK_C = 64, 128, 192
vWA = 128

def nwg(): return NATT if O.noffn else NATT + (2 * NFFN if O.ffn_even else NFFN)

def srd(p, dst, base, off_lo=None, size=None):
    if off_lo is None:
        p(f"s_mov_b32 s{dst}, s{base}")
        p(f"s_and_b32 s{dst+1}, s{base+1}, 0xffff")
    else:
        p(f"s_add_u32 s{dst}, s{base}, {off_lo}")
        p(f"s_addc_u32 s{dst+1}, s{base+1}, 0")
        p(f"s_and_b32 s{dst+1}, s{dst+1}, 0xffff")
    p(f"s_mov_b32 s{dst+2}, {size}")
    p(f"s_mov_b32 s{dst+3}, 0x20000")

def r4(b): return f"v[{b}:{b+3}]"

def stamp(p, k):
    if O.stamps: p(f"s_memrealtime s[{sST+2*k}:{sST+2*k+1}]")

def write_stamps(p, n):
    if not O.stamps: return
    p("s_mov_b64 exec, 1")
    p(f"s_getreg_b32 s{sST+22}, hwreg(HW_REG_HW_ID)")
    p(f"s_getreg_b32 s{sST+23}, hwreg(HW_REG_XCC_ID)")
    p("s_waitcnt lgkmcnt(0)")
    p(f"s_lshl_b32 s{sST+24}, s2, 2")
    p(f"s_add_u32 s{sST+24}, s{sST+24}, s{sWAVE}")
    p(f"s_lshl_b32 s{sST+24}, s{sST+24}, 6")
    p(f"s_add_u32 s{sST+24}, s{sST+24}, {WS_ST}")
    p(f"v_mov_b32 v60, s{sST+24}")
    p("s_mov_b32 s96, s40")
    p("s_and_b32 s97, s41, 0xffff")
    p("s_mov_b32 s98, 0x400000")
    p("s_mov_b32 s99, 0x20000")
    for k in range(n):
        p(f"v_mov_b32 v61, s{sST+2*k}")
        p(f"buffer_store_dword v61, v60, s[96:99], 0 offen offset:{4*k}")
    p(f"v_mov_b32 v61, s{sST+22}")
    p("buffer_store_dword v61, v60, s[96:99], 0 offen offset:56")
    p(f"v_mov_b32 v61, s{sST+23}")
    p("buffer_store_dword v61, v60, s[96:99], 0 offen offset:60")

def common_prologue(p):
    p(f"""
    s_cmp_ge_u32 s2, {nwg()}
    s_cbranch_scc1 L_end
    """)
    stamp(p, 0)
    p(f"""
    s_load_dwordx16 s[16:31], s[0:1], 0
    s_load_dwordx8 s[32:39], s[0:1], 64
    s_load_dwordx2 s[40:41], s[0:1], 96
    v_and_b32 v{vLANE}, 63, v0
    v_lshrrev_b32 v{vT}, 6, v0
    s_mov_b32 s{sL2E}, {hex(L2E)}
    v_readfirstlane_b32 s{sWAVE}, v{vT}
    s_mov_b32 s{sSCALE}, {hex(SCALE)}
    s_mov_b32 s{sHI}, 0xffff0000
    v_and_b32 v{vT}, 1, v{vLANE}
    v_lshlrev_b32 v{vT}, 4, v{vT}
    v_mov_b32 v{vT+1}, 0xffff
    v_lshlrev_b32 v{vT+1}, v{vT}, v{vT+1}
    v_bfe_u32 v{vT+2}, v{vLANE}, 1, 3
    """)
    for j in range(4):
        p(f"v_cmp_eq_u32 vcc, {j}, v{vT+2}")
        p(f"v_cndmask_b32 v{vMASK+j}, 0, v{vT+1}, vcc")
    p(f"""
    v_and_b32 v{vT+3}, 15, v{vLANE}
    v_lshlrev_b32 v{vT+3}, 4, v{vT+3}
    v_lshrrev_b32 v{vT+4}, 4, v{vLANE}
    """)

def set_off(p, reg, k):
    if O.rot:
        p(f"s_add_u32 s{reg}, s{sROT}, {k * 32768}")
        p(f"s_and_b32 s{reg}, s{reg}, 0xfffff")
    else:
        p(f"s_mov_b32 s{reg}, {k * 32768}")

def adv_off(p, reg):
    p(f"s_add_u32 s{reg}, s{reg}, 32768")
    if O.rot: p(f"s_and_b32 s{reg}, s{reg}, 0xfffff")

def kv_load(p, reg, isv, t, soff, tag):
    d = srdV if isv else srdK
    p.vm(f"buffer_load_dwordx4 {r4(reg)}, v{vKV0 + (t >> 2)}, s[{d}:{d+3}], s{soff} offen offset:{(t & 3) * 1024} {O.kvpol}", tag)

def wo_load(p, t):
    u, tt = t >> 4, t & 15
    if tt & 3 == 0: p(f"s_mov_b32 s{sT2}, {(64 * u + (tt & ~3)) * 1024}")
    p.vm(f"buffer_load_dwordx4 {r4(vWA + 4*t)}, v{vWO}, s[{srdW}:{srdW+3}], s{sT2} offen offset:{(tt & 3) * 1024} {O.wpol}", ("W", t))

def proj_routine(p):
    p("L_proj:")
    def mk(t):
        for j in range(4):
            p(f"v_and_b32_dpp v{vA + 4*(t&1) + j}, v{vX + (t >> 4)}, v{vMASK+j} row_newbcast:{t & 15} row_mask:0xf bank_mask:0xf")
    mk(0)
    for t in range(32):
        if t + 1 < 32: mk(t + 1)
        if t % 2 == 0: p.wait_vm(("W", t + 1))
        p(f"v_mfma_f32_16x16x32_bf16 {r4(vO)}, {r4(vA + 4*(t&1))}, {r4(vWA + 4*t)}, {r4(vO)}")
    p("s_nop 7")
    p(f"s_setpc_b64 s[{sRET}:{sRET+1}]")

def bank_base(bank): return 64 + 32 * bank

def k_tile(p, bank, refill, scoff):
    base = bank_base(bank)
    for t in range(8):
        if t % 2 == 0: p.wait_vm((bank, t + 1))
        k = base + 4 * t
        p(f"v_dot2_f32_bf16 v{vP+t}, v{k}, v{vQ}, 0")
        for j in range(1, 4):
            p(f"v_dot2_f32_bf16 v{vP+t}, v{k+j}, v{vQ+j}, v{vP+t}")
        refill(t)
    for a in range(4):
        p(f"v_add_f32_dpp v{vR+a}, v{vP+a}, v{vP+a} row_mirror row_mask:0xf bank_mask:0x3")
    for a in range(4):
        p(f"v_add_f32_dpp v{vR+a}, v{vP+a+4}, v{vP+a+4} row_mirror row_mask:0xf bank_mask:0xc")
    p(f"v_add_f32_dpp v{vU}, v{vR}, v{vR} row_half_mirror row_mask:0xf bank_mask:0x5")
    p(f"v_add_f32_dpp v{vU+1}, v{vR+1}, v{vR+1} row_half_mirror row_mask:0xf bank_mask:0x5")
    p(f"v_add_f32_dpp v{vU}, v{vR+2}, v{vR+2} row_half_mirror row_mask:0xf bank_mask:0xa")
    p(f"v_add_f32_dpp v{vU+1}, v{vR+3}, v{vR+3} row_half_mirror row_mask:0xf bank_mask:0xa")
    for qp in ("[1,0,3,2]", "[2,3,0,1]"):
        for u in range(2):
            p(f"v_add_f32_dpp v{vU+u}, v{vU+u}, v{vU+u} quad_perm:{qp} row_mask:0xf bank_mask:0xf")
    a0, a1, w = vT, vT+1, vT+2
    p(f"""
    v_cvt_pk_bf16_f32 v{w}, v{vU}, v{vU+1}
    v_lshlrev_b32 v{a0}, 16, v{w}
    v_and_b32 v{a1}, s{sHI}, v{w}
    v_mul_f32 v{a0}, s{sSCALE}, v{a0}
    v_mul_f32 v{a1}, s{sSCALE}, v{a1}
    v_cvt_pk_bf16_f32 v{w}, v{a0}, v{a1}
    v_lshlrev_b32 v{a0}, 16, v{w}
    v_and_b32 v{a1}, s{sHI}, v{w}
    ds_write_b32 v{vSC}, v{w} offset:{LDS_SC + scoff}
    v_max3_f32 v{vM}, v{vM}, v{a0}, v{a1}
    """)

def v_tile(p, bank, refill, wreg, prefetch_next):
    base = bank_base(bank)
    a0, a1, p0, p1 = vT, vT+1, vT+6, vT+7
    neg = vT + 4
    p(f"""
    v_lshlrev_b32 v{a0}, 16, v{wreg}
    v_and_b32 v{a1}, s{sHI}, v{wreg}
    """)
    if prefetch_next is not None: prefetch_next()
    p(f"""
    v_fma_f32 v{p0}, v{a0}, s{sL2E}, -v{neg}
    v_fma_f32 v{p1}, v{a1}, s{sL2E}, -v{neg}
    v_exp_f32 v{p0}, v{p0}
    v_exp_f32 v{p1}, v{p1}
    v_add_f32 v{vL}, v{vL}, v{p0}
    v_cvt_pk_bf16_f32 v{a0}, v{p0}, v{p0}
    v_cvt_pk_bf16_f32 v{a1}, v{p1}, v{p1}
    v_add_f32 v{vL}, v{vL}, v{p1}
    """)
    def mk(t):
        for j in range(4):
            p(f"v_and_b32_dpp v{vA + 4*(t&1) + j}, v{a0 + (t & 1)}, v{vMASK+j} row_newbcast:{4*(t >> 1)} row_mask:0xf bank_mask:0xf")
    mk(0)
    for t in range(8):
        if t + 1 < 8: mk(t + 1)
        if t % 2 == 0: p.wait_vm((bank, t + 1))
        p(f"v_mfma_f32_16x16x32_bf16 {r4(vO)}, {r4(vA + 4*(t&1))}, {r4(base + 4*t)}, {r4(vO)}")
        refill(t)

def gate_math(p, z, t0, t1):
    p(f"""
    v_cvt_pk_bf16_f32 v{z}, v{z}, v{z}
    v_lshlrev_b32 v{z}, 16, v{z}
    v_mul_f32 v{z}, s{sL2E}, v{z}
    v_sub_f32 v{z}, 0, v{z}
    v_exp_f32 v{z}, v{z}
    v_add_f32 v{z}, 1.0, v{z}
    v_rcp_f32 v{z}, v{z}
    v_cvt_pk_bf16_f32 v{z}, v{z}, v{z}
    v_lshlrev_b32 v{z}, 16, v{z}
    v_sub_f32 v{t1}, 1.0, v{z}
    v_cvt_pk_bf16_f32 v{t1}, v{t1}, v{t1}
    v_lshlrev_b32 v{t1}, 16, v{t1}
    """)

def attention(p):
    sRED = 88
    p(f"""
    s_and_b32 s{sT0}, s2, 7
    s_lshr_b32 s{sT1}, s2, 3
    s_lshr_b32 s{sH}, s{sT1}, 3
    s_lshl_b32 s{sT0}, s{sT0}, 2
    s_add_u32 s{sH}, s{sH}, s{sT0}
    s_lshr_b32 s{sB}, s{sT1}, 1
    s_and_b32 s{sB}, s{sB}, 3
    s_and_b32 s{sT1}, s{sT1}, 1
    s_lshl_b32 s{sR}, s{sB}, 5
    s_add_u32 s{sR}, s{sR}, s{sH}
    s_lshl_b32 s{sR}, s{sR}, 1
    s_add_u32 s{sR}, s{sR}, s{sT1}
    s_and_b32 s{sRED}, s{sR}, 3
    """)
    if O.rot:
        p(f"""
        s_mul_i32 s{sROT}, s{sR}, {O.rot}
        s_lshr_b32 s{sT0}, s{sR}, 5
        s_add_u32 s{sROT}, s{sROT}, s{sT0}
        s_and_b32 s{sROT}, s{sROT}, 31
        s_lshl_b32 s{sROT}, s{sROT}, 15
        """)
    srd(p, srdWS, sWS, None, WS_BYTES)
    p(f"""
    s_lshl_b32 s{sT0}, s{sR}, 11
    s_lshl_b32 s{sT1}, s{sWAVE}, 9
    s_add_u32 s{sT0}, s{sT0}, s{sT1}
    v_lshlrev_b32 v{vT}, 3, v{vLANE}
    v_add_u32 v{vT}, s{sT0}, v{vT}
    v_mov_b32 v{vP}, -1
    v_mov_b32 v{vP+1}, -1
    s_lshl_b32 s{sT0}, s{sR}, 3
    s_add_u32 s{sT0}, s{sT0}, {WS_ML}
    v_mov_b32 v{vT+1}, s{sT0}
    """)
    p.vm(f"buffer_store_dwordx2 v[{vP}:{vP+1}], v{vT}, s[{srdWS}:{srdWS+3}], 0 offen sc1", "inv")
    p.vm(f"buffer_store_dwordx2 v[{vP}:{vP+1}], v{vT+1}, s[{srdWS}:{srdWS+3}], 0 offen sc1", "inv")
    srd(p, srdX, sX, None, 4096)
    p(f"""
    s_lshl_b32 s{sT0}, s{sWAVE}, 8
    s_lshl_b32 s{sT1}, s{sB}, 10
    s_add_u32 s{sT0}, s{sT0}, s{sT1}
    v_lshlrev_b32 v{vT}, 1, v{vLANE}
    v_add_u32 v{vT}, s{sT0}, v{vT}
    """)
    p.vm(f"buffer_load_ushort v{vX}, v{vT}, s[{srdX}:{srdX+3}], 0 offen", "x")
    p.vm(f"buffer_load_ushort v{vX+1}, v{vT}, s[{srdX}:{srdX+3}], 0 offen offset:128", "x")
    p(f"s_lshl_b32 s{sT0}, s{sH}, 8")
    p(f"s_sub_u32 s{sT1}, {4 << 20}, s{sT0}")
    srd(p, srdW, sWQ, f"s{sT0}", f"s{sT1}")
    p(f"""
    s_lshl_b32 s{sT0}, s{sWAVE}, 20
    v_lshlrev_b32 v{vW}, 17, v{vT+4}
    v_add3_u32 v{vW}, v{vW}, v{vT+3}, s{sT0}
    s_lshl_b32 s{sT0}, s{sR}, 20
    s_lshr_b32 s{sT1}, s{sR}, 12
    """)
    for (d, b) in ((srdK, sK), (srdV, sV)):
        p(f"s_add_u32 s{d}, s{b}, s{sT0}")
        p(f"s_addc_u32 s{d+1}, s{b+1}, s{sT1}")
        p(f"s_and_b32 s{d+1}, s{d+1}, 0xffff")
        p(f"s_mov_b32 s{d+2}, {1 << 20}")
        p(f"s_mov_b32 s{d+3}, 0x20000")
    p(f"""
    s_lshl_b32 s{sT0}, s{sWAVE}, 13
    v_lshlrev_b32 v{vKV0}, 4, v{vLANE}
    v_add_u32 v{vKV0}, s{sT0}, v{vKV0}
    v_add_u32 v{vKV1}, 4096, v{vKV0}
    s_mov_b32 s{sOFF}, 0
    s_mov_b32 s{sT2}, 0
    """)
    for t in range(32):
        p.vm(f"buffer_load_dwordx4 {r4(vWA + 4*t)}, v{vW}, s[{srdW}:{srdW+3}], s{sT2} offen {O.wpol}", ("W", t))
        if t == 15: p(f"s_add_u32 s{sT2}, s{sT2}, {49 * 8192}")
        elif t < 31: p(f"s_add_u32 s{sT2}, s{sT2}, 8192")
    for bank in range(O.nb):
        set_off(p, sOFF, bank)
        for t in range(8): kv_load(p, bank_base(bank) + 4*t, 0, t, sOFF, (bank, t))
    p(f"""
    s_lshl_b32 s{sT0}, s{sWAVE}, 8
    v_lshlrev_b32 v{vWO}, 14, v{vT+4}
    v_add3_u32 v{vWO}, v{vWO}, v{vT+3}, s{sT0}
    v_lshlrev_b32 v{vG}, 1, v{vT+3}
    v_lshl_add_u32 v{vG+1}, v{vT+4}, 4, v{vG}
    s_lshl_b32 s{sT1}, s{sWAVE}, 9
    v_add_u32 v{vG+1}, s{sT1}, v{vG+1}
    v_mov_b32 v{vO}, 0
    v_mov_b32 v{vO+1}, 0
    v_mov_b32 v{vO+2}, 0
    v_mov_b32 v{vO+3}, 0
    """)
    p.wait_vm("x")
    p(f"""
    v_lshl_or_b32 v{vX}, v{vX}, 16, v{vX}
    v_lshl_or_b32 v{vX+1}, v{vX+1}, 16, v{vX+1}
    s_nop 1
    s_call_b64 s[{sRET}:{sRET+1}], L_proj
    """)
    mark = len(p.ins)
    proj_routine(p)
    routine = p.ins[mark:]
    p.ins = p.ins[:mark]
    stamp(p, 2)
    p(f"""
    s_mov_b64 exec, 0xffffffff
    ds_write_b128 v{vG+1}, {r4(vO)}
    s_mov_b64 exec, -1
    s_lshl_b32 s{sT0}, s{sH}, 17
    s_sub_u32 s{sT1}, {4 << 20}, s{sT0}
    """)
    srd(p, srdW, sWO, f"s{sT0}", f"s{sT1}")
    p(f"""
    s_waitcnt lgkmcnt(0)
    s_barrier
    """)
    qa = vP
    regs = [18, 26, 34, 52]
    for w in range(4):
        p(f"ds_read_b128 {r4(regs[w])}, v{vG} offset:{w*512}" if w < 3 else f"ds_read_b128 {r4(56)}, v{vG} offset:{w*512}")
        p(f"ds_read_b128 {r4(regs[w] + 4)}, v{vG} offset:{w*512 + 16}" if w < 3 else f"ds_read_b128 {r4(60)}, v{vG} offset:{w*512 + 16}")
    regs[3] = 56
    p(f"""
    v_mov_b32 v{vM}, 0xff7fffff
    v_mov_b32 v{vL}, 0
    v_mov_b32 v{vO}, 0
    v_mov_b32 v{vO+1}, 0
    v_mov_b32 v{vO+2}, 0
    v_mov_b32 v{vO+3}, 0
    s_waitcnt lgkmcnt(0)
    """)
    for i in range(8):
        p(f"v_add_f32 v{regs[0]+i}, v{regs[0]+i}, v{regs[1]+i}")
        p(f"v_add_f32 v{regs[2]+i}, v{regs[2]+i}, v{regs[3]+i}")
    for i in range(8):
        p(f"v_add_f32 v{regs[0]+i}, v{regs[0]+i}, v{regs[2]+i}")
    for j in range(4):
        p(f"v_cvt_pk_bf16_f32 v{vQ+j}, v{regs[0]+2*j}, v{regs[0]+2*j+1}")
    stamp(p, 3)
    step = 32768
    NB = O.nb
    def refill(bank, isv, extra=None):
        def f(t):
            kv_load(p, bank_base(bank) + 4*t, isv, t, sOFF, (bank, t))
            if extra: extra(t)
        return f
    none = lambda t: None
    adv = lambda: adv_off(p, sOFF)
    nxt_sc = lambda n: p(f"v_add_u32 v{vSC}, {256*n}, v{vSC}")
    set_off(p, sOFF, NB)
    p(f"""
    s_lshl_b32 s{sT0}, s{sWAVE}, 13
    v_lshlrev_b32 v{vSC}, 2, v{vLANE}
    v_add_u32 v{vSC}, s{sT0}, v{vSC}
    """)
    NPEEL = 12
    wo_next = [0]
    def wo_extra(t):
        if t % 2 == 0:
            wo_load(p, wo_next[0]); wo_next[0] += 1
    for i in range(NPEEL):
        k_tile(p, i % NB, refill(i % NB, 0, wo_extra if 2 <= i < 10 else None), 256 * (i & 1))
        adv()
        if i & 1: nxt_sc(2)
    assert wo_next[0] == 32
    q0 = list(p.vmq)
    assert q0 == [(b, t) for b in range(NB) for t in range(8)], q0
    p(f"s_mov_b32 s{sCNT}, {(30 - NPEEL) // 2}")
    p("L_kloop:")
    for i in range(2):
        k_tile(p, i % NB, refill(i % NB, 0), 256 * i)
        adv()
    nxt_sc(2)
    assert p.vmq == q0
    p(f"""
    s_sub_u32 s{sCNT}, s{sCNT}, 1
    s_cmp_lg_u32 s{sCNT}, 0
    s_cbranch_scc1 L_kloop
    """)
    srd(p, srdD, sDBG, None, 256)
    srd(p, srdX, sX, None, 4096)
    p(f"""
    s_mov_b32 s{srdW}, s{sGW}
    s_and_b32 s{srdW+1}, s{sGW+1}, 0xffff
    s_mov_b32 s{srdW+2}, 1024
    s_lshl_b32 s{sT0}, s{sB}, 10
    v_lshlrev_b32 v{vG+2}, 2, v0
    v_add_u32 v{vG+3}, s{sT0}, v{vG+2}
    """)
    p.vm(f"buffer_load_dword v{vG+5}, v{vG+3}, s[{srdX}:{srdX+3}], 0 offen", "G")
    p.vm(f"buffer_load_dword v{vG+6}, v{vG+2}, s[{srdW}:{srdW+3}], 0 offen", "G")
    for i in (30, 31):
        if i + NB >= 32:
            if i + NB == 32: set_off(p, sOFF, 0)
            k_tile(p, i % NB, refill(i % NB, 1), 256 * (i & 1))
        else:
            k_tile(p, i % NB, refill(i % NB, 0), 256 * (i & 1))
        adv()
    mx, neg = vT + 3, vT + 4
    p(f"""
    s_lshl_b32 s{sT0}, s{sWAVE}, 13
    v_lshlrev_b32 v{vSC}, 2, v{vLANE}
    v_add_u32 v{vSC}, s{sT0}, v{vSC}
    v_max_f32_dpp v{vM}, v{vM}, v{vM} row_half_mirror row_mask:0xf bank_mask:0xf
    s_waitcnt lgkmcnt(0)
    ds_read_b32 v{vW0}, v{vSC} offset:{LDS_SC}
    ds_read_b32 v{vW1}, v{vSC} offset:{LDS_SC + 256}
    v_max_f32_dpp v{vM}, v{vM}, v{vM} row_mirror row_mask:0xf bank_mask:0xf
    v_max_f32_dpp v{vM}, v{vM}, v{vM} row_bcast:15 row_mask:0xa bank_mask:0xf
    v_max_f32_dpp v{vM}, v{vM}, v{vM} row_bcast:31 row_mask:0xc bank_mask:0xf
    v_readlane_b32 s{sT0}, v{vM}, 63
    v_mov_b32 v{vM}, s{sT0}
    v_mul_f32 v{neg}, s{sL2E}, v{vM}
    v_add_u32 v{vSC}, 512, v{vSC}
    s_mov_b32 s{sCNT}, 15
    s_waitcnt lgkmcnt(0)
    """)
    stamp(p, 4)
    p.vmq = [t for t in p.vmq if t != "G"]
    p("L_vloop:")
    def pf(dst, off):
        return lambda: p(f"ds_read_b32 v{dst}, v{vSC} offset:{LDS_SC + off}")
    v_tile(p, 0, refill(0, 1), vW0, pf(vW0, 0))
    adv()
    v_tile(p, 1 % NB, refill(1 % NB, 1), vW1, pf(vW1, 256))
    adv()
    assert p.vmq == q0
    p(f"""
    v_add_u32 v{vSC}, 512, v{vSC}
    s_sub_u32 s{sCNT}, s{sCNT}, 1
    s_cmp_lg_u32 s{sCNT}, 0
    s_waitcnt lgkmcnt(0)
    s_cbranch_scc1 L_vloop
    """)
    stamp(p, 5)
    p(f"""
    s_lshl_b32 s{sT0}, s{sB}, 6
    s_cmp_eq_u32 s{sWAVE}, 0
    s_cselect_b32 s{sT0}, s{sT0}, 4096
    v_mov_b32 v{vG}, s{sT0}
    v_mov_b32 v{vG+1}, 1
    s_mov_b64 exec, 1
    """)
    p.vm(f"buffer_atomic_add v{vG+1}, v{vG}, s[{srdD}:{srdD+3}], 0 offen sc1", "ARR")
    p("s_mov_b64 exec, -1")
    v_tile(p, 0, refill(0, 1) if NB == 1 else none, vW0, None)
    v_tile(p, 1 % NB, none, vW1, None)
    stamp(p, 6)
    p(f"""
    v_add_f32_dpp v{vL}, v{vL}, v{vL} row_half_mirror row_mask:0xf bank_mask:0xf
    v_add_f32_dpp v{vL}, v{vL}, v{vL} row_mirror row_mask:0xf bank_mask:0xf
    v_add_f32_dpp v{vL}, v{vL}, v{vL} row_bcast:15 row_mask:0xa bank_mask:0xf
    v_add_f32_dpp v{vL}, v{vL}, v{vL} row_bcast:31 row_mask:0xc bank_mask:0xf
    v_readlane_b32 s{sT0}, v{vL}, 63
    v_and_b32 v{vT+3}, 15, v{vLANE}
    v_lshrrev_b32 v{vT+4}, 4, v{vLANE}
    v_mov_b32 v{vL}, s{sT0}
    v_lshlrev_b32 v{vT}, 5, v{vT+3}
    v_lshl_add_u32 v{vT+1}, v{vT+4}, 4, v{vT}
    s_lshl_b32 s{sT1}, s{sWAVE}, 9
    s_lshl_b32 s{sT0}, s{sWAVE}, 3
    v_add_u32 v{vT+2}, s{sT1}, v{vT+1}
    v_mov_b32 v{vT+5}, s{sT0}
    s_mov_b64 exec, 0xffffffff
    ds_write_b128 v{vT+2}, {r4(vO)} offset:2048
    s_mov_b64 exec, -1
    ds_write_b64 v{vT+5}, v[{vM}:{vM+1}] offset:4096
    v_lshlrev_b32 v{vT+6}, 2, v{vLANE}
    v_mov_b32 v{vT+5}, 0
    s_waitcnt lgkmcnt(0)
    s_barrier
    ds_read_b128 {r4(vP)}, v{vT+5} offset:4096
    ds_read_b128 {r4(vP+4)}, v{vT+5} offset:4112
    """)
    ob = 64
    for w in range(4):
        p(f"ds_read_b32 v{ob+2*w}, v{vT+6} offset:{2048 + w*512}")
        p(f"ds_read_b32 v{ob+2*w+1}, v{vT+6} offset:{2048 + w*512 + 256}")
    m = [vP, vP+2, vP+4, vP+6]; l = [vP+1, vP+3, vP+5, vP+7]
    p(f"""
    s_waitcnt lgkmcnt(8)
    v_max_f32 v{vM}, v{m[0]}, v{m[1]}
    v_max3_f32 v{vM}, v{vM}, v{m[2]}, v{m[3]}
    v_mul_f32 v{vT+7}, s{sL2E}, v{vM}
    """)
    for w in range(4): p(f"v_fma_f32 v{m[w]}, v{m[w]}, s{sL2E}, -v{vT+7}")
    for w in range(4): p(f"v_exp_f32 v{m[w]}, v{m[w]}")
    p(f"v_mul_f32 v{vL}, v{m[0]}, v{l[0]}")
    for w in range(1, 4): p(f"v_fma_f32 v{vL}, v{m[w]}, v{l[w]}, v{vL}")
    p("s_waitcnt lgkmcnt(0)")
    for u in range(2):
        p(f"v_mul_f32 v{vX+u}, v{m[0]}, v{ob+u}")
    for w in range(1, 4):
        for u in range(2):
            p(f"v_fma_f32 v{vX+u}, v{m[w]}, v{ob+2*w+u}, v{vX+u}")
    p(f"""
    v_cvt_pk_bf16_f32 v{vX}, v{vX}, v{vX}
    v_cvt_pk_bf16_f32 v{vX+1}, v{vX+1}, v{vX+1}
    v_mov_b32 v{vO}, 0
    v_mov_b32 v{vO+1}, 0
    v_mov_b32 v{vO+2}, 0
    v_mov_b32 v{vO+3}, 0
    s_nop 1
    s_call_b64 s[{sRET}:{sRET+1}], L_proj
    """)
    p(f"""
    s_lshl_b32 s{sT0}, s{sR}, 11
    s_lshl_b32 s{sT1}, s{sWAVE}, 9
    s_add_u32 s{sT0}, s{sT0}, s{sT1}
    v_add_u32 v{vT+1}, s{sT0}, v{vT+1}
    s_mov_b64 exec, 0xffffffff
    buffer_store_dwordx4 {r4(vO)}, v{vT+1}, s[{srdWS}:{srdWS+3}], 0 offen sc1
    s_mov_b64 exec, 1
    s_lshl_b32 s{sT0}, s{sR}, 3
    s_add_u32 s{sT0}, s{sT0}, {WS_ML}
    v_mov_b32 v{vT+2}, s{sT0}
    s_cmp_lg_u32 s{sWAVE}, 0
    s_cbranch_scc1 L_noml
    buffer_store_dwordx2 v[{vM}:{vM+1}], v{vT+2}, s[{srdWS}:{srdWS+3}], 0 offen sc1
    L_noml:
    s_mov_b64 exec, -1
    """)
    stamp(p, 7)
    p(f"""
    s_cmp_lg_u32 s{sRED}, 0
    s_cbranch_scc1 L_fin
    """)
    reducer(p)
    p("s_branch L_fin")
    return routine

def reducer(p):
    p.vmq = []
    vCOL, vGRP = 64, 65
    aP, aML, aQ = 66, 67, 68
    dP, dML, dQ = 72, 80, 96
    acc, accq = 100, 101
    sCB = sH
    gx, gw = vG+5, vG+6
    p(f"""
    s_lshr_b32 s{sCB}, s{sH}, 1
    v_and_b32 v{vCOL}, 31, v0
    v_lshrrev_b32 v{vGRP}, 5, v0
    s_lshl_b32 s{sT0}, s{sB}, 6
    v_lshl_add_u32 v{aML}, v{vGRP}, 3, s{sT0}
    v_lshlrev_b32 v{aP}, 11, v{aML}
    s_lshl_b32 s{sT1}, s{sCB}, 7
    v_lshl_add_u32 v{aQ}, v{vCOL}, 2, s{sT1}
    v_add_u32 v{aP}, v{aP}, v{aQ}
    v_lshlrev_b32 v{aML}, 3, v{aML}
    v_add_u32 v{aML}, {WS_ML}, v{aML}
    s_lshl_b32 s{sT0}, s{sB}, 11
    v_lshlrev_b32 v102, 15, v{vGRP}
    v_add3_u32 v{aQ}, v{aQ}, v102, s{sT0}
    s_mov_b32 s{sSPIN}, 0
    v_lshlrev_b32 v104, 16, v{gx}
    v_and_b32 v105, s{sHI}, v{gx}
    v_lshlrev_b32 v106, 16, v{gw}
    v_and_b32 v107, s{sHI}, v{gw}
    v_mul_f32 v104, v104, v106
    v_mul_f32 v105, v105, v107
    v_cvt_pk_bf16_f32 v104, v104, v105
    v_lshlrev_b32 v105, 16, v104
    v_and_b32 v104, s{sHI}, v104
    v_add_f32 v104, v104, v105
    v_add_f32_dpp v104, v104, v104 quad_perm:[1,0,3,2] row_mask:0xf bank_mask:0xf
    v_add_f32_dpp v104, v104, v104 quad_perm:[2,3,0,1] row_mask:0xf bank_mask:0xf
    v_add_f32_dpp v104, v104, v104 row_half_mirror row_mask:0xf bank_mask:0xf
    v_add_f32_dpp v104, v104, v104 row_mirror row_mask:0xf bank_mask:0xf
    v_add_f32_dpp v104, v104, v104 row_bcast:15 row_mask:0xa bank_mask:0xf
    v_add_f32_dpp v104, v104, v104 row_bcast:31 row_mask:0xc bank_mask:0xf
    v_readlane_b32 s{sT1}, v104, 63
    s_lshl_b32 s{sT2}, s{sWAVE}, 2
    v_mov_b32 v105, s{sT2}
    v_mov_b32 v104, s{sT1}
    ds_write_b32 v105, v104 offset:8192
    s_add_u32 s{srdV}, s{sWS}, {WS_Q}
    s_addc_u32 s{srdV+1}, s{sWS+1}, 0
    s_and_b32 s{srdV+1}, s{srdV+1}, 0xffff
    s_mov_b32 s{srdV+2}, {NFFN * 8192}
    s_mov_b32 s{srdV+3}, 0x20000
    s_cmp_lg_u32 s{sWAVE}, 0
    s_cbranch_scc1 L_pollok
    s_lshl_b32 s{sT0}, s{sB}, 6
    v_mov_b32 v103, s{sT0}
    v_mov_b32 v108, 32
    s_mov_b64 exec, 1
    L_apoll:
    buffer_load_dword v109, v103, s[{srdD}:{srdD+3}], 0 offen sc1
    buffer_load_dword v110, v108, s[{srdD}:{srdD+3}], 0 offen sc1
    s_waitcnt vmcnt(0)
    v_readfirstlane_b32 s{sT0}, v109
    v_readfirstlane_b32 s{sT1}, v110
    s_cmp_ge_u32 s{sT0}, 64
    s_cselect_b32 s{sT0}, 1, 0
    s_cmp_ge_u32 s{sT1}, {0 if O.noffn else NFFN}
    s_cselect_b32 s{sT0}, s{sT0}, 0
    s_cmp_lg_u32 s{sT0}, 0
    s_cbranch_scc1 L_aok
    s_add_u32 s{sSPIN}, s{sSPIN}, 1
    s_cmp_ge_u32 s{sSPIN}, {SPIN_MAX}
    s_cbranch_scc1 L_fin
    s_sleep {O.sleep}
    s_branch L_apoll
    L_aok:
    s_mov_b64 exec, -1
    L_pollok:
    s_barrier
    """)
    for i in range(4):
        p(f"s_mov_b32 s{sT2}, {i * 8192}")
        p(f"buffer_load_dword v{dQ+i}, v{aQ}, s[{srdV}:{srdV+3}], s{sT2} offen sc1")
    p("L_dpoll:")
    for k in range(8):
        p(f"s_mov_b32 s{sT2}, {k * 2048}")
        p(f"buffer_load_dword v{dP+k}, v{aP}, s[{srdWS}:{srdWS+3}], s{sT2} offen sc1")
    for i in range(4):
        p(f"buffer_load_dwordx4 {r4(dML+4*i)}, v{aML}, s[{srdWS}:{srdWS+3}], 0 offen offset:{16*i} sc1")
    p("s_waitcnt vmcnt(0)")
    p(f"v_max_u32 v102, v{dP}, v{dP+1}")
    for k in range(2, 8, 2): p(f"v_max3_u32 v102, v102, v{dP+k}, v{dP+k+1}")
    for k in range(0, 16, 2): p(f"v_max3_u32 v102, v102, v{dML+k}, v{dML+k+1}")
    p(f"""
    v_cmp_eq_u32 vcc, -1, v102
    s_cbranch_vccz L_dok
    s_add_u32 s{sSPIN}, s{sSPIN}, 1
    s_cmp_ge_u32 s{sSPIN}, {SPIN_MAX}
    s_cbranch_scc1 L_fin
    s_branch L_dpoll
    L_dok:
    v_mov_b32 v{acc}, 0
    """)
    for i in range(4):
        m0, l0, m1, l1 = dML+4*i, dML+4*i+1, dML+4*i+2, dML+4*i+3
        p(f"""
        v_max_f32 v102, v{m0}, v{m1}
        v_sub_f32 v{m0}, v{m0}, v102
        v_sub_f32 v{m1}, v{m1}, v102
        v_mul_f32 v{m0}, s{sL2E}, v{m0}
        v_mul_f32 v{m1}, s{sL2E}, v{m1}
        v_exp_f32 v{m0}, v{m0}
        v_exp_f32 v{m1}, v{m1}
        v_mul_f32 v102, v{m0}, v{l0}
        v_fma_f32 v102, v{m1}, v{l1}, v102
        v_rcp_f32 v102, v102
        v_mul_f32 v104, v{m0}, v{dP+2*i}
        v_fma_f32 v104, v{m1}, v{dP+2*i+1}, v104
        v_fma_f32 v{acc}, v104, v102, v{acc}
        """)
    p(f"""
    v_add_f32 v{dQ}, v{dQ}, v{dQ+1}
    v_add_f32 v{dQ+2}, v{dQ+2}, v{dQ+3}
    v_add_f32 v{accq}, v{dQ}, v{dQ+2}
    v_lshlrev_b32 v102, 2, v0
    ds_write_b32 v102, v{acc} offset:5120
    ds_write_b32 v102, v{accq} offset:6144
    s_waitcnt lgkmcnt(0)
    s_barrier
    s_cmp_lg_u32 s{sWAVE}, 0
    s_cbranch_scc1 L_fin
    v_lshlrev_b32 v102, 2, v{vCOL}
    v_mov_b32 v103, 0
    ds_read_b128 v[104:107], v103 offset:8192
    """)
    for g in range(8):
        p(f"ds_read_b32 v{dP+g}, v102 offset:{5120 + g*128}")
        p(f"ds_read_b32 v{dML+g}, v102 offset:{6144 + g*128}")
    p("s_waitcnt lgkmcnt(0)")
    for base in (dP, dML):
        p(f"""
        v_add_f32 v{base}, v{base}, v{base+1}
        v_add_f32 v{base+2}, v{base+2}, v{base+3}
        v_add_f32 v{base+4}, v{base+4}, v{base+5}
        v_add_f32 v{base+6}, v{base+6}, v{base+7}
        v_add_f32 v{base}, v{base}, v{base+2}
        v_add_f32 v{base+4}, v{base+4}, v{base+6}
        v_add_f32 v{base}, v{base}, v{base+4}
        """)
    p(f"""
    v_add_f32 v104, v104, v105
    v_add_f32 v106, v106, v107
    v_add_f32 v104, v104, v106
    """)
    gate_math(p, 104, None, 105)
    srd(p, srdK, sOUT, None, 4096)
    p(f"""
    v_cvt_pk_bf16_f32 v106, v{dP}, v{dML}
    v_lshlrev_b32 v107, 16, v106
    v_and_b32 v106, s{sHI}, v106
    v_mul_f32 v107, v104, v107
    v_mul_f32 v106, v105, v106
    v_cvt_pk_bf16_f32 v106, v107, v106
    v_lshlrev_b32 v107, 16, v106
    v_and_b32 v106, s{sHI}, v106
    v_add_f32 v106, v106, v107
    v_cvt_pk_bf16_f32 v106, v106, v106
    s_lshl_b32 s{sT0}, s{sB}, 10
    s_lshl_b32 s{sT1}, s{sCB}, 6
    s_add_u32 s{sT0}, s{sT0}, s{sT1}
    v_lshlrev_b32 v102, 1, v{vCOL}
    v_add_u32 v102, s{sT0}, v102
    s_mov_b64 exec, 0xffffffff
    buffer_store_short v106, v102, s[{srdK}:{srdK+3}], 0 offen
    s_mov_b64 exec, -1
    """)

def ffn(p):
    sJ = sH
    vXP = 50
    vSEL = 4
    vD0, vD1 = 12, 16
    vWD = 64
    srdG, srdU = srdK, srdV
    p.vmq = []
    p("L_ffn:")
    if O.prio: p("s_setprio 3")
    p(f"s_sub_u32 s{sJ}, s2, {NATT}")
    if O.ffn_even:
        p(f"""
        s_and_b32 s{sT0}, s{sJ}, 1
        s_cmp_lg_u32 s{sT0}, 0
        s_cbranch_scc1 L_end
        s_lshr_b32 s{sJ}, s{sJ}, 1
        """)
    srd(p, srdX, sX, None, 4096)
    p(f"""
    s_lshl_b32 s{sT0}, s{sWAVE}, 8
    v_lshlrev_b32 v{vT}, 1, v{vLANE}
    v_add_u32 v{vT}, s{sT0}, v{vT}
    v_add_u32 v{vT+1}, 2048, v{vT}
    """)
    xr = 22
    for b in range(4):
        for u in range(2):
            p.vm(f"buffer_load_ushort v{xr + 2*b + u}, v{vT + (b >> 1)}, s[{srdX}:{srdX+3}], 0 offen offset:{(b & 1) * 1024 + u * 128}", "x")
    srd(p, srdG, sWG, None, 512 * 3584)
    srd(p, srdU, sWU, None, 512 * 3584)
    p(f"""
    s_lshl_b32 s{sT0}, s{sWAVE}, 3
    v_add_u32 v{vT+5}, s{sT0}, v{vT+4}
    v_mul_u32_u24 v{vT+5}, {16 * 3584}, v{vT+5}
    v_and_b32 v{vT+6}, 7, v{vLANE}
    v_lshlrev_b32 v{vT+6}, 4, v{vT+6}
    s_lshl_b32 s{sT0}, s{sJ}, 7
    v_add3_u32 v20, v{vT+5}, v{vT+6}, s{sT0}
    s_mov_b32 s{sOFF1}, 0x00ff00ff
    s_mov_b32 s{sOFF2}, 0xff00ff00
    """)
    for half, (sr, mk) in enumerate(((srdG, sOFF1), (srdU, sOFF2))):
        p(f"s_mov_b32 exec_lo, s{mk}")
        p(f"s_mov_b32 exec_hi, s{mk}")
        p(f"s_mov_b32 s{sT2}, 0")
        for t in range(32):
            p.vm(f"buffer_load_dwordx4 {r4(vWA + 4*t)}, v20, s[{sr}:{sr+3}], s{sT2} offen {O.wpol}", ("W", half, t))
            if t == 15: p(f"s_add_u32 s{sT2}, s{sT2}, {49 * 3584}")
            elif t < 31: p(f"s_add_u32 s{sT2}, s{sT2}, 3584")
        if half == 0: p.wait_vm(("W", 0, 15))
    p("s_mov_b64 exec, -1")
    p(f"s_lshl_b32 s{sT0}, s{sJ}, 16")
    p(f"s_sub_u32 s{sT1}, {1792 * 1024}, s{sT0}")
    srd(p, srdW, sWD, f"s{sT0}", f"s{sT1}")
    p(f"""
    s_lshl_b32 s{sT0}, s{sWAVE}, 8
    v_lshlrev_b32 v{vW}, 14, v{vT+4}
    v_add3_u32 v{vW}, v{vW}, v{vT+3}, s{sT0}
    v_and_b32 v{vT+5}, 8, v{vLANE}
    v_mov_b32 v{vT+6}, 0x0100
    v_mov_b32 v{vT+7}, 0x0302
    v_cmp_eq_u32 vcc, 0, v{vT+5}
    v_cndmask_b32 v{vT+6}, v{vT+7}, v{vT+6}, vcc
    v_lshlrev_b32 v{vT+7}, 16, v{vT+6}
    v_or_b32 v{vT+7}, 0x0c0c, v{vT+7}
    v_or_b32 v{vT+6}, 0x0c0c0000, v{vT+6}
    v_and_b32 v{vT+5}, 1, v{vLANE}
    v_cmp_eq_u32 vcc, 0, v{vT+5}
    v_cndmask_b32 v{vT+6}, v{vT+7}, v{vT+6}, vcc
    v_bfe_u32 v{vT+5}, v{vLANE}, 1, 2
    v_mov_b32 v{vT+7}, 0x0c0c0c0c
    """)
    for j in range(4):
        p(f"v_cmp_eq_u32 vcc, {j}, v{vT+5}")
        p(f"v_cndmask_b32 v{vSEL+j}, v{vT+7}, v{vT+6}, vcc")
    for pr in range(2):
        for u in range(2):
            p(f"v_lshl_or_b32 v{vXP + 2*pr + u}, v{xr + 2*(2*pr+1) + u}, 16, v{xr + 2*(2*pr) + u}")
    for r in range(8): p(f"v_mov_b32 v{vD0 + r}, 0")
    p.wait_vm(("W", 1, 7))
    for t in range(16):
        if t & 3 == 0: p(f"s_mov_b32 s{sT2}, {(t & ~3) * 1024}")
        p.vm(f"buffer_load_dwordx4 {r4(vWD + 4*t)}, v{vW}, s[{srdW}:{srdW+3}], s{sT2} offen offset:{(t & 3) * 1024} {O.wpol}", ("D", t))
    stamp(p, 2)
    vBC = 30
    def step(src_of_pair, lane):
        for pr in range(2):
            p(f"v_mov_b32_dpp v{vBC+pr}, v{src_of_pair(pr)} row_newbcast:{lane} row_mask:0xf bank_mask:0xf")
        for pr in range(2):
            for j in range(4):
                p(f"v_perm_b32 v{vA + 4*pr + j}, v{vBC+pr}, v{vBC+pr}, v{vSEL+j}")
    for t in range(32):
        step(lambda pr: vXP + 2*pr + (t >> 4), t & 15)
        if t % 2 == 0: p.wait_vm(("W", 1, t + 1))
        p(f"v_mfma_f32_16x16x32_bf16 {r4(vD0)}, {r4(vA)}, {r4(vWA + 4*t)}, {r4(vD0)}")
        p(f"v_mfma_f32_16x16x32_bf16 {r4(vD1)}, {r4(vA+4)}, {r4(vWA + 4*t)}, {r4(vD1)}")
    stamp(p, 4)
    p(f"""
    s_lshl_b32 s{sT0}, s{sWAVE}, 11
    v_lshlrev_b32 v{vT}, 4, v{vLANE}
    v_add_u32 v{vT}, s{sT0}, v{vT}
    ds_write_b128 v{vT}, {r4(vD0)}
    ds_write_b128 v{vT}, {r4(vD1)} offset:1024
    s_lshr_b32 s{sT0}, s{sWAVE}, 1
    s_lshl_b32 s{sT0}, s{sT0}, 10
    s_and_b32 s{sT1}, s{sWAVE}, 1
    s_lshl_b32 s{sT2}, s{sT1}, 9
    s_add_u32 s{sT0}, s{sT0}, s{sT2}
    v_bfe_u32 v{vT+1}, v{vLANE}, 2, 1
    v_lshlrev_b32 v{vT+1}, 8, v{vT+1}
    v_lshrrev_b32 v{vT+2}, 3, v{vLANE}
    v_lshl_add_u32 v{vT+1}, v{vT+2}, 4, v{vT+1}
    v_and_b32 v{vT+2}, 3, v{vLANE}
    v_lshl_add_u32 v{vT+1}, v{vT+2}, 2, v{vT+1}
    v_add_u32 v{vT+1}, s{sT0}, v{vT+1}
    s_waitcnt lgkmcnt(0)
    s_barrier
    """)
    for w in range(4):
        p(f"ds_read_b32 v{vP+w}, v{vT+1} offset:{w*2048}")
        p(f"ds_read_b32 v{vP+4+w}, v{vT+1} offset:{w*2048 + 128}")
    h1, h2, t0, t1 = vP, vP+4, vP+1, vP+2
    C0 = 0x3F4C422A
    C1 = 0x3D372713
    p(f"""
    s_waitcnt lgkmcnt(0)
    v_add_f32 v{vP}, v{vP}, v{vP+1}
    v_add_f32 v{vP+2}, v{vP+2}, v{vP+3}
    v_add_f32 v{vP+4}, v{vP+4}, v{vP+5}
    v_add_f32 v{vP+6}, v{vP+6}, v{vP+7}
    v_add_f32 v{h1}, v{vP}, v{vP+2}
    v_add_f32 v{h2}, v{vP+4}, v{vP+6}
    v_cvt_pk_bf16_f32 v{t0}, v{h1}, v{h2}
    v_lshlrev_b32 v{h1}, 16, v{t0}
    v_and_b32 v{h2}, s{sHI}, v{t0}
    v_mul_f32 v{t0}, v{h1}, v{h1}
    v_mul_f32 v{t0}, v{t0}, v{h1}
    v_mov_b32 v{t1}, {hex(C1)}
    v_fma_f32 v{t0}, v{t0}, v{t1}, v{h1}
    v_mul_f32 v{t0}, {hex(C0)}, v{t0}
    v_mul_f32 v{t0}, s{sL2E}, v{t0}
    v_mul_f32 v{t0}, -2.0, v{t0}
    v_exp_f32 v{t0}, v{t0}
    v_add_f32 v{t0}, 1.0, v{t0}
    v_rcp_f32 v{t0}, v{t0}
    v_mul_f32 v{t0}, v{h1}, v{t0}
    v_cvt_pk_bf16_f32 v{t0}, v{t0}, v{t0}
    v_lshlrev_b32 v{t0}, 16, v{t0}
    v_mul_f32 v{t0}, v{t0}, v{h2}
    v_cvt_pk_bf16_f32 v{t0}, v{t0}, v{t0}
    s_lshr_b32 s{sT0}, s{sWAVE}, 1
    s_lshl_b32 s{sT0}, s{sT0}, 8
    s_lshl_b32 s{sT1}, s{sT1}, 1
    s_add_u32 s{sT0}, s{sT0}, s{sT1}
    v_lshlrev_b32 v{vT+2}, 2, v{vLANE}
    v_add_u32 v{vT+3}, s{sT0}, v{vT+2}
    ds_write_b16 v{vT+3}, v{t0} offset:8192
    s_waitcnt lgkmcnt(0)
    s_barrier
    ds_read_b32 v{vXP}, v{vT+2} offset:8192
    ds_read_b32 v{vXP+1}, v{vT+2} offset:8448
    """)
    for r in range(8): p(f"v_mov_b32 v{vD0 + r}, 0")
    p("s_waitcnt lgkmcnt(0)")
    stamp(p, 5)
    for t in range(16):
        step(lambda pr: vXP + pr, t)
        if t % 2 == 0: p.wait_vm(("D", t + 1))
        p(f"v_mfma_f32_16x16x32_bf16 {r4(vD0)}, {r4(vA)}, {r4(vWD + 4*t)}, {r4(vD0)}")
        p(f"v_mfma_f32_16x16x32_bf16 {r4(vD1)}, {r4(vA+4)}, {r4(vWD + 4*t)}, {r4(vD1)}")
    stamp(p, 6)
    srd(p, srdWS, sWS, None, WS_BYTES)
    srd(p, srdD, sDBG, None, 256)
    p(f"""
    s_lshl_b32 s{sT0}, s{sJ}, 13
    s_lshl_b32 s{sT1}, s{sWAVE}, 9
    s_add_u32 s{sT0}, s{sT0}, s{sT1}
    s_add_u32 s{sT0}, s{sT0}, {WS_Q}
    v_lshrrev_b32 v{vT}, 5, v{vLANE}
    v_lshlrev_b32 v{vT}, 11, v{vT}
    v_bfe_u32 v{vT+1}, v{vLANE}, 4, 1
    v_lshl_add_u32 v{vT}, v{vT+1}, 4, v{vT}
    v_and_b32 v{vT+1}, 15, v{vLANE}
    v_lshl_add_u32 v{vT}, v{vT+1}, 5, v{vT}
    v_add_u32 v{vT}, s{sT0}, v{vT}
    s_mov_b32 s{sT2}, 4096
    buffer_store_dwordx4 {r4(vD0)}, v{vT}, s[{srdWS}:{srdWS+3}], 0 offen sc1
    buffer_store_dwordx4 {r4(vD1)}, v{vT}, s[{srdWS}:{srdWS+3}], s{sT2} offen sc1
    v_mov_b32 v{vT+1}, 32
    v_mov_b32 v{vT+2}, 1
    s_waitcnt vmcnt(0)
    s_barrier
    s_cmp_lg_u32 s{sWAVE}, 0
    s_cbranch_scc1 L_fin
    s_mov_b64 exec, 1
    buffer_atomic_add v{vT+2}, v{vT+1}, s[{srdD}:{srdD+3}], 0 offen sc1
    s_mov_b64 exec, -1
    """)

def kernel1():
    p = Prog()
    common_prologue(p)
    p("s_waitcnt lgkmcnt(0)")
    stamp(p, 1)
    p(f"""
    s_cmp_ge_u32 s2, {NATT}
    s_cbranch_scc1 L_ffn
    """)
    routine = attention(p)
    p.ins += routine
    ffn(p)
    p("L_fin:")
    if O.stamps:
        p("s_waitcnt vmcnt(0)")
        stamp(p, 8)
        write_stamps(p, 9)
    p("L_end:")
    p("s_endpgm")
    p.finish()
    p.check_loop("L_kloop", "s_cbranch_scc1 L_kloop")
    p.check_loop("L_vloop", "s_cbranch_scc1 L_vloop")
    return p

def desc(name, vgpr, sgpr):
    acc = (vgpr + 3) // 4 * 4
    return f""".amdhsa_kernel {name}
  .amdhsa_next_free_vgpr {vgpr}
  .amdhsa_next_free_sgpr {sgpr}
  .amdhsa_accum_offset {acc}
  .amdhsa_group_segment_fixed_size 0
  .amdhsa_kernarg_size 104
  .amdhsa_user_sgpr_count 2
  .amdhsa_user_sgpr_kernarg_segment_ptr 1
  .amdhsa_system_sgpr_workgroup_id_x 1
  .amdhsa_float_denorm_mode_32 3
.end_amdhsa_kernel
"""

def gen():
    k1 = NAME + "_kernel"
    out = HEADER
    out += f"; @launch grid=({nwg()},1,1) block=(256,1,1) lds=49152\n"
    out += '.amdgcn_target "amdgcn-amd-amdhsa--gfx950"\n.text\n'
    out += f".globl {k1}\n.p2align 8\n.type {k1},@function\n{k1}:\n" + kernel1().text()
    out += '.section .rodata,"a"\n.p2align 6\n' + desc(k1, 256, 102 if O.stamps else 92)
    return out

if __name__ == "__main__":
    for a in sys.argv[2:]:
        if "=" in a:
            k, v = a.split("=", 1); setattr(O, k, v.replace("_", " ") if k.endswith("pol") else eval(v))
        else: setattr(O, a, True)
    open(sys.argv[1], "w").write(gen())
```

```python
import sys
from asmlib import Prog

NAME = "gated_mix__mha_block_cached__geglu_ffn__decode"
HEADER = open("gated_mix__mha_block_cached__geglu_ffn__decode.s.ref").read().split("; Override launch")[0]

NATT = 256
NFFN = 28
L2E = 0x3FB8AA3B
SCALE = 0x3DB504F3
WS_P, WS_ML, WS_Q = 0, 0x80000, 0x100000
WS_BYTES = 0x140000
WS_ST = 0x200000
SPIN_MAX = 1 << 22

class O:
    stamps = False
    wpol = ""
    kvpol = "nt"
    ffn_even = False
    prio = True
    noffn = False
    sleep = 16
    rot = 0
    dbgtime = False
    nb = 2

sX, sK, sV, sWQ, sWO, sBX, sWG, sWU, sWD, sGW, sOUT, sDBG, sWS = 16, 18, 20, 22, 24, 26, 28, 30, 32, 34, 36, 38, 40
srdK, srdV, srdW, srdX, srdWS, srdD = 44, 48, 52, 56, 60, 64
sWAVE, sH, sB, sR = 3, 4, 5, 6
sOFF, sCNT, sL2E, sSCALE, sRET = 8, 9, 10, 11, 12
sT0, sT1, sT2 = 14, 15, 7
sHI, sOFF1, sOFF2, sSPIN = 68, 69, 42, 43
sST = 70
sROT = 89
vLANE, vKV0, vKV1 = 1, 2, 3
vMASK, vQ, vO = 4, 8, 12
vM, vL = 16, 17
vP, vR, vU, vA, vT = 18, 26, 30, 32, 40
vW, vWO, vX = 48, 49, 50
vSC, vW0, vW1 = 62, 60, 61
LDS_SC = 16384
vG = 52
BANK_A, BANK_B, BANK_C = 64, 128, 192
vWA = 128

def nwg(): return NATT if O.noffn else NATT + (2 * NFFN if O.ffn_even else NFFN)

def srd(p, dst, base, off_lo=None, size=None):
    if off_lo is None:
        p(f"s_mov_b32 s{dst}, s{base}")
        p(f"s_and_b32 s{dst+1}, s{base+1}, 0xffff")
    else:
        p(f"s_add_u32 s{dst}, s{base}, {off_lo}")
        p(f"s_addc_u32 s{dst+1}, s{base+1}, 0")
        p(f"s_and_b32 s{dst+1}, s{dst+1}, 0xffff")
    p(f"s_mov_b32 s{dst+2}, {size}")
    p(f"s_mov_b32 s{dst+3}, 0x20000")

def r4(b): return f"v[{b}:{b+3}]"

def stamp(p, k):
    if O.stamps: p(f"s_memrealtime s[{sST+2*k}:{sST+2*k+1}]")

def write_stamps(p, n):
    if not O.stamps: return
    p("s_mov_b64 exec, 1")
    p(f"s_getreg_b32 s{sST+22}, hwreg(HW_REG_HW_ID)")
    p(f"s_getreg_b32 s{sST+23}, hwreg(HW_REG_XCC_ID)")
    p("s_waitcnt lgkmcnt(0)")
    p(f"s_lshl_b32 s{sST+24}, s2, 2")
    p(f"s_add_u32 s{sST+24}, s{sST+24}, s{sWAVE}")
    p(f"s_lshl_b32 s{sST+24}, s{sST+24}, 6")
    p(f"s_add_u32 s{sST+24}, s{sST+24}, {WS_ST}")
    p(f"v_mov_b32 v60, s{sST+24}")
    p("s_mov_b32 s96, s40")
    p("s_and_b32 s97, s41, 0xffff")
    p("s_mov_b32 s98, 0x400000")
    p("s_mov_b32 s99, 0x20000")
    for k in range(n):
        p(f"v_mov_b32 v61, s{sST+2*k}")
        p(f"buffer_store_dword v61, v60, s[96:99], 0 offen offset:{4*k}")
    p(f"v_mov_b32 v61, s{sST+22}")
    p("buffer_store_dword v61, v60, s[96:99], 0 offen offset:56")
    p(f"v_mov_b32 v61, s{sST+23}")
    p("buffer_store_dword v61, v60, s[96:99], 0 offen offset:60")

def common_prologue(p):
    p(f"""
    s_cmp_ge_u32 s2, {nwg()}
    s_cbranch_scc1 L_end
    """)
    stamp(p, 0)
    if O.dbgtime: p("s_memrealtime s[70:71]")
    p(f"""
    s_load_dwordx16 s[16:31], s[0:1], 0
    s_load_dwordx8 s[32:39], s[0:1], 64
    s_load_dwordx2 s[40:41], s[0:1], 96
    v_and_b32 v{vLANE}, 63, v0
    v_lshrrev_b32 v{vT}, 6, v0
    s_mov_b32 s{sL2E}, {hex(L2E)}
    v_readfirstlane_b32 s{sWAVE}, v{vT}
    s_mov_b32 s{sSCALE}, {hex(SCALE)}
    s_mov_b32 s{sHI}, 0xffff0000
    v_and_b32 v{vT}, 1, v{vLANE}
    v_lshlrev_b32 v{vT}, 4, v{vT}
    v_mov_b32 v{vT+1}, 0xffff
    v_lshlrev_b32 v{vT+1}, v{vT}, v{vT+1}
    v_bfe_u32 v{vT+2}, v{vLANE}, 1, 3
    """)
    for j in range(4):
        p(f"v_cmp_eq_u32 vcc, {j}, v{vT+2}")
        p(f"v_cndmask_b32 v{vMASK+j}, 0, v{vT+1}, vcc")
    p(f"""
    v_and_b32 v{vT+3}, 15, v{vLANE}
    v_lshlrev_b32 v{vT+3}, 4, v{vT+3}
    v_lshrrev_b32 v{vT+4}, 4, v{vLANE}
    """)

def set_off(p, reg, k):
    if O.rot:
        p(f"s_add_u32 s{reg}, s{sROT}, {k * 32768}")
        p(f"s_and_b32 s{reg}, s{reg}, 0xfffff")
    else:
        p(f"s_mov_b32 s{reg}, {k * 32768}")

def adv_off(p, reg):
    p(f"s_add_u32 s{reg}, s{reg}, 32768")
    if O.rot: p(f"s_and_b32 s{reg}, s{reg}, 0xfffff")

def kv_load(p, reg, isv, t, soff, tag):
    d = srdV if isv else srdK
    p.vm(f"buffer_load_dwordx4 {r4(reg)}, v{vKV0 + (t >> 2)}, s[{d}:{d+3}], s{soff} offen offset:{(t & 3) * 1024} {O.kvpol}", tag)

def wo_load(p, t):
    u, tt = t >> 4, t & 15
    if tt & 3 == 0: p(f"s_mov_b32 s{sT2}, {(64 * u + (tt & ~3)) * 1024}")
    p.vm(f"buffer_load_dwordx4 {r4(vWA + 4*t)}, v{vWO}, s[{srdW}:{srdW+3}], s{sT2} offen offset:{(tt & 3) * 1024} {O.wpol}", ("W", t))

def proj_routine(p):
    p("L_proj:")
    def mk(t):
        for j in range(4):
            p(f"v_and_b32_dpp v{vA + 4*(t&1) + j}, v{vX + (t >> 4)}, v{vMASK+j} row_newbcast:{t & 15} row_mask:0xf bank_mask:0xf")
    mk(0)
    for t in range(32):
        if t + 1 < 32: mk(t + 1)
        if t % 2 == 0: p.wait_vm(("W", t + 1))
        p(f"v_mfma_f32_16x16x32_bf16 {r4(vO)}, {r4(vA + 4*(t&1))}, {r4(vWA + 4*t)}, {r4(vO)}")
    p("s_nop 7")
    p(f"s_setpc_b64 s[{sRET}:{sRET+1}]")

def bank_base(bank): return 64 + 32 * bank

def k_tile(p, bank, refill, scoff):
    base = bank_base(bank)
    for t in range(8):
        if t % 2 == 0: p.wait_vm((bank, t + 1))
        k = base + 4 * t
        p(f"v_dot2_f32_bf16 v{vP+t}, v{k}, v{vQ}, 0")
        for j in range(1, 4):
            p(f"v_dot2_f32_bf16 v{vP+t}, v{k+j}, v{vQ+j}, v{vP+t}")
        refill(t)
    for a in range(4):
        p(f"v_add_f32_dpp v{vR+a}, v{vP+a}, v{vP+a} row_mirror row_mask:0xf bank_mask:0x3")
    for a in range(4):
        p(f"v_add_f32_dpp v{vR+a}, v{vP+a+4}, v{vP+a+4} row_mirror row_mask:0xf bank_mask:0xc")
    p(f"v_add_f32_dpp v{vU}, v{vR}, v{vR} row_half_mirror row_mask:0xf bank_mask:0x5")
    p(f"v_add_f32_dpp v{vU+1}, v{vR+1}, v{vR+1} row_half_mirror row_mask:0xf bank_mask:0x5")
    p(f"v_add_f32_dpp v{vU}, v{vR+2}, v{vR+2} row_half_mirror row_mask:0xf bank_mask:0xa")
    p(f"v_add_f32_dpp v{vU+1}, v{vR+3}, v{vR+3} row_half_mirror row_mask:0xf bank_mask:0xa")
    for qp in ("[1,0,3,2]", "[2,3,0,1]"):
        for u in range(2):
            p(f"v_add_f32_dpp v{vU+u}, v{vU+u}, v{vU+u} quad_perm:{qp} row_mask:0xf bank_mask:0xf")
    a0, a1, w = vT, vT+1, vT+2
    p(f"""
    v_cvt_pk_bf16_f32 v{w}, v{vU}, v{vU+1}
    v_lshlrev_b32 v{a0}, 16, v{w}
    v_and_b32 v{a1}, s{sHI}, v{w}
    v_mul_f32 v{a0}, s{sSCALE}, v{a0}
    v_mul_f32 v{a1}, s{sSCALE}, v{a1}
    v_cvt_pk_bf16_f32 v{w}, v{a0}, v{a1}
    v_lshlrev_b32 v{a0}, 16, v{w}
    v_and_b32 v{a1}, s{sHI}, v{w}
    ds_write_b32 v{vSC}, v{w} offset:{LDS_SC + scoff}
    v_max3_f32 v{vM}, v{vM}, v{a0}, v{a1}
    """)

def v_tile(p, bank, refill, wreg, prefetch_next):
    base = bank_base(bank)
    a0, a1, p0, p1 = vT, vT+1, vT+6, vT+7
    neg = vT + 4
    p(f"""
    v_lshlrev_b32 v{a0}, 16, v{wreg}
    v_and_b32 v{a1}, s{sHI}, v{wreg}
    """)
    if prefetch_next is not None: prefetch_next()
    p(f"""
    v_fma_f32 v{p0}, v{a0}, s{sL2E}, -v{neg}
    v_fma_f32 v{p1}, v{a1}, s{sL2E}, -v{neg}
    v_exp_f32 v{p0}, v{p0}
    v_exp_f32 v{p1}, v{p1}
    v_add_f32 v{vL}, v{vL}, v{p0}
    v_cvt_pk_bf16_f32 v{a0}, v{p0}, v{p0}
    v_cvt_pk_bf16_f32 v{a1}, v{p1}, v{p1}
    v_add_f32 v{vL}, v{vL}, v{p1}
    """)
    def mk(t):
        for j in range(4):
            p(f"v_and_b32_dpp v{vA + 4*(t&1) + j}, v{a0 + (t & 1)}, v{vMASK+j} row_newbcast:{4*(t >> 1)} row_mask:0xf bank_mask:0xf")
    mk(0)
    for t in range(8):
        if t + 1 < 8: mk(t + 1)
        if t % 2 == 0: p.wait_vm((bank, t + 1))
        p(f"v_mfma_f32_16x16x32_bf16 {r4(vO)}, {r4(vA + 4*(t&1))}, {r4(base + 4*t)}, {r4(vO)}")
        refill(t)

def gate_math(p, z, t0, t1):
    p(f"""
    v_cvt_pk_bf16_f32 v{z}, v{z}, v{z}
    v_lshlrev_b32 v{z}, 16, v{z}
    v_mul_f32 v{z}, s{sL2E}, v{z}
    v_sub_f32 v{z}, 0, v{z}
    v_exp_f32 v{z}, v{z}
    v_add_f32 v{z}, 1.0, v{z}
    v_rcp_f32 v{z}, v{z}
    v_cvt_pk_bf16_f32 v{z}, v{z}, v{z}
    v_lshlrev_b32 v{z}, 16, v{z}
    v_sub_f32 v{t1}, 1.0, v{z}
    v_cvt_pk_bf16_f32 v{t1}, v{t1}, v{t1}
    v_lshlrev_b32 v{t1}, 16, v{t1}
    """)

def attention(p):
    sRED = 88
    p(f"""
    s_and_b32 s{sT0}, s2, 7
    s_lshr_b32 s{sT1}, s2, 3
    s_lshr_b32 s{sH}, s{sT1}, 3
    s_lshl_b32 s{sT0}, s{sT0}, 2
    s_add_u32 s{sH}, s{sH}, s{sT0}
    s_lshr_b32 s{sB}, s{sT1}, 1
    s_and_b32 s{sB}, s{sB}, 3
    s_and_b32 s{sT1}, s{sT1}, 1
    s_lshl_b32 s{sR}, s{sB}, 5
    s_add_u32 s{sR}, s{sR}, s{sH}
    s_lshl_b32 s{sR}, s{sR}, 1
    s_add_u32 s{sR}, s{sR}, s{sT1}
    s_and_b32 s{sRED}, s{sR}, 3
    """)
    if O.rot:
        p(f"""
        s_mul_i32 s{sROT}, s{sR}, {O.rot}
        s_lshr_b32 s{sT0}, s{sR}, 5
        s_add_u32 s{sROT}, s{sROT}, s{sT0}
        s_and_b32 s{sROT}, s{sROT}, 31
        s_lshl_b32 s{sROT}, s{sROT}, 15
        """)
    srd(p, srdWS, sWS, None, WS_BYTES)
    p(f"""
    s_lshl_b32 s{sT0}, s{sR}, 11
    s_lshl_b32 s{sT1}, s{sWAVE}, 9
    s_add_u32 s{sT0}, s{sT0}, s{sT1}
    v_lshlrev_b32 v{vT}, 3, v{vLANE}
    v_add_u32 v{vT}, s{sT0}, v{vT}
    v_mov_b32 v{vP}, -1
    v_mov_b32 v{vP+1}, -1
    s_lshl_b32 s{sT0}, s{sR}, 3
    s_add_u32 s{sT0}, s{sT0}, {WS_ML}
    v_mov_b32 v{vT+1}, s{sT0}
    """)
    p.vm(f"buffer_store_dwordx2 v[{vP}:{vP+1}], v{vT}, s[{srdWS}:{srdWS+3}], 0 offen sc1", "inv")
    p.vm(f"buffer_store_dwordx2 v[{vP}:{vP+1}], v{vT+1}, s[{srdWS}:{srdWS+3}], 0 offen sc1", "inv")
    srd(p, srdX, sX, None, 4096)
    p(f"""
    s_lshl_b32 s{sT0}, s{sWAVE}, 8
    s_lshl_b32 s{sT1}, s{sB}, 10
    s_add_u32 s{sT0}, s{sT0}, s{sT1}
    v_lshlrev_b32 v{vT}, 1, v{vLANE}
    v_add_u32 v{vT}, s{sT0}, v{vT}
    """)
    p.vm(f"buffer_load_ushort v{vX}, v{vT}, s[{srdX}:{srdX+3}], 0 offen", "x")
    p.vm(f"buffer_load_ushort v{vX+1}, v{vT}, s[{srdX}:{srdX+3}], 0 offen offset:128", "x")
    p(f"s_lshl_b32 s{sT0}, s{sH}, 8")
    p(f"s_sub_u32 s{sT1}, {4 << 20}, s{sT0}")
    srd(p, srdW, sWQ, f"s{sT0}", f"s{sT1}")
    p(f"""
    s_lshl_b32 s{sT0}, s{sWAVE}, 20
    v_lshlrev_b32 v{vW}, 17, v{vT+4}
    v_add3_u32 v{vW}, v{vW}, v{vT+3}, s{sT0}
    s_lshl_b32 s{sT0}, s{sR}, 20
    s_lshr_b32 s{sT1}, s{sR}, 12
    """)
    for (d, b) in ((srdK, sK), (srdV, sV)):
        p(f"s_add_u32 s{d}, s{b}, s{sT0}")
        p(f"s_addc_u32 s{d+1}, s{b+1}, s{sT1}")
        p(f"s_and_b32 s{d+1}, s{d+1}, 0xffff")
        p(f"s_mov_b32 s{d+2}, {1 << 20}")
        p(f"s_mov_b32 s{d+3}, 0x20000")
    p(f"""
    s_lshl_b32 s{sT0}, s{sWAVE}, 13
    v_lshlrev_b32 v{vKV0}, 4, v{vLANE}
    v_add_u32 v{vKV0}, s{sT0}, v{vKV0}
    v_add_u32 v{vKV1}, 4096, v{vKV0}
    s_mov_b32 s{sOFF}, 0
    s_mov_b32 s{sT2}, 0
    """)
    for t in range(32):
        p.vm(f"buffer_load_dwordx4 {r4(vWA + 4*t)}, v{vW}, s[{srdW}:{srdW+3}], s{sT2} offen {O.wpol}", ("W", t))
        if t == 15: p(f"s_add_u32 s{sT2}, s{sT2}, {49 * 8192}")
        elif t < 31: p(f"s_add_u32 s{sT2}, s{sT2}, 8192")
    for bank in range(O.nb):
        set_off(p, sOFF, bank)
        for t in range(8): kv_load(p, bank_base(bank) + 4*t, 0, t, sOFF, (bank, t))
    p(f"""
    s_lshl_b32 s{sT0}, s{sWAVE}, 8
    v_lshlrev_b32 v{vWO}, 14, v{vT+4}
    v_add3_u32 v{vWO}, v{vWO}, v{vT+3}, s{sT0}
    v_lshlrev_b32 v{vG}, 1, v{vT+3}
    v_lshl_add_u32 v{vG+1}, v{vT+4}, 4, v{vG}
    s_lshl_b32 s{sT1}, s{sWAVE}, 9
    v_add_u32 v{vG+1}, s{sT1}, v{vG+1}
    v_mov_b32 v{vO}, 0
    v_mov_b32 v{vO+1}, 0
    v_mov_b32 v{vO+2}, 0
    v_mov_b32 v{vO+3}, 0
    """)
    p.wait_vm("x")
    p(f"""
    v_lshl_or_b32 v{vX}, v{vX}, 16, v{vX}
    v_lshl_or_b32 v{vX+1}, v{vX+1}, 16, v{vX+1}
    s_nop 1
    s_call_b64 s[{sRET}:{sRET+1}], L_proj
    """)
    mark = len(p.ins)
    proj_routine(p)
    routine = p.ins[mark:]
    p.ins = p.ins[:mark]
    stamp(p, 2)
    p(f"""
    s_mov_b64 exec, 0xffffffff
    ds_write_b128 v{vG+1}, {r4(vO)}
    s_mov_b64 exec, -1
    s_lshl_b32 s{sT0}, s{sH}, 17
    s_sub_u32 s{sT1}, {4 << 20}, s{sT0}
    """)
    srd(p, srdW, sWO, f"s{sT0}", f"s{sT1}")
    p(f"""
    s_waitcnt lgkmcnt(0)
    s_barrier
    """)
    qa = vP
    regs = [18, 26, 34, 52]
    for w in range(4):
        p(f"ds_read_b128 {r4(regs[w])}, v{vG} offset:{w*512}" if w < 3 else f"ds_read_b128 {r4(56)}, v{vG} offset:{w*512}")
        p(f"ds_read_b128 {r4(regs[w] + 4)}, v{vG} offset:{w*512 + 16}" if w < 3 else f"ds_read_b128 {r4(60)}, v{vG} offset:{w*512 + 16}")
    regs[3] = 56
    p(f"""
    v_mov_b32 v{vM}, 0xff7fffff
    v_mov_b32 v{vL}, 0
    v_mov_b32 v{vO}, 0
    v_mov_b32 v{vO+1}, 0
    v_mov_b32 v{vO+2}, 0
    v_mov_b32 v{vO+3}, 0
    s_waitcnt lgkmcnt(0)
    """)
    for i in range(8):
        p(f"v_add_f32 v{regs[0]+i}, v{regs[0]+i}, v{regs[1]+i}")
        p(f"v_add_f32 v{regs[2]+i}, v{regs[2]+i}, v{regs[3]+i}")
    for i in range(8):
        p(f"v_add_f32 v{regs[0]+i}, v{regs[0]+i}, v{regs[2]+i}")
    for j in range(4):
        p(f"v_cvt_pk_bf16_f32 v{vQ+j}, v{regs[0]+2*j}, v{regs[0]+2*j+1}")
    stamp(p, 3)
    step = 32768
    NB = O.nb
    def refill(bank, isv, extra=None):
        def f(t):
            kv_load(p, bank_base(bank) + 4*t, isv, t, sOFF, (bank, t))
            if extra: extra(t)
        return f
    none = lambda t: None
    adv = lambda: adv_off(p, sOFF)
    nxt_sc = lambda n: p(f"v_add_u32 v{vSC}, {256*n}, v{vSC}")
    set_off(p, sOFF, NB)
    p(f"""
    s_lshl_b32 s{sT0}, s{sWAVE}, 13
    v_lshlrev_b32 v{vSC}, 2, v{vLANE}
    v_add_u32 v{vSC}, s{sT0}, v{vSC}
    """)
    NPEEL = 12
    wo_next = [0]
    def wo_extra(t):
        if t % 2 == 0:
            wo_load(p, wo_next[0]); wo_next[0] += 1
    for i in range(NPEEL):
        k_tile(p, i % NB, refill(i % NB, 0, wo_extra if 2 <= i < 10 else None), 256 * (i & 1))
        adv()
        if i & 1: nxt_sc(2)
    assert wo_next[0] == 32
    q0 = list(p.vmq)
    assert q0 == [(b, t) for b in range(NB) for t in range(8)], q0
    p(f"s_mov_b32 s{sCNT}, {(30 - NPEEL) // 2}")
    p("L_kloop:")
    for i in range(2):
        k_tile(p, i % NB, refill(i % NB, 0), 256 * i)
        adv()
    nxt_sc(2)
    assert p.vmq == q0
    p(f"""
    s_sub_u32 s{sCNT}, s{sCNT}, 1
    s_cmp_lg_u32 s{sCNT}, 0
    s_cbranch_scc1 L_kloop
    """)
    srd(p, srdD, sDBG, None, 256)
    srd(p, srdX, sX, None, 4096)
    p(f"""
    s_mov_b32 s{srdW}, s{sGW}
    s_and_b32 s{srdW+1}, s{sGW+1}, 0xffff
    s_mov_b32 s{srdW+2}, 1024
    s_lshl_b32 s{sT0}, s{sB}, 10
    v_lshlrev_b32 v{vG+2}, 2, v0
    v_add_u32 v{vG+3}, s{sT0}, v{vG+2}
    """)
    p.vm(f"buffer_load_dword v{vG+5}, v{vG+3}, s[{srdX}:{srdX+3}], 0 offen", "G")
    p.vm(f"buffer_load_dword v{vG+6}, v{vG+2}, s[{srdW}:{srdW+3}], 0 offen", "G")
    for i in (30, 31):
        if i + NB >= 32:
            if i + NB == 32: set_off(p, sOFF, 0)
            k_tile(p, i % NB, refill(i % NB, 1), 256 * (i & 1))
        else:
            k_tile(p, i % NB, refill(i % NB, 0), 256 * (i & 1))
        adv()
    mx, neg = vT + 3, vT + 4
    p(f"""
    s_lshl_b32 s{sT0}, s{sWAVE}, 13
    v_lshlrev_b32 v{vSC}, 2, v{vLANE}
    v_add_u32 v{vSC}, s{sT0}, v{vSC}
    v_max_f32_dpp v{vM}, v{vM}, v{vM} row_half_mirror row_mask:0xf bank_mask:0xf
    s_waitcnt lgkmcnt(0)
    ds_read_b32 v{vW0}, v{vSC} offset:{LDS_SC}
    ds_read_b32 v{vW1}, v{vSC} offset:{LDS_SC + 256}
    v_max_f32_dpp v{vM}, v{vM}, v{vM} row_mirror row_mask:0xf bank_mask:0xf
    v_max_f32_dpp v{vM}, v{vM}, v{vM} row_bcast:15 row_mask:0xa bank_mask:0xf
    v_max_f32_dpp v{vM}, v{vM}, v{vM} row_bcast:31 row_mask:0xc bank_mask:0xf
    v_readlane_b32 s{sT0}, v{vM}, 63
    v_mov_b32 v{vM}, s{sT0}
    v_mul_f32 v{neg}, s{sL2E}, v{vM}
    v_add_u32 v{vSC}, 512, v{vSC}
    s_mov_b32 s{sCNT}, 15
    s_waitcnt lgkmcnt(0)
    """)
    stamp(p, 4)
    p.vmq = [t for t in p.vmq if t != "G"]
    p("L_vloop:")
    def pf(dst, off):
        return lambda: p(f"ds_read_b32 v{dst}, v{vSC} offset:{LDS_SC + off}")
    v_tile(p, 0, refill(0, 1), vW0, pf(vW0, 0))
    adv()
    v_tile(p, 1 % NB, refill(1 % NB, 1), vW1, pf(vW1, 256))
    adv()
    assert p.vmq == q0
    p(f"""
    v_add_u32 v{vSC}, 512, v{vSC}
    s_sub_u32 s{sCNT}, s{sCNT}, 1
    s_cmp_lg_u32 s{sCNT}, 0
    s_waitcnt lgkmcnt(0)
    s_cbranch_scc1 L_vloop
    """)
    stamp(p, 5)
    p(f"""
    s_lshl_b32 s{sT0}, s{sB}, 6
    s_cmp_eq_u32 s{sWAVE}, 0
    s_cselect_b32 s{sT0}, s{sT0}, 4096
    v_mov_b32 v{vG}, s{sT0}
    v_mov_b32 v{vG+1}, 1
    s_mov_b64 exec, 1
    """)
    p.vm(f"buffer_atomic_add v{vG+1}, v{vG}, s[{srdD}:{srdD+3}], 0 offen sc1", "ARR")
    p("s_mov_b64 exec, -1")
    v_tile(p, 0, refill(0, 1) if NB == 1 else none, vW0, None)
    v_tile(p, 1 % NB, none, vW1, None)
    stamp(p, 6)
    p(f"""
    v_add_f32_dpp v{vL}, v{vL}, v{vL} row_half_mirror row_mask:0xf bank_mask:0xf
    v_add_f32_dpp v{vL}, v{vL}, v{vL} row_mirror row_mask:0xf bank_mask:0xf
    v_add_f32_dpp v{vL}, v{vL}, v{vL} row_bcast:15 row_mask:0xa bank_mask:0xf
    v_add_f32_dpp v{vL}, v{vL}, v{vL} row_bcast:31 row_mask:0xc bank_mask:0xf
    v_readlane_b32 s{sT0}, v{vL}, 63
    v_and_b32 v{vT+3}, 15, v{vLANE}
    v_lshrrev_b32 v{vT+4}, 4, v{vLANE}
    v_mov_b32 v{vL}, s{sT0}
    v_lshlrev_b32 v{vT}, 5, v{vT+3}
    v_lshl_add_u32 v{vT+1}, v{vT+4}, 4, v{vT}
    s_lshl_b32 s{sT1}, s{sWAVE}, 9
    s_lshl_b32 s{sT0}, s{sWAVE}, 3
    v_add_u32 v{vT+2}, s{sT1}, v{vT+1}
    v_mov_b32 v{vT+5}, s{sT0}
    s_mov_b64 exec, 0xffffffff
    ds_write_b128 v{vT+2}, {r4(vO)} offset:2048
    s_mov_b64 exec, -1
    ds_write_b64 v{vT+5}, v[{vM}:{vM+1}] offset:4096
    v_lshlrev_b32 v{vT+6}, 2, v{vLANE}
    v_mov_b32 v{vT+5}, 0
    s_waitcnt lgkmcnt(0)
    s_barrier
    ds_read_b128 {r4(vP)}, v{vT+5} offset:4096
    ds_read_b128 {r4(vP+4)}, v{vT+5} offset:4112
    """)
    ob = 64
    for w in range(4):
        p(f"ds_read_b32 v{ob+2*w}, v{vT+6} offset:{2048 + w*512}")
        p(f"ds_read_b32 v{ob+2*w+1}, v{vT+6} offset:{2048 + w*512 + 256}")
    m = [vP, vP+2, vP+4, vP+6]; l = [vP+1, vP+3, vP+5, vP+7]
    p(f"""
    s_waitcnt lgkmcnt(8)
    v_max_f32 v{vM}, v{m[0]}, v{m[1]}
    v_max3_f32 v{vM}, v{vM}, v{m[2]}, v{m[3]}
    v_mul_f32 v{vT+7}, s{sL2E}, v{vM}
    """)
    for w in range(4): p(f"v_fma_f32 v{m[w]}, v{m[w]}, s{sL2E}, -v{vT+7}")
    for w in range(4): p(f"v_exp_f32 v{m[w]}, v{m[w]}")
    p(f"v_mul_f32 v{vL}, v{m[0]}, v{l[0]}")
    for w in range(1, 4): p(f"v_fma_f32 v{vL}, v{m[w]}, v{l[w]}, v{vL}")
    p("s_waitcnt lgkmcnt(0)")
    for u in range(2):
        p(f"v_mul_f32 v{vX+u}, v{m[0]}, v{ob+u}")
    for w in range(1, 4):
        for u in range(2):
            p(f"v_fma_f32 v{vX+u}, v{m[w]}, v{ob+2*w+u}, v{vX+u}")
    p(f"""
    v_cvt_pk_bf16_f32 v{vX}, v{vX}, v{vX}
    v_cvt_pk_bf16_f32 v{vX+1}, v{vX+1}, v{vX+1}
    v_mov_b32 v{vO}, 0
    v_mov_b32 v{vO+1}, 0
    v_mov_b32 v{vO+2}, 0
    v_mov_b32 v{vO+3}, 0
    s_nop 1
    s_call_b64 s[{sRET}:{sRET+1}], L_proj
    """)
    p(f"""
    s_lshl_b32 s{sT0}, s{sR}, 11
    s_lshl_b32 s{sT1}, s{sWAVE}, 9
    s_add_u32 s{sT0}, s{sT0}, s{sT1}
    v_add_u32 v{vT+1}, s{sT0}, v{vT+1}
    s_mov_b64 exec, 0xffffffff
    buffer_store_dwordx4 {r4(vO)}, v{vT+1}, s[{srdWS}:{srdWS+3}], 0 offen sc1
    s_mov_b64 exec, 1
    s_lshl_b32 s{sT0}, s{sR}, 3
    s_add_u32 s{sT0}, s{sT0}, {WS_ML}
    v_mov_b32 v{vT+2}, s{sT0}
    s_cmp_lg_u32 s{sWAVE}, 0
    s_cbranch_scc1 L_noml
    buffer_store_dwordx2 v[{vM}:{vM+1}], v{vT+2}, s[{srdWS}:{srdWS+3}], 0 offen sc1
    L_noml:
    s_mov_b64 exec, -1
    """)
    stamp(p, 7)
    p(f"""
    s_cmp_lg_u32 s{sRED}, 0
    s_cbranch_scc1 L_fin
    """)
    reducer(p)
    p("s_branch L_fin")
    return routine

def reducer(p):
    p.vmq = []
    vCOL, vGRP = 64, 65
    aP, aML, aQ = 66, 67, 68
    dP, dML, dQ = 72, 80, 96
    acc, accq = 100, 101
    sCB = sH
    gx, gw = vG+5, vG+6
    p(f"""
    s_lshr_b32 s{sCB}, s{sH}, 1
    v_and_b32 v{vCOL}, 31, v0
    v_lshrrev_b32 v{vGRP}, 5, v0
    s_lshl_b32 s{sT0}, s{sB}, 6
    v_lshl_add_u32 v{aML}, v{vGRP}, 3, s{sT0}
    v_lshlrev_b32 v{aP}, 11, v{aML}
    s_lshl_b32 s{sT1}, s{sCB}, 7
    v_lshl_add_u32 v{aQ}, v{vCOL}, 2, s{sT1}
    v_add_u32 v{aP}, v{aP}, v{aQ}
    v_lshlrev_b32 v{aML}, 3, v{aML}
    v_add_u32 v{aML}, {WS_ML}, v{aML}
    s_lshl_b32 s{sT0}, s{sB}, 11
    v_lshlrev_b32 v102, 15, v{vGRP}
    v_add3_u32 v{aQ}, v{aQ}, v102, s{sT0}
    s_mov_b32 s{sSPIN}, 0
    v_lshlrev_b32 v104, 16, v{gx}
    v_and_b32 v105, s{sHI}, v{gx}
    v_lshlrev_b32 v106, 16, v{gw}
    v_and_b32 v107, s{sHI}, v{gw}
    v_mul_f32 v104, v104, v106
    v_mul_f32 v105, v105, v107
    v_cvt_pk_bf16_f32 v104, v104, v105
    v_lshlrev_b32 v105, 16, v104
    v_and_b32 v104, s{sHI}, v104
    v_add_f32 v104, v104, v105
    v_add_f32_dpp v104, v104, v104 quad_perm:[1,0,3,2] row_mask:0xf bank_mask:0xf
    v_add_f32_dpp v104, v104, v104 quad_perm:[2,3,0,1] row_mask:0xf bank_mask:0xf
    v_add_f32_dpp v104, v104, v104 row_half_mirror row_mask:0xf bank_mask:0xf
    v_add_f32_dpp v104, v104, v104 row_mirror row_mask:0xf bank_mask:0xf
    v_add_f32_dpp v104, v104, v104 row_bcast:15 row_mask:0xa bank_mask:0xf
    v_add_f32_dpp v104, v104, v104 row_bcast:31 row_mask:0xc bank_mask:0xf
    v_readlane_b32 s{sT1}, v104, 63
    s_lshl_b32 s{sT2}, s{sWAVE}, 2
    v_mov_b32 v105, s{sT2}
    v_mov_b32 v104, s{sT1}
    ds_write_b32 v105, v104 offset:8192
    s_add_u32 s{srdV}, s{sWS}, {WS_Q}
    s_addc_u32 s{srdV+1}, s{sWS+1}, 0
    s_and_b32 s{srdV+1}, s{srdV+1}, 0xffff
    s_mov_b32 s{srdV+2}, {NFFN * 8192}
    s_mov_b32 s{srdV+3}, 0x20000
    s_cmp_lg_u32 s{sWAVE}, 0
    s_cbranch_scc1 L_pollok
    s_lshl_b32 s{sT0}, s{sB}, 6
    v_mov_b32 v103, s{sT0}
    v_mov_b32 v108, 32
    s_mov_b64 exec, 1
    L_apoll:
    buffer_load_dword v109, v103, s[{srdD}:{srdD+3}], 0 offen sc1
    buffer_load_dword v110, v108, s[{srdD}:{srdD+3}], 0 offen sc1
    s_waitcnt vmcnt(0)
    v_readfirstlane_b32 s{sT0}, v109
    v_readfirstlane_b32 s{sT1}, v110
    s_cmp_ge_u32 s{sT0}, 64
    s_cselect_b32 s{sT0}, 1, 0
    s_cmp_ge_u32 s{sT1}, {0 if O.noffn else NFFN}
    s_cselect_b32 s{sT0}, s{sT0}, 0
    s_cmp_lg_u32 s{sT0}, 0
    s_cbranch_scc1 L_aok
    s_add_u32 s{sSPIN}, s{sSPIN}, 1
    s_cmp_ge_u32 s{sSPIN}, {SPIN_MAX}
    s_cbranch_scc1 L_fin
    s_sleep {O.sleep}
    s_branch L_apoll
    L_aok:
    s_mov_b64 exec, -1
    L_pollok:
    s_barrier
    """)
    for i in range(4):
        p(f"s_mov_b32 s{sT2}, {i * 8192}")
        p(f"buffer_load_dword v{dQ+i}, v{aQ}, s[{srdV}:{srdV+3}], s{sT2} offen sc1")
    p("L_dpoll:")
    for k in range(8):
        p(f"s_mov_b32 s{sT2}, {k * 2048}")
        p(f"buffer_load_dword v{dP+k}, v{aP}, s[{srdWS}:{srdWS+3}], s{sT2} offen sc1")
    for i in range(4):
        p(f"buffer_load_dwordx4 {r4(dML+4*i)}, v{aML}, s[{srdWS}:{srdWS+3}], 0 offen offset:{16*i} sc1")
    p("s_waitcnt vmcnt(0)")
    p(f"v_max_u32 v102, v{dP}, v{dP+1}")
    for k in range(2, 8, 2): p(f"v_max3_u32 v102, v102, v{dP+k}, v{dP+k+1}")
    for k in range(0, 16, 2): p(f"v_max3_u32 v102, v102, v{dML+k}, v{dML+k+1}")
    p(f"""
    v_cmp_eq_u32 vcc, -1, v102
    s_cbranch_vccz L_dok
    s_add_u32 s{sSPIN}, s{sSPIN}, 1
    s_cmp_ge_u32 s{sSPIN}, {SPIN_MAX}
    s_cbranch_scc1 L_fin
    s_branch L_dpoll
    L_dok:
    v_mov_b32 v{acc}, 0
    """)
    for i in range(4):
        m0, l0, m1, l1 = dML+4*i, dML+4*i+1, dML+4*i+2, dML+4*i+3
        p(f"""
        v_max_f32 v102, v{m0}, v{m1}
        v_sub_f32 v{m0}, v{m0}, v102
        v_sub_f32 v{m1}, v{m1}, v102
        v_mul_f32 v{m0}, s{sL2E}, v{m0}
        v_mul_f32 v{m1}, s{sL2E}, v{m1}
        v_exp_f32 v{m0}, v{m0}
        v_exp_f32 v{m1}, v{m1}
        v_mul_f32 v102, v{m0}, v{l0}
        v_fma_f32 v102, v{m1}, v{l1}, v102
        v_rcp_f32 v102, v102
        v_mul_f32 v104, v{m0}, v{dP+2*i}
        v_fma_f32 v104, v{m1}, v{dP+2*i+1}, v104
        v_fma_f32 v{acc}, v104, v102, v{acc}
        """)
    p(f"""
    v_add_f32 v{dQ}, v{dQ}, v{dQ+1}
    v_add_f32 v{dQ+2}, v{dQ+2}, v{dQ+3}
    v_add_f32 v{accq}, v{dQ}, v{dQ+2}
    v_lshlrev_b32 v102, 2, v0
    ds_write_b32 v102, v{acc} offset:5120
    ds_write_b32 v102, v{accq} offset:6144
    s_waitcnt lgkmcnt(0)
    s_barrier
    s_cmp_lg_u32 s{sWAVE}, 0
    s_cbranch_scc1 L_fin
    v_lshlrev_b32 v102, 2, v{vCOL}
    v_mov_b32 v103, 0
    ds_read_b128 v[104:107], v103 offset:8192
    """)
    for g in range(8):
        p(f"ds_read_b32 v{dP+g}, v102 offset:{5120 + g*128}")
        p(f"ds_read_b32 v{dML+g}, v102 offset:{6144 + g*128}")
    p("s_waitcnt lgkmcnt(0)")
    for base in (dP, dML):
        p(f"""
        v_add_f32 v{base}, v{base}, v{base+1}
        v_add_f32 v{base+2}, v{base+2}, v{base+3}
        v_add_f32 v{base+4}, v{base+4}, v{base+5}
        v_add_f32 v{base+6}, v{base+6}, v{base+7}
        v_add_f32 v{base}, v{base}, v{base+2}
        v_add_f32 v{base+4}, v{base+4}, v{base+6}
        v_add_f32 v{base}, v{base}, v{base+4}
        """)
    p(f"""
    v_add_f32 v104, v104, v105
    v_add_f32 v106, v106, v107
    v_add_f32 v104, v104, v106
    """)
    gate_math(p, 104, None, 105)
    srd(p, srdK, sOUT, None, 4096)
    p(f"""
    v_cvt_pk_bf16_f32 v106, v{dP}, v{dML}
    v_lshlrev_b32 v107, 16, v106
    v_and_b32 v106, s{sHI}, v106
    v_mul_f32 v107, v104, v107
    v_mul_f32 v106, v105, v106
    v_cvt_pk_bf16_f32 v106, v107, v106
    v_lshlrev_b32 v107, 16, v106
    v_and_b32 v106, s{sHI}, v106
    v_add_f32 v106, v106, v107
    v_cvt_pk_bf16_f32 v106, v106, v106
    s_lshl_b32 s{sT0}, s{sB}, 10
    s_lshl_b32 s{sT1}, s{sCB}, 6
    s_add_u32 s{sT0}, s{sT0}, s{sT1}
    v_lshlrev_b32 v102, 1, v{vCOL}
    v_add_u32 v102, s{sT0}, v102
    s_mov_b64 exec, 0xffffffff
    buffer_store_short v106, v102, s[{srdK}:{srdK+3}], 0 offen
    s_mov_b64 exec, -1
    """)

def ffn(p):
    sJ = sH
    vXP = 50
    vSEL = 4
    vD0, vD1 = 12, 16
    vWD = 64
    srdG, srdU = srdK, srdV
    p.vmq = []
    p("L_ffn:")
    if O.prio: p("s_setprio 3")
    p(f"s_sub_u32 s{sJ}, s2, {NATT}")
    if O.ffn_even:
        p(f"""
        s_and_b32 s{sT0}, s{sJ}, 1
        s_cmp_lg_u32 s{sT0}, 0
        s_cbranch_scc1 L_end
        s_lshr_b32 s{sJ}, s{sJ}, 1
        """)
    srd(p, srdX, sX, None, 4096)
    p(f"""
    s_lshl_b32 s{sT0}, s{sWAVE}, 8
    v_lshlrev_b32 v{vT}, 1, v{vLANE}
    v_add_u32 v{vT}, s{sT0}, v{vT}
    v_add_u32 v{vT+1}, 2048, v{vT}
    """)
    xr = 22
    for b in range(4):
        for u in range(2):
            p.vm(f"buffer_load_ushort v{xr + 2*b + u}, v{vT + (b >> 1)}, s[{srdX}:{srdX+3}], 0 offen offset:{(b & 1) * 1024 + u * 128}", "x")
    srd(p, srdG, sWG, None, 512 * 3584)
    srd(p, srdU, sWU, None, 512 * 3584)
    p(f"""
    s_lshl_b32 s{sT0}, s{sWAVE}, 3
    v_add_u32 v{vT+5}, s{sT0}, v{vT+4}
    v_mul_u32_u24 v{vT+5}, {16 * 3584}, v{vT+5}
    v_and_b32 v{vT+6}, 7, v{vLANE}
    v_lshlrev_b32 v{vT+6}, 4, v{vT+6}
    s_lshl_b32 s{sT0}, s{sJ}, 7
    v_add3_u32 v20, v{vT+5}, v{vT+6}, s{sT0}
    s_mov_b32 s{sOFF1}, 0x00ff00ff
    s_mov_b32 s{sOFF2}, 0xff00ff00
    """)
    for half, (sr, mk) in enumerate(((srdG, sOFF1), (srdU, sOFF2))):
        p(f"s_mov_b32 exec_lo, s{mk}")
        p(f"s_mov_b32 exec_hi, s{mk}")
        p(f"s_mov_b32 s{sT2}, 0")
        for t in range(32):
            p.vm(f"buffer_load_dwordx4 {r4(vWA + 4*t)}, v20, s[{sr}:{sr+3}], s{sT2} offen {O.wpol}", ("W", half, t))
            if t == 15: p(f"s_add_u32 s{sT2}, s{sT2}, {49 * 3584}")
            elif t < 31: p(f"s_add_u32 s{sT2}, s{sT2}, 3584")
        if half == 0: p.wait_vm(("W", 0, 15))
    p("s_mov_b64 exec, -1")
    p(f"s_lshl_b32 s{sT0}, s{sJ}, 16")
    p(f"s_sub_u32 s{sT1}, {1792 * 1024}, s{sT0}")
    srd(p, srdW, sWD, f"s{sT0}", f"s{sT1}")
    p(f"""
    s_lshl_b32 s{sT0}, s{sWAVE}, 8
    v_lshlrev_b32 v{vW}, 14, v{vT+4}
    v_add3_u32 v{vW}, v{vW}, v{vT+3}, s{sT0}
    v_and_b32 v{vT+5}, 8, v{vLANE}
    v_mov_b32 v{vT+6}, 0x0100
    v_mov_b32 v{vT+7}, 0x0302
    v_cmp_eq_u32 vcc, 0, v{vT+5}
    v_cndmask_b32 v{vT+6}, v{vT+7}, v{vT+6}, vcc
    v_lshlrev_b32 v{vT+7}, 16, v{vT+6}
    v_or_b32 v{vT+7}, 0x0c0c, v{vT+7}
    v_or_b32 v{vT+6}, 0x0c0c0000, v{vT+6}
    v_and_b32 v{vT+5}, 1, v{vLANE}
    v_cmp_eq_u32 vcc, 0, v{vT+5}
    v_cndmask_b32 v{vT+6}, v{vT+7}, v{vT+6}, vcc
    v_bfe_u32 v{vT+5}, v{vLANE}, 1, 2
    v_mov_b32 v{vT+7}, 0x0c0c0c0c
    """)
    for j in range(4):
        p(f"v_cmp_eq_u32 vcc, {j}, v{vT+5}")
        p(f"v_cndmask_b32 v{vSEL+j}, v{vT+7}, v{vT+6}, vcc")
    for pr in range(2):
        for u in range(2):
            p(f"v_lshl_or_b32 v{vXP + 2*pr + u}, v{xr + 2*(2*pr+1) + u}, 16, v{xr + 2*(2*pr) + u}")
    for r in range(8): p(f"v_mov_b32 v{vD0 + r}, 0")
    p.wait_vm(("W", 1, 7))
    for t in range(16):
        if t & 3 == 0: p(f"s_mov_b32 s{sT2}, {(t & ~3) * 1024}")
        p.vm(f"buffer_load_dwordx4 {r4(vWD + 4*t)}, v{vW}, s[{srdW}:{srdW+3}], s{sT2} offen offset:{(t & 3) * 1024} {O.wpol}", ("D", t))
    stamp(p, 2)
    vBC = 30
    def step(src_of_pair, lane):
        for pr in range(2):
            p(f"v_mov_b32_dpp v{vBC+pr}, v{src_of_pair(pr)} row_newbcast:{lane} row_mask:0xf bank_mask:0xf")
        for pr in range(2):
            for j in range(4):
                p(f"v_perm_b32 v{vA + 4*pr + j}, v{vBC+pr}, v{vBC+pr}, v{vSEL+j}")
    for t in range(32):
        step(lambda pr: vXP + 2*pr + (t >> 4), t & 15)
        if t % 2 == 0: p.wait_vm(("W", 1, t + 1))
        p(f"v_mfma_f32_16x16x32_bf16 {r4(vD0)}, {r4(vA)}, {r4(vWA + 4*t)}, {r4(vD0)}")
        p(f"v_mfma_f32_16x16x32_bf16 {r4(vD1)}, {r4(vA+4)}, {r4(vWA + 4*t)}, {r4(vD1)}")
    stamp(p, 4)
    p(f"""
    s_lshl_b32 s{sT0}, s{sWAVE}, 11
    v_lshlrev_b32 v{vT}, 4, v{vLANE}
    v_add_u32 v{vT}, s{sT0}, v{vT}
    ds_write_b128 v{vT}, {r4(vD0)}
    ds_write_b128 v{vT}, {r4(vD1)} offset:1024
    s_lshr_b32 s{sT0}, s{sWAVE}, 1
    s_lshl_b32 s{sT0}, s{sT0}, 10
    s_and_b32 s{sT1}, s{sWAVE}, 1
    s_lshl_b32 s{sT2}, s{sT1}, 9
    s_add_u32 s{sT0}, s{sT0}, s{sT2}
    v_bfe_u32 v{vT+1}, v{vLANE}, 2, 1
    v_lshlrev_b32 v{vT+1}, 8, v{vT+1}
    v_lshrrev_b32 v{vT+2}, 3, v{vLANE}
    v_lshl_add_u32 v{vT+1}, v{vT+2}, 4, v{vT+1}
    v_and_b32 v{vT+2}, 3, v{vLANE}
    v_lshl_add_u32 v{vT+1}, v{vT+2}, 2, v{vT+1}
    v_add_u32 v{vT+1}, s{sT0}, v{vT+1}
    s_waitcnt lgkmcnt(0)
    s_barrier
    """)
    for w in range(4):
        p(f"ds_read_b32 v{vP+w}, v{vT+1} offset:{w*2048}")
        p(f"ds_read_b32 v{vP+4+w}, v{vT+1} offset:{w*2048 + 128}")
    h1, h2, t0, t1 = vP, vP+4, vP+1, vP+2
    C0 = 0x3F4C422A
    C1 = 0x3D372713
    p(f"""
    s_waitcnt lgkmcnt(0)
    v_add_f32 v{vP}, v{vP}, v{vP+1}
    v_add_f32 v{vP+2}, v{vP+2}, v{vP+3}
    v_add_f32 v{vP+4}, v{vP+4}, v{vP+5}
    v_add_f32 v{vP+6}, v{vP+6}, v{vP+7}
    v_add_f32 v{h1}, v{vP}, v{vP+2}
    v_add_f32 v{h2}, v{vP+4}, v{vP+6}
    v_cvt_pk_bf16_f32 v{t0}, v{h1}, v{h2}
    v_lshlrev_b32 v{h1}, 16, v{t0}
    v_and_b32 v{h2}, s{sHI}, v{t0}
    v_mul_f32 v{t0}, v{h1}, v{h1}
    v_mul_f32 v{t0}, v{t0}, v{h1}
    v_mov_b32 v{t1}, {hex(C1)}
    v_fma_f32 v{t0}, v{t0}, v{t1}, v{h1}
    v_mul_f32 v{t0}, {hex(C0)}, v{t0}
    v_mul_f32 v{t0}, s{sL2E}, v{t0}
    v_mul_f32 v{t0}, -2.0, v{t0}
    v_exp_f32 v{t0}, v{t0}
    v_add_f32 v{t0}, 1.0, v{t0}
    v_rcp_f32 v{t0}, v{t0}
    v_mul_f32 v{t0}, v{h1}, v{t0}
    v_cvt_pk_bf16_f32 v{t0}, v{t0}, v{t0}
    v_lshlrev_b32 v{t0}, 16, v{t0}
    v_mul_f32 v{t0}, v{t0}, v{h2}
    v_cvt_pk_bf16_f32 v{t0}, v{t0}, v{t0}
    s_lshr_b32 s{sT0}, s{sWAVE}, 1
    s_lshl_b32 s{sT0}, s{sT0}, 8
    s_lshl_b32 s{sT1}, s{sT1}, 1
    s_add_u32 s{sT0}, s{sT0}, s{sT1}
    v_lshlrev_b32 v{vT+2}, 2, v{vLANE}
    v_add_u32 v{vT+3}, s{sT0}, v{vT+2}
    ds_write_b16 v{vT+3}, v{t0} offset:8192
    s_waitcnt lgkmcnt(0)
    s_barrier
    ds_read_b32 v{vXP}, v{vT+2} offset:8192
    ds_read_b32 v{vXP+1}, v{vT+2} offset:8448
    """)
    for r in range(8): p(f"v_mov_b32 v{vD0 + r}, 0")
    p("s_waitcnt lgkmcnt(0)")
    stamp(p, 5)
    for t in range(16):
        step(lambda pr: vXP + pr, t)
        if t % 2 == 0: p.wait_vm(("D", t + 1))
        p(f"v_mfma_f32_16x16x32_bf16 {r4(vD0)}, {r4(vA)}, {r4(vWD + 4*t)}, {r4(vD0)}")
        p(f"v_mfma_f32_16x16x32_bf16 {r4(vD1)}, {r4(vA+4)}, {r4(vWD + 4*t)}, {r4(vD1)}")
    stamp(p, 6)
    srd(p, srdWS, sWS, None, WS_BYTES)
    srd(p, srdD, sDBG, None, 256)
    p(f"""
    s_lshl_b32 s{sT0}, s{sJ}, 13
    s_lshl_b32 s{sT1}, s{sWAVE}, 9
    s_add_u32 s{sT0}, s{sT0}, s{sT1}
    s_add_u32 s{sT0}, s{sT0}, {WS_Q}
    v_lshrrev_b32 v{vT}, 5, v{vLANE}
    v_lshlrev_b32 v{vT}, 11, v{vT}
    v_bfe_u32 v{vT+1}, v{vLANE}, 4, 1
    v_lshl_add_u32 v{vT}, v{vT+1}, 4, v{vT}
    v_and_b32 v{vT+1}, 15, v{vLANE}
    v_lshl_add_u32 v{vT}, v{vT+1}, 5, v{vT}
    v_add_u32 v{vT}, s{sT0}, v{vT}
    s_mov_b32 s{sT2}, 4096
    buffer_store_dwordx4 {r4(vD0)}, v{vT}, s[{srdWS}:{srdWS+3}], 0 offen sc1
    buffer_store_dwordx4 {r4(vD1)}, v{vT}, s[{srdWS}:{srdWS+3}], s{sT2} offen sc1
    v_mov_b32 v{vT+1}, 32
    v_mov_b32 v{vT+2}, 1
    s_waitcnt vmcnt(0)
    s_barrier
    s_cmp_lg_u32 s{sWAVE}, 0
    s_cbranch_scc1 L_fin
    s_mov_b64 exec, 1
    buffer_atomic_add v{vT+2}, v{vT+1}, s[{srdD}:{srdD+3}], 0 offen sc1
    s_mov_b64 exec, -1
    """)

def kernel1():
    p = Prog()
    common_prologue(p)
    p("s_waitcnt lgkmcnt(0)")
    stamp(p, 1)
    p(f"""
    s_cmp_ge_u32 s2, {NATT}
    s_cbranch_scc1 L_ffn
    """)
    routine = attention(p)
    p.ins += routine
    ffn(p)
    p("L_fin:")
    if O.dbgtime:
        p("""
        s_waitcnt vmcnt(0)
        s_memrealtime s[72:73]
        s_mov_b64 exec, 1
        s_mov_b32 s64, s38
        s_and_b32 s65, s39, 0xffff
        s_mov_b32 s66, 256
        s_mov_b32 s67, 0x20000
        s_waitcnt lgkmcnt(0)
        s_not_b32 s70, s70
        v_mov_b32 v60, s70
        v_mov_b32 v61, s72
        v_mov_b32 v62, 16
        buffer_atomic_umax v60, v62, s[64:67], 0 offen sc1
        buffer_atomic_umax v61, v62, s[64:67], 0 offen offset:4 sc1
        """)
    if O.stamps:
        p("s_waitcnt vmcnt(0)")
        stamp(p, 8)
        write_stamps(p, 9)
    p("L_end:")
    p("s_endpgm")
    p.finish()
    p.check_loop("L_kloop", "s_cbranch_scc1 L_kloop")
    p.check_loop("L_vloop", "s_cbranch_scc1 L_vloop")
    return p

def desc(name, vgpr, sgpr):
    acc = (vgpr + 3) // 4 * 4
    return f""".amdhsa_kernel {name}
  .amdhsa_next_free_vgpr {vgpr}
  .amdhsa_next_free_sgpr {sgpr}
  .amdhsa_accum_offset {acc}
  .amdhsa_group_segment_fixed_size 0
  .amdhsa_kernarg_size 104
  .amdhsa_user_sgpr_count 2
  .amdhsa_user_sgpr_kernarg_segment_ptr 1
  .amdhsa_system_sgpr_workgroup_id_x 1
  .amdhsa_float_denorm_mode_32 3
.end_amdhsa_kernel
"""

def gen():
    k1 = NAME + "_kernel"
    out = HEADER
    out += f"; @launch grid=({nwg()},1,1) block=(256,1,1) lds=49152\n"
    out += '.amdgcn_target "amdgcn-amd-amdhsa--gfx950"\n.text\n'
    out += f".globl {k1}\n.p2align 8\n.type {k1},@function\n{k1}:\n" + kernel1().text()
    out += '.section .rodata,"a"\n.p2align 6\n' + desc(k1, 256, 102 if O.stamps else 92)
    return out

if __name__ == "__main__":
    for a in sys.argv[2:]:
        if "=" in a:
            k, v = a.split("=", 1); setattr(O, k, v.replace("_", " ") if k.endswith("pol") else eval(v))
        else: setattr(O, a, True)
    open(sys.argv[1], "w").write(gen())
```

```python
import sys
from asmlib import Prog

NAME = "gated_mix__mha_block_cached__geglu_ffn__decode"
HEADER = open("gated_mix__mha_block_cached__geglu_ffn__decode.s.ref").read().split("; Override launch")[0]

NATT = 256
NFFN = 28
L2E = 0x3FB8AA3B
SCALE = 0x3DB504F3
WS_P, WS_ML, WS_Q = 0, 0x80000, 0x100000
WS_BYTES = 0x140000
WS_ST = 0x200000
SPIN_MAX = 1 << 22

class O:
    stamps = False
    wpol = ""
    kvpol = "nt"
    ffn_even = False
    prio = True
    noffn = False
    sleep = 16
    rot = 0
    dbgtime = False
    nb = 2

sX, sK, sV, sWQ, sWO, sBX, sWG, sWU, sWD, sGW, sOUT, sDBG, sWS = 16, 18, 20, 22, 24, 26, 28, 30, 32, 34, 36, 38, 40
srdK, srdV, srdW, srdX, srdWS, srdD = 44, 48, 52, 56, 60, 64
sWAVE, sH, sB, sR = 3, 4, 5, 6
sOFF, sCNT, sL2E, sSCALE, sRET = 8, 9, 10, 11, 12
sT0, sT1, sT2 = 14, 15, 7
sHI, sOFF1, sOFF2, sSPIN = 68, 69, 42, 43
sST = 70
sROT = 89
vLANE, vKV0, vKV1 = 1, 2, 3
vMASK, vQ, vO = 4, 8, 12
vM, vL = 16, 17
vP, vR, vU, vA, vT = 18, 26, 30, 32, 40
vW, vWO, vX = 48, 49, 50
vSC, vW0, vW1 = 62, 60, 61
LDS_SC = 16384
vG = 52
BANK_A, BANK_B, BANK_C = 64, 128, 192
vWA = 128

def nwg(): return NATT if O.noffn else NATT + (2 * NFFN if O.ffn_even else NFFN)

def srd(p, dst, base, off_lo=None, size=None):
    if off_lo is None:
        p(f"s_mov_b32 s{dst}, s{base}")
        p(f"s_and_b32 s{dst+1}, s{base+1}, 0xffff")
    else:
        p(f"s_add_u32 s{dst}, s{base}, {off_lo}")
        p(f"s_addc_u32 s{dst+1}, s{base+1}, 0")
        p(f"s_and_b32 s{dst+1}, s{dst+1}, 0xffff")
    p(f"s_mov_b32 s{dst+2}, {size}")
    p(f"s_mov_b32 s{dst+3}, 0x20000")

def r4(b): return f"v[{b}:{b+3}]"

def stamp(p, k):
    if O.stamps: p(f"s_memrealtime s[{sST+2*k}:{sST+2*k+1}]")

def write_stamps(p, n):
    if not O.stamps: return
    p("s_mov_b64 exec, 1")
    p(f"s_getreg_b32 s{sST+22}, hwreg(HW_REG_HW_ID)")
    p(f"s_getreg_b32 s{sST+23}, hwreg(HW_REG_XCC_ID)")
    p("s_waitcnt lgkmcnt(0)")
    p(f"s_lshl_b32 s{sST+24}, s2, 2")
    p(f"s_add_u32 s{sST+24}, s{sST+24}, s{sWAVE}")
    p(f"s_lshl_b32 s{sST+24}, s{sST+24}, 6")
    p(f"s_add_u32 s{sST+24}, s{sST+24}, {WS_ST}")
    p(f"v_mov_b32 v60, s{sST+24}")
    p("s_mov_b32 s96, s40")
    p("s_and_b32 s97, s41, 0xffff")
    p("s_mov_b32 s98, 0x400000")
    p("s_mov_b32 s99, 0x20000")
    for k in range(n):
        p(f"v_mov_b32 v61, s{sST+2*k}")
        p(f"buffer_store_dword v61, v60, s[96:99], 0 offen offset:{4*k}")
    p(f"v_mov_b32 v61, s{sST+22}")
    p("buffer_store_dword v61, v60, s[96:99], 0 offen offset:56")
    p(f"v_mov_b32 v61, s{sST+23}")
    p("buffer_store_dword v61, v60, s[96:99], 0 offen offset:60")

def common_prologue(p):
    p(f"""
    s_cmp_ge_u32 s2, {nwg()}
    s_cbranch_scc1 L_end
    """)
    stamp(p, 0)
    if O.dbgtime: p("s_memrealtime s[70:71]")
    p(f"""
    s_load_dwordx16 s[16:31], s[0:1], 0
    s_load_dwordx8 s[32:39], s[0:1], 64
    s_load_dwordx2 s[40:41], s[0:1], 96
    v_and_b32 v{vLANE}, 63, v0
    v_lshrrev_b32 v{vT}, 6, v0
    s_mov_b32 s{sL2E}, {hex(L2E)}
    v_readfirstlane_b32 s{sWAVE}, v{vT}
    s_mov_b32 s{sSCALE}, {hex(SCALE)}
    s_mov_b32 s{sHI}, 0xffff0000
    v_and_b32 v{vT}, 1, v{vLANE}
    v_lshlrev_b32 v{vT}, 4, v{vT}
    v_mov_b32 v{vT+1}, 0xffff
    v_lshlrev_b32 v{vT+1}, v{vT}, v{vT+1}
    v_bfe_u32 v{vT+2}, v{vLANE}, 1, 3
    """)
    for j in range(4):
        p(f"v_cmp_eq_u32 vcc, {j}, v{vT+2}")
        p(f"v_cndmask_b32 v{vMASK+j}, 0, v{vT+1}, vcc")
    p(f"""
    v_and_b32 v{vT+3}, 15, v{vLANE}
    v_lshlrev_b32 v{vT+3}, 4, v{vT+3}
    v_lshrrev_b32 v{vT+4}, 4, v{vLANE}
    """)

def set_off(p, reg, k):
    if O.rot:
        p(f"s_add_u32 s{reg}, s{sROT}, {k * 32768}")
        p(f"s_and_b32 s{reg}, s{reg}, 0xfffff")
    else:
        p(f"s_mov_b32 s{reg}, {k * 32768}")

def adv_off(p, reg):
    p(f"s_add_u32 s{reg}, s{reg}, 32768")
    if O.rot: p(f"s_and_b32 s{reg}, s{reg}, 0xfffff")

def kv_load(p, reg, isv, t, soff, tag):
    d = srdV if isv else srdK
    p.vm(f"buffer_load_dwordx4 {r4(reg)}, v{vKV0 + (t >> 2)}, s[{d}:{d+3}], s{soff} offen offset:{(t & 3) * 1024} {O.kvpol}", tag)

def wo_load(p, t):
    u, tt = t >> 4, t & 15
    if tt & 3 == 0: p(f"s_mov_b32 s{sT2}, {(64 * u + (tt & ~3)) * 1024}")
    p.vm(f"buffer_load_dwordx4 {r4(vWA + 4*t)}, v{vWO}, s[{srdW}:{srdW+3}], s{sT2} offen offset:{(tt & 3) * 1024} {O.wpol}", ("W", t))

def proj_routine(p):
    p("L_proj:")
    def mk(t):
        for j in range(4):
            p(f"v_and_b32_dpp v{vA + 4*(t&1) + j}, v{vX + (t >> 4)}, v{vMASK+j} row_newbcast:{t & 15} row_mask:0xf bank_mask:0xf")
    mk(0)
    for t in range(32):
        if t + 1 < 32: mk(t + 1)
        if t % 2 == 0: p.wait_vm(("W", t + 1))
        p(f"v_mfma_f32_16x16x32_bf16 {r4(vO)}, {r4(vA + 4*(t&1))}, {r4(vWA + 4*t)}, {r4(vO)}")
    p("s_nop 7")
    p(f"s_setpc_b64 s[{sRET}:{sRET+1}]")

def bank_base(bank): return 64 + 32 * bank

def k_tile(p, bank, refill, scoff):
    base = bank_base(bank)
    for t in range(8):
        if t % 2 == 0: p.wait_vm((bank, t + 1))
        k = base + 4 * t
        p(f"v_dot2_f32_bf16 v{vP+t}, v{k}, v{vQ}, 0")
        for j in range(1, 4):
            p(f"v_dot2_f32_bf16 v{vP+t}, v{k+j}, v{vQ+j}, v{vP+t}")
        refill(t)
    for a in range(4):
        p(f"v_add_f32_dpp v{vR+a}, v{vP+a}, v{vP+a} row_mirror row_mask:0xf bank_mask:0x3")
    for a in range(4):
        p(f"v_add_f32_dpp v{vR+a}, v{vP+a+4}, v{vP+a+4} row_mirror row_mask:0xf bank_mask:0xc")
    p(f"v_add_f32_dpp v{vU}, v{vR}, v{vR} row_half_mirror row_mask:0xf bank_mask:0x5")
    p(f"v_add_f32_dpp v{vU+1}, v{vR+1}, v{vR+1} row_half_mirror row_mask:0xf bank_mask:0x5")
    p(f"v_add_f32_dpp v{vU}, v{vR+2}, v{vR+2} row_half_mirror row_mask:0xf bank_mask:0xa")
    p(f"v_add_f32_dpp v{vU+1}, v{vR+3}, v{vR+3} row_half_mirror row_mask:0xf bank_mask:0xa")
    for qp in ("[1,0,3,2]", "[2,3,0,1]"):
        for u in range(2):
            p(f"v_add_f32_dpp v{vU+u}, v{vU+u}, v{vU+u} quad_perm:{qp} row_mask:0xf bank_mask:0xf")
    a0, a1, w = vT, vT+1, vT+2
    p(f"""
    v_cvt_pk_bf16_f32 v{w}, v{vU}, v{vU+1}
    v_lshlrev_b32 v{a0}, 16, v{w}
    v_and_b32 v{a1}, s{sHI}, v{w}
    v_mul_f32 v{a0}, s{sSCALE}, v{a0}
    v_mul_f32 v{a1}, s{sSCALE}, v{a1}
    v_cvt_pk_bf16_f32 v{w}, v{a0}, v{a1}
    v_lshlrev_b32 v{a0}, 16, v{w}
    v_and_b32 v{a1}, s{sHI}, v{w}
    ds_write_b32 v{vSC}, v{w} offset:{LDS_SC + scoff}
    v_max3_f32 v{vM}, v{vM}, v{a0}, v{a1}
    """)

def v_tile(p, bank, refill, wreg, prefetch_next):
    base = bank_base(bank)
    a0, a1, p0, p1 = vT, vT+1, vT+6, vT+7
    neg = vT + 4
    p(f"""
    v_lshlrev_b32 v{a0}, 16, v{wreg}
    v_and_b32 v{a1}, s{sHI}, v{wreg}
    """)
    if prefetch_next is not None: prefetch_next()
    p(f"""
    v_fma_f32 v{p0}, v{a0}, s{sL2E}, -v{neg}
    v_fma_f32 v{p1}, v{a1}, s{sL2E}, -v{neg}
    v_exp_f32 v{p0}, v{p0}
    v_exp_f32 v{p1}, v{p1}
    v_add_f32 v{vL}, v{vL}, v{p0}
    v_cvt_pk_bf16_f32 v{a0}, v{p0}, v{p0}
    v_cvt_pk_bf16_f32 v{a1}, v{p1}, v{p1}
    v_add_f32 v{vL}, v{vL}, v{p1}
    """)
    def mk(t):
        for j in range(4):
            p(f"v_and_b32_dpp v{vA + 4*(t&1) + j}, v{a0 + (t & 1)}, v{vMASK+j} row_newbcast:{4*(t >> 1)} row_mask:0xf bank_mask:0xf")
    mk(0)
    for t in range(8):
        if t + 1 < 8: mk(t + 1)
        if t % 2 == 0: p.wait_vm((bank, t + 1))
        p(f"v_mfma_f32_16x16x32_bf16 {r4(vO)}, {r4(vA + 4*(t&1))}, {r4(base + 4*t)}, {r4(vO)}")
        refill(t)

def gate_math(p, z, t0, t1):
    p(f"""
    v_cvt_pk_bf16_f32 v{z}, v{z}, v{z}
    v_lshlrev_b32 v{z}, 16, v{z}
    v_mul_f32 v{z}, s{sL2E}, v{z}
    v_sub_f32 v{z}, 0, v{z}
    v_exp_f32 v{z}, v{z}
    v_add_f32 v{z}, 1.0, v{z}
    v_rcp_f32 v{z}, v{z}
    v_cvt_pk_bf16_f32 v{z}, v{z}, v{z}
    v_lshlrev_b32 v{z}, 16, v{z}
    v_sub_f32 v{t1}, 1.0, v{z}
    v_cvt_pk_bf16_f32 v{t1}, v{t1}, v{t1}
    v_lshlrev_b32 v{t1}, 16, v{t1}
    """)

def attention(p):
    sRED = 88
    p(f"""
    s_and_b32 s{sT0}, s2, 7
    s_lshr_b32 s{sT1}, s2, 3
    s_lshr_b32 s{sH}, s{sT1}, 3
    s_lshl_b32 s{sT0}, s{sT0}, 2
    s_add_u32 s{sH}, s{sH}, s{sT0}
    s_lshr_b32 s{sB}, s{sT1}, 1
    s_and_b32 s{sB}, s{sB}, 3
    s_and_b32 s{sT1}, s{sT1}, 1
    s_lshl_b32 s{sR}, s{sB}, 5
    s_add_u32 s{sR}, s{sR}, s{sH}
    s_lshl_b32 s{sR}, s{sR}, 1
    s_add_u32 s{sR}, s{sR}, s{sT1}
    s_and_b32 s{sRED}, s{sR}, 3
    """)
    if O.rot:
        p(f"""
        s_mul_i32 s{sROT}, s{sR}, {O.rot}
        s_lshr_b32 s{sT0}, s{sR}, 5
        s_add_u32 s{sROT}, s{sROT}, s{sT0}
        s_and_b32 s{sROT}, s{sROT}, 31
        s_lshl_b32 s{sROT}, s{sROT}, 15
        """)
    srd(p, srdWS, sWS, None, WS_BYTES)
    p(f"""
    s_lshl_b32 s{sT0}, s{sR}, 11
    s_lshl_b32 s{sT1}, s{sWAVE}, 9
    s_add_u32 s{sT0}, s{sT0}, s{sT1}
    v_lshlrev_b32 v{vT}, 3, v{vLANE}
    v_add_u32 v{vT}, s{sT0}, v{vT}
    v_mov_b32 v{vP}, -1
    v_mov_b32 v{vP+1}, -1
    s_lshl_b32 s{sT0}, s{sR}, 3
    s_add_u32 s{sT0}, s{sT0}, {WS_ML}
    v_mov_b32 v{vT+1}, s{sT0}
    """)
    p.vm(f"buffer_store_dwordx2 v[{vP}:{vP+1}], v{vT}, s[{srdWS}:{srdWS+3}], 0 offen sc1", "inv")
    p.vm(f"buffer_store_dwordx2 v[{vP}:{vP+1}], v{vT+1}, s[{srdWS}:{srdWS+3}], 0 offen sc1", "inv")
    srd(p, srdX, sX, None, 4096)
    p(f"""
    s_lshl_b32 s{sT0}, s{sWAVE}, 8
    s_lshl_b32 s{sT1}, s{sB}, 10
    s_add_u32 s{sT0}, s{sT0}, s{sT1}
    v_lshlrev_b32 v{vT}, 1, v{vLANE}
    v_add_u32 v{vT}, s{sT0}, v{vT}
    """)
    p.vm(f"buffer_load_ushort v{vX}, v{vT}, s[{srdX}:{srdX+3}], 0 offen", "x")
    p.vm(f"buffer_load_ushort v{vX+1}, v{vT}, s[{srdX}:{srdX+3}], 0 offen offset:128", "x")
    p(f"s_lshl_b32 s{sT0}, s{sH}, 8")
    p(f"s_sub_u32 s{sT1}, {4 << 20}, s{sT0}")
    srd(p, srdW, sWQ, f"s{sT0}", f"s{sT1}")
    p(f"""
    s_lshl_b32 s{sT0}, s{sWAVE}, 20
    v_lshlrev_b32 v{vW}, 17, v{vT+4}
    v_add3_u32 v{vW}, v{vW}, v{vT+3}, s{sT0}
    s_lshl_b32 s{sT0}, s{sR}, 20
    s_lshr_b32 s{sT1}, s{sR}, 12
    """)
    for (d, b) in ((srdK, sK), (srdV, sV)):
        p(f"s_add_u32 s{d}, s{b}, s{sT0}")
        p(f"s_addc_u32 s{d+1}, s{b+1}, s{sT1}")
        p(f"s_and_b32 s{d+1}, s{d+1}, 0xffff")
        p(f"s_mov_b32 s{d+2}, {1 << 20}")
        p(f"s_mov_b32 s{d+3}, 0x20000")
    p(f"""
    s_lshl_b32 s{sT0}, s{sWAVE}, 13
    v_lshlrev_b32 v{vKV0}, 4, v{vLANE}
    v_add_u32 v{vKV0}, s{sT0}, v{vKV0}
    v_add_u32 v{vKV1}, 4096, v{vKV0}
    s_mov_b32 s{sOFF}, 0
    s_mov_b32 s{sT2}, 0
    """)
    for t in range(32):
        p.vm(f"buffer_load_dwordx4 {r4(vWA + 4*t)}, v{vW}, s[{srdW}:{srdW+3}], s{sT2} offen {O.wpol}", ("W", t))
        if t == 15: p(f"s_add_u32 s{sT2}, s{sT2}, {49 * 8192}")
        elif t < 31: p(f"s_add_u32 s{sT2}, s{sT2}, 8192")
    for bank in range(O.nb):
        set_off(p, sOFF, bank)
        for t in range(8): kv_load(p, bank_base(bank) + 4*t, 0, t, sOFF, (bank, t))
    p(f"""
    s_lshl_b32 s{sT0}, s{sWAVE}, 8
    v_lshlrev_b32 v{vWO}, 14, v{vT+4}
    v_add3_u32 v{vWO}, v{vWO}, v{vT+3}, s{sT0}
    v_lshlrev_b32 v{vG}, 1, v{vT+3}
    v_lshl_add_u32 v{vG+1}, v{vT+4}, 4, v{vG}
    s_lshl_b32 s{sT1}, s{sWAVE}, 9
    v_add_u32 v{vG+1}, s{sT1}, v{vG+1}
    v_mov_b32 v{vO}, 0
    v_mov_b32 v{vO+1}, 0
    v_mov_b32 v{vO+2}, 0
    v_mov_b32 v{vO+3}, 0
    """)
    p.wait_vm("x")
    p(f"""
    v_lshl_or_b32 v{vX}, v{vX}, 16, v{vX}
    v_lshl_or_b32 v{vX+1}, v{vX+1}, 16, v{vX+1}
    s_nop 1
    s_call_b64 s[{sRET}:{sRET+1}], L_proj
    """)
    mark = len(p.ins)
    proj_routine(p)
    routine = p.ins[mark:]
    p.ins = p.ins[:mark]
    stamp(p, 2)
    p(f"""
    s_mov_b64 exec, 0xffffffff
    ds_write_b128 v{vG+1}, {r4(vO)}
    s_mov_b64 exec, -1
    s_lshl_b32 s{sT0}, s{sH}, 17
    s_sub_u32 s{sT1}, {4 << 20}, s{sT0}
    """)
    srd(p, srdW, sWO, f"s{sT0}", f"s{sT1}")
    p(f"""
    s_waitcnt lgkmcnt(0)
    s_barrier
    """)
    qa = vP
    regs = [18, 26, 34, 52]
    for w in range(4):
        p(f"ds_read_b128 {r4(regs[w])}, v{vG} offset:{w*512}" if w < 3 else f"ds_read_b128 {r4(56)}, v{vG} offset:{w*512}")
        p(f"ds_read_b128 {r4(regs[w] + 4)}, v{vG} offset:{w*512 + 16}" if w < 3 else f"ds_read_b128 {r4(60)}, v{vG} offset:{w*512 + 16}")
    regs[3] = 56
    p(f"""
    v_mov_b32 v{vM}, 0xff7fffff
    v_mov_b32 v{vL}, 0
    v_mov_b32 v{vO}, 0
    v_mov_b32 v{vO+1}, 0
    v_mov_b32 v{vO+2}, 0
    v_mov_b32 v{vO+3}, 0
    s_waitcnt lgkmcnt(0)
    """)
    for i in range(8):
        p(f"v_add_f32 v{regs[0]+i}, v{regs[0]+i}, v{regs[1]+i}")
        p(f"v_add_f32 v{regs[2]+i}, v{regs[2]+i}, v{regs[3]+i}")
    for i in range(8):
        p(f"v_add_f32 v{regs[0]+i}, v{regs[0]+i}, v{regs[2]+i}")
    for j in range(4):
        p(f"v_cvt_pk_bf16_f32 v{vQ+j}, v{regs[0]+2*j}, v{regs[0]+2*j+1}")
    stamp(p, 3)
    step = 32768
    NB = O.nb
    def refill(bank, isv, extra=None):
        def f(t):
            kv_load(p, bank_base(bank) + 4*t, isv, t, sOFF, (bank, t))
            if extra: extra(t)
        return f
    none = lambda t: None
    adv = lambda: adv_off(p, sOFF)
    nxt_sc = lambda n: p(f"v_add_u32 v{vSC}, {256*n}, v{vSC}")
    set_off(p, sOFF, NB)
    p(f"""
    s_lshl_b32 s{sT0}, s{sWAVE}, 13
    v_lshlrev_b32 v{vSC}, 2, v{vLANE}
    v_add_u32 v{vSC}, s{sT0}, v{vSC}
    """)
    NPEEL = 12
    wo_next = [0]
    def wo_extra(t):
        if t % 2 == 0:
            wo_load(p, wo_next[0]); wo_next[0] += 1
    for i in range(NPEEL):
        k_tile(p, i % NB, refill(i % NB, 0, wo_extra if 2 <= i < 10 else None), 256 * (i & 1))
        adv()
        if i & 1: nxt_sc(2)
    assert wo_next[0] == 32
    q0 = list(p.vmq)
    assert q0 == [(b, t) for b in range(NB) for t in range(8)], q0
    p(f"s_mov_b32 s{sCNT}, {(30 - NPEEL) // 2}")
    p("L_kloop:")
    for i in range(2):
        k_tile(p, i % NB, refill(i % NB, 0), 256 * i)
        adv()
    nxt_sc(2)
    assert p.vmq == q0
    p(f"""
    s_sub_u32 s{sCNT}, s{sCNT}, 1
    s_cmp_lg_u32 s{sCNT}, 0
    s_cbranch_scc1 L_kloop
    """)
    srd(p, srdD, sDBG, None, 256)
    srd(p, srdX, sX, None, 4096)
    p(f"""
    s_mov_b32 s{srdW}, s{sGW}
    s_and_b32 s{srdW+1}, s{sGW+1}, 0xffff
    s_mov_b32 s{srdW+2}, 1024
    s_lshl_b32 s{sT0}, s{sB}, 10
    v_lshlrev_b32 v{vG+2}, 2, v0
    v_add_u32 v{vG+3}, s{sT0}, v{vG+2}
    """)
    p.vm(f"buffer_load_dword v{vG+5}, v{vG+3}, s[{srdX}:{srdX+3}], 0 offen", "G")
    p.vm(f"buffer_load_dword v{vG+6}, v{vG+2}, s[{srdW}:{srdW+3}], 0 offen", "G")
    for i in (30, 31):
        if i + NB >= 32:
            if i + NB == 32: set_off(p, sOFF, 0)
            k_tile(p, i % NB, refill(i % NB, 1), 256 * (i & 1))
        else:
            k_tile(p, i % NB, refill(i % NB, 0), 256 * (i & 1))
        adv()
    mx, neg = vT + 3, vT + 4
    p(f"""
    s_lshl_b32 s{sT0}, s{sWAVE}, 13
    v_lshlrev_b32 v{vSC}, 2, v{vLANE}
    v_add_u32 v{vSC}, s{sT0}, v{vSC}
    v_max_f32_dpp v{vM}, v{vM}, v{vM} row_half_mirror row_mask:0xf bank_mask:0xf
    s_waitcnt lgkmcnt(0)
    ds_read_b32 v{vW0}, v{vSC} offset:{LDS_SC}
    ds_read_b32 v{vW1}, v{vSC} offset:{LDS_SC + 256}
    v_max_f32_dpp v{vM}, v{vM}, v{vM} row_mirror row_mask:0xf bank_mask:0xf
    v_max_f32_dpp v{vM}, v{vM}, v{vM} row_bcast:15 row_mask:0xa bank_mask:0xf
    v_max_f32_dpp v{vM}, v{vM}, v{vM} row_bcast:31 row_mask:0xc bank_mask:0xf
    v_readlane_b32 s{sT0}, v{vM}, 63
    v_mov_b32 v{vM}, s{sT0}
    v_mul_f32 v{neg}, s{sL2E}, v{vM}
    v_add_u32 v{vSC}, 512, v{vSC}
    s_mov_b32 s{sCNT}, 15
    s_waitcnt lgkmcnt(0)
    """)
    stamp(p, 4)
    p.vmq = [t for t in p.vmq if t != "G"]
    p("L_vloop:")
    def pf(dst, off):
        return lambda: p(f"ds_read_b32 v{dst}, v{vSC} offset:{LDS_SC + off}")
    v_tile(p, 0, refill(0, 1), vW0, pf(vW0, 0))
    adv()
    v_tile(p, 1 % NB, refill(1 % NB, 1), vW1, pf(vW1, 256))
    adv()
    assert p.vmq == q0
    p(f"""
    v_add_u32 v{vSC}, 512, v{vSC}
    s_sub_u32 s{sCNT}, s{sCNT}, 1
    s_cmp_lg_u32 s{sCNT}, 0
    s_waitcnt lgkmcnt(0)
    s_cbranch_scc1 L_vloop
    """)
    stamp(p, 5)
    p(f"""
    s_lshl_b32 s{sT0}, s{sB}, 6
    s_cmp_eq_u32 s{sWAVE}, 0
    s_cselect_b32 s{sT0}, s{sT0}, 4096
    v_mov_b32 v{vG}, s{sT0}
    v_mov_b32 v{vG+1}, 1
    s_mov_b64 exec, 1
    """)
    p.vm(f"buffer_atomic_add v{vG+1}, v{vG}, s[{srdD}:{srdD+3}], 0 offen sc1", "ARR")
    p("s_mov_b64 exec, -1")
    v_tile(p, 0, refill(0, 1) if NB == 1 else none, vW0, None)
    v_tile(p, 1 % NB, none, vW1, None)
    stamp(p, 6)
    p(f"""
    v_add_f32_dpp v{vL}, v{vL}, v{vL} row_half_mirror row_mask:0xf bank_mask:0xf
    v_add_f32_dpp v{vL}, v{vL}, v{vL} row_mirror row_mask:0xf bank_mask:0xf
    v_add_f32_dpp v{vL}, v{vL}, v{vL} row_bcast:15 row_mask:0xa bank_mask:0xf
    v_add_f32_dpp v{vL}, v{vL}, v{vL} row_bcast:31 row_mask:0xc bank_mask:0xf
    v_readlane_b32 s{sT0}, v{vL}, 63
    v_and_b32 v{vT+3}, 15, v{vLANE}
    v_lshrrev_b32 v{vT+4}, 4, v{vLANE}
    v_mov_b32 v{vL}, s{sT0}
    v_lshlrev_b32 v{vT}, 5, v{vT+3}
    v_lshl_add_u32 v{vT+1}, v{vT+4}, 4, v{vT}
    s_lshl_b32 s{sT1}, s{sWAVE}, 9
    s_lshl_b32 s{sT0}, s{sWAVE}, 3
    v_add_u32 v{vT+2}, s{sT1}, v{vT+1}
    v_mov_b32 v{vT+5}, s{sT0}
    s_mov_b64 exec, 0xffffffff
    ds_write_b128 v{vT+2}, {r4(vO)} offset:2048
    s_mov_b64 exec, -1
    ds_write_b64 v{vT+5}, v[{vM}:{vM+1}] offset:4096
    v_lshlrev_b32 v{vT+6}, 2, v{vLANE}
    v_mov_b32 v{vT+5}, 0
    s_waitcnt lgkmcnt(0)
    s_barrier
    ds_read_b128 {r4(vP)}, v{vT+5} offset:4096
    ds_read_b128 {r4(vP+4)}, v{vT+5} offset:4112
    """)
    ob = 64
    for w in range(4):
        p(f"ds_read_b32 v{ob+2*w}, v{vT+6} offset:{2048 + w*512}")
        p(f"ds_read_b32 v{ob+2*w+1}, v{vT+6} offset:{2048 + w*512 + 256}")
    m = [vP, vP+2, vP+4, vP+6]; l = [vP+1, vP+3, vP+5, vP+7]
    p(f"""
    s_waitcnt lgkmcnt(8)
    v_max_f32 v{vM}, v{m[0]}, v{m[1]}
    v_max3_f32 v{vM}, v{vM}, v{m[2]}, v{m[3]}
    v_mul_f32 v{vT+7}, s{sL2E}, v{vM}
    """)
    for w in range(4): p(f"v_fma_f32 v{m[w]}, v{m[w]}, s{sL2E}, -v{vT+7}")
    for w in range(4): p(f"v_exp_f32 v{m[w]}, v{m[w]}")
    p(f"v_mul_f32 v{vL}, v{m[0]}, v{l[0]}")
    for w in range(1, 4): p(f"v_fma_f32 v{vL}, v{m[w]}, v{l[w]}, v{vL}")
    p("s_waitcnt lgkmcnt(0)")
    for u in range(2):
        p(f"v_mul_f32 v{vX+u}, v{m[0]}, v{ob+u}")
    for w in range(1, 4):
        for u in range(2):
            p(f"v_fma_f32 v{vX+u}, v{m[w]}, v{ob+2*w+u}, v{vX+u}")
    p(f"""
    v_cvt_pk_bf16_f32 v{vX}, v{vX}, v{vX}
    v_cvt_pk_bf16_f32 v{vX+1}, v{vX+1}, v{vX+1}
    v_mov_b32 v{vO}, 0
    v_mov_b32 v{vO+1}, 0
    v_mov_b32 v{vO+2}, 0
    v_mov_b32 v{vO+3}, 0
    s_nop 1
    s_call_b64 s[{sRET}:{sRET+1}], L_proj
    """)
    p(f"""
    s_lshl_b32 s{sT0}, s{sR}, 11
    s_lshl_b32 s{sT1}, s{sWAVE}, 9
    s_add_u32 s{sT0}, s{sT0}, s{sT1}
    v_add_u32 v{vT+1}, s{sT0}, v{vT+1}
    s_mov_b64 exec, 0xffffffff
    buffer_store_dwordx4 {r4(vO)}, v{vT+1}, s[{srdWS}:{srdWS+3}], 0 offen sc1
    s_mov_b64 exec, 1
    s_lshl_b32 s{sT0}, s{sR}, 3
    s_add_u32 s{sT0}, s{sT0}, {WS_ML}
    v_mov_b32 v{vT+2}, s{sT0}
    s_cmp_lg_u32 s{sWAVE}, 0
    s_cbranch_scc1 L_noml
    buffer_store_dwordx2 v[{vM}:{vM+1}], v{vT+2}, s[{srdWS}:{srdWS+3}], 0 offen sc1
    L_noml:
    s_mov_b64 exec, -1
    """)
    stamp(p, 7)
    p(f"""
    s_cmp_lg_u32 s{sRED}, 0
    s_cbranch_scc1 L_fin
    """)
    reducer(p)
    p("s_branch L_fin")
    return routine

def reducer(p):
    p.vmq = []
    vCOL, vGRP = 64, 65
    aP, aML, aQ = 66, 67, 68
    dP, dML, dQ = 72, 80, 96
    acc, accq = 100, 101
    sCB = sH
    gx, gw = vG+5, vG+6
    p(f"""
    s_lshr_b32 s{sCB}, s{sH}, 1
    v_and_b32 v{vCOL}, 31, v0
    v_lshrrev_b32 v{vGRP}, 5, v0
    s_lshl_b32 s{sT0}, s{sB}, 6
    v_lshl_add_u32 v{aML}, v{vGRP}, 3, s{sT0}
    v_lshlrev_b32 v{aP}, 11, v{aML}
    s_lshl_b32 s{sT1}, s{sCB}, 7
    v_lshl_add_u32 v{aQ}, v{vCOL}, 2, s{sT1}
    v_add_u32 v{aP}, v{aP}, v{aQ}
    v_lshlrev_b32 v{aML}, 3, v{aML}
    v_add_u32 v{aML}, {WS_ML}, v{aML}
    s_lshl_b32 s{sT0}, s{sB}, 11
    v_lshlrev_b32 v102, 15, v{vGRP}
    v_add3_u32 v{aQ}, v{aQ}, v102, s{sT0}
    s_mov_b32 s{sSPIN}, 0
    v_lshlrev_b32 v104, 16, v{gx}
    v_and_b32 v105, s{sHI}, v{gx}
    v_lshlrev_b32 v106, 16, v{gw}
    v_and_b32 v107, s{sHI}, v{gw}
    v_mul_f32 v104, v104, v106
    v_mul_f32 v105, v105, v107
    v_cvt_pk_bf16_f32 v104, v104, v105
    v_lshlrev_b32 v105, 16, v104
    v_and_b32 v104, s{sHI}, v104
    v_add_f32 v104, v104, v105
    v_add_f32_dpp v104, v104, v104 quad_perm:[1,0,3,2] row_mask:0xf bank_mask:0xf
    v_add_f32_dpp v104, v104, v104 quad_perm:[2,3,0,1] row_mask:0xf bank_mask:0xf
    v_add_f32_dpp v104, v104, v104 row_half_mirror row_mask:0xf bank_mask:0xf
    v_add_f32_dpp v104, v104, v104 row_mirror row_mask:0xf bank_mask:0xf
    v_add_f32_dpp v104, v104, v104 row_bcast:15 row_mask:0xa bank_mask:0xf
    v_add_f32_dpp v104, v104, v104 row_bcast:31 row_mask:0xc bank_mask:0xf
    v_readlane_b32 s{sT1}, v104, 63
    s_lshl_b32 s{sT2}, s{sWAVE}, 2
    v_mov_b32 v105, s{sT2}
    v_mov_b32 v104, s{sT1}
    ds_write_b32 v105, v104 offset:8192
    s_add_u32 s{srdV}, s{sWS}, {WS_Q}
    s_addc_u32 s{srdV+1}, s{sWS+1}, 0
    s_and_b32 s{srdV+1}, s{srdV+1}, 0xffff
    s_mov_b32 s{srdV+2}, {NFFN * 8192}
    s_mov_b32 s{srdV+3}, 0x20000
    s_cmp_lg_u32 s{sWAVE}, 0
    s_cbranch_scc1 L_pollok
    s_lshl_b32 s{sT0}, s{sB}, 6
    v_mov_b32 v103, s{sT0}
    v_mov_b32 v108, 32
    s_mov_b64 exec, 1
    L_apoll:
    buffer_load_dword v109, v103, s[{srdD}:{srdD+3}], 0 offen sc1
    buffer_load_dword v110, v108, s[{srdD}:{srdD+3}], 0 offen sc1
    s_waitcnt vmcnt(0)
    v_readfirstlane_b32 s{sT0}, v109
    v_readfirstlane_b32 s{sT1}, v110
    s_cmp_ge_u32 s{sT0}, 64
    s_cselect_b32 s{sT0}, 1, 0
    s_cmp_ge_u32 s{sT1}, {0 if O.noffn else NFFN}
    s_cselect_b32 s{sT0}, s{sT0}, 0
    s_cmp_lg_u32 s{sT0}, 0
    s_cbranch_scc1 L_aok
    s_add_u32 s{sSPIN}, s{sSPIN}, 1
    s_cmp_ge_u32 s{sSPIN}, {SPIN_MAX}
    s_cbranch_scc1 L_fin
    s_sleep {O.sleep}
    s_branch L_apoll
    L_aok:
    s_mov_b64 exec, -1
    L_pollok:
    s_barrier
    """)
    for i in range(4):
        p(f"s_mov_b32 s{sT2}, {i * 8192}")
        p(f"buffer_load_dword v{dQ+i}, v{aQ}, s[{srdV}:{srdV+3}], s{sT2} offen sc1")
    p("L_dpoll:")
    for k in range(8):
        p(f"s_mov_b32 s{sT2}, {k * 2048}")
        p(f"buffer_load_dword v{dP+k}, v{aP}, s[{srdWS}:{srdWS+3}], s{sT2} offen sc1")
    for i in range(4):
        p(f"buffer_load_dwordx4 {r4(dML+4*i)}, v{aML}, s[{srdWS}:{srdWS+3}], 0 offen offset:{16*i} sc1")
    p("s_waitcnt vmcnt(0)")
    p(f"v_max_u32 v102, v{dP}, v{dP+1}")
    for k in range(2, 8, 2): p(f"v_max3_u32 v102, v102, v{dP+k}, v{dP+k+1}")
    for k in range(0, 16, 2): p(f"v_max3_u32 v102, v102, v{dML+k}, v{dML+k+1}")
    p(f"""
    v_cmp_eq_u32 vcc, -1, v102
    s_cbranch_vccz L_dok
    s_add_u32 s{sSPIN}, s{sSPIN}, 1
    s_cmp_ge_u32 s{sSPIN}, {SPIN_MAX}
    s_cbranch_scc1 L_fin
    s_branch L_dpoll
    L_dok:
    v_mov_b32 v{acc}, 0
    """)
    for i in range(4):
        m0, l0, m1, l1 = dML+4*i, dML+4*i+1, dML+4*i+2, dML+4*i+3
        p(f"""
        v_max_f32 v102, v{m0}, v{m1}
        v_sub_f32 v{m0}, v{m0}, v102
        v_sub_f32 v{m1}, v{m1}, v102
        v_mul_f32 v{m0}, s{sL2E}, v{m0}
        v_mul_f32 v{m1}, s{sL2E}, v{m1}
        v_exp_f32 v{m0}, v{m0}
        v_exp_f32 v{m1}, v{m1}
        v_mul_f32 v102, v{m0}, v{l0}
        v_fma_f32 v102, v{m1}, v{l1}, v102
        v_rcp_f32 v102, v102
        v_mul_f32 v104, v{m0}, v{dP+2*i}
        v_fma_f32 v104, v{m1}, v{dP+2*i+1}, v104
        v_fma_f32 v{acc}, v104, v102, v{acc}
        """)
    p(f"""
    v_add_f32 v{dQ}, v{dQ}, v{dQ+1}
    v_add_f32 v{dQ+2}, v{dQ+2}, v{dQ+3}
    v_add_f32 v{accq}, v{dQ}, v{dQ+2}
    v_lshlrev_b32 v102, 2, v0
    ds_write_b32 v102, v{acc} offset:5120
    ds_write_b32 v102, v{accq} offset:6144
    s_waitcnt lgkmcnt(0)
    s_barrier
    s_cmp_lg_u32 s{sWAVE}, 0
    s_cbranch_scc1 L_fin
    v_lshlrev_b32 v102, 2, v{vCOL}
    v_mov_b32 v103, 0
    ds_read_b128 v[104:107], v103 offset:8192
    """)
    for g in range(8):
        p(f"ds_read_b32 v{dP+g}, v102 offset:{5120 + g*128}")
        p(f"ds_read_b32 v{dML+g}, v102 offset:{6144 + g*128}")
    p("s_waitcnt lgkmcnt(0)")
    for base in (dP, dML):
        p(f"""
        v_add_f32 v{base}, v{base}, v{base+1}
        v_add_f32 v{base+2}, v{base+2}, v{base+3}
        v_add_f32 v{base+4}, v{base+4}, v{base+5}
        v_add_f32 v{base+6}, v{base+6}, v{base+7}
        v_add_f32 v{base}, v{base}, v{base+2}
        v_add_f32 v{base+4}, v{base+4}, v{base+6}
        v_add_f32 v{base}, v{base}, v{base+4}
        """)
    p(f"""
    v_add_f32 v104, v104, v105
    v_add_f32 v106, v106, v107
    v_add_f32 v104, v104, v106
    """)
    gate_math(p, 104, None, 105)
    srd(p, srdK, sOUT, None, 4096)
    p(f"""
    v_cvt_pk_bf16_f32 v106, v{dP}, v{dML}
    v_lshlrev_b32 v107, 16, v106
    v_and_b32 v106, s{sHI}, v106
    v_mul_f32 v107, v104, v107
    v_mul_f32 v106, v105, v106
    v_cvt_pk_bf16_f32 v106, v107, v106
    v_lshlrev_b32 v107, 16, v106
    v_and_b32 v106, s{sHI}, v106
    v_add_f32 v106, v106, v107
    v_cvt_pk_bf16_f32 v106, v106, v106
    s_lshl_b32 s{sT0}, s{sB}, 10
    s_lshl_b32 s{sT1}, s{sCB}, 6
    s_add_u32 s{sT0}, s{sT0}, s{sT1}
    v_lshlrev_b32 v102, 1, v{vCOL}
    v_add_u32 v102, s{sT0}, v102
    s_mov_b64 exec, 0xffffffff
    buffer_store_short v106, v102, s[{srdK}:{srdK+3}], 0 offen
    s_mov_b64 exec, -1
    """)

def ffn(p):
    sJ = sH
    vXP = 50
    vSEL = 4
    vD0, vD1 = 12, 16
    vWD = 64
    srdG, srdU = srdK, srdV
    p.vmq = []
    p("L_ffn:")
    if O.prio: p("s_setprio 3")
    p(f"s_sub_u32 s{sJ}, s2, {NATT}")
    if O.ffn_even:
        p(f"""
        s_and_b32 s{sT0}, s{sJ}, 1
        s_cmp_lg_u32 s{sT0}, 0
        s_cbranch_scc1 L_end
        s_lshr_b32 s{sJ}, s{sJ}, 1
        """)
    srd(p, srdX, sX, None, 4096)
    p(f"""
    s_lshl_b32 s{sT0}, s{sWAVE}, 8
    v_lshlrev_b32 v{vT}, 1, v{vLANE}
    v_add_u32 v{vT}, s{sT0}, v{vT}
    v_add_u32 v{vT+1}, 2048, v{vT}
    """)
    xr = 22
    for b in range(4):
        for u in range(2):
            p.vm(f"buffer_load_ushort v{xr + 2*b + u}, v{vT + (b >> 1)}, s[{srdX}:{srdX+3}], 0 offen offset:{(b & 1) * 1024 + u * 128}", "x")
    srd(p, srdG, sWG, None, 512 * 3584)
    srd(p, srdU, sWU, None, 512 * 3584)
    p(f"""
    s_lshl_b32 s{sT0}, s{sWAVE}, 3
    v_add_u32 v{vT+5}, s{sT0}, v{vT+4}
    v_mul_u32_u24 v{vT+5}, {16 * 3584}, v{vT+5}
    v_and_b32 v{vT+6}, 7, v{vLANE}
    v_lshlrev_b32 v{vT+6}, 4, v{vT+6}
    s_lshl_b32 s{sT0}, s{sJ}, 7
    v_add3_u32 v20, v{vT+5}, v{vT+6}, s{sT0}
    s_mov_b32 s{sOFF1}, 0x00ff00ff
    s_mov_b32 s{sOFF2}, 0xff00ff00
    """)
    for half, (sr, mk) in enumerate(((srdG, sOFF1), (srdU, sOFF2))):
        p(f"s_mov_b32 exec_lo, s{mk}")
        p(f"s_mov_b32 exec_hi, s{mk}")
        p(f"s_mov_b32 s{sT2}, 0")
        for t in range(32):
            p.vm(f"buffer_load_dwordx4 {r4(vWA + 4*t)}, v20, s[{sr}:{sr+3}], s{sT2} offen {O.wpol}", ("W", half, t))
            if t == 15: p(f"s_add_u32 s{sT2}, s{sT2}, {49 * 3584}")
            elif t < 31: p(f"s_add_u32 s{sT2}, s{sT2}, 3584")
        if half == 0: p.wait_vm(("W", 0, 15))
    p("s_mov_b64 exec, -1")
    p(f"s_lshl_b32 s{sT0}, s{sJ}, 16")
    p(f"s_sub_u32 s{sT1}, {1792 * 1024}, s{sT0}")
    srd(p, srdW, sWD, f"s{sT0}", f"s{sT1}")
    p(f"""
    s_lshl_b32 s{sT0}, s{sWAVE}, 8
    v_lshlrev_b32 v{vW}, 14, v{vT+4}
    v_add3_u32 v{vW}, v{vW}, v{vT+3}, s{sT0}
    v_and_b32 v{vT+5}, 8, v{vLANE}
    v_mov_b32 v{vT+6}, 0x0100
    v_mov_b32 v{vT+7}, 0x0302
    v_cmp_eq_u32 vcc, 0, v{vT+5}
    v_cndmask_b32 v{vT+6}, v{vT+7}, v{vT+6}, vcc
    v_lshlrev_b32 v{vT+7}, 16, v{vT+6}
    v_or_b32 v{vT+7}, 0x0c0c, v{vT+7}
    v_or_b32 v{vT+6}, 0x0c0c0000, v{vT+6}
    v_and_b32 v{vT+5}, 1, v{vLANE}
    v_cmp_eq_u32 vcc, 0, v{vT+5}
    v_cndmask_b32 v{vT+6}, v{vT+7}, v{vT+6}, vcc
    v_bfe_u32 v{vT+5}, v{vLANE}, 1, 2
    v_mov_b32 v{vT+7}, 0x0c0c0c0c
    """)
    for j in range(4):
        p(f"v_cmp_eq_u32 vcc, {j}, v{vT+5}")
        p(f"v_cndmask_b32 v{vSEL+j}, v{vT+7}, v{vT+6}, vcc")
    for pr in range(2):
        for u in range(2):
            p(f"v_lshl_or_b32 v{vXP + 2*pr + u}, v{xr + 2*(2*pr+1) + u}, 16, v{xr + 2*(2*pr) + u}")
    for r in range(8): p(f"v_mov_b32 v{vD0 + r}, 0")
    p.wait_vm(("W", 1, 7))
    for t in range(16):
        if t & 3 == 0: p(f"s_mov_b32 s{sT2}, {(t & ~3) * 1024}")
        p.vm(f"buffer_load_dwordx4 {r4(vWD + 4*t)}, v{vW}, s[{srdW}:{srdW+3}], s{sT2} offen offset:{(t & 3) * 1024} {O.wpol}", ("D", t))
    stamp(p, 2)
    vBC = 30
    def step(src_of_pair, lane):
        for pr in range(2):
            p(f"v_mov_b32_dpp v{vBC+pr}, v{src_of_pair(pr)} row_newbcast:{lane} row_mask:0xf bank_mask:0xf")
        for pr in range(2):
            for j in range(4):
                p(f"v_perm_b32 v{vA + 4*pr + j}, v{vBC+pr}, v{vBC+pr}, v{vSEL+j}")
    for t in range(32):
        step(lambda pr: vXP + 2*pr + (t >> 4), t & 15)
        if t % 2 == 0: p.wait_vm(("W", 1, t + 1))
        p(f"v_mfma_f32_16x16x32_bf16 {r4(vD0)}, {r4(vA)}, {r4(vWA + 4*t)}, {r4(vD0)}")
        p(f"v_mfma_f32_16x16x32_bf16 {r4(vD1)}, {r4(vA+4)}, {r4(vWA + 4*t)}, {r4(vD1)}")
    stamp(p, 4)
    p(f"""
    s_lshl_b32 s{sT0}, s{sWAVE}, 11
    v_lshlrev_b32 v{vT}, 4, v{vLANE}
    v_add_u32 v{vT}, s{sT0}, v{vT}
    ds_write_b128 v{vT}, {r4(vD0)}
    ds_write_b128 v{vT}, {r4(vD1)} offset:1024
    s_lshr_b32 s{sT0}, s{sWAVE}, 1
    s_lshl_b32 s{sT0}, s{sT0}, 10
    s_and_b32 s{sT1}, s{sWAVE}, 1
    s_lshl_b32 s{sT2}, s{sT1}, 9
    s_add_u32 s{sT0}, s{sT0}, s{sT2}
    v_bfe_u32 v{vT+1}, v{vLANE}, 2, 1
    v_lshlrev_b32 v{vT+1}, 8, v{vT+1}
    v_lshrrev_b32 v{vT+2}, 3, v{vLANE}
    v_lshl_add_u32 v{vT+1}, v{vT+2}, 4, v{vT+1}
    v_and_b32 v{vT+2}, 3, v{vLANE}
    v_lshl_add_u32 v{vT+1}, v{vT+2}, 2, v{vT+1}
    v_add_u32 v{vT+1}, s{sT0}, v{vT+1}
    s_waitcnt lgkmcnt(0)
    s_barrier
    """)
    for w in range(4):
        p(f"ds_read_b32 v{vP+w}, v{vT+1} offset:{w*2048}")
        p(f"ds_read_b32 v{vP+4+w}, v{vT+1} offset:{w*2048 + 128}")
    h1, h2, t0, t1 = vP, vP+4, vP+1, vP+2
    C0 = 0x3F4C422A
    C1 = 0x3D372713
    p(f"""
    s_waitcnt lgkmcnt(0)
    v_add_f32 v{vP}, v{vP}, v{vP+1}
    v_add_f32 v{vP+2}, v{vP+2}, v{vP+3}
    v_add_f32 v{vP+4}, v{vP+4}, v{vP+5}
    v_add_f32 v{vP+6}, v{vP+6}, v{vP+7}
    v_add_f32 v{h1}, v{vP}, v{vP+2}
    v_add_f32 v{h2}, v{vP+4}, v{vP+6}
    v_cvt_pk_bf16_f32 v{t0}, v{h1}, v{h2}
    v_lshlrev_b32 v{h1}, 16, v{t0}
    v_and_b32 v{h2}, s{sHI}, v{t0}
    v_mul_f32 v{t0}, v{h1}, v{h1}
    v_mul_f32 v{t0}, v{t0}, v{h1}
    v_mov_b32 v{t1}, {hex(C1)}
    v_fma_f32 v{t0}, v{t0}, v{t1}, v{h1}
    v_mul_f32 v{t0}, {hex(C0)}, v{t0}
    v_mul_f32 v{t0}, s{sL2E}, v{t0}
    v_mul_f32 v{t0}, -2.0, v{t0}
    v_exp_f32 v{t0}, v{t0}
    v_add_f32 v{t0}, 1.0, v{t0}
    v_rcp_f32 v{t0}, v{t0}
    v_mul_f32 v{t0}, v{h1}, v{t0}
    v_cvt_pk_bf16_f32 v{t0}, v{t0}, v{t0}
    v_lshlrev_b32 v{t0}, 16, v{t0}
    v_mul_f32 v{t0}, v{t0}, v{h2}
    v_cvt_pk_bf16_f32 v{t0}, v{t0}, v{t0}
    s_lshr_b32 s{sT0}, s{sWAVE}, 1
    s_lshl_b32 s{sT0}, s{sT0}, 8
    s_lshl_b32 s{sT1}, s{sT1}, 1
    s_add_u32 s{sT0}, s{sT0}, s{sT1}
    v_lshlrev_b32 v{vT+2}, 2, v{vLANE}
    v_add_u32 v{vT+3}, s{sT0}, v{vT+2}
    ds_write_b16 v{vT+3}, v{t0} offset:8192
    s_waitcnt lgkmcnt(0)
    s_barrier
    ds_read_b32 v{vXP}, v{vT+2} offset:8192
    ds_read_b32 v{vXP+1}, v{vT+2} offset:8448
    """)
    for r in range(8): p(f"v_mov_b32 v{vD0 + r}, 0")
    p("s_waitcnt lgkmcnt(0)")
    stamp(p, 5)
    for t in range(16):
        step(lambda pr: vXP + pr, t)
        if t % 2 == 0: p.wait_vm(("D", t + 1))
        p(f"v_mfma_f32_16x16x32_bf16 {r4(vD0)}, {r4(vA)}, {r4(vWD + 4*t)}, {r4(vD0)}")
        p(f"v_mfma_f32_16x16x32_bf16 {r4(vD1)}, {r4(vA+4)}, {r4(vWD + 4*t)}, {r4(vD1)}")
    stamp(p, 6)
    srd(p, srdWS, sWS, None, WS_BYTES)
    srd(p, srdD, sDBG, None, 256)
    p(f"""
    s_lshl_b32 s{sT0}, s{sJ}, 13
    s_lshl_b32 s{sT1}, s{sWAVE}, 9
    s_add_u32 s{sT0}, s{sT0}, s{sT1}
    s_add_u32 s{sT0}, s{sT0}, {WS_Q}
    v_lshrrev_b32 v{vT}, 5, v{vLANE}
    v_lshlrev_b32 v{vT}, 11, v{vT}
    v_bfe_u32 v{vT+1}, v{vLANE}, 4, 1
    v_lshl_add_u32 v{vT}, v{vT+1}, 4, v{vT}
    v_and_b32 v{vT+1}, 15, v{vLANE}
    v_lshl_add_u32 v{vT}, v{vT+1}, 5, v{vT}
    v_add_u32 v{vT}, s{sT0}, v{vT}
    s_mov_b32 s{sT2}, 4096
    buffer_store_dwordx4 {r4(vD0)}, v{vT}, s[{srdWS}:{srdWS+3}], 0 offen sc1
    buffer_store_dwordx4 {r4(vD1)}, v{vT}, s[{srdWS}:{srdWS+3}], s{sT2} offen sc1
    v_mov_b32 v{vT+1}, 32
    v_mov_b32 v{vT+2}, 1
    s_waitcnt vmcnt(0)
    s_barrier
    s_cmp_lg_u32 s{sWAVE}, 0
    s_cbranch_scc1 L_fin
    s_mov_b64 exec, 1
    buffer_atomic_add v{vT+2}, v{vT+1}, s[{srdD}:{srdD+3}], 0 offen sc1
    s_mov_b64 exec, -1
    """)

def kernel1():
    p = Prog()
    common_prologue(p)
    p("s_waitcnt lgkmcnt(0)")
    stamp(p, 1)
    p(f"""
    s_cmp_ge_u32 s2, {NATT}
    s_cbranch_scc1 L_ffn
    """)
    routine = attention(p)
    p.ins += routine
    ffn(p)
    p("L_fin:")
    if O.dbgtime:
        p(f"""
        s_cmp_lg_u32 s{sWAVE}, 0
        s_cbranch_scc1 L_end
        s_and_b32 s74, s2, 0x1f
        s_cmp_lg_u32 s74, 0
        s_cbranch_scc1 L_end
        s_waitcnt vmcnt(0)
        s_memrealtime s[72:73]
        s_mov_b64 exec, 1
        s_mov_b32 s64, s38
        s_and_b32 s65, s39, 0xffff
        s_mov_b32 s66, 256
        s_mov_b32 s67, 0x20000
        s_waitcnt lgkmcnt(0)
        s_not_b32 s70, s70
        v_mov_b32 v60, s70
        v_mov_b32 v61, s72
        v_mov_b32 v62, 16
        buffer_atomic_umax v60, v62, s[64:67], 0 offen sc1
        buffer_atomic_umax v61, v62, s[64:67], 0 offen offset:4 sc1
        """)
    if O.stamps:
        p("s_waitcnt vmcnt(0)")
        stamp(p, 8)
        write_stamps(p, 9)
    p("L_end:")
    p("s_endpgm")
    p.finish()
    p.check_loop("L_kloop", "s_cbranch_scc1 L_kloop")
    p.check_loop("L_vloop", "s_cbranch_scc1 L_vloop")
    return p

def desc(name, vgpr, sgpr):
    acc = (vgpr + 3) // 4 * 4
    return f""".amdhsa_kernel {name}
  .amdhsa_next_free_vgpr {vgpr}
  .amdhsa_next_free_sgpr {sgpr}
  .amdhsa_accum_offset {acc}
  .amdhsa_group_segment_fixed_size 0
  .amdhsa_kernarg_size 104
  .amdhsa_user_sgpr_count 2
  .amdhsa_user_sgpr_kernarg_segment_ptr 1
  .amdhsa_system_sgpr_workgroup_id_x 1
  .amdhsa_float_denorm_mode_32 3
.end_amdhsa_kernel
"""

def gen():
    k1 = NAME + "_kernel"
    out = HEADER
    out += f"; @launch grid=({nwg()},1,1) block=(256,1,1) lds=49152\n"
    out += '.amdgcn_target "amdgcn-amd-amdhsa--gfx950"\n.text\n'
    out += f".globl {k1}\n.p2align 8\n.type {k1},@function\n{k1}:\n" + kernel1().text()
    out += '.section .rodata,"a"\n.p2align 6\n' + desc(k1, 256, 102 if O.stamps else 92)
    return out

if __name__ == "__main__":
    for a in sys.argv[2:]:
        if "=" in a:
            k, v = a.split("=", 1); setattr(O, k, v.replace("_", " ") if k.endswith("pol") else eval(v))
        else: setattr(O, a, True)
    open(sys.argv[1], "w").write(gen())
```

```python
import sys
from asmlib import Prog

NAME = "gated_mix__mha_block_cached__geglu_ffn__decode"
HEADER = open("gated_mix__mha_block_cached__geglu_ffn__decode.s.ref").read().split("; Override launch")[0]

NATT = 256
NFFN = 224
NQ = 56
L2E = 0x3FB8AA3B
SCALE = 0x3DB504F3
WS_P, WS_ML, WS_Q = 0, 0x80000, 0x100000
WS_H = 0x180000
WS_BYTES = 0x200000
WS_ST = 0x200000
SPIN_MAX = 1 << 22

class O:
    stamps = False
    wpol = ""
    kvpol = "nt"
    vpol = None
    ffn_even = False
    prio = False
    aprio = 0
    noffn = False
    sleep = 16
    rot = 0
    dbgtime = False
    lead = 16
    pre = 0
    flead = 0
    fnosync = False
    fpol = "nt"
    fsleep = 16
    wqrot = False
    wo0 = 2

sX, sK, sV, sWQ, sWO, sBX, sWG, sWU, sWD, sGW, sOUT, sDBG, sWS = 16, 18, 20, 22, 24, 26, 28, 30, 32, 34, 36, 38, 40
srdK, srdV, srdW, srdX, srdWS, srdD = 44, 48, 52, 56, 60, 64
sWAVE, sH, sB, sR = 3, 4, 5, 6
sOFF, sCNT, sL2E, sSCALE, sRET = 8, 9, 10, 11, 12
sT0, sT1, sT2 = 14, 15, 7
sHI, sOFF1, sOFF2, sSPIN = 68, 69, 42, 43
sST = 70
sROT = 89
vLANE, vKV0, vKV1 = 1, 2, 3
vMASK, vQ, vO = 4, 8, 12
vM, vL = 16, 17
vP, vR, vU, vA, vT = 18, 26, 30, 32, 40
vW, vWO, vX = 48, 49, 50
vSC, vW0, vW1 = 62, 60, 61
LDS_SC = 16384
vG = 52
BANK_A, BANK_B, BANK_C = 64, 128, 192
vWA = 128

def nwg(): return NATT if O.noffn else NATT + NFFN

def srd(p, dst, base, off_lo=None, size=None):
    if off_lo is None:
        p(f"s_mov_b32 s{dst}, s{base}")
        p(f"s_and_b32 s{dst+1}, s{base+1}, 0xffff")
    else:
        p(f"s_add_u32 s{dst}, s{base}, {off_lo}")
        p(f"s_addc_u32 s{dst+1}, s{base+1}, 0")
        p(f"s_and_b32 s{dst+1}, s{dst+1}, 0xffff")
    p(f"s_mov_b32 s{dst+2}, {size}")
    p(f"s_mov_b32 s{dst+3}, 0x20000")

def r4(b): return f"v[{b}:{b+3}]"

def stamp(p, k):
    if O.stamps: p(f"s_memrealtime s[{sST+2*k}:{sST+2*k+1}]")

def write_stamps(p, n):
    if not O.stamps: return
    p("s_mov_b64 exec, 1")
    p(f"s_getreg_b32 s{sST+22}, hwreg(HW_REG_HW_ID)")
    p(f"s_getreg_b32 s{sST+23}, hwreg(HW_REG_XCC_ID)")
    p("s_waitcnt lgkmcnt(0)")
    p(f"s_lshl_b32 s{sST+24}, s2, 2")
    p(f"s_add_u32 s{sST+24}, s{sST+24}, s{sWAVE}")
    p(f"s_lshl_b32 s{sST+24}, s{sST+24}, 6")
    p(f"s_add_u32 s{sST+24}, s{sST+24}, {WS_ST}")
    p(f"v_mov_b32 v60, s{sST+24}")
    p("s_mov_b32 s96, s40")
    p("s_and_b32 s97, s41, 0xffff")
    p("s_mov_b32 s98, 0x400000")
    p("s_mov_b32 s99, 0x20000")
    for k in range(n):
        p(f"v_mov_b32 v61, s{sST+2*k}")
        p(f"buffer_store_dword v61, v60, s[96:99], 0 offen offset:{4*k}")
    p(f"v_mov_b32 v61, s{sST+22}")
    p("buffer_store_dword v61, v60, s[96:99], 0 offen offset:56")
    p(f"v_mov_b32 v61, s{sST+23}")
    p("buffer_store_dword v61, v60, s[96:99], 0 offen offset:60")

def common_prologue(p):
    p(f"""
    s_cmp_ge_u32 s2, {nwg()}
    s_cbranch_scc1 L_end
    """)
    stamp(p, 0)
    if O.dbgtime: p("s_memrealtime s[70:71]")
    p(f"""
    s_load_dwordx16 s[16:31], s[0:1], 0
    s_load_dwordx8 s[32:39], s[0:1], 64
    s_load_dwordx2 s[40:41], s[0:1], 96
    v_and_b32 v{vLANE}, 63, v0
    v_lshrrev_b32 v{vT}, 6, v0
    s_mov_b32 s{sL2E}, {hex(L2E)}
    v_readfirstlane_b32 s{sWAVE}, v{vT}
    s_mov_b32 s{sSCALE}, {hex(SCALE)}
    s_mov_b32 s{sHI}, 0xffff0000
    v_and_b32 v{vT}, 1, v{vLANE}
    v_lshlrev_b32 v{vT}, 4, v{vT}
    v_mov_b32 v{vT+1}, 0xffff
    v_lshlrev_b32 v{vT+1}, v{vT}, v{vT+1}
    v_bfe_u32 v{vT+2}, v{vLANE}, 1, 3
    """)
    for j in range(4):
        p(f"v_cmp_eq_u32 vcc, {j}, v{vT+2}")
        p(f"v_cndmask_b32 v{vMASK+j}, 0, v{vT+1}, vcc")
    p(f"""
    v_and_b32 v{vT+3}, 15, v{vLANE}
    v_lshlrev_b32 v{vT+3}, 4, v{vT+3}
    v_lshrrev_b32 v{vT+4}, 4, v{vLANE}
    """)

def set_off(p, reg, k):
    if O.rot:
        p(f"s_add_u32 s{reg}, s{sROT}, {k * 32768}")
        p(f"s_and_b32 s{reg}, s{reg}, 0xfffff")
    else:
        p(f"s_mov_b32 s{reg}, {k * 32768}")

def adv_off(p, reg):
    p(f"s_add_u32 s{reg}, s{reg}, 32768")
    if O.rot: p(f"s_and_b32 s{reg}, s{reg}, 0xfffff")

def kv_load(p, reg, isv, t, soff, tag):
    d = srdV if isv else srdK
    p.vm(f"buffer_load_dwordx4 {r4(reg)}, v{vKV0 + (t >> 2)}, s[{d}:{d+3}], s{soff} offen offset:{(t & 3) * 1024} {O.vpol if (isv and O.vpol is not None) else O.kvpol}", tag)

def wo_load(p, t):
    u, tt = t >> 4, t & 15
    if tt & 3 == 0: p(f"s_mov_b32 s{sT2}, {(64 * u + (tt & ~3)) * 1024}")
    p.vm(f"buffer_load_dwordx4 {r4(vWA + 4*t)}, v{vWO}, s[{srdW}:{srdW+3}], s{sT2} offen offset:{(tt & 3) * 1024} {O.wpol}", ("W", t))

def proj_routine(p):
    p("L_proj:")
    def mk(t):
        for j in range(4):
            p(f"v_and_b32_dpp v{vA + 4*(t&1) + j}, v{vX + (t >> 4)}, v{vMASK+j} row_newbcast:{t & 15} row_mask:0xf bank_mask:0xf")
    mk(0)
    for t in range(32):
        if t + 1 < 32: mk(t + 1)
        if t % 2 == 0: p.wait_vm(("W", t + 1))
        p(f"v_mfma_f32_16x16x32_bf16 {r4(vO)}, {r4(vA + 4*(t&1))}, {r4(vWA + 4*t)}, {r4(vO)}")
    p("s_nop 7")
    p(f"s_setpc_b64 s[{sRET}:{sRET+1}]")

def bank_base(bank): return 64 + 32 * bank

def k_tile(p, bank, refill, scoff):
    base = bank_base(bank)
    for t in range(8):
        p.wait_vm(("L", 8 * bank + t))
        k = base + 4 * t
        p(f"v_dot2_f32_bf16 v{vP+t}, v{k}, v{vQ}, 0")
        for j in range(1, 4):
            p(f"v_dot2_f32_bf16 v{vP+t}, v{k+j}, v{vQ+j}, v{vP+t}")
        refill(t)
    for a in range(4):
        p(f"v_add_f32_dpp v{vR+a}, v{vP+a}, v{vP+a} row_mirror row_mask:0xf bank_mask:0x3")
    for a in range(4):
        p(f"v_add_f32_dpp v{vR+a}, v{vP+a+4}, v{vP+a+4} row_mirror row_mask:0xf bank_mask:0xc")
    p(f"v_add_f32_dpp v{vU}, v{vR}, v{vR} row_half_mirror row_mask:0xf bank_mask:0x5")
    p(f"v_add_f32_dpp v{vU+1}, v{vR+1}, v{vR+1} row_half_mirror row_mask:0xf bank_mask:0x5")
    p(f"v_add_f32_dpp v{vU}, v{vR+2}, v{vR+2} row_half_mirror row_mask:0xf bank_mask:0xa")
    p(f"v_add_f32_dpp v{vU+1}, v{vR+3}, v{vR+3} row_half_mirror row_mask:0xf bank_mask:0xa")
    for qp in ("[1,0,3,2]", "[2,3,0,1]"):
        for u in range(2):
            p(f"v_add_f32_dpp v{vU+u}, v{vU+u}, v{vU+u} quad_perm:{qp} row_mask:0xf bank_mask:0xf")
    a0, a1, w = vT, vT+1, vT+2
    p(f"""
    v_cvt_pk_bf16_f32 v{w}, v{vU}, v{vU+1}
    v_lshlrev_b32 v{a0}, 16, v{w}
    v_and_b32 v{a1}, s{sHI}, v{w}
    v_mul_f32 v{a0}, s{sSCALE}, v{a0}
    v_mul_f32 v{a1}, s{sSCALE}, v{a1}
    v_cvt_pk_bf16_f32 v{w}, v{a0}, v{a1}
    v_lshlrev_b32 v{a0}, 16, v{w}
    v_and_b32 v{a1}, s{sHI}, v{w}
    ds_write_b32 v{vSC}, v{w} offset:{LDS_SC + scoff}
    v_max3_f32 v{vM}, v{vM}, v{a0}, v{a1}
    """)

def v_tile(p, bank, refill, wreg, prefetch_next):
    base = bank_base(bank)
    a0, a1, p0, p1 = vT, vT+1, vT+6, vT+7
    neg = vT + 4
    p(f"""
    v_lshlrev_b32 v{a0}, 16, v{wreg}
    v_and_b32 v{a1}, s{sHI}, v{wreg}
    """)
    if prefetch_next is not None: prefetch_next()
    p(f"""
    v_fma_f32 v{p0}, v{a0}, s{sL2E}, -v{neg}
    v_fma_f32 v{p1}, v{a1}, s{sL2E}, -v{neg}
    v_exp_f32 v{p0}, v{p0}
    v_exp_f32 v{p1}, v{p1}
    v_add_f32 v{vL}, v{vL}, v{p0}
    v_cvt_pk_bf16_f32 v{a0}, v{p0}, v{p0}
    v_cvt_pk_bf16_f32 v{a1}, v{p1}, v{p1}
    v_add_f32 v{vL}, v{vL}, v{p1}
    """)
    def mk(t):
        for j in range(4):
            p(f"v_and_b32_dpp v{vA + 4*(t&1) + j}, v{a0 + (t & 1)}, v{vMASK+j} row_newbcast:{4*(t >> 1)} row_mask:0xf bank_mask:0xf")
    mk(0)
    for t in range(8):
        if t + 1 < 8: mk(t + 1)
        p.wait_vm(("L", 8 * bank + t))
        p(f"v_mfma_f32_16x16x32_bf16 {r4(vO)}, {r4(vA + 4*(t&1))}, {r4(base + 4*t)}, {r4(vO)}")
        refill(t)

def gate_math(p, z, t0, t1):
    p(f"""
    v_cvt_pk_bf16_f32 v{z}, v{z}, v{z}
    v_lshlrev_b32 v{z}, 16, v{z}
    v_mul_f32 v{z}, s{sL2E}, v{z}
    v_sub_f32 v{z}, 0, v{z}
    v_exp_f32 v{z}, v{z}
    v_add_f32 v{z}, 1.0, v{z}
    v_rcp_f32 v{z}, v{z}
    v_cvt_pk_bf16_f32 v{z}, v{z}, v{z}
    v_lshlrev_b32 v{z}, 16, v{z}
    v_sub_f32 v{t1}, 1.0, v{z}
    v_cvt_pk_bf16_f32 v{t1}, v{t1}, v{t1}
    v_lshlrev_b32 v{t1}, 16, v{t1}
    """)

def attention(p):
    if O.aprio: p(f"s_setprio {O.aprio}")
    sRED = 88
    p(f"""
    s_and_b32 s{sT0}, s2, 7
    s_lshr_b32 s{sT1}, s2, 3
    s_lshr_b32 s{sH}, s{sT1}, 3
    s_lshl_b32 s{sT0}, s{sT0}, 2
    s_add_u32 s{sH}, s{sH}, s{sT0}
    s_lshr_b32 s{sB}, s{sT1}, 1
    s_and_b32 s{sB}, s{sB}, 3
    s_and_b32 s{sT1}, s{sT1}, 1
    s_lshl_b32 s{sR}, s{sB}, 5
    s_add_u32 s{sR}, s{sR}, s{sH}
    s_lshl_b32 s{sR}, s{sR}, 1
    s_add_u32 s{sR}, s{sR}, s{sT1}
    s_and_b32 s{sRED}, s{sR}, 3
    """)
    if O.rot:
        p(f"""
        s_mul_i32 s{sROT}, s{sR}, {O.rot}
        s_lshr_b32 s{sT0}, s{sR}, 5
        s_add_u32 s{sROT}, s{sROT}, s{sT0}
        s_and_b32 s{sROT}, s{sROT}, 31
        s_lshl_b32 s{sROT}, s{sROT}, 15
        """)
    srd(p, srdWS, sWS, None, WS_BYTES)
    p(f"""
    s_lshl_b32 s{sT0}, s{sR}, 11
    s_lshl_b32 s{sT1}, s{sWAVE}, 9
    s_add_u32 s{sT0}, s{sT0}, s{sT1}
    v_lshlrev_b32 v{vT}, 3, v{vLANE}
    v_add_u32 v{vT}, s{sT0}, v{vT}
    v_mov_b32 v{vP}, -1
    v_mov_b32 v{vP+1}, -1
    s_lshl_b32 s{sT0}, s{sR}, 3
    s_add_u32 s{sT0}, s{sT0}, {WS_ML}
    v_mov_b32 v{vT+1}, s{sT0}
    """)
    p.vm(f"buffer_store_dwordx2 v[{vP}:{vP+1}], v{vT}, s[{srdWS}:{srdWS+3}], 0 offen sc1", "inv")
    p.vm(f"buffer_store_dwordx2 v[{vP}:{vP+1}], v{vT+1}, s[{srdWS}:{srdWS+3}], 0 offen sc1", "inv")
    srd(p, srdX, sX, None, 4096)
    sRHO = sOFF2
    if O.wqrot:
        p(f"""
        s_lshr_b32 s{sRHO}, s2, 3
        s_and_b32 s{sRHO}, s{sRHO}, 7
        s_lshl_b32 s{sRHO}, s{sRHO}, 2
        s_lshl_b32 s{sT0}, s{sWAVE}, 8
        s_lshl_b32 s{sT1}, s{sB}, 10
        s_add_u32 s{sT0}, s{sT0}, s{sT1}
        v_and_b32 v{vT}, 15, v{vLANE}
        v_add_u32 v{vT}, s{sRHO}, v{vT}
        v_and_b32 v{vT}, 31, v{vT}
        v_xor_b32 v{vT+1}, 16, v{vT}
        v_and_b32 v{vT+5}, 16, v{vT}
        v_and_b32 v{vT+6}, 16, v{vT+1}
        v_mul_u32_u24 v{vT+5}, 3, v{vT+5}
        v_mul_u32_u24 v{vT+6}, 3, v{vT+6}
        v_add_u32 v{vT}, v{vT}, v{vT+5}
        v_add_u32 v{vT+1}, v{vT+1}, v{vT+6}
        v_lshl_add_u32 v{vT}, v{vT+4}, 4, v{vT}
        v_lshl_add_u32 v{vT+1}, v{vT+4}, 4, v{vT+1}
        v_lshl_add_u32 v{vT}, v{vT}, 1, s{sT0}
        v_lshl_add_u32 v{vT+1}, v{vT+1}, 1, s{sT0}
        """)
        p.vm(f"buffer_load_ushort v{vX}, v{vT}, s[{srdX}:{srdX+3}], 0 offen", "x")
        p.vm(f"buffer_load_ushort v{vX+1}, v{vT+1}, s[{srdX}:{srdX+3}], 0 offen", "x")
    else:
        p(f"""
        s_lshl_b32 s{sT0}, s{sWAVE}, 8
        s_lshl_b32 s{sT1}, s{sB}, 10
        s_add_u32 s{sT0}, s{sT0}, s{sT1}
        v_lshlrev_b32 v{vT}, 1, v{vLANE}
        v_add_u32 v{vT}, s{sT0}, v{vT}
        """)
        p.vm(f"buffer_load_ushort v{vX}, v{vT}, s[{srdX}:{srdX+3}], 0 offen", "x")
        p.vm(f"buffer_load_ushort v{vX+1}, v{vT}, s[{srdX}:{srdX+3}], 0 offen offset:128", "x")
    p(f"s_lshl_b32 s{sT0}, s{sH}, 8")
    p(f"s_sub_u32 s{sT1}, {4 << 20}, s{sT0}")
    srd(p, srdW, sWQ, f"s{sT0}", f"s{sT1}")
    p(f"""
    s_lshl_b32 s{sT0}, s{sWAVE}, 20
    v_lshlrev_b32 v{vW}, 17, v{vT+4}
    v_add3_u32 v{vW}, v{vW}, v{vT+3}, s{sT0}
    s_lshl_b32 s{sT0}, s{sR}, 20
    s_lshr_b32 s{sT1}, s{sR}, 12
    """)
    for (d, b) in ((srdK, sK), (srdV, sV)):
        p(f"s_add_u32 s{d}, s{b}, s{sT0}")
        p(f"s_addc_u32 s{d+1}, s{b+1}, s{sT1}")
        p(f"s_and_b32 s{d+1}, s{d+1}, 0xffff")
        p(f"s_mov_b32 s{d+2}, {1 << 20}")
        p(f"s_mov_b32 s{d+3}, 0x20000")
    p(f"""
    s_lshl_b32 s{sT0}, s{sWAVE}, 13
    v_lshlrev_b32 v{vKV0}, 4, v{vLANE}
    v_add_u32 v{vKV0}, s{sT0}, v{vKV0}
    v_add_u32 v{vKV1}, 4096, v{vKV0}
    s_mov_b32 s{sOFF}, 0
    s_mov_b32 s{sT2}, 0
    """)
    for t in range(32):
        if O.wqrot and t % 4 == 0:
            p(f"""
            s_add_u32 s{sT2}, s{sRHO}, {t}
            s_and_b32 s{sT2}, s{sT2}, 31
            s_and_b32 s{sT0}, s{sT2}, 16
            s_mul_i32 s{sT0}, s{sT0}, 3
            s_add_u32 s{sT2}, s{sT2}, s{sT0}
            s_lshl_b32 s{sT2}, s{sT2}, 13
            """)
        p.vm(f"buffer_load_dwordx4 {r4(vWA + 4*t)}, v{vW}, s[{srdW}:{srdW+3}], s{sT2} offen {O.wpol}", ("W", t))
        if O.wqrot:
            if t % 4 != 3: p(f"s_add_u32 s{sT2}, s{sT2}, 8192")
        elif t == 15: p(f"s_add_u32 s{sT2}, s{sT2}, {49 * 8192}")
        elif t < 31: p(f"s_add_u32 s{sT2}, s{sT2}, 8192")
    for j in range(max(O.lead, O.pre)):
        if j % 8 == 0: set_off(p, sOFF, j // 8)
        kv_load(p, 64 + 4 * j, 0, j & 7, sOFF, ("L", j))
    p(f"""
    s_lshl_b32 s{sT0}, s{sWAVE}, 8
    v_lshlrev_b32 v{vWO}, 14, v{vT+4}
    v_add3_u32 v{vWO}, v{vWO}, v{vT+3}, s{sT0}
    v_lshlrev_b32 v{vG}, 1, v{vT+3}
    v_lshl_add_u32 v{vG+1}, v{vT+4}, 4, v{vG}
    s_lshl_b32 s{sT1}, s{sWAVE}, 9
    v_add_u32 v{vG+1}, s{sT1}, v{vG+1}
    v_mov_b32 v{vO}, 0
    v_mov_b32 v{vO+1}, 0
    v_mov_b32 v{vO+2}, 0
    v_mov_b32 v{vO+3}, 0
    """)
    p.wait_vm("x")
    p(f"""
    v_lshl_or_b32 v{vX}, v{vX}, 16, v{vX}
    v_lshl_or_b32 v{vX+1}, v{vX+1}, 16, v{vX+1}
    s_nop 1
    s_call_b64 s[{sRET}:{sRET+1}], L_proj
    """)
    mark = len(p.ins)
    proj_routine(p)
    routine = p.ins[mark:]
    p.ins = p.ins[:mark]
    stamp(p, 2)
    p(f"""
    s_mov_b64 exec, 0xffffffff
    ds_write_b128 v{vG+1}, {r4(vO)}
    s_mov_b64 exec, -1
    s_lshl_b32 s{sT0}, s{sH}, 17
    s_sub_u32 s{sT1}, {4 << 20}, s{sT0}
    """)
    srd(p, srdW, sWO, f"s{sT0}", f"s{sT1}")
    p(f"""
    s_waitcnt lgkmcnt(0)
    s_barrier
    """)
    qa = vP
    regs = [18, 26, 34, 52]
    for w in range(4):
        p(f"ds_read_b128 {r4(regs[w])}, v{vG} offset:{w*512}" if w < 3 else f"ds_read_b128 {r4(56)}, v{vG} offset:{w*512}")
        p(f"ds_read_b128 {r4(regs[w] + 4)}, v{vG} offset:{w*512 + 16}" if w < 3 else f"ds_read_b128 {r4(60)}, v{vG} offset:{w*512 + 16}")
    regs[3] = 56
    p(f"""
    v_mov_b32 v{vM}, 0xff7fffff
    v_mov_b32 v{vL}, 0
    v_mov_b32 v{vO}, 0
    v_mov_b32 v{vO+1}, 0
    v_mov_b32 v{vO+2}, 0
    v_mov_b32 v{vO+3}, 0
    s_waitcnt lgkmcnt(0)
    """)
    for i in range(8):
        p(f"v_add_f32 v{regs[0]+i}, v{regs[0]+i}, v{regs[1]+i}")
        p(f"v_add_f32 v{regs[2]+i}, v{regs[2]+i}, v{regs[3]+i}")
    for i in range(8):
        p(f"v_add_f32 v{regs[0]+i}, v{regs[0]+i}, v{regs[2]+i}")
    for j in range(4):
        p(f"v_cvt_pk_bf16_f32 v{vQ+j}, v{regs[0]+2*j}, v{regs[0]+2*j+1}")
    stamp(p, 3)
    LEAD = O.lead
    DA = LEAD >> 3
    sOFFA, sOFFB = sOFF, sOFF1
    def set_pair(i):
        set_off(p, sOFFA, (i + DA) % 32); set_off(p, sOFFB, (i + DA + 1) % 32)
    def adv_pair():
        p(f"s_mov_b32 s{sOFFA}, s{sOFFB}")
        adv_off(p, sOFFB)
    def announce():
        p(f"""
        s_lshl_b32 s{sT0}, s{sB}, 6
        s_cmp_eq_u32 s{sWAVE}, 0
        s_cselect_b32 s{sT0}, s{sT0}, 4096
        v_mov_b32 v{vG}, s{sT0}
        v_mov_b32 v{vG+1}, 1
        s_mov_b64 exec, 1
        """)
        p.vm(f"buffer_atomic_add v{vG+1}, v{vG}, s[{srdD}:{srdD+3}], 0 offen sc1", "ARR")
        p("s_mov_b64 exec, -1")
    def refill(i, total_i, extra=None):
        def f(t):
            jt = t + LEAD
            d, t2 = jt >> 3, jt & 7
            slot = (8 * (i & 1) + jt) % 16
            if isinstance(total_i, str): isv = total_i == "V"
            else:
                ti = total_i + d
                if ti >= 64 or 8 * total_i + jt < O.pre:
                    if extra: extra(t)
                    return
                isv = ti >= 32
            kv_load(p, 64 + 4 * slot, isv, t2, sOFFA if d == DA else sOFFB, ("L", slot))
            if not isinstance(total_i, str) and total_i + d == 63 and t2 == 7: announce()
            if extra: extra(t)
        return f
    nxt_sc = lambda n: p(f"v_add_u32 v{vSC}, {256*n}, v{vSC}")
    p(f"""
    s_lshl_b32 s{sT0}, s{sWAVE}, 13
    v_lshlrev_b32 v{vSC}, 2, v{vLANE}
    v_add_u32 v{vSC}, s{sT0}, v{vSC}
    """)
    set_pair(0)
    WO0 = O.wo0
    NPEEL = WO0 + 10
    assert NPEEL % 2 == 0
    wo_next = [0]
    def wo_extra(t):
        if t % 2 == 0:
            wo_load(p, wo_next[0]); wo_next[0] += 1
    for i in range(NPEEL):
        k_tile(p, i & 1, refill(i, i, wo_extra if WO0 <= i < WO0 + 8 else None), 256 * (i & 1))
        adv_pair()
        if i & 1: nxt_sc(2)
    assert wo_next[0] == 32
    q0 = list(p.vmq)
    assert q0 == [("L", j % 16) for j in range(LEAD)], q0
    KEND = 28
    p(f"s_mov_b32 s{sCNT}, {(KEND - NPEEL) // 2}")
    p("L_kloop:")
    for i in range(2):
        k_tile(p, i, refill(i, "K"), 256 * i)
        adv_pair()
    nxt_sc(2)
    assert p.vmq == q0
    p(f"""
    s_sub_u32 s{sCNT}, s{sCNT}, 1
    s_cmp_lg_u32 s{sCNT}, 0
    s_cbranch_scc1 L_kloop
    """)
    srd(p, srdD, sDBG, None, 256)
    srd(p, srdX, sX, None, 4096)
    p(f"""
    s_mov_b32 s{srdW}, s{sGW}
    s_and_b32 s{srdW+1}, s{sGW+1}, 0xffff
    s_mov_b32 s{srdW+2}, 1024
    s_lshl_b32 s{sT0}, s{sB}, 10
    v_lshlrev_b32 v{vG+2}, 2, v0
    v_add_u32 v{vG+3}, s{sT0}, v{vG+2}
    """)
    p.vm(f"buffer_load_dword v{vG+5}, v{vG+3}, s[{srdX}:{srdX+3}], 0 offen", "G")
    p.vm(f"buffer_load_dword v{vG+6}, v{vG+2}, s[{srdW}:{srdW+3}], 0 offen", "G")
    for i in range(KEND, 32):
        set_pair(i)
        k_tile(p, i & 1, refill(i, i), 256 * (i & 1))
        if i & 1: nxt_sc(2)
    mx, neg = vT + 3, vT + 4
    p(f"""
    s_lshl_b32 s{sT0}, s{sWAVE}, 13
    v_lshlrev_b32 v{vSC}, 2, v{vLANE}
    v_add_u32 v{vSC}, s{sT0}, v{vSC}
    v_max_f32_dpp v{vM}, v{vM}, v{vM} row_half_mirror row_mask:0xf bank_mask:0xf
    s_waitcnt lgkmcnt(0)
    ds_read_b32 v{vW0}, v{vSC} offset:{LDS_SC}
    ds_read_b32 v{vW1}, v{vSC} offset:{LDS_SC + 256}
    v_max_f32_dpp v{vM}, v{vM}, v{vM} row_mirror row_mask:0xf bank_mask:0xf
    v_max_f32_dpp v{vM}, v{vM}, v{vM} row_bcast:15 row_mask:0xa bank_mask:0xf
    v_max_f32_dpp v{vM}, v{vM}, v{vM} row_bcast:31 row_mask:0xc bank_mask:0xf
    v_readlane_b32 s{sT0}, v{vM}, 63
    v_mov_b32 v{vM}, s{sT0}
    v_mul_f32 v{neg}, s{sL2E}, v{vM}
    v_add_u32 v{vSC}, 512, v{vSC}
    s_waitcnt lgkmcnt(0)
    """)
    stamp(p, 4)
    p.vmq = [t for t in p.vmq if t != "G"]
    assert p.vmq == q0, p.vmq
    VEND = 28
    set_pair(32)
    p(f"s_mov_b32 s{sCNT}, {VEND // 2}")
    p("L_vloop:")
    def pf(dst, off):
        return lambda: p(f"ds_read_b32 v{dst}, v{vSC} offset:{LDS_SC + off}")
    v_tile(p, 0, refill(0, "V"), vW0, pf(vW0, 0))
    adv_pair()
    v_tile(p, 1, refill(1, "V"), vW1, pf(vW1, 256))
    adv_pair()
    assert p.vmq == q0
    p(f"""
    v_add_u32 v{vSC}, 512, v{vSC}
    s_sub_u32 s{sCNT}, s{sCNT}, 1
    s_cmp_lg_u32 s{sCNT}, 0
    s_waitcnt lgkmcnt(0)
    s_cbranch_scc1 L_vloop
    """)
    v_tile(p, 0, refill(28, 32 + 28), vW0, pf(vW0, 0))
    adv_pair()
    v_tile(p, 1, refill(29, 32 + 29), vW1, pf(vW1, 256))
    adv_pair()
    p("s_waitcnt lgkmcnt(0)")
    stamp(p, 5)
    v_tile(p, 0, refill(30, 32 + 30), vW0, None)
    adv_pair()
    v_tile(p, 1, refill(31, 32 + 31), vW1, None)
    stamp(p, 6)
    p(f"""
    v_add_f32_dpp v{vL}, v{vL}, v{vL} row_half_mirror row_mask:0xf bank_mask:0xf
    v_add_f32_dpp v{vL}, v{vL}, v{vL} row_mirror row_mask:0xf bank_mask:0xf
    v_add_f32_dpp v{vL}, v{vL}, v{vL} row_bcast:15 row_mask:0xa bank_mask:0xf
    v_add_f32_dpp v{vL}, v{vL}, v{vL} row_bcast:31 row_mask:0xc bank_mask:0xf
    v_readlane_b32 s{sT0}, v{vL}, 63
    v_and_b32 v{vT+3}, 15, v{vLANE}
    v_lshrrev_b32 v{vT+4}, 4, v{vLANE}
    v_mov_b32 v{vL}, s{sT0}
    v_lshlrev_b32 v{vT}, 5, v{vT+3}
    v_lshl_add_u32 v{vT+1}, v{vT+4}, 4, v{vT}
    s_lshl_b32 s{sT1}, s{sWAVE}, 9
    s_lshl_b32 s{sT0}, s{sWAVE}, 3
    v_add_u32 v{vT+2}, s{sT1}, v{vT+1}
    v_mov_b32 v{vT+5}, s{sT0}
    s_mov_b64 exec, 0xffffffff
    ds_write_b128 v{vT+2}, {r4(vO)} offset:2048
    s_mov_b64 exec, -1
    ds_write_b64 v{vT+5}, v[{vM}:{vM+1}] offset:4096
    v_lshlrev_b32 v{vT+6}, 2, v{vLANE}
    v_mov_b32 v{vT+5}, 0
    s_waitcnt lgkmcnt(0)
    s_barrier
    ds_read_b128 {r4(vP)}, v{vT+5} offset:4096
    ds_read_b128 {r4(vP+4)}, v{vT+5} offset:4112
    """)
    ob = 64
    for w in range(4):
        p(f"ds_read_b32 v{ob+2*w}, v{vT+6} offset:{2048 + w*512}")
        p(f"ds_read_b32 v{ob+2*w+1}, v{vT+6} offset:{2048 + w*512 + 256}")
    m = [vP, vP+2, vP+4, vP+6]; l = [vP+1, vP+3, vP+5, vP+7]
    p(f"""
    s_waitcnt lgkmcnt(8)
    v_max_f32 v{vM}, v{m[0]}, v{m[1]}
    v_max3_f32 v{vM}, v{vM}, v{m[2]}, v{m[3]}
    v_mul_f32 v{vT+7}, s{sL2E}, v{vM}
    """)
    for w in range(4): p(f"v_fma_f32 v{m[w]}, v{m[w]}, s{sL2E}, -v{vT+7}")
    for w in range(4): p(f"v_exp_f32 v{m[w]}, v{m[w]}")
    p(f"v_mul_f32 v{vL}, v{m[0]}, v{l[0]}")
    for w in range(1, 4): p(f"v_fma_f32 v{vL}, v{m[w]}, v{l[w]}, v{vL}")
    p("s_waitcnt lgkmcnt(0)")
    for u in range(2):
        p(f"v_mul_f32 v{vX+u}, v{m[0]}, v{ob+u}")
    for w in range(1, 4):
        for u in range(2):
            p(f"v_fma_f32 v{vX+u}, v{m[w]}, v{ob+2*w+u}, v{vX+u}")
    p(f"""
    v_cvt_pk_bf16_f32 v{vX}, v{vX}, v{vX}
    v_cvt_pk_bf16_f32 v{vX+1}, v{vX+1}, v{vX+1}
    v_mov_b32 v{vO}, 0
    v_mov_b32 v{vO+1}, 0
    v_mov_b32 v{vO+2}, 0
    v_mov_b32 v{vO+3}, 0
    s_nop 1
    s_call_b64 s[{sRET}:{sRET+1}], L_proj
    """)
    p(f"""
    s_lshl_b32 s{sT0}, s{sR}, 11
    s_lshl_b32 s{sT1}, s{sWAVE}, 9
    s_add_u32 s{sT0}, s{sT0}, s{sT1}
    v_add_u32 v{vT+1}, s{sT0}, v{vT+1}
    s_mov_b64 exec, 0xffffffff
    buffer_store_dwordx4 {r4(vO)}, v{vT+1}, s[{srdWS}:{srdWS+3}], 0 offen sc1
    s_mov_b64 exec, 1
    s_lshl_b32 s{sT0}, s{sR}, 3
    s_add_u32 s{sT0}, s{sT0}, {WS_ML}
    v_mov_b32 v{vT+2}, s{sT0}
    s_cmp_lg_u32 s{sWAVE}, 0
    s_cbranch_scc1 L_noml
    buffer_store_dwordx2 v[{vM}:{vM+1}], v{vT+2}, s[{srdWS}:{srdWS+3}], 0 offen sc1
    L_noml:
    s_mov_b64 exec, -1
    """)
    stamp(p, 7)
    p(f"""
    s_cmp_lg_u32 s{sRED}, 0
    s_cbranch_scc1 L_fin
    """)
    reducer(p)
    p("s_branch L_fin")
    return routine

def reducer(p):
    p.vmq = []
    vCOL, vGRP = 64, 65
    aP, aML, aQ = 66, 67, 68
    dP, dML, dQ = 72, 80, 112
    acc, accq = 100, 101
    sCB = sH
    gx, gw = vG+5, vG+6
    p(f"""
    s_lshr_b32 s{sCB}, s{sH}, 1
    v_and_b32 v{vCOL}, 31, v0
    v_lshrrev_b32 v{vGRP}, 5, v0
    s_lshl_b32 s{sT0}, s{sB}, 6
    v_lshl_add_u32 v{aML}, v{vGRP}, 3, s{sT0}
    v_lshlrev_b32 v{aP}, 11, v{aML}
    s_lshl_b32 s{sT1}, s{sCB}, 7
    v_lshl_add_u32 v{aQ}, v{vCOL}, 2, s{sT1}
    v_add_u32 v{aP}, v{aP}, v{aQ}
    v_lshlrev_b32 v{aML}, 3, v{aML}
    v_add_u32 v{aML}, {WS_ML}, v{aML}
    s_lshl_b32 s{sT0}, s{sB}, 11
    v_mul_u32_u24 v102, {7 * 8192}, v{vGRP}
    v_add3_u32 v{aQ}, v{aQ}, v102, s{sT0}
    s_mov_b32 s{sSPIN}, 0
    v_lshlrev_b32 v104, 16, v{gx}
    v_and_b32 v105, s{sHI}, v{gx}
    v_lshlrev_b32 v106, 16, v{gw}
    v_and_b32 v107, s{sHI}, v{gw}
    v_mul_f32 v104, v104, v106
    v_mul_f32 v105, v105, v107
    v_cvt_pk_bf16_f32 v104, v104, v105
    v_lshlrev_b32 v105, 16, v104
    v_and_b32 v104, s{sHI}, v104
    v_add_f32 v104, v104, v105
    v_add_f32_dpp v104, v104, v104 quad_perm:[1,0,3,2] row_mask:0xf bank_mask:0xf
    v_add_f32_dpp v104, v104, v104 quad_perm:[2,3,0,1] row_mask:0xf bank_mask:0xf
    v_add_f32_dpp v104, v104, v104 row_half_mirror row_mask:0xf bank_mask:0xf
    v_add_f32_dpp v104, v104, v104 row_mirror row_mask:0xf bank_mask:0xf
    v_add_f32_dpp v104, v104, v104 row_bcast:15 row_mask:0xa bank_mask:0xf
    v_add_f32_dpp v104, v104, v104 row_bcast:31 row_mask:0xc bank_mask:0xf
    v_readlane_b32 s{sT1}, v104, 63
    s_lshl_b32 s{sT2}, s{sWAVE}, 2
    v_mov_b32 v105, s{sT2}
    v_mov_b32 v104, s{sT1}
    ds_write_b32 v105, v104 offset:8192
    s_add_u32 s{srdV}, s{sWS}, {WS_Q}
    s_addc_u32 s{srdV+1}, s{sWS+1}, 0
    s_and_b32 s{srdV+1}, s{srdV+1}, 0xffff
    s_mov_b32 s{srdV+2}, {NQ * 8192}
    s_mov_b32 s{srdV+3}, 0x20000
    s_cmp_lg_u32 s{sWAVE}, 0
    s_cbranch_scc1 L_pollok
    s_lshl_b32 s{sT0}, s{sB}, 6
    v_mov_b32 v103, s{sT0}
    v_mov_b32 v108, 32
    s_mov_b64 exec, 1
    L_apoll:
    buffer_load_dword v109, v103, s[{srdD}:{srdD+3}], 0 offen sc1
    buffer_load_dword v110, v108, s[{srdD}:{srdD+3}], 0 offen sc1
    s_waitcnt vmcnt(0)
    v_readfirstlane_b32 s{sT0}, v109
    v_readfirstlane_b32 s{sT1}, v110
    s_cmp_ge_u32 s{sT0}, 64
    s_cselect_b32 s{sT0}, 1, 0
    s_cmp_ge_u32 s{sT1}, {0 if (O.noffn or O.fnosync) else NFFN}
    s_cselect_b32 s{sT0}, s{sT0}, 0
    s_cmp_lg_u32 s{sT0}, 0
    s_cbranch_scc1 L_aok
    s_add_u32 s{sSPIN}, s{sSPIN}, 1
    s_cmp_ge_u32 s{sSPIN}, {SPIN_MAX}
    s_cbranch_scc1 L_fin
    s_sleep {O.sleep}
    s_branch L_apoll
    L_aok:
    s_mov_b64 exec, -1
    L_pollok:
    s_barrier
    """)
    for i in range(7):
        p(f"s_mov_b32 s{sT2}, {i * 8192}")
        p(f"buffer_load_dword v{dQ+i}, v{aQ}, s[{srdV}:{srdV+3}], s{sT2} offen sc1")
    p("L_dpoll:")
    for k in range(8):
        p(f"s_mov_b32 s{sT2}, {k * 2048}")
        p(f"buffer_load_dword v{dP+k}, v{aP}, s[{srdWS}:{srdWS+3}], s{sT2} offen sc1")
    for i in range(4):
        p(f"buffer_load_dwordx4 {r4(dML+4*i)}, v{aML}, s[{srdWS}:{srdWS+3}], 0 offen offset:{16*i} sc1")
    p("s_waitcnt vmcnt(0)")
    p(f"v_max_u32 v102, v{dP}, v{dP+1}")
    for k in range(2, 8, 2): p(f"v_max3_u32 v102, v102, v{dP+k}, v{dP+k+1}")
    for k in range(0, 16, 2): p(f"v_max3_u32 v102, v102, v{dML+k}, v{dML+k+1}")
    p(f"""
    v_cmp_eq_u32 vcc, -1, v102
    s_cbranch_vccz L_dok
    s_add_u32 s{sSPIN}, s{sSPIN}, 1
    s_cmp_ge_u32 s{sSPIN}, {SPIN_MAX}
    s_cbranch_scc1 L_fin
    s_branch L_dpoll
    L_dok:
    v_mov_b32 v{acc}, 0
    """)
    for i in range(4):
        m0, l0, m1, l1 = dML+4*i, dML+4*i+1, dML+4*i+2, dML+4*i+3
        p(f"""
        v_max_f32 v102, v{m0}, v{m1}
        v_sub_f32 v{m0}, v{m0}, v102
        v_sub_f32 v{m1}, v{m1}, v102
        v_mul_f32 v{m0}, s{sL2E}, v{m0}
        v_mul_f32 v{m1}, s{sL2E}, v{m1}
        v_exp_f32 v{m0}, v{m0}
        v_exp_f32 v{m1}, v{m1}
        v_mul_f32 v102, v{m0}, v{l0}
        v_fma_f32 v102, v{m1}, v{l1}, v102
        v_rcp_f32 v102, v102
        v_mul_f32 v104, v{m0}, v{dP+2*i}
        v_fma_f32 v104, v{m1}, v{dP+2*i+1}, v104
        v_fma_f32 v{acc}, v104, v102, v{acc}
        """)
    p(f"""
    v_add_f32 v{dQ}, v{dQ}, v{dQ+1}
    v_add_f32 v{dQ+2}, v{dQ+2}, v{dQ+3}
    v_add_f32 v{dQ+4}, v{dQ+4}, v{dQ+5}
    v_add_f32 v{dQ}, v{dQ}, v{dQ+2}
    v_add_f32 v{dQ+4}, v{dQ+4}, v{dQ+6}
    v_add_f32 v{accq}, v{dQ}, v{dQ+4}
    v_lshlrev_b32 v102, 2, v0
    ds_write_b32 v102, v{acc} offset:5120
    ds_write_b32 v102, v{accq} offset:6144
    s_waitcnt lgkmcnt(0)
    s_barrier
    s_cmp_lg_u32 s{sWAVE}, 0
    s_cbranch_scc1 L_fin
    v_lshlrev_b32 v102, 2, v{vCOL}
    v_mov_b32 v103, 0
    ds_read_b128 v[104:107], v103 offset:8192
    """)
    for g in range(8):
        p(f"ds_read_b32 v{dP+g}, v102 offset:{5120 + g*128}")
        p(f"ds_read_b32 v{dML+g}, v102 offset:{6144 + g*128}")
    p("s_waitcnt lgkmcnt(0)")
    for base in (dP, dML):
        p(f"""
        v_add_f32 v{base}, v{base}, v{base+1}
        v_add_f32 v{base+2}, v{base+2}, v{base+3}
        v_add_f32 v{base+4}, v{base+4}, v{base+5}
        v_add_f32 v{base+6}, v{base+6}, v{base+7}
        v_add_f32 v{base}, v{base}, v{base+2}
        v_add_f32 v{base+4}, v{base+4}, v{base+6}
        v_add_f32 v{base}, v{base}, v{base+4}
        """)
    p(f"""
    v_add_f32 v104, v104, v105
    v_add_f32 v106, v106, v107
    v_add_f32 v104, v104, v106
    """)
    gate_math(p, 104, None, 105)
    srd(p, srdK, sOUT, None, 4096)
    p(f"""
    v_cvt_pk_bf16_f32 v106, v{dP}, v{dML}
    v_lshlrev_b32 v107, 16, v106
    v_and_b32 v106, s{sHI}, v106
    v_mul_f32 v107, v104, v107
    v_mul_f32 v106, v105, v106
    v_cvt_pk_bf16_f32 v106, v107, v106
    v_lshlrev_b32 v107, 16, v106
    v_and_b32 v106, s{sHI}, v106
    v_add_f32 v106, v106, v107
    v_cvt_pk_bf16_f32 v106, v106, v106
    s_lshl_b32 s{sT0}, s{sB}, 10
    s_lshl_b32 s{sT1}, s{sCB}, 6
    s_add_u32 s{sT0}, s{sT0}, s{sT1}
    v_lshlrev_b32 v102, 1, v{vCOL}
    v_add_u32 v102, s{sT0}, v102
    s_mov_b64 exec, 0xffffffff
    buffer_store_short v106, v102, s[{srdK}:{srdK+3}], 0 offen
    s_mov_b64 exec, -1
    """)

def ffn(p):
    sF, sFS, sRR = sH, sB, sR
    vXP, vSEL, vD0, vD1 = 50, 4, 12, 16
    vG1, vWD, vH = 64, 96, 112
    srdG = srdK
    vBC = 30
    p.vmq = []
    p("L_ffn:")
    if O.prio: p("s_setprio 3")
    p(f"""
    s_sub_u32 s{sF}, s2, {NATT}
    s_lshr_b32 s{sFS}, s{sF}, 4
    s_and_b32 s{sRR}, s{sF}, 15
    """)
    srd(p, srdX, sX, None, 4096)
    p(f"""
    s_and_b32 s{sT0}, s{sRR}, 7
    s_lshl_b32 s{sT0}, s{sT0}, 6
    s_lshl_b32 s{sT1}, s{sWAVE}, 4
    s_add_u32 s{sT0}, s{sT0}, s{sT1}
    v_lshl_add_u32 v{vT+5}, v{vT+4}, 2, s{sT0}
    v_and_b32 v{vT}, 3, v{vLANE}
    v_add_u32 v{vT}, v{vT}, v{vT+5}
    v_lshlrev_b32 v{vT}, 1, v{vT}
    v_add_u32 v{vT+1}, 2048, v{vT}
    """)
    xr = 22
    for b in range(4):
        p.vm(f"buffer_load_ushort v{xr + b}, v{vT + (b >> 1)}, s[{srdX}:{srdX+3}], 0 offen offset:{(b & 1) * 1024}", "x")
    p(f"""
    s_cmp_lt_u32 s{sRR}, 8
    s_cselect_b32 s{srdG}, s{sWG}, s{sWU}
    s_cselect_b32 s{srdG+1}, s{sWG+1}, s{sWU+1}
    s_lshl_b32 s{sT0}, s{sFS}, 8
    s_add_u32 s{srdG}, s{srdG}, s{sT0}
    s_addc_u32 s{srdG+1}, s{srdG+1}, 0
    s_and_b32 s{srdG+1}, s{srdG+1}, 0xffff
    s_sub_u32 s{srdG+2}, {512 * 3584}, s{sT0}
    s_mov_b32 s{srdG+3}, 0x20000
    v_mul_u32_u24 v20, 3584, v{vT+5}
    v_add_u32 v20, v20, v{vT+3}
    """)
    for t in range(4):
        p(f"s_mov_b32 s{sT2}, {t * 3584}")
        p.vm(f"buffer_load_dwordx4 {r4(vG1 + 4*t)}, v20, s[{srdG}:{srdG+3}], s{sT2} offen {O.fpol}", ("W", t))
    srd(p, srdW, sWD, None, 1792 * 1024)
    p(f"""
    s_lshl_b32 s{sT0}, s{sFS}, 7
    s_lshr_b32 s{sT1}, s{sRR}, 2
    s_lshl_b32 s{sT1}, s{sT1}, 5
    s_add_u32 s{sT0}, s{sT0}, s{sT1}
    s_lshl_b32 s{sT1}, s{sWAVE}, 3
    s_add_u32 s{sT0}, s{sT0}, s{sT1}
    v_lshl_add_u32 v{vW}, v{vT+4}, 1, s{sT0}
    v_lshlrev_b32 v{vW}, 10, v{vW}
    s_and_b32 s{sT0}, s{sRR}, 3
    s_lshl_b32 s{sT0}, s{sT0}, 8
    v_add3_u32 v{vW}, v{vW}, v{vT+3}, s{sT0}
    """)
    for t in range(2):
        p.vm(f"buffer_load_dwordx4 {r4(vWD + 4*t)}, v{vW}, s[{srdW}:{srdW+3}], 0 offen offset:{t * 1024} {O.fpol}", ("D", t))
    p(f"""
    v_and_b32 v{vT+5}, 8, v{vLANE}
    v_mov_b32 v{vT+6}, 0x0100
    v_mov_b32 v{vT+7}, 0x0302
    v_cmp_eq_u32 vcc, 0, v{vT+5}
    v_cndmask_b32 v{vT+6}, v{vT+7}, v{vT+6}, vcc
    v_lshlrev_b32 v{vT+7}, 16, v{vT+6}
    v_or_b32 v{vT+7}, 0x0c0c, v{vT+7}
    v_or_b32 v{vT+6}, 0x0c0c0000, v{vT+6}
    v_and_b32 v{vT+5}, 1, v{vLANE}
    v_cmp_eq_u32 vcc, 0, v{vT+5}
    v_cndmask_b32 v{vT+6}, v{vT+7}, v{vT+6}, vcc
    v_bfe_u32 v{vT+5}, v{vLANE}, 1, 2
    v_mov_b32 v{vT+7}, 0x0c0c0c0c
    """)
    for j in range(4):
        p(f"v_cmp_eq_u32 vcc, {j}, v{vT+5}")
        p(f"v_cndmask_b32 v{vSEL+j}, v{vT+7}, v{vT+6}, vcc")
    srd(p, srdWS, sWS, None, WS_BYTES)
    srd(p, srdD, sDBG, None, 256)
    vRD = 54
    p(f"""
    s_lshr_b32 s{sT0}, s{sWAVE}, 1
    s_lshl_b32 s{sT0}, s{sT0}, 10
    s_and_b32 s{sT1}, s{sWAVE}, 1
    s_lshl_b32 s{sT1}, s{sT1}, 9
    s_add_u32 s{sT0}, s{sT0}, s{sT1}
    v_bfe_u32 v{vRD}, v{vLANE}, 1, 1
    v_lshlrev_b32 v{vRD}, 8, v{vRD}
    v_lshrrev_b32 v{vT+5}, 2, v{vLANE}
    v_lshl_add_u32 v{vRD}, v{vT+5}, 4, v{vRD}
    v_and_b32 v{vT+5}, 1, v{vLANE}
    v_lshl_add_u32 v{vRD}, v{vT+5}, 3, v{vRD}
    v_add_u32 v{vRD}, s{sT0}, v{vRD}
    """)
    def step(src_of_pair, lane):
        for pr in range(2):
            p(f"v_mov_b32_dpp v{vBC+pr}, v{src_of_pair(pr)} row_newbcast:{lane} row_mask:0xf bank_mask:0xf")
        for pr in range(2):
            for j in range(4):
                p(f"v_perm_b32 v{vA + 4*pr + j}, v{vBC+pr}, v{vBC+pr}, v{vSEL+j}")
    def cross_wave_sum(dst):
        p(f"""
        s_lshl_b32 s{sT0}, s{sWAVE}, 11
        v_lshlrev_b32 v{vT}, 4, v{vLANE}
        v_add_u32 v{vT}, s{sT0}, v{vT}
        ds_write_b128 v{vT}, {r4(vD0)}
        ds_write_b128 v{vT}, {r4(vD1)} offset:1024
        s_waitcnt lgkmcnt(0)
        s_barrier
        """)
        for w in range(4):
            p(f"ds_read_b64 v[{vP+2*w}:{vP+2*w+1}], v{vRD} offset:{w*2048}")
        p("s_waitcnt lgkmcnt(0)")
        for e in range(2):
            p(f"v_add_f32 v{vP+e}, v{vP+e}, v{vP+2+e}")
            p(f"v_add_f32 v{vP+4+e}, v{vP+4+e}, v{vP+6+e}")
        for e in range(2):
            p(f"v_add_f32 v{dst+e}, v{vP+e}, v{vP+4+e}")
    p.wait_vm("x")
    for pr in range(2):
        p(f"v_lshl_or_b32 v{vXP + pr}, v{xr + 2*pr + 1}, 16, v{xr + 2*pr}")
    for r in range(8): p(f"v_mov_b32 v{vD0 + r}, 0")
    stamp(p, 2)
    for t in range(4):
        step(lambda pr: vXP + pr, t)
        p.wait_vm(("W", t))
        p(f"v_mfma_f32_16x16x32_bf16 {r4(vD0)}, {r4(vA)}, {r4(vG1 + 4*t)}, {r4(vD0)}")
        p(f"v_mfma_f32_16x16x32_bf16 {r4(vD1)}, {r4(vA+4)}, {r4(vG1 + 4*t)}, {r4(vD1)}")
    cross_wave_sum(26)
    p(f"""
    s_lshl_b32 s{sT0}, s{sF}, 11
    s_lshl_b32 s{sT1}, s{sWAVE}, 9
    s_add_u32 s{sT0}, s{sT0}, s{sT1}
    s_add_u32 s{sT0}, s{sT0}, {WS_H}
    v_lshl_add_u32 v{vT}, v{vLANE}, 3, s{sT0}
    buffer_store_dwordx2 v[26:27], v{vT}, s[{srdWS}:{srdWS+3}], 0 offen sc1
    s_lshl_b32 s{sT0}, s{sFS}, 2
    s_cmp_lt_u32 s{sFS}, 7
    s_cselect_b32 s{sT1}, 0, 36
    s_add_u32 s{sT0}, s{sT0}, s{sT1}
    s_add_u32 s{sT0}, s{sT0}, 68
    v_mov_b32 v{vT+1}, s{sT0}
    v_mov_b32 v{vT+2}, 1
    s_waitcnt vmcnt(0)
    s_barrier
    """)
    p.vmq = []
    stamp(p, 4)
    p(f"""
    s_cmp_lg_u32 s{sWAVE}, {99 if O.fnosync else 0}
    s_cbranch_scc1 L_f1ok
    s_mov_b64 exec, 1
    buffer_atomic_add v{vT+2}, v{vT+1}, s[{srdD}:{srdD+3}], 0 offen sc0 sc1
    s_mov_b32 s{sSPIN}, 0
    s_waitcnt vmcnt(0)
    v_readfirstlane_b32 s{sT0}, v{vT+2}
    s_cmp_ge_u32 s{sT0}, 15
    s_cbranch_scc1 L_f1seen
    L_f1poll:
    s_sleep {O.fsleep}
    buffer_load_dword v{vT+5}, v{vT+1}, s[{srdD}:{srdD+3}], 0 offen sc1
    s_waitcnt vmcnt(0)
    v_readfirstlane_b32 s{sT0}, v{vT+5}
    s_cmp_ge_u32 s{sT0}, 16
    s_cbranch_scc1 L_f1seen
    s_add_u32 s{sSPIN}, s{sSPIN}, 1
    s_cmp_ge_u32 s{sSPIN}, {SPIN_MAX}
    s_cbranch_scc1 L_fin
    s_branch L_f1poll
    L_f1seen:
    s_mov_b64 exec, -1
    L_f1ok:
    s_barrier
    """)
    p(f"""
    s_lshl_b32 s{sT0}, s{sFS}, 4
    s_lshl_b32 s{sT1}, s{sWAVE}, 2
    s_add_u32 s{sT0}, s{sT0}, s{sT1}
    v_lshrrev_b32 v{vT}, 5, v{vLANE}
    v_add_u32 v{vT}, s{sT0}, v{vT}
    v_lshlrev_b32 v{vT}, 11, v{vT}
    v_bfe_u32 v{vT+1}, v{vLANE}, 3, 2
    v_lshl_add_u32 v{vT}, v{vT+1}, 9, v{vT}
    v_and_b32 v{vT+2}, 7, v{vLANE}
    v_lshl_add_u32 v{vT}, v{vT+2}, 4, v{vT}
    s_lshr_b32 s{sT1}, s{sRR}, 2
    s_lshl_b32 s{sT1}, s{sT1}, 7
    s_add_u32 s{sT1}, s{sT1}, {WS_H}
    v_add_u32 v{vT}, s{sT1}, v{vT}
    s_mov_b32 s{sT2}, 4096
    buffer_load_dwordx4 {r4(vH)}, v{vT}, s[{srdWS}:{srdWS+3}], 0 offen sc1
    buffer_load_dwordx4 {r4(vH+4)}, v{vT}, s[{srdWS}:{srdWS+3}], s{sT2} offen sc1
    s_lshl_b32 s{sT0}, s{sWAVE}, 11
    v_lshrrev_b32 v{vT+5}, 5, v{vLANE}
    v_lshlrev_b32 v{vT+5}, 9, v{vT+5}
    v_lshl_add_u32 v{vT+5}, v{vT+1}, 7, v{vT+5}
    v_lshl_add_u32 v{vT+5}, v{vT+2}, 4, v{vT+5}
    v_add_u32 v{vT+5}, s{sT0}, v{vT+5}
    s_waitcnt vmcnt(0)
    ds_write_b128 v{vT+5}, {r4(vH)} offset:8192
    ds_write_b128 v{vT+5}, {r4(vH+4)} offset:9216
    v_and_b32 v{vT}, 127, v0
    v_lshlrev_b32 v{vT}, 2, v{vT}
    s_waitcnt lgkmcnt(0)
    s_barrier
    """)
    for pi in range(16):
        p(f"ds_read_b32 v{vG1+pi}, v{vT} offset:{8192 + pi*512}")
    p("s_waitcnt lgkmcnt(0)")
    for base in (vG1, vG1 + 8):
        p(f"""
        v_add_f32 v{base}, v{base}, v{base+1}
        v_add_f32 v{base+2}, v{base+2}, v{base+3}
        v_add_f32 v{base+4}, v{base+4}, v{base+5}
        v_add_f32 v{base+6}, v{base+6}, v{base+7}
        v_add_f32 v{base}, v{base}, v{base+2}
        v_add_f32 v{base+4}, v{base+4}, v{base+6}
        v_add_f32 v{base}, v{base}, v{base+4}
        """)
    h1, h2, t0, t1 = vP, vP+4, vP+1, vP+2
    C0 = 0x3F4C422A
    C1 = 0x3D372713
    p(f"""
    v_cvt_pk_bf16_f32 v{t0}, v{vG1}, v{vG1+8}
    v_lshlrev_b32 v{h1}, 16, v{t0}
    v_and_b32 v{h2}, s{sHI}, v{t0}
    v_mul_f32 v{t0}, v{h1}, v{h1}
    v_mul_f32 v{t0}, v{t0}, v{h1}
    v_mov_b32 v{t1}, {hex(C1)}
    v_fma_f32 v{t0}, v{t0}, v{t1}, v{h1}
    v_mul_f32 v{t0}, {hex(C0)}, v{t0}
    v_mul_f32 v{t0}, s{sL2E}, v{t0}
    v_mul_f32 v{t0}, -2.0, v{t0}
    v_exp_f32 v{t0}, v{t0}
    v_add_f32 v{t0}, 1.0, v{t0}
    v_rcp_f32 v{t0}, v{t0}
    v_mul_f32 v{t0}, v{h1}, v{t0}
    v_cvt_pk_bf16_f32 v{t0}, v{t0}, v{t0}
    v_lshlrev_b32 v{t0}, 16, v{t0}
    v_mul_f32 v{t0}, v{t0}, v{h2}
    v_cvt_pk_bf16_f32 v{t0}, v{t0}, v{t0}
    v_bfe_u32 v{vT+1}, v0, 6, 1
    v_lshlrev_b32 v{vT+1}, 7, v{vT+1}
    v_and_b32 v{vT+2}, 31, v0
    v_lshl_add_u32 v{vT+1}, v{vT+2}, 2, v{vT+1}
    v_bfe_u32 v{vT+2}, v0, 5, 1
    v_lshl_add_u32 v{vT+1}, v{vT+2}, 1, v{vT+1}
    ds_write_b16 v{vT+1}, v{t0} offset:16384
    s_lshl_b32 s{sT0}, s{sWAVE}, 3
    v_lshl_add_u32 v{vT+2}, v{vT+4}, 1, s{sT0}
    v_and_b32 v{vT+5}, 1, v{vLANE}
    v_add_u32 v{vT+2}, v{vT+2}, v{vT+5}
    v_lshlrev_b32 v{vT+2}, 2, v{vT+2}
    s_waitcnt lgkmcnt(0)
    s_barrier
    ds_read_b32 v{vXP}, v{vT+2} offset:16384
    ds_read_b32 v{vXP+1}, v{vT+2} offset:16512
    """)
    for r in range(8): p(f"v_mov_b32 v{vD0 + r}, 0")
    p("s_waitcnt lgkmcnt(0)")
    stamp(p, 5)
    for t in range(2):
        step(lambda pr: vXP + pr, t)
        p(f"v_mfma_f32_16x16x32_bf16 {r4(vD0)}, {r4(vA)}, {r4(vWD + 4*t)}, {r4(vD0)}")
        p(f"v_mfma_f32_16x16x32_bf16 {r4(vD1)}, {r4(vA+4)}, {r4(vWD + 4*t)}, {r4(vD1)}")
    cross_wave_sum(26)
    stamp(p, 6)
    p(f"""
    s_lshl_b32 s{sT0}, s{sFS}, 2
    s_lshr_b32 s{sT1}, s{sRR}, 2
    s_add_u32 s{sT0}, s{sT0}, s{sT1}
    s_lshl_b32 s{sT0}, s{sT0}, 13
    s_lshl_b32 s{sT1}, s{sWAVE}, 11
    s_add_u32 s{sT0}, s{sT0}, s{sT1}
    s_and_b32 s{sT1}, s{sRR}, 3
    s_lshl_b32 s{sT1}, s{sT1}, 9
    s_add_u32 s{sT0}, s{sT0}, s{sT1}
    s_add_u32 s{sT0}, s{sT0}, {WS_Q}
    v_lshl_add_u32 v{vT}, v{vLANE}, 3, s{sT0}
    buffer_store_dwordx2 v[26:27], v{vT}, s[{srdWS}:{srdWS+3}], 0 offen sc1
    v_mov_b32 v{vT+1}, 32
    v_mov_b32 v{vT+2}, 1
    s_waitcnt vmcnt(0)
    s_barrier
    s_cmp_lg_u32 s{sWAVE}, {99 if O.fnosync else 0}
    s_cbranch_scc1 L_fin
    s_mov_b64 exec, 1
    buffer_atomic_add v{vT+2}, v{vT+1}, s[{srdD}:{srdD+3}], 0 offen sc1
    s_mov_b64 exec, -1
    """)

def kernel1():
    p = Prog()
    common_prologue(p)
    p("s_waitcnt lgkmcnt(0)")
    stamp(p, 1)
    p(f"""
    s_cmp_ge_u32 s2, {NATT}
    s_cbranch_scc1 L_ffn
    """)
    routine = attention(p)
    p.ins += routine
    ffn(p)
    p("L_fin:")
    if O.dbgtime:
        p(f"""
        s_cmp_lg_u32 s{sWAVE}, 0
        s_cbranch_scc1 L_end
        s_and_b32 s74, s2, 0x1f
        s_cmp_lg_u32 s74, 0
        s_cbranch_scc1 L_end
        s_waitcnt vmcnt(0)
        s_memrealtime s[72:73]
        s_mov_b64 exec, 1
        s_mov_b32 s64, s38
        s_and_b32 s65, s39, 0xffff
        s_mov_b32 s66, 256
        s_mov_b32 s67, 0x20000
        s_waitcnt lgkmcnt(0)
        s_not_b32 s70, s70
        v_mov_b32 v60, s70
        v_mov_b32 v61, s72
        v_mov_b32 v62, 16
        buffer_atomic_umax v60, v62, s[64:67], 0 offen sc1
        buffer_atomic_umax v61, v62, s[64:67], 0 offen offset:4 sc1
        """)
    if O.stamps:
        p("s_waitcnt vmcnt(0)")
        stamp(p, 8)
        write_stamps(p, 9)
    p("L_end:")
    p("s_endpgm")
    p.finish()
    p.check_loop("L_kloop", "s_cbranch_scc1 L_kloop")
    p.check_loop("L_vloop", "s_cbranch_scc1 L_vloop")
    return p

def desc(name, vgpr, sgpr):
    acc = (vgpr + 3) // 4 * 4
    return f""".amdhsa_kernel {name}
  .amdhsa_next_free_vgpr {vgpr}
  .amdhsa_next_free_sgpr {sgpr}
  .amdhsa_accum_offset {acc}
  .amdhsa_group_segment_fixed_size 0
  .amdhsa_kernarg_size 104
  .amdhsa_user_sgpr_count 2
  .amdhsa_user_sgpr_kernarg_segment_ptr 1
  .amdhsa_system_sgpr_workgroup_id_x 1
  .amdhsa_float_denorm_mode_32 3
.end_amdhsa_kernel
"""

def gen():
    k1 = NAME + "_kernel"
    out = HEADER
    out += f"; @launch grid=({nwg()},1,1) block=(256,1,1) lds=49152\n"
    out += '.amdgcn_target "amdgcn-amd-amdhsa--gfx950"\n.text\n'
    out += f".globl {k1}\n.p2align 8\n.type {k1},@function\n{k1}:\n" + kernel1().text()
    out += '.section .rodata,"a"\n.p2align 6\n' + desc(k1, 256, 102 if O.stamps else 92)
    return out

if __name__ == "__main__":
    for a in sys.argv[2:]:
        if "=" in a:
            k, v = a.split("=", 1); setattr(O, k, v.replace("_", " ").replace("def", "") if k.endswith("pol") else eval(v))
        else: setattr(O, a, True)
    open(sys.argv[1], "w").write(gen())
```

```python
import sys
from asmlib import Prog

NAME = "gated_mix__mha_block_cached__geglu_ffn__decode"
HEADER = open("gated_mix__mha_block_cached__geglu_ffn__decode.s.ref").read().split("; Override launch")[0]

NATT = 256
NFFN = 224
NQ = 56
L2E = 0x3FB8AA3B
SCALE = 0x3DB504F3
WS_P, WS_ML, WS_Q = 0, 0x80000, 0x100000
WS_H = 0x180000
WS_EPOCH, WS_HINT, WS_F1, WS_F2 = 0x90000, 0x90400, 0x91000, 0x92000
WS_BYTES = 0x200000
WS_ST = 0x200000
SPIN_MAX = 1 << 22

class O:
    stamps = False
    wpol = ""
    kvpol = "nt"
    vpol = None
    ffn_even = False
    prio = False
    aprio = 0
    noffn = False
    sleep = 16
    rot = 0
    dbgtime = False
    lead = 16
    lead2 = 0
    vsw = 99
    pre = 0
    flead = 0
    fnosync = False
    fpol = "nt"
    fsleep = 16
    wqrot = False
    wo0 = 2

sX, sK, sV, sWQ, sWO, sBX, sWG, sWU, sWD, sGW, sOUT, sDBG, sWS = 16, 18, 20, 22, 24, 26, 28, 30, 32, 34, 36, 38, 40
srdK, srdV, srdW, srdX, srdWS, srdD = 44, 48, 52, 56, 60, 64
sWAVE, sH, sB, sR = 3, 4, 5, 6
sOFF, sCNT, sL2E, sSCALE, sRET = 8, 9, 10, 11, 12
sT0, sT1, sT2 = 14, 15, 7
sHI, sOFF1, sOFF2, sSPIN = 68, 69, 42, 43
sST = 70
sROT = 89
sTAG = 90
vLANE, vKV0, vKV1 = 1, 2, 3
vMASK, vQ, vO = 4, 8, 12
vM, vL = 16, 17
vP, vR, vU, vA, vT = 18, 26, 30, 32, 40
vW, vWO, vX = 48, 49, 50
vSC, vW0, vW1 = 62, 60, 61
LDS_SC = 16384
vG = 52
BANK_A, BANK_B, BANK_C = 64, 128, 192
vWA = 128

def nwg(): return NATT if O.noffn else NATT + NFFN

def srd(p, dst, base, off_lo=None, size=None):
    if off_lo is None:
        p(f"s_mov_b32 s{dst}, s{base}")
        p(f"s_and_b32 s{dst+1}, s{base+1}, 0xffff")
    else:
        p(f"s_add_u32 s{dst}, s{base}, {off_lo}")
        p(f"s_addc_u32 s{dst+1}, s{base+1}, 0")
        p(f"s_and_b32 s{dst+1}, s{dst+1}, 0xffff")
    p(f"s_mov_b32 s{dst+2}, {size}")
    p(f"s_mov_b32 s{dst+3}, 0x20000")

def r4(b): return f"v[{b}:{b+3}]"

def stamp(p, k):
    if O.stamps: p(f"s_memrealtime s[{sST+2*k}:{sST+2*k+1}]")

def write_stamps(p, n):
    if not O.stamps: return
    p("s_mov_b64 exec, 1")
    p(f"s_getreg_b32 s{sST+22}, hwreg(HW_REG_HW_ID)")
    p(f"s_getreg_b32 s{sST+23}, hwreg(HW_REG_XCC_ID)")
    p("s_waitcnt lgkmcnt(0)")
    p(f"s_lshl_b32 s{sST+24}, s2, 2")
    p(f"s_add_u32 s{sST+24}, s{sST+24}, s{sWAVE}")
    p(f"s_lshl_b32 s{sST+24}, s{sST+24}, 6")
    p(f"s_add_u32 s{sST+24}, s{sST+24}, {WS_ST}")
    p(f"v_mov_b32 v60, s{sST+24}")
    p("s_mov_b32 s96, s40")
    p("s_and_b32 s97, s41, 0xffff")
    p("s_mov_b32 s98, 0x400000")
    p("s_mov_b32 s99, 0x20000")
    for k in range(n):
        p(f"v_mov_b32 v61, s{sST+2*k}")
        p(f"buffer_store_dword v61, v60, s[96:99], 0 offen offset:{4*k}")
    p(f"v_mov_b32 v61, s{sST+22}")
    p("buffer_store_dword v61, v60, s[96:99], 0 offen offset:56")
    p(f"v_mov_b32 v61, s{sST+23}")
    p("buffer_store_dword v61, v60, s[96:99], 0 offen offset:60")

def common_prologue(p):
    p(f"""
    s_cmp_ge_u32 s2, {nwg()}
    s_cbranch_scc1 L_end
    """)
    stamp(p, 0)
    if O.dbgtime: p("s_memrealtime s[70:71]")
    p(f"""
    s_load_dwordx16 s[16:31], s[0:1], 0
    s_load_dwordx8 s[32:39], s[0:1], 64
    s_load_dwordx2 s[40:41], s[0:1], 96
    v_and_b32 v{vLANE}, 63, v0
    v_lshrrev_b32 v{vT}, 6, v0
    s_mov_b32 s{sL2E}, {hex(L2E)}
    v_readfirstlane_b32 s{sWAVE}, v{vT}
    s_mov_b32 s{sSCALE}, {hex(SCALE)}
    s_mov_b32 s{sHI}, 0xffff0000
    v_and_b32 v{vT}, 1, v{vLANE}
    v_lshlrev_b32 v{vT}, 4, v{vT}
    v_mov_b32 v{vT+1}, 0xffff
    v_lshlrev_b32 v{vT+1}, v{vT}, v{vT+1}
    v_bfe_u32 v{vT+2}, v{vLANE}, 1, 3
    """)
    for j in range(4):
        p(f"v_cmp_eq_u32 vcc, {j}, v{vT+2}")
        p(f"v_cndmask_b32 v{vMASK+j}, 0, v{vT+1}, vcc")
    p(f"""
    v_and_b32 v{vT+3}, 15, v{vLANE}
    v_lshlrev_b32 v{vT+3}, 4, v{vT+3}
    v_lshrrev_b32 v{vT+4}, 4, v{vLANE}
    """)

def set_off(p, reg, k):
    if O.rot:
        p(f"s_add_u32 s{reg}, s{sROT}, {k * 32768}")
        p(f"s_and_b32 s{reg}, s{reg}, 0xfffff")
    else:
        p(f"s_mov_b32 s{reg}, {k * 32768}")

def adv_off(p, reg):
    p(f"s_add_u32 s{reg}, s{reg}, 32768")
    if O.rot: p(f"s_and_b32 s{reg}, s{reg}, 0xfffff")

def kv_load(p, reg, isv, t, soff, tag):
    d = srdV if isv else srdK
    p.vm(f"buffer_load_dwordx4 {r4(reg)}, v{vKV0 + (t >> 2)}, s[{d}:{d+3}], s{soff} offen offset:{(t & 3) * 1024} {O.vpol if (isv and O.vpol is not None) else O.kvpol}", tag)

def wo_load(p, t):
    u, tt = t >> 4, t & 15
    if tt & 3 == 0: p(f"s_mov_b32 s{sT2}, {(64 * u + (tt & ~3)) * 1024}")
    p.vm(f"buffer_load_dwordx4 {r4(vWA + 4*t)}, v{vWO}, s[{srdW}:{srdW+3}], s{sT2} offen offset:{(tt & 3) * 1024} {O.wpol}", ("W", t))

def proj_routine(p):
    p("L_proj:")
    def mk(t):
        for j in range(4):
            p(f"v_and_b32_dpp v{vA + 4*(t&1) + j}, v{vX + (t >> 4)}, v{vMASK+j} row_newbcast:{t & 15} row_mask:0xf bank_mask:0xf")
    mk(0)
    for t in range(32):
        if t + 1 < 32: mk(t + 1)
        if t % 2 == 0: p.wait_vm(("W", t + 1))
        p(f"v_mfma_f32_16x16x32_bf16 {r4(vO)}, {r4(vA + 4*(t&1))}, {r4(vWA + 4*t)}, {r4(vO)}")
    p("s_nop 7")
    p(f"s_setpc_b64 s[{sRET}:{sRET+1}]")

def bank_base(bank): return 64 + 32 * bank

def k_tile(p, bank, refill, scoff):
    base = bank_base(bank)
    for t in range(8):
        p.wait_vm(("L", 8 * bank + t))
        k = base + 4 * t
        p(f"v_dot2_f32_bf16 v{vP+t}, v{k}, v{vQ}, 0")
        for j in range(1, 4):
            p(f"v_dot2_f32_bf16 v{vP+t}, v{k+j}, v{vQ+j}, v{vP+t}")
        refill(t)
    for a in range(4):
        p(f"v_add_f32_dpp v{vR+a}, v{vP+a}, v{vP+a} row_mirror row_mask:0xf bank_mask:0x3")
    for a in range(4):
        p(f"v_add_f32_dpp v{vR+a}, v{vP+a+4}, v{vP+a+4} row_mirror row_mask:0xf bank_mask:0xc")
    p(f"v_add_f32_dpp v{vU}, v{vR}, v{vR} row_half_mirror row_mask:0xf bank_mask:0x5")
    p(f"v_add_f32_dpp v{vU+1}, v{vR+1}, v{vR+1} row_half_mirror row_mask:0xf bank_mask:0x5")
    p(f"v_add_f32_dpp v{vU}, v{vR+2}, v{vR+2} row_half_mirror row_mask:0xf bank_mask:0xa")
    p(f"v_add_f32_dpp v{vU+1}, v{vR+3}, v{vR+3} row_half_mirror row_mask:0xf bank_mask:0xa")
    for qp in ("[1,0,3,2]", "[2,3,0,1]"):
        for u in range(2):
            p(f"v_add_f32_dpp v{vU+u}, v{vU+u}, v{vU+u} quad_perm:{qp} row_mask:0xf bank_mask:0xf")
    a0, a1, w = vT, vT+1, vT+2
    p(f"""
    v_cvt_pk_bf16_f32 v{w}, v{vU}, v{vU+1}
    v_lshlrev_b32 v{a0}, 16, v{w}
    v_and_b32 v{a1}, s{sHI}, v{w}
    v_mul_f32 v{a0}, s{sSCALE}, v{a0}
    v_mul_f32 v{a1}, s{sSCALE}, v{a1}
    v_cvt_pk_bf16_f32 v{w}, v{a0}, v{a1}
    v_lshlrev_b32 v{a0}, 16, v{w}
    v_and_b32 v{a1}, s{sHI}, v{w}
    ds_write_b32 v{vSC}, v{w} offset:{LDS_SC + scoff}
    v_max3_f32 v{vM}, v{vM}, v{a0}, v{a1}
    """)

def v_tile(p, bank, refill, wreg, prefetch_next):
    base = bank_base(bank)
    a0, a1, p0, p1 = vT, vT+1, vT+6, vT+7
    neg = vT + 4
    p(f"""
    v_lshlrev_b32 v{a0}, 16, v{wreg}
    v_and_b32 v{a1}, s{sHI}, v{wreg}
    """)
    if prefetch_next is not None: prefetch_next()
    p(f"""
    v_fma_f32 v{p0}, v{a0}, s{sL2E}, -v{neg}
    v_fma_f32 v{p1}, v{a1}, s{sL2E}, -v{neg}
    v_exp_f32 v{p0}, v{p0}
    v_exp_f32 v{p1}, v{p1}
    v_add_f32 v{vL}, v{vL}, v{p0}
    v_cvt_pk_bf16_f32 v{a0}, v{p0}, v{p0}
    v_cvt_pk_bf16_f32 v{a1}, v{p1}, v{p1}
    v_add_f32 v{vL}, v{vL}, v{p1}
    """)
    def mk(t):
        for j in range(4):
            p(f"v_and_b32_dpp v{vA + 4*(t&1) + j}, v{a0 + (t & 1)}, v{vMASK+j} row_newbcast:{4*(t >> 1)} row_mask:0xf bank_mask:0xf")
    mk(0)
    for t in range(8):
        if t + 1 < 8: mk(t + 1)
        p.wait_vm(("L", 8 * bank + t))
        p(f"v_mfma_f32_16x16x32_bf16 {r4(vO)}, {r4(vA + 4*(t&1))}, {r4(base + 4*t)}, {r4(vO)}")
        refill(t)

def gate_math(p, z, t0, t1):
    p(f"""
    v_cvt_pk_bf16_f32 v{z}, v{z}, v{z}
    v_lshlrev_b32 v{z}, 16, v{z}
    v_mul_f32 v{z}, s{sL2E}, v{z}
    v_sub_f32 v{z}, 0, v{z}
    v_exp_f32 v{z}, v{z}
    v_add_f32 v{z}, 1.0, v{z}
    v_rcp_f32 v{z}, v{z}
    v_cvt_pk_bf16_f32 v{z}, v{z}, v{z}
    v_lshlrev_b32 v{z}, 16, v{z}
    v_sub_f32 v{t1}, 1.0, v{z}
    v_cvt_pk_bf16_f32 v{t1}, v{t1}, v{t1}
    v_lshlrev_b32 v{t1}, 16, v{t1}
    """)

def attention(p):
    if O.aprio: p(f"s_setprio {O.aprio}")
    sRED = 88
    p(f"""
    s_and_b32 s{sT0}, s2, 7
    s_lshr_b32 s{sT1}, s2, 3
    s_lshr_b32 s{sH}, s{sT1}, 3
    s_lshl_b32 s{sT0}, s{sT0}, 2
    s_add_u32 s{sH}, s{sH}, s{sT0}
    s_lshr_b32 s{sB}, s{sT1}, 1
    s_and_b32 s{sB}, s{sB}, 3
    s_and_b32 s{sT1}, s{sT1}, 1
    s_lshl_b32 s{sR}, s{sB}, 5
    s_add_u32 s{sR}, s{sR}, s{sH}
    s_lshl_b32 s{sR}, s{sR}, 1
    s_add_u32 s{sR}, s{sR}, s{sT1}
    s_and_b32 s{sRED}, s{sR}, 3
    """)
    if O.rot:
        p(f"""
        s_mul_i32 s{sROT}, s{sR}, {O.rot}
        s_lshr_b32 s{sT0}, s{sR}, 5
        s_add_u32 s{sROT}, s{sROT}, s{sT0}
        s_and_b32 s{sROT}, s{sROT}, 31
        s_lshl_b32 s{sROT}, s{sROT}, 15
        """)
    srd(p, srdWS, sWS, None, WS_BYTES)
    p(f"""
    s_lshl_b32 s{sT0}, s{sR}, 11
    s_lshl_b32 s{sT1}, s{sWAVE}, 9
    s_add_u32 s{sT0}, s{sT0}, s{sT1}
    v_lshlrev_b32 v{vT}, 3, v{vLANE}
    v_add_u32 v{vT}, s{sT0}, v{vT}
    v_mov_b32 v{vP}, -1
    v_mov_b32 v{vP+1}, -1
    s_lshl_b32 s{sT0}, s{sR}, 3
    s_add_u32 s{sT0}, s{sT0}, {WS_ML}
    v_mov_b32 v{vT+1}, s{sT0}
    """)
    p.vm(f"buffer_store_dwordx2 v[{vP}:{vP+1}], v{vT}, s[{srdWS}:{srdWS+3}], 0 offen sc1", "inv")
    p.vm(f"buffer_store_dwordx2 v[{vP}:{vP+1}], v{vT+1}, s[{srdWS}:{srdWS+3}], 0 offen sc1", "inv")
    srd(p, srdX, sX, None, 4096)
    sRHO = sOFF2
    if O.wqrot:
        p(f"""
        s_lshr_b32 s{sRHO}, s2, 3
        s_and_b32 s{sRHO}, s{sRHO}, 7
        s_lshl_b32 s{sRHO}, s{sRHO}, 2
        s_lshl_b32 s{sT0}, s{sWAVE}, 8
        s_lshl_b32 s{sT1}, s{sB}, 10
        s_add_u32 s{sT0}, s{sT0}, s{sT1}
        v_and_b32 v{vT}, 15, v{vLANE}
        v_add_u32 v{vT}, s{sRHO}, v{vT}
        v_and_b32 v{vT}, 31, v{vT}
        v_xor_b32 v{vT+1}, 16, v{vT}
        v_and_b32 v{vT+5}, 16, v{vT}
        v_and_b32 v{vT+6}, 16, v{vT+1}
        v_mul_u32_u24 v{vT+5}, 3, v{vT+5}
        v_mul_u32_u24 v{vT+6}, 3, v{vT+6}
        v_add_u32 v{vT}, v{vT}, v{vT+5}
        v_add_u32 v{vT+1}, v{vT+1}, v{vT+6}
        v_lshl_add_u32 v{vT}, v{vT+4}, 4, v{vT}
        v_lshl_add_u32 v{vT+1}, v{vT+4}, 4, v{vT+1}
        v_lshl_add_u32 v{vT}, v{vT}, 1, s{sT0}
        v_lshl_add_u32 v{vT+1}, v{vT+1}, 1, s{sT0}
        """)
        p.vm(f"buffer_load_ushort v{vX}, v{vT}, s[{srdX}:{srdX+3}], 0 offen", "x")
        p.vm(f"buffer_load_ushort v{vX+1}, v{vT+1}, s[{srdX}:{srdX+3}], 0 offen", "x")
    else:
        p(f"""
        s_lshl_b32 s{sT0}, s{sWAVE}, 8
        s_lshl_b32 s{sT1}, s{sB}, 10
        s_add_u32 s{sT0}, s{sT0}, s{sT1}
        v_lshlrev_b32 v{vT}, 1, v{vLANE}
        v_add_u32 v{vT}, s{sT0}, v{vT}
        """)
        p.vm(f"buffer_load_ushort v{vX}, v{vT}, s[{srdX}:{srdX+3}], 0 offen", "x")
        p.vm(f"buffer_load_ushort v{vX+1}, v{vT}, s[{srdX}:{srdX+3}], 0 offen offset:128", "x")
    p(f"s_lshl_b32 s{sT0}, s{sH}, 8")
    p(f"s_sub_u32 s{sT1}, {4 << 20}, s{sT0}")
    srd(p, srdW, sWQ, f"s{sT0}", f"s{sT1}")
    p(f"""
    s_lshl_b32 s{sT0}, s{sWAVE}, 20
    v_lshlrev_b32 v{vW}, 17, v{vT+4}
    v_add3_u32 v{vW}, v{vW}, v{vT+3}, s{sT0}
    s_lshl_b32 s{sT0}, s{sR}, 20
    s_lshr_b32 s{sT1}, s{sR}, 12
    """)
    for (d, b) in ((srdK, sK), (srdV, sV)):
        p(f"s_add_u32 s{d}, s{b}, s{sT0}")
        p(f"s_addc_u32 s{d+1}, s{b+1}, s{sT1}")
        p(f"s_and_b32 s{d+1}, s{d+1}, 0xffff")
        p(f"s_mov_b32 s{d+2}, {1 << 20}")
        p(f"s_mov_b32 s{d+3}, 0x20000")
    p(f"""
    s_lshl_b32 s{sT0}, s{sWAVE}, 13
    v_lshlrev_b32 v{vKV0}, 4, v{vLANE}
    v_add_u32 v{vKV0}, s{sT0}, v{vKV0}
    v_add_u32 v{vKV1}, 4096, v{vKV0}
    s_mov_b32 s{sOFF}, 0
    s_mov_b32 s{sT2}, 0
    """)
    for t in range(32):
        if O.wqrot and t % 4 == 0:
            p(f"""
            s_add_u32 s{sT2}, s{sRHO}, {t}
            s_and_b32 s{sT2}, s{sT2}, 31
            s_and_b32 s{sT0}, s{sT2}, 16
            s_mul_i32 s{sT0}, s{sT0}, 3
            s_add_u32 s{sT2}, s{sT2}, s{sT0}
            s_lshl_b32 s{sT2}, s{sT2}, 13
            """)
        p.vm(f"buffer_load_dwordx4 {r4(vWA + 4*t)}, v{vW}, s[{srdW}:{srdW+3}], s{sT2} offen {O.wpol}", ("W", t))
        if O.wqrot:
            if t % 4 != 3: p(f"s_add_u32 s{sT2}, s{sT2}, 8192")
        elif t == 15: p(f"s_add_u32 s{sT2}, s{sT2}, {49 * 8192}")
        elif t < 31: p(f"s_add_u32 s{sT2}, s{sT2}, 8192")
    for j in range(max(O.lead, O.pre)):
        if j % 8 == 0: set_off(p, sOFF, j // 8)
        kv_load(p, 64 + 4 * j, 0, j & 7, sOFF, ("L", j))
    p(f"""
    s_lshl_b32 s{sT0}, s{sWAVE}, 8
    v_lshlrev_b32 v{vWO}, 14, v{vT+4}
    v_add3_u32 v{vWO}, v{vWO}, v{vT+3}, s{sT0}
    v_lshlrev_b32 v{vG}, 1, v{vT+3}
    v_lshl_add_u32 v{vG+1}, v{vT+4}, 4, v{vG}
    s_lshl_b32 s{sT1}, s{sWAVE}, 9
    v_add_u32 v{vG+1}, s{sT1}, v{vG+1}
    v_mov_b32 v{vO}, 0
    v_mov_b32 v{vO+1}, 0
    v_mov_b32 v{vO+2}, 0
    v_mov_b32 v{vO+3}, 0
    """)
    p.wait_vm("x")
    p(f"""
    v_lshl_or_b32 v{vX}, v{vX}, 16, v{vX}
    v_lshl_or_b32 v{vX+1}, v{vX+1}, 16, v{vX+1}
    s_nop 1
    s_call_b64 s[{sRET}:{sRET+1}], L_proj
    """)
    mark = len(p.ins)
    proj_routine(p)
    routine = p.ins[mark:]
    p.ins = p.ins[:mark]
    stamp(p, 2)
    p(f"""
    s_mov_b64 exec, 0xffffffff
    ds_write_b128 v{vG+1}, {r4(vO)}
    s_mov_b64 exec, -1
    s_lshl_b32 s{sT0}, s{sH}, 17
    s_sub_u32 s{sT1}, {4 << 20}, s{sT0}
    """)
    srd(p, srdW, sWO, f"s{sT0}", f"s{sT1}")
    p(f"""
    s_waitcnt lgkmcnt(0)
    s_barrier
    """)
    qa = vP
    regs = [18, 26, 34, 52]
    for w in range(4):
        p(f"ds_read_b128 {r4(regs[w])}, v{vG} offset:{w*512}" if w < 3 else f"ds_read_b128 {r4(56)}, v{vG} offset:{w*512}")
        p(f"ds_read_b128 {r4(regs[w] + 4)}, v{vG} offset:{w*512 + 16}" if w < 3 else f"ds_read_b128 {r4(60)}, v{vG} offset:{w*512 + 16}")
    regs[3] = 56
    p(f"""
    v_mov_b32 v{vM}, 0xff7fffff
    v_mov_b32 v{vL}, 0
    v_mov_b32 v{vO}, 0
    v_mov_b32 v{vO+1}, 0
    v_mov_b32 v{vO+2}, 0
    v_mov_b32 v{vO+3}, 0
    s_waitcnt lgkmcnt(0)
    """)
    p(f"""
    s_add_u32 s{sTAG}, s{sTAG}, 1
    s_addc_u32 s{sTAG+1}, s{sTAG+1}, 0
    """)
    for i in range(8):
        p(f"v_add_f32 v{regs[0]+i}, v{regs[0]+i}, v{regs[1]+i}")
        p(f"v_add_f32 v{regs[2]+i}, v{regs[2]+i}, v{regs[3]+i}")
    for i in range(8):
        p(f"v_add_f32 v{regs[0]+i}, v{regs[0]+i}, v{regs[2]+i}")
    for j in range(4):
        p(f"v_cvt_pk_bf16_f32 v{vQ+j}, v{regs[0]+2*j}, v{regs[0]+2*j+1}")
    stamp(p, 3)
    LEAD, LEAD2 = O.lead, max(O.lead2, O.lead)
    sOFFA, sOFFB = sOFF, sOFF1
    st = {"J": max(O.lead, O.pre), "A": None, "B": None}
    def lead_at(j):
        return LEAD2 if j >= 8 * (32 + O.vsw) else LEAD
    def announce():
        p(f"""
        s_lshl_b32 s{sT0}, s{sR}, 3
        s_add_u32 s{sT0}, s{sT0}, {WS_HINT}
        s_cmp_eq_u32 s{sWAVE}, 0
        s_cselect_b32 s{sT0}, s{sT0}, {WS_BYTES}
        v_mov_b32 v{vG}, s{sTAG}
        v_mov_b32 v{vG+1}, s{sTAG+1}
        v_mov_b32 v{vG+2}, s{sT0}
        s_mov_b64 exec, 1
        """)
        p.vm(f"buffer_store_dwordx2 v[{vG}:{vG+1}], v{vG+2}, s[{srdWS}:{srdWS+3}], 0 offen sc1", "ARR")
        p("s_mov_b64 exec, -1")
    def off_reg(k):
        if st["A"] == k: return sOFFA
        if st["B"] == k: return sOFFB
        if st["A"] is None or (st["B"] is not None and st["A"] <= st["B"]):
            set_off(p, sOFFA, k % 32); st["A"] = k; return sOFFA
        set_off(p, sOFFB, k % 32); st["B"] = k; return sOFFB
    def peeled_refill(i, extra=None):
        def f(t):
            j = 8 * i + t
            target = min(512, j + 1 + lead_at(j))
            n = 0
            while st["J"] < target and n < 3:
                J = st["J"]; k = J >> 3
                kv_load(p, 64 + 4 * (J % 16), k >= 32, J & 7, off_reg(k), ("L", J % 16))
                st["J"] += 1; n += 1
                if J == 511: announce()
            if extra: extra(t)
        return f
    def loop_refill(par, isv, L):
        DA = L >> 3
        def f(t):
            jt = t + L
            d, t2 = jt >> 3, jt & 7
            slot = (8 * par + jt) % 16
            kv_load(p, 64 + 4 * slot, isv, t2, sOFFA if d == DA else sOFFB, ("L", slot))
        return f
    def loop_enter(i, L):
        assert st["J"] == 8 * i + L, (st["J"], i, L)
        DA = L >> 3
        set_off(p, sOFFA, (i + DA) % 32); set_off(p, sOFFB, (i + DA + 1) % 32)
    def adv_pair():
        p(f"s_mov_b32 s{sOFFA}, s{sOFFB}")
        adv_off(p, sOFFB)
    def loop_exit(i_end, L):
        st["J"] = 8 * i_end + L; st["A"] = None; st["B"] = None
    nxt_sc = lambda n: p(f"v_add_u32 v{vSC}, {256*n}, v{vSC}")
    p(f"""
    s_lshl_b32 s{sT0}, s{sWAVE}, 13
    v_lshlrev_b32 v{vSC}, 2, v{vLANE}
    v_add_u32 v{vSC}, s{sT0}, v{vSC}
    """)
    WO0 = O.wo0
    NPEEL = WO0 + 10
    assert NPEEL % 2 == 0
    wo_next = [0]
    def wo_extra(t):
        if t % 2 == 0:
            wo_load(p, wo_next[0]); wo_next[0] += 1
    for i in range(NPEEL):
        k_tile(p, i & 1, peeled_refill(i, wo_extra if WO0 <= i < WO0 + 8 else None), 256 * (i & 1))
        if i & 1: nxt_sc(2)
    assert wo_next[0] == 32
    q0 = list(p.vmq)
    assert q0 == [("L", j % 16) for j in range(LEAD)], q0
    KEND = 28
    loop_enter(NPEEL, LEAD)
    p(f"s_mov_b32 s{sCNT}, {(KEND - NPEEL) // 2}")
    p("L_kloop:")
    for i in range(2):
        k_tile(p, i, loop_refill(i, False, LEAD), 256 * i)
        adv_pair()
    nxt_sc(2)
    assert p.vmq == q0
    p(f"""
    s_sub_u32 s{sCNT}, s{sCNT}, 1
    s_cmp_lg_u32 s{sCNT}, 0
    s_cbranch_scc1 L_kloop
    """)
    loop_exit(KEND, LEAD)
    srd(p, srdX, sX, None, 4096)
    p(f"""
    s_mov_b32 s{srdW}, s{sGW}
    s_and_b32 s{srdW+1}, s{sGW+1}, 0xffff
    s_mov_b32 s{srdW+2}, 1024
    s_lshl_b32 s{sT0}, s{sB}, 10
    v_lshlrev_b32 v{vG+2}, 2, v0
    v_add_u32 v{vG+3}, s{sT0}, v{vG+2}
    """)
    p.vm(f"buffer_load_dword v{vG+5}, v{vG+3}, s[{srdX}:{srdX+3}], 0 offen", "G")
    p.vm(f"buffer_load_dword v{vG+6}, v{vG+2}, s[{srdW}:{srdW+3}], 0 offen", "G")
    for i in range(KEND, 32):
        k_tile(p, i & 1, peeled_refill(i), 256 * (i & 1))
        if i & 1: nxt_sc(2)
    mx, neg = vT + 3, vT + 4
    p(f"""
    s_lshl_b32 s{sT0}, s{sWAVE}, 13
    v_lshlrev_b32 v{vSC}, 2, v{vLANE}
    v_add_u32 v{vSC}, s{sT0}, v{vSC}
    v_max_f32_dpp v{vM}, v{vM}, v{vM} row_half_mirror row_mask:0xf bank_mask:0xf
    s_waitcnt lgkmcnt(0)
    ds_read_b32 v{vW0}, v{vSC} offset:{LDS_SC}
    ds_read_b32 v{vW1}, v{vSC} offset:{LDS_SC + 256}
    v_max_f32_dpp v{vM}, v{vM}, v{vM} row_mirror row_mask:0xf bank_mask:0xf
    v_max_f32_dpp v{vM}, v{vM}, v{vM} row_bcast:15 row_mask:0xa bank_mask:0xf
    v_max_f32_dpp v{vM}, v{vM}, v{vM} row_bcast:31 row_mask:0xc bank_mask:0xf
    v_readlane_b32 s{sT0}, v{vM}, 63
    v_mov_b32 v{vM}, s{sT0}
    v_mul_f32 v{neg}, s{sL2E}, v{vM}
    v_add_u32 v{vSC}, 512, v{vSC}
    s_waitcnt lgkmcnt(0)
    """)
    stamp(p, 4)
    p.vmq = [t for t in p.vmq if t != "G"]
    def pf(dst, off):
        return lambda: p(f"ds_read_b32 v{dst}, v{vSC} offset:{LDS_SC + off}")
    def v_pair_tail():
        p(f"""
        v_add_u32 v{vSC}, 512, v{vSC}
        s_waitcnt lgkmcnt(0)
        """)
    def v_loop(label, v0, v1, L):
        if v1 <= v0: return
        qL = [("L", (8 * v0 + j) % 16) for j in range(L)]
        assert p.vmq == qL, (p.vmq, qL)
        loop_enter(32 + v0, L)
        p(f"s_mov_b32 s{sCNT}, {(v1 - v0) // 2}")
        p(label + ":")
        v_tile(p, 0, loop_refill(0, True, L), vW0, pf(vW0, 0))
        adv_pair()
        v_tile(p, 1, loop_refill(1, True, L), vW1, pf(vW1, 256))
        adv_pair()
        assert p.vmq == qL
        p(f"""
        v_add_u32 v{vSC}, 512, v{vSC}
        s_sub_u32 s{sCNT}, s{sCNT}, 1
        s_cmp_lg_u32 s{sCNT}, 0
        s_waitcnt lgkmcnt(0)
        s_cbranch_scc1 {label}
        """)
        loop_exit(32 + v1, L)
    def v_peeled_pair(v, last=False):
        v_tile(p, 0, peeled_refill(32 + v), vW0, None if last else pf(vW0, 0))
        v_tile(p, 1, peeled_refill(33 + v), vW1, None if last else pf(vW1, 256))
        if not last: v_pair_tail()
    VEND = 28
    if LEAD2 > LEAD and O.vsw < VEND:
        assert O.vsw % 2 == 0
        v_loop("L_vloop", 0, O.vsw, LEAD)
        v_peeled_pair(O.vsw)
        v_loop("L_vloop2", O.vsw + 2, VEND, LEAD2)
    else:
        v_loop("L_vloop", 0, VEND, LEAD)
    v_peeled_pair(28)
    stamp(p, 5)
    v_peeled_pair(30, last=True)
    stamp(p, 6)
    p(f"""
    v_add_f32_dpp v{vL}, v{vL}, v{vL} row_half_mirror row_mask:0xf bank_mask:0xf
    v_add_f32_dpp v{vL}, v{vL}, v{vL} row_mirror row_mask:0xf bank_mask:0xf
    v_add_f32_dpp v{vL}, v{vL}, v{vL} row_bcast:15 row_mask:0xa bank_mask:0xf
    v_add_f32_dpp v{vL}, v{vL}, v{vL} row_bcast:31 row_mask:0xc bank_mask:0xf
    v_readlane_b32 s{sT0}, v{vL}, 63
    v_and_b32 v{vT+3}, 15, v{vLANE}
    v_lshrrev_b32 v{vT+4}, 4, v{vLANE}
    v_mov_b32 v{vL}, s{sT0}
    v_lshlrev_b32 v{vT}, 5, v{vT+3}
    v_lshl_add_u32 v{vT+1}, v{vT+4}, 4, v{vT}
    s_lshl_b32 s{sT1}, s{sWAVE}, 9
    s_lshl_b32 s{sT0}, s{sWAVE}, 3
    v_add_u32 v{vT+2}, s{sT1}, v{vT+1}
    v_mov_b32 v{vT+5}, s{sT0}
    s_mov_b64 exec, 0xffffffff
    ds_write_b128 v{vT+2}, {r4(vO)} offset:2048
    s_mov_b64 exec, -1
    ds_write_b64 v{vT+5}, v[{vM}:{vM+1}] offset:4096
    v_lshlrev_b32 v{vT+6}, 2, v{vLANE}
    v_mov_b32 v{vT+5}, 0
    s_waitcnt lgkmcnt(0)
    s_barrier
    ds_read_b128 {r4(vP)}, v{vT+5} offset:4096
    ds_read_b128 {r4(vP+4)}, v{vT+5} offset:4112
    """)
    ob = 64
    for w in range(4):
        p(f"ds_read_b32 v{ob+2*w}, v{vT+6} offset:{2048 + w*512}")
        p(f"ds_read_b32 v{ob+2*w+1}, v{vT+6} offset:{2048 + w*512 + 256}")
    m = [vP, vP+2, vP+4, vP+6]; l = [vP+1, vP+3, vP+5, vP+7]
    p(f"""
    s_waitcnt lgkmcnt(8)
    v_max_f32 v{vM}, v{m[0]}, v{m[1]}
    v_max3_f32 v{vM}, v{vM}, v{m[2]}, v{m[3]}
    v_mul_f32 v{vT+7}, s{sL2E}, v{vM}
    """)
    for w in range(4): p(f"v_fma_f32 v{m[w]}, v{m[w]}, s{sL2E}, -v{vT+7}")
    for w in range(4): p(f"v_exp_f32 v{m[w]}, v{m[w]}")
    p(f"v_mul_f32 v{vL}, v{m[0]}, v{l[0]}")
    for w in range(1, 4): p(f"v_fma_f32 v{vL}, v{m[w]}, v{l[w]}, v{vL}")
    p("s_waitcnt lgkmcnt(0)")
    for u in range(2):
        p(f"v_mul_f32 v{vX+u}, v{m[0]}, v{ob+u}")
    for w in range(1, 4):
        for u in range(2):
            p(f"v_fma_f32 v{vX+u}, v{m[w]}, v{ob+2*w+u}, v{vX+u}")
    p(f"""
    v_cvt_pk_bf16_f32 v{vX}, v{vX}, v{vX}
    v_cvt_pk_bf16_f32 v{vX+1}, v{vX+1}, v{vX+1}
    v_mov_b32 v{vO}, 0
    v_mov_b32 v{vO+1}, 0
    v_mov_b32 v{vO+2}, 0
    v_mov_b32 v{vO+3}, 0
    s_nop 1
    s_call_b64 s[{sRET}:{sRET+1}], L_proj
    """)
    p(f"""
    s_lshl_b32 s{sT0}, s{sR}, 11
    s_lshl_b32 s{sT1}, s{sWAVE}, 9
    s_add_u32 s{sT0}, s{sT0}, s{sT1}
    v_add_u32 v{vT+1}, s{sT0}, v{vT+1}
    s_mov_b64 exec, 0xffffffff
    buffer_store_dwordx4 {r4(vO)}, v{vT+1}, s[{srdWS}:{srdWS+3}], 0 offen sc1
    s_mov_b64 exec, 1
    s_lshl_b32 s{sT0}, s{sR}, 3
    s_add_u32 s{sT0}, s{sT0}, {WS_ML}
    v_mov_b32 v{vT+2}, s{sT0}
    s_cmp_lg_u32 s{sWAVE}, 0
    s_cbranch_scc1 L_noml
    buffer_store_dwordx2 v[{vM}:{vM+1}], v{vT+2}, s[{srdWS}:{srdWS+3}], 0 offen sc1
    L_noml:
    s_mov_b64 exec, -1
    """)
    stamp(p, 7)
    p(f"""
    s_cmp_eq_u32 s{sR}, 1
    s_cbranch_scc1 L_keeper
    s_cmp_lg_u32 s{sRED}, 0
    s_cbranch_scc1 L_fin
    """)
    reducer(p)
    p("s_branch L_fin")
    keeper(p)
    return routine

def keeper(p):
    p(f"""
    L_keeper:
    v_lshlrev_b32 v64, 3, v0
    v_add_u32 v64, {WS_HINT}, v64
    v_and_b32 v65, 63, v0
    v_min_u32 v65, 55, v65
    v_lshrrev_b32 v66, 6, v0
    v_lshlrev_b32 v66, 9, v66
    v_lshl_add_u32 v65, v65, 3, v66
    v_add_u32 v65, {WS_F2}, v65
    s_mov_b32 s{sSPIN}, 0
    L_kpoll:
    buffer_load_dwordx2 v[68:69], v64, s[{srdWS}:{srdWS+3}], 0 offen sc1
    buffer_load_dwordx2 v[70:71], v65, s[{srdWS}:{srdWS+3}], 0 offen sc1
    s_waitcnt vmcnt(0)
    v_cmp_ne_u64 vcc, s[{sTAG}:{sTAG+1}], v[68:69]
    s_mov_b64 s[{sT0}:{sT0+1}], vcc
    """)
    if not (O.noffn or O.fnosync):
        p(f"""
        v_cmp_ne_u64 vcc, s[{sTAG}:{sTAG+1}], v[70:71]
        s_or_b64 s[{sT0}:{sT0+1}], s[{sT0}:{sT0+1}], vcc
        """)
    p(f"""
    s_cmp_eq_u64 s[{sT0}:{sT0+1}], 0
    s_cbranch_scc1 L_kok
    s_add_u32 s{sSPIN}, s{sSPIN}, 1
    s_cmp_ge_u32 s{sSPIN}, {SPIN_MAX}
    s_cbranch_scc1 L_fin
    s_sleep 64
    s_branch L_kpoll
    L_kok:
    s_barrier
    s_cmp_lg_u32 s{sWAVE}, 0
    s_cbranch_scc1 L_fin
    v_mov_b32 v64, {WS_EPOCH}
    v_mov_b32 v68, s{sTAG}
    v_mov_b32 v69, s{sTAG+1}
    s_mov_b64 exec, 1
    buffer_store_dwordx2 v[68:69], v64, s[{srdWS}:{srdWS+3}], 0 offen sc1
    s_mov_b64 exec, -1
    s_branch L_fin
    """)

def reducer(p):
    p.vmq = []
    vCOL, vGRP = 64, 65
    aP, aML, aQ = 66, 67, 68
    dP, dML, dQ = 72, 80, 112
    acc, accq = 100, 101
    sCB = sH
    gx, gw = vG+5, vG+6
    p(f"""
    s_lshr_b32 s{sCB}, s{sH}, 1
    v_and_b32 v{vCOL}, 31, v0
    v_lshrrev_b32 v{vGRP}, 5, v0
    s_lshl_b32 s{sT0}, s{sB}, 6
    v_lshl_add_u32 v{aML}, v{vGRP}, 3, s{sT0}
    v_lshlrev_b32 v{aP}, 11, v{aML}
    s_lshl_b32 s{sT1}, s{sCB}, 7
    v_lshl_add_u32 v{aQ}, v{vCOL}, 2, s{sT1}
    v_add_u32 v{aP}, v{aP}, v{aQ}
    v_lshlrev_b32 v{aML}, 3, v{aML}
    v_add_u32 v{aML}, {WS_ML}, v{aML}
    s_lshl_b32 s{sT0}, s{sB}, 11
    v_mul_u32_u24 v102, {7 * 8192}, v{vGRP}
    v_add3_u32 v{aQ}, v{aQ}, v102, s{sT0}
    s_mov_b32 s{sSPIN}, 0
    v_lshlrev_b32 v104, 16, v{gx}
    v_and_b32 v105, s{sHI}, v{gx}
    v_lshlrev_b32 v106, 16, v{gw}
    v_and_b32 v107, s{sHI}, v{gw}
    v_mul_f32 v104, v104, v106
    v_mul_f32 v105, v105, v107
    v_cvt_pk_bf16_f32 v104, v104, v105
    v_lshlrev_b32 v105, 16, v104
    v_and_b32 v104, s{sHI}, v104
    v_add_f32 v104, v104, v105
    v_add_f32_dpp v104, v104, v104 quad_perm:[1,0,3,2] row_mask:0xf bank_mask:0xf
    v_add_f32_dpp v104, v104, v104 quad_perm:[2,3,0,1] row_mask:0xf bank_mask:0xf
    v_add_f32_dpp v104, v104, v104 row_half_mirror row_mask:0xf bank_mask:0xf
    v_add_f32_dpp v104, v104, v104 row_mirror row_mask:0xf bank_mask:0xf
    v_add_f32_dpp v104, v104, v104 row_bcast:15 row_mask:0xa bank_mask:0xf
    v_add_f32_dpp v104, v104, v104 row_bcast:31 row_mask:0xc bank_mask:0xf
    v_readlane_b32 s{sT1}, v104, 63
    s_lshl_b32 s{sT2}, s{sWAVE}, 2
    v_mov_b32 v105, s{sT2}
    v_mov_b32 v104, s{sT1}
    ds_write_b32 v105, v104 offset:8192
    s_add_u32 s{srdV}, s{sWS}, {WS_Q}
    s_addc_u32 s{srdV+1}, s{sWS+1}, 0
    s_and_b32 s{srdV+1}, s{srdV+1}, 0xffff
    s_mov_b32 s{srdV+2}, {NQ * 8192}
    s_mov_b32 s{srdV+3}, 0x20000
    s_cmp_lg_u32 s{sWAVE}, 0
    s_cbranch_scc1 L_pollok
    s_lshl_b32 s{sT0}, s{sB}, 9
    s_add_u32 s{sT0}, s{sT0}, {WS_HINT}
    v_lshl_add_u32 v103, v{vLANE}, 3, s{sT0}
    s_lshr_b32 s{sT0}, s{sCB}, 2
    s_lshl_b32 s{sT0}, s{sT0}, 9
    s_add_u32 s{sT0}, s{sT0}, {WS_F2}
    v_min_u32 v108, 55, v{vLANE}
    v_lshl_add_u32 v108, v108, 3, s{sT0}
    L_apoll:
    buffer_load_dwordx2 v[110:111], v103, s[{srdWS}:{srdWS+3}], 0 offen sc1
    buffer_load_dwordx2 v[120:121], v108, s[{srdWS}:{srdWS+3}], 0 offen sc1
    s_waitcnt vmcnt(0)
    v_cmp_ne_u64 vcc, s[{sTAG}:{sTAG+1}], v[110:111]
    s_mov_b64 s[{sT0}:{sT0+1}], vcc
    """)
    if not (O.noffn or O.fnosync):
        p(f"""
        v_cmp_ne_u64 vcc, s[{sTAG}:{sTAG+1}], v[120:121]
        s_or_b64 s[{sT0}:{sT0+1}], s[{sT0}:{sT0+1}], vcc
        """)
    p(f"""
    s_cmp_eq_u64 s[{sT0}:{sT0+1}], 0
    s_cbranch_scc1 L_pollok
    s_add_u32 s{sSPIN}, s{sSPIN}, 1
    s_cmp_ge_u32 s{sSPIN}, {SPIN_MAX}
    s_cbranch_scc1 L_fin
    s_sleep {O.sleep}
    s_branch L_apoll
    L_pollok:
    s_barrier
    """)
    for i in range(7):
        p(f"s_mov_b32 s{sT2}, {i * 8192}")
        p(f"buffer_load_dword v{dQ+i}, v{aQ}, s[{srdV}:{srdV+3}], s{sT2} offen sc1")
    p("L_dpoll:")
    for k in range(8):
        p(f"s_mov_b32 s{sT2}, {k * 2048}")
        p(f"buffer_load_dword v{dP+k}, v{aP}, s[{srdWS}:{srdWS+3}], s{sT2} offen sc1")
    for i in range(4):
        p(f"buffer_load_dwordx4 {r4(dML+4*i)}, v{aML}, s[{srdWS}:{srdWS+3}], 0 offen offset:{16*i} sc1")
    p("s_waitcnt vmcnt(0)")
    p(f"v_max_u32 v102, v{dP}, v{dP+1}")
    for k in range(2, 8, 2): p(f"v_max3_u32 v102, v102, v{dP+k}, v{dP+k+1}")
    for k in range(0, 16, 2): p(f"v_max3_u32 v102, v102, v{dML+k}, v{dML+k+1}")
    p(f"""
    v_cmp_eq_u32 vcc, -1, v102
    s_cbranch_vccz L_dok
    s_add_u32 s{sSPIN}, s{sSPIN}, 1
    s_cmp_ge_u32 s{sSPIN}, {SPIN_MAX}
    s_cbranch_scc1 L_fin
    s_branch L_dpoll
    L_dok:
    v_mov_b32 v{acc}, 0
    """)
    for i in range(4):
        m0, l0, m1, l1 = dML+4*i, dML+4*i+1, dML+4*i+2, dML+4*i+3
        p(f"""
        v_max_f32 v102, v{m0}, v{m1}
        v_sub_f32 v{m0}, v{m0}, v102
        v_sub_f32 v{m1}, v{m1}, v102
        v_mul_f32 v{m0}, s{sL2E}, v{m0}
        v_mul_f32 v{m1}, s{sL2E}, v{m1}
        v_exp_f32 v{m0}, v{m0}
        v_exp_f32 v{m1}, v{m1}
        v_mul_f32 v102, v{m0}, v{l0}
        v_fma_f32 v102, v{m1}, v{l1}, v102
        v_rcp_f32 v102, v102
        v_mul_f32 v104, v{m0}, v{dP+2*i}
        v_fma_f32 v104, v{m1}, v{dP+2*i+1}, v104
        v_fma_f32 v{acc}, v104, v102, v{acc}
        """)
    p(f"""
    v_add_f32 v{dQ}, v{dQ}, v{dQ+1}
    v_add_f32 v{dQ+2}, v{dQ+2}, v{dQ+3}
    v_add_f32 v{dQ+4}, v{dQ+4}, v{dQ+5}
    v_add_f32 v{dQ}, v{dQ}, v{dQ+2}
    v_add_f32 v{dQ+4}, v{dQ+4}, v{dQ+6}
    v_add_f32 v{accq}, v{dQ}, v{dQ+4}
    v_lshlrev_b32 v102, 2, v0
    ds_write_b32 v102, v{acc} offset:5120
    ds_write_b32 v102, v{accq} offset:6144
    s_waitcnt lgkmcnt(0)
    s_barrier
    s_cmp_lg_u32 s{sWAVE}, 0
    s_cbranch_scc1 L_fin
    v_lshlrev_b32 v102, 2, v{vCOL}
    v_mov_b32 v103, 0
    ds_read_b128 v[104:107], v103 offset:8192
    """)
    for g in range(8):
        p(f"ds_read_b32 v{dP+g}, v102 offset:{5120 + g*128}")
        p(f"ds_read_b32 v{dML+g}, v102 offset:{6144 + g*128}")
    p("s_waitcnt lgkmcnt(0)")
    for base in (dP, dML):
        p(f"""
        v_add_f32 v{base}, v{base}, v{base+1}
        v_add_f32 v{base+2}, v{base+2}, v{base+3}
        v_add_f32 v{base+4}, v{base+4}, v{base+5}
        v_add_f32 v{base+6}, v{base+6}, v{base+7}
        v_add_f32 v{base}, v{base}, v{base+2}
        v_add_f32 v{base+4}, v{base+4}, v{base+6}
        v_add_f32 v{base}, v{base}, v{base+4}
        """)
    p(f"""
    v_add_f32 v104, v104, v105
    v_add_f32 v106, v106, v107
    v_add_f32 v104, v104, v106
    """)
    gate_math(p, 104, None, 105)
    srd(p, srdK, sOUT, None, 4096)
    p(f"""
    v_cvt_pk_bf16_f32 v106, v{dP}, v{dML}
    v_lshlrev_b32 v107, 16, v106
    v_and_b32 v106, s{sHI}, v106
    v_mul_f32 v107, v104, v107
    v_mul_f32 v106, v105, v106
    v_cvt_pk_bf16_f32 v106, v107, v106
    v_lshlrev_b32 v107, 16, v106
    v_and_b32 v106, s{sHI}, v106
    v_add_f32 v106, v106, v107
    v_cvt_pk_bf16_f32 v106, v106, v106
    s_lshl_b32 s{sT0}, s{sB}, 10
    s_lshl_b32 s{sT1}, s{sCB}, 6
    s_add_u32 s{sT0}, s{sT0}, s{sT1}
    v_lshlrev_b32 v102, 1, v{vCOL}
    v_add_u32 v102, s{sT0}, v102
    s_mov_b64 exec, 0xffffffff
    buffer_store_short v106, v102, s[{srdK}:{srdK+3}], 0 offen
    s_mov_b64 exec, -1
    """)

def ffn(p):
    sF, sFS, sRR = sH, sB, sR
    vXP, vSEL, vD0, vD1 = 50, 4, 12, 16
    vG1, vWD, vH = 64, 96, 112
    srdG = srdK
    vBC = 30
    p.vmq = []
    p("L_ffn:")
    if O.prio: p("s_setprio 3")
    p(f"""
    s_sub_u32 s{sF}, s2, {NATT}
    s_lshr_b32 s{sFS}, s{sF}, 4
    s_and_b32 s{sRR}, s{sF}, 15
    """)
    srd(p, srdX, sX, None, 4096)
    p(f"""
    s_and_b32 s{sT0}, s{sRR}, 7
    s_lshl_b32 s{sT0}, s{sT0}, 6
    s_lshl_b32 s{sT1}, s{sWAVE}, 4
    s_add_u32 s{sT0}, s{sT0}, s{sT1}
    v_lshl_add_u32 v{vT+5}, v{vT+4}, 2, s{sT0}
    v_and_b32 v{vT}, 3, v{vLANE}
    v_add_u32 v{vT}, v{vT}, v{vT+5}
    v_lshlrev_b32 v{vT}, 1, v{vT}
    v_add_u32 v{vT+1}, 2048, v{vT}
    """)
    xr = 22
    for b in range(4):
        p.vm(f"buffer_load_ushort v{xr + b}, v{vT + (b >> 1)}, s[{srdX}:{srdX+3}], 0 offen offset:{(b & 1) * 1024}", "x")
    p(f"""
    s_cmp_lt_u32 s{sRR}, 8
    s_cselect_b32 s{srdG}, s{sWG}, s{sWU}
    s_cselect_b32 s{srdG+1}, s{sWG+1}, s{sWU+1}
    s_lshl_b32 s{sT0}, s{sFS}, 8
    s_add_u32 s{srdG}, s{srdG}, s{sT0}
    s_addc_u32 s{srdG+1}, s{srdG+1}, 0
    s_and_b32 s{srdG+1}, s{srdG+1}, 0xffff
    s_sub_u32 s{srdG+2}, {512 * 3584}, s{sT0}
    s_mov_b32 s{srdG+3}, 0x20000
    v_mul_u32_u24 v20, 3584, v{vT+5}
    v_add_u32 v20, v20, v{vT+3}
    """)
    for t in range(4):
        p(f"s_mov_b32 s{sT2}, {t * 3584}")
        p.vm(f"buffer_load_dwordx4 {r4(vG1 + 4*t)}, v20, s[{srdG}:{srdG+3}], s{sT2} offen {O.fpol}", ("W", t))
    srd(p, srdW, sWD, None, 1792 * 1024)
    p(f"""
    s_lshl_b32 s{sT0}, s{sFS}, 7
    s_lshr_b32 s{sT1}, s{sRR}, 2
    s_lshl_b32 s{sT1}, s{sT1}, 5
    s_add_u32 s{sT0}, s{sT0}, s{sT1}
    s_lshl_b32 s{sT1}, s{sWAVE}, 3
    s_add_u32 s{sT0}, s{sT0}, s{sT1}
    v_lshl_add_u32 v{vW}, v{vT+4}, 1, s{sT0}
    v_lshlrev_b32 v{vW}, 10, v{vW}
    s_and_b32 s{sT0}, s{sRR}, 3
    s_lshl_b32 s{sT0}, s{sT0}, 8
    v_add3_u32 v{vW}, v{vW}, v{vT+3}, s{sT0}
    """)
    for t in range(2):
        p.vm(f"buffer_load_dwordx4 {r4(vWD + 4*t)}, v{vW}, s[{srdW}:{srdW+3}], 0 offen offset:{t * 1024} {O.fpol}", ("D", t))
    p(f"""
    v_and_b32 v{vT+5}, 8, v{vLANE}
    v_mov_b32 v{vT+6}, 0x0100
    v_mov_b32 v{vT+7}, 0x0302
    v_cmp_eq_u32 vcc, 0, v{vT+5}
    v_cndmask_b32 v{vT+6}, v{vT+7}, v{vT+6}, vcc
    v_lshlrev_b32 v{vT+7}, 16, v{vT+6}
    v_or_b32 v{vT+7}, 0x0c0c, v{vT+7}
    v_or_b32 v{vT+6}, 0x0c0c0000, v{vT+6}
    v_and_b32 v{vT+5}, 1, v{vLANE}
    v_cmp_eq_u32 vcc, 0, v{vT+5}
    v_cndmask_b32 v{vT+6}, v{vT+7}, v{vT+6}, vcc
    v_bfe_u32 v{vT+5}, v{vLANE}, 1, 2
    v_mov_b32 v{vT+7}, 0x0c0c0c0c
    """)
    for j in range(4):
        p(f"v_cmp_eq_u32 vcc, {j}, v{vT+5}")
        p(f"v_cndmask_b32 v{vSEL+j}, v{vT+7}, v{vT+6}, vcc")
    srd(p, srdWS, sWS, None, WS_BYTES)
    vRD = 54
    p(f"""
    s_lshr_b32 s{sT0}, s{sWAVE}, 1
    s_lshl_b32 s{sT0}, s{sT0}, 10
    s_and_b32 s{sT1}, s{sWAVE}, 1
    s_lshl_b32 s{sT1}, s{sT1}, 9
    s_add_u32 s{sT0}, s{sT0}, s{sT1}
    v_bfe_u32 v{vRD}, v{vLANE}, 1, 1
    v_lshlrev_b32 v{vRD}, 8, v{vRD}
    v_lshrrev_b32 v{vT+5}, 2, v{vLANE}
    v_lshl_add_u32 v{vRD}, v{vT+5}, 4, v{vRD}
    v_and_b32 v{vT+5}, 1, v{vLANE}
    v_lshl_add_u32 v{vRD}, v{vT+5}, 3, v{vRD}
    v_add_u32 v{vRD}, s{sT0}, v{vRD}
    """)
    def step(src_of_pair, lane):
        for pr in range(2):
            p(f"v_mov_b32_dpp v{vBC+pr}, v{src_of_pair(pr)} row_newbcast:{lane} row_mask:0xf bank_mask:0xf")
        for pr in range(2):
            for j in range(4):
                p(f"v_perm_b32 v{vA + 4*pr + j}, v{vBC+pr}, v{vBC+pr}, v{vSEL+j}")
    def cross_wave_sum(dst):
        p(f"""
        s_lshl_b32 s{sT0}, s{sWAVE}, 11
        v_lshlrev_b32 v{vT}, 4, v{vLANE}
        v_add_u32 v{vT}, s{sT0}, v{vT}
        ds_write_b128 v{vT}, {r4(vD0)}
        ds_write_b128 v{vT}, {r4(vD1)} offset:1024
        s_waitcnt lgkmcnt(0)
        s_barrier
        """)
        for w in range(4):
            p(f"ds_read_b64 v[{vP+2*w}:{vP+2*w+1}], v{vRD} offset:{w*2048}")
        p("s_waitcnt lgkmcnt(0)")
        for e in range(2):
            p(f"v_add_f32 v{vP+e}, v{vP+e}, v{vP+2+e}")
            p(f"v_add_f32 v{vP+4+e}, v{vP+4+e}, v{vP+6+e}")
        for e in range(2):
            p(f"v_add_f32 v{dst+e}, v{vP+e}, v{vP+4+e}")
    p.wait_vm("x")
    for pr in range(2):
        p(f"v_lshl_or_b32 v{vXP + pr}, v{xr + 2*pr + 1}, 16, v{xr + 2*pr}")
    for r in range(8): p(f"v_mov_b32 v{vD0 + r}, 0")
    stamp(p, 2)
    for t in range(4):
        step(lambda pr: vXP + pr, t)
        p.wait_vm(("W", t))
        p(f"v_mfma_f32_16x16x32_bf16 {r4(vD0)}, {r4(vA)}, {r4(vG1 + 4*t)}, {r4(vD0)}")
        p(f"v_mfma_f32_16x16x32_bf16 {r4(vD1)}, {r4(vA+4)}, {r4(vG1 + 4*t)}, {r4(vD1)}")
    cross_wave_sum(26)
    p(f"""
    s_lshl_b32 s{sT0}, s{sF}, 11
    s_lshl_b32 s{sT1}, s{sWAVE}, 9
    s_add_u32 s{sT0}, s{sT0}, s{sT1}
    s_add_u32 s{sT0}, s{sT0}, {WS_H}
    v_lshl_add_u32 v{vT}, v{vLANE}, 3, s{sT0}
    buffer_store_dwordx2 v[26:27], v{vT}, s[{srdWS}:{srdWS+3}], 0 offen sc1
    s_lshl_b32 s{sT0}, s{sF}, 3
    s_add_u32 s{sT0}, s{sT0}, {WS_F1}
    v_mov_b32 v{vT+1}, s{sT0}
    s_add_u32 s{sTAG}, s{sTAG}, 1
    s_addc_u32 s{sTAG+1}, s{sTAG+1}, 0
    v_mov_b32 v28, s{sTAG}
    v_mov_b32 v29, s{sTAG+1}
    s_lshl_b32 s{sT0}, s{sFS}, 7
    s_add_u32 s{sT0}, s{sT0}, {WS_F1}
    v_lshl_add_u32 v{vT+2}, v{vLANE}, 3, s{sT0}
    s_waitcnt vmcnt(0)
    s_barrier
    """)
    p.vmq = []
    stamp(p, 4)
    p(f"""
    s_cmp_lg_u32 s{sWAVE}, {99 if O.fnosync else 0}
    s_cbranch_scc1 L_f1ok
    s_mov_b64 exec, 1
    buffer_store_dwordx2 v[28:29], v{vT+1}, s[{srdWS}:{srdWS+3}], 0 offen sc1
    s_mov_b64 exec, 0xffff
    s_mov_b32 s{sSPIN}, 0
    L_f1poll:
    s_sleep {O.fsleep}
    buffer_load_dwordx2 v[{vT+6}:{vT+7}], v{vT+2}, s[{srdWS}:{srdWS+3}], 0 offen sc1
    s_waitcnt vmcnt(0)
    v_cmp_ne_u64 vcc, s[{sTAG}:{sTAG+1}], v[{vT+6}:{vT+7}]
    s_cmp_eq_u64 vcc, 0
    s_cbranch_scc1 L_f1seen
    s_add_u32 s{sSPIN}, s{sSPIN}, 1
    s_cmp_ge_u32 s{sSPIN}, {SPIN_MAX}
    s_cbranch_scc1 L_fin
    s_branch L_f1poll
    L_f1seen:
    s_mov_b64 exec, -1
    L_f1ok:
    s_barrier
    """)
    p(f"""
    s_lshl_b32 s{sT0}, s{sFS}, 4
    s_lshl_b32 s{sT1}, s{sWAVE}, 2
    s_add_u32 s{sT0}, s{sT0}, s{sT1}
    v_lshrrev_b32 v{vT}, 5, v{vLANE}
    v_add_u32 v{vT}, s{sT0}, v{vT}
    v_lshlrev_b32 v{vT}, 11, v{vT}
    v_bfe_u32 v{vT+1}, v{vLANE}, 3, 2
    v_lshl_add_u32 v{vT}, v{vT+1}, 9, v{vT}
    v_and_b32 v{vT+2}, 7, v{vLANE}
    v_lshl_add_u32 v{vT}, v{vT+2}, 4, v{vT}
    s_lshr_b32 s{sT1}, s{sRR}, 2
    s_lshl_b32 s{sT1}, s{sT1}, 7
    s_add_u32 s{sT1}, s{sT1}, {WS_H}
    v_add_u32 v{vT}, s{sT1}, v{vT}
    s_mov_b32 s{sT2}, 4096
    buffer_load_dwordx4 {r4(vH)}, v{vT}, s[{srdWS}:{srdWS+3}], 0 offen sc1
    buffer_load_dwordx4 {r4(vH+4)}, v{vT}, s[{srdWS}:{srdWS+3}], s{sT2} offen sc1
    s_lshl_b32 s{sT0}, s{sWAVE}, 11
    v_lshrrev_b32 v{vT+5}, 5, v{vLANE}
    v_lshlrev_b32 v{vT+5}, 9, v{vT+5}
    v_lshl_add_u32 v{vT+5}, v{vT+1}, 7, v{vT+5}
    v_lshl_add_u32 v{vT+5}, v{vT+2}, 4, v{vT+5}
    v_add_u32 v{vT+5}, s{sT0}, v{vT+5}
    s_waitcnt vmcnt(0)
    ds_write_b128 v{vT+5}, {r4(vH)} offset:8192
    ds_write_b128 v{vT+5}, {r4(vH+4)} offset:9216
    v_and_b32 v{vT}, 127, v0
    v_lshlrev_b32 v{vT}, 2, v{vT}
    s_waitcnt lgkmcnt(0)
    s_barrier
    """)
    for pi in range(16):
        p(f"ds_read_b32 v{vG1+pi}, v{vT} offset:{8192 + pi*512}")
    p("s_waitcnt lgkmcnt(0)")
    for base in (vG1, vG1 + 8):
        p(f"""
        v_add_f32 v{base}, v{base}, v{base+1}
        v_add_f32 v{base+2}, v{base+2}, v{base+3}
        v_add_f32 v{base+4}, v{base+4}, v{base+5}
        v_add_f32 v{base+6}, v{base+6}, v{base+7}
        v_add_f32 v{base}, v{base}, v{base+2}
        v_add_f32 v{base+4}, v{base+4}, v{base+6}
        v_add_f32 v{base}, v{base}, v{base+4}
        """)
    h1, h2, t0, t1 = vP, vP+4, vP+1, vP+2
    C0 = 0x3F4C422A
    C1 = 0x3D372713
    p(f"""
    v_cvt_pk_bf16_f32 v{t0}, v{vG1}, v{vG1+8}
    v_lshlrev_b32 v{h1}, 16, v{t0}
    v_and_b32 v{h2}, s{sHI}, v{t0}
    v_mul_f32 v{t0}, v{h1}, v{h1}
    v_mul_f32 v{t0}, v{t0}, v{h1}
    v_mov_b32 v{t1}, {hex(C1)}
    v_fma_f32 v{t0}, v{t0}, v{t1}, v{h1}
    v_mul_f32 v{t0}, {hex(C0)}, v{t0}
    v_mul_f32 v{t0}, s{sL2E}, v{t0}
    v_mul_f32 v{t0}, -2.0, v{t0}
    v_exp_f32 v{t0}, v{t0}
    v_add_f32 v{t0}, 1.0, v{t0}
    v_rcp_f32 v{t0}, v{t0}
    v_mul_f32 v{t0}, v{h1}, v{t0}
    v_cvt_pk_bf16_f32 v{t0}, v{t0}, v{t0}
    v_lshlrev_b32 v{t0}, 16, v{t0}
    v_mul_f32 v{t0}, v{t0}, v{h2}
    v_cvt_pk_bf16_f32 v{t0}, v{t0}, v{t0}
    v_bfe_u32 v{vT+1}, v0, 6, 1
    v_lshlrev_b32 v{vT+1}, 7, v{vT+1}
    v_and_b32 v{vT+2}, 31, v0
    v_lshl_add_u32 v{vT+1}, v{vT+2}, 2, v{vT+1}
    v_bfe_u32 v{vT+2}, v0, 5, 1
    v_lshl_add_u32 v{vT+1}, v{vT+2}, 1, v{vT+1}
    ds_write_b16 v{vT+1}, v{t0} offset:16384
    s_lshl_b32 s{sT0}, s{sWAVE}, 3
    v_lshl_add_u32 v{vT+2}, v{vT+4}, 1, s{sT0}
    v_and_b32 v{vT+5}, 1, v{vLANE}
    v_add_u32 v{vT+2}, v{vT+2}, v{vT+5}
    v_lshlrev_b32 v{vT+2}, 2, v{vT+2}
    s_waitcnt lgkmcnt(0)
    s_barrier
    ds_read_b32 v{vXP}, v{vT+2} offset:16384
    ds_read_b32 v{vXP+1}, v{vT+2} offset:16512
    """)
    for r in range(8): p(f"v_mov_b32 v{vD0 + r}, 0")
    p("s_waitcnt lgkmcnt(0)")
    stamp(p, 5)
    for t in range(2):
        step(lambda pr: vXP + pr, t)
        p(f"v_mfma_f32_16x16x32_bf16 {r4(vD0)}, {r4(vA)}, {r4(vWD + 4*t)}, {r4(vD0)}")
        p(f"v_mfma_f32_16x16x32_bf16 {r4(vD1)}, {r4(vA+4)}, {r4(vWD + 4*t)}, {r4(vD1)}")
    cross_wave_sum(26)
    stamp(p, 6)
    p(f"""
    s_lshl_b32 s{sT0}, s{sFS}, 2
    s_lshr_b32 s{sT1}, s{sRR}, 2
    s_add_u32 s{sT0}, s{sT0}, s{sT1}
    s_lshl_b32 s{sT0}, s{sT0}, 13
    s_lshl_b32 s{sT1}, s{sWAVE}, 11
    s_add_u32 s{sT0}, s{sT0}, s{sT1}
    s_and_b32 s{sT1}, s{sRR}, 3
    s_lshl_b32 s{sT1}, s{sT1}, 9
    s_add_u32 s{sT0}, s{sT0}, s{sT1}
    s_add_u32 s{sT0}, s{sT0}, {WS_Q}
    v_lshl_add_u32 v{vT}, v{vLANE}, 3, s{sT0}
    buffer_store_dwordx2 v[26:27], v{vT}, s[{srdWS}:{srdWS+3}], 0 offen sc1
    s_and_b32 s{sT0}, s{sRR}, 3
    s_lshl_b32 s{sT0}, s{sT0}, 6
    s_lshl_b32 s{sT1}, s{sFS}, 2
    s_add_u32 s{sT0}, s{sT0}, s{sT1}
    s_lshr_b32 s{sT1}, s{sRR}, 2
    s_add_u32 s{sT0}, s{sT0}, s{sT1}
    s_lshl_b32 s{sT0}, s{sT0}, 3
    s_add_u32 s{sT0}, s{sT0}, {WS_F2}
    v_mov_b32 v{vT+1}, s{sT0}
    s_waitcnt vmcnt(0)
    s_barrier
    s_cmp_lg_u32 s{sWAVE}, {99 if O.fnosync else 0}
    s_cbranch_scc1 L_fin
    s_mov_b64 exec, 1
    buffer_store_dwordx2 v[28:29], v{vT+1}, s[{srdWS}:{srdWS+3}], 0 offen sc1
    s_mov_b64 exec, -1
    """)

def kernel1():
    p = Prog()
    common_prologue(p)
    p("s_waitcnt lgkmcnt(0)")
    stamp(p, 1)
    p(f"""
    s_load_dwordx2 s[{sTAG}:{sTAG+1}], s[{sWS}:{sWS+1}], {hex(WS_EPOCH)}
    s_cmp_ge_u32 s2, {NATT}
    s_cbranch_scc1 L_ffn
    """)
    routine = attention(p)
    p.ins += routine
    ffn(p)
    p("L_fin:")
    if O.dbgtime:
        p(f"""
        s_cmp_lg_u32 s{sWAVE}, 0
        s_cbranch_scc1 L_end
        s_and_b32 s74, s2, 0x1f
        s_cmp_lg_u32 s74, 0
        s_cbranch_scc1 L_end
        s_waitcnt vmcnt(0)
        s_memrealtime s[72:73]
        s_mov_b64 exec, 1
        s_mov_b32 s64, s38
        s_and_b32 s65, s39, 0xffff
        s_mov_b32 s66, 256
        s_mov_b32 s67, 0x20000
        s_waitcnt lgkmcnt(0)
        s_not_b32 s70, s70
        v_mov_b32 v60, s70
        v_mov_b32 v61, s72
        v_mov_b32 v62, 16
        buffer_atomic_umax v60, v62, s[64:67], 0 offen sc1
        buffer_atomic_umax v61, v62, s[64:67], 0 offen offset:4 sc1
        """)
    if O.stamps:
        p("s_waitcnt vmcnt(0)")
        stamp(p, 8)
        write_stamps(p, 9)
    p("L_end:")
    p("s_endpgm")
    p.finish()
    p.check_loop("L_kloop", "s_cbranch_scc1 L_kloop")
    p.check_loop("L_vloop", "s_cbranch_scc1 L_vloop")
    if any(i.text.strip() == "L_vloop2:" for i in p.ins): p.check_loop("L_vloop2", "s_cbranch_scc1 L_vloop2")
    return p

def desc(name, vgpr, sgpr):
    acc = (vgpr + 3) // 4 * 4
    return f""".amdhsa_kernel {name}
  .amdhsa_next_free_vgpr {vgpr}
  .amdhsa_next_free_sgpr {sgpr}
  .amdhsa_accum_offset {acc}
  .amdhsa_group_segment_fixed_size 0
  .amdhsa_kernarg_size 104
  .amdhsa_user_sgpr_count 2
  .amdhsa_user_sgpr_kernarg_segment_ptr 1
  .amdhsa_system_sgpr_workgroup_id_x 1
  .amdhsa_float_denorm_mode_32 3
.end_amdhsa_kernel
"""

def gen():
    k1 = NAME + "_kernel"
    out = HEADER
    out += f"; @launch grid=({nwg()},1,1) block=(256,1,1) lds=49152\n"
    out += '.amdgcn_target "amdgcn-amd-amdhsa--gfx950"\n.text\n'
    out += f".globl {k1}\n.p2align 8\n.type {k1},@function\n{k1}:\n" + kernel1().text()
    out += '.section .rodata,"a"\n.p2align 6\n' + desc(k1, 256, 102 if O.stamps else 94)
    return out

if __name__ == "__main__":
    for a in sys.argv[2:]:
        if "=" in a:
            k, v = a.split("=", 1); setattr(O, k, v.replace("_", " ").replace("def", "") if k.endswith("pol") else eval(v))
        else: setattr(O, a, True)
    open(sys.argv[1], "w").write(gen())
```

```python
import sys
from asmlib import Prog

NAME = "gated_mix__mha_block_cached__geglu_ffn__decode"
HEADER = open("gated_mix__mha_block_cached__geglu_ffn__decode.s.ref").read().split("; Override launch")[0]

NATT = 256
NFFN = 224
NQ = 56
L2E = 0x3FB8AA3B
SCALE = 0x3DB504F3
WS_P, WS_ML, WS_Q = 0, 0x80000, 0x100000
WS_H = 0x180000
WS_EPOCH, WS_HINT, WS_F1, WS_F2 = 0x90000, 0x90400, 0x91000, 0x92000
WS_BYTES = 0x200000
WS_ST = 0x200000
SPIN_MAX = 1 << 22

class O:
    stamps = False
    wpol = ""
    kvpol = "nt"
    vpol = None
    ffn_even = False
    prio = False
    aprio = 0
    noffn = False
    sleep = 16
    rot = 0
    dbgtime = False
    lead = 16
    lead2 = 0
    lead0 = 16
    j0 = 0
    leadv = 0
    kstamps = False
    vsw = 99
    pre = 0
    flead = 0
    fnosync = False
    fpol = "nt"
    fsleep = 16
    wqrot = False
    wo0 = 2

sX, sK, sV, sWQ, sWO, sBX, sWG, sWU, sWD, sGW, sOUT, sDBG, sWS = 16, 18, 20, 22, 24, 26, 28, 30, 32, 34, 36, 38, 40
srdK, srdV, srdW, srdX, srdWS, srdD = 44, 48, 52, 56, 60, 64
sWAVE, sH, sB, sR = 3, 4, 5, 6
sOFF, sCNT, sL2E, sSCALE, sRET = 8, 9, 10, 11, 12
sT0, sT1, sT2 = 14, 15, 7
sHI, sOFF1, sOFF2, sSPIN = 68, 69, 42, 43
sST = 70
sROT = 89
sTAG = 90
vLANE, vKV0, vKV1 = 1, 2, 3
vMASK, vQ, vO = 4, 8, 12
vM, vL = 16, 17
vP, vR, vU, vA, vT = 18, 26, 30, 32, 40
vW, vWO, vX = 48, 49, 50
vSC, vW0, vW1 = 62, 60, 61
LDS_SC = 16384
vG = 52
BANK_A, BANK_B, BANK_C = 64, 128, 192
vWA = 128

def nwg(): return NATT if O.noffn else NATT + NFFN

def srd(p, dst, base, off_lo=None, size=None):
    if off_lo is None:
        p(f"s_mov_b32 s{dst}, s{base}")
        p(f"s_and_b32 s{dst+1}, s{base+1}, 0xffff")
    else:
        p(f"s_add_u32 s{dst}, s{base}, {off_lo}")
        p(f"s_addc_u32 s{dst+1}, s{base+1}, 0")
        p(f"s_and_b32 s{dst+1}, s{dst+1}, 0xffff")
    p(f"s_mov_b32 s{dst+2}, {size}")
    p(f"s_mov_b32 s{dst+3}, 0x20000")

def r4(b): return f"v[{b}:{b+3}]"

def stamp(p, k):
    if O.stamps: p(f"s_memrealtime s[{sST+2*k}:{sST+2*k+1}]")

def write_stamps(p, n):
    if not O.stamps: return
    p("s_mov_b64 exec, 1")
    p(f"s_getreg_b32 s{sST+22}, hwreg(HW_REG_HW_ID)")
    p(f"s_getreg_b32 s{sST+23}, hwreg(HW_REG_XCC_ID)")
    p("s_waitcnt lgkmcnt(0)")
    p(f"s_lshl_b32 s{sST+24}, s2, 2")
    p(f"s_add_u32 s{sST+24}, s{sST+24}, s{sWAVE}")
    p(f"s_lshl_b32 s{sST+24}, s{sST+24}, 6")
    p(f"s_add_u32 s{sST+24}, s{sST+24}, {WS_ST}")
    p(f"v_mov_b32 v60, s{sST+24}")
    p("s_mov_b32 s96, s40")
    p("s_and_b32 s97, s41, 0xffff")
    p("s_mov_b32 s98, 0x400000")
    p("s_mov_b32 s99, 0x20000")
    for k in range(n):
        p(f"v_mov_b32 v61, s{sST+2*k}")
        p(f"buffer_store_dword v61, v60, s[96:99], 0 offen offset:{4*k}")
    p(f"v_mov_b32 v61, s{sST+22}")
    p("buffer_store_dword v61, v60, s[96:99], 0 offen offset:56")
    p(f"v_mov_b32 v61, s{sST+23}")
    p("buffer_store_dword v61, v60, s[96:99], 0 offen offset:60")

def common_prologue(p):
    p(f"""
    s_cmp_ge_u32 s2, {nwg()}
    s_cbranch_scc1 L_end
    """)
    stamp(p, 0)
    if O.dbgtime: p("s_memrealtime s[70:71]")
    p(f"""
    s_load_dwordx16 s[16:31], s[0:1], 0
    s_load_dwordx8 s[32:39], s[0:1], 64
    s_load_dwordx2 s[40:41], s[0:1], 96
    v_and_b32 v{vLANE}, 63, v0
    v_lshrrev_b32 v{vT}, 6, v0
    s_mov_b32 s{sL2E}, {hex(L2E)}
    v_readfirstlane_b32 s{sWAVE}, v{vT}
    s_mov_b32 s{sSCALE}, {hex(SCALE)}
    s_mov_b32 s{sHI}, 0xffff0000
    v_and_b32 v{vT}, 1, v{vLANE}
    v_lshlrev_b32 v{vT}, 4, v{vT}
    v_mov_b32 v{vT+1}, 0xffff
    v_lshlrev_b32 v{vT+1}, v{vT}, v{vT+1}
    v_bfe_u32 v{vT+2}, v{vLANE}, 1, 3
    """)
    for j in range(4):
        p(f"v_cmp_eq_u32 vcc, {j}, v{vT+2}")
        p(f"v_cndmask_b32 v{vMASK+j}, 0, v{vT+1}, vcc")
    p(f"""
    v_and_b32 v{vT+3}, 15, v{vLANE}
    v_lshlrev_b32 v{vT+3}, 4, v{vT+3}
    v_lshrrev_b32 v{vT+4}, 4, v{vLANE}
    """)

def set_off(p, reg, k):
    if O.rot:
        p(f"s_add_u32 s{reg}, s{sROT}, {k * 32768}")
        p(f"s_and_b32 s{reg}, s{reg}, 0xfffff")
    else:
        p(f"s_mov_b32 s{reg}, {k * 32768}")

def adv_off(p, reg):
    p(f"s_add_u32 s{reg}, s{reg}, 32768")
    if O.rot: p(f"s_and_b32 s{reg}, s{reg}, 0xfffff")

def kv_load(p, reg, isv, t, soff, tag):
    d = srdV if isv else srdK
    p.vm(f"buffer_load_dwordx4 {r4(reg)}, v{vKV0 + (t >> 2)}, s[{d}:{d+3}], s{soff} offen offset:{(t & 3) * 1024} {O.vpol if (isv and O.vpol is not None) else O.kvpol}", tag)

def wo_load(p, t):
    u, tt = t >> 4, t & 15
    if tt & 3 == 0: p(f"s_mov_b32 s{sT2}, {(64 * u + (tt & ~3)) * 1024}")
    p.vm(f"buffer_load_dwordx4 {r4(vWA + 4*t)}, v{vWO}, s[{srdW}:{srdW+3}], s{sT2} offen offset:{(tt & 3) * 1024} {O.wpol}", ("W", t))

def proj_routine(p):
    p("L_proj:")
    def mk(t):
        for j in range(4):
            p(f"v_and_b32_dpp v{vA + 4*(t&1) + j}, v{vX + (t >> 4)}, v{vMASK+j} row_newbcast:{t & 15} row_mask:0xf bank_mask:0xf")
    mk(0)
    for t in range(32):
        if t + 1 < 32: mk(t + 1)
        if t % 2 == 0: p.wait_vm(("W", t + 1))
        p(f"v_mfma_f32_16x16x32_bf16 {r4(vO)}, {r4(vA + 4*(t&1))}, {r4(vWA + 4*t)}, {r4(vO)}")
    p("s_nop 7")
    p(f"s_setpc_b64 s[{sRET}:{sRET+1}]")

def bank_base(bank): return 64 + 32 * bank

def k_tile(p, bank, refill, scoff):
    base = bank_base(bank)
    for t in range(8):
        p.wait_vm(("L", 8 * bank + t))
        k = base + 4 * t
        p(f"v_dot2_f32_bf16 v{vP+t}, v{k}, v{vQ}, 0")
        for j in range(1, 4):
            p(f"v_dot2_f32_bf16 v{vP+t}, v{k+j}, v{vQ+j}, v{vP+t}")
        refill(t)
    for a in range(4):
        p(f"v_add_f32_dpp v{vR+a}, v{vP+a}, v{vP+a} row_mirror row_mask:0xf bank_mask:0x3")
    for a in range(4):
        p(f"v_add_f32_dpp v{vR+a}, v{vP+a+4}, v{vP+a+4} row_mirror row_mask:0xf bank_mask:0xc")
    p(f"v_add_f32_dpp v{vU}, v{vR}, v{vR} row_half_mirror row_mask:0xf bank_mask:0x5")
    p(f"v_add_f32_dpp v{vU+1}, v{vR+1}, v{vR+1} row_half_mirror row_mask:0xf bank_mask:0x5")
    p(f"v_add_f32_dpp v{vU}, v{vR+2}, v{vR+2} row_half_mirror row_mask:0xf bank_mask:0xa")
    p(f"v_add_f32_dpp v{vU+1}, v{vR+3}, v{vR+3} row_half_mirror row_mask:0xf bank_mask:0xa")
    for qp in ("[1,0,3,2]", "[2,3,0,1]"):
        for u in range(2):
            p(f"v_add_f32_dpp v{vU+u}, v{vU+u}, v{vU+u} quad_perm:{qp} row_mask:0xf bank_mask:0xf")
    a0, a1, w = vT, vT+1, vT+2
    p(f"""
    v_cvt_pk_bf16_f32 v{w}, v{vU}, v{vU+1}
    v_lshlrev_b32 v{a0}, 16, v{w}
    v_and_b32 v{a1}, s{sHI}, v{w}
    v_mul_f32 v{a0}, s{sSCALE}, v{a0}
    v_mul_f32 v{a1}, s{sSCALE}, v{a1}
    v_cvt_pk_bf16_f32 v{w}, v{a0}, v{a1}
    v_lshlrev_b32 v{a0}, 16, v{w}
    v_and_b32 v{a1}, s{sHI}, v{w}
    ds_write_b32 v{vSC}, v{w} offset:{LDS_SC + scoff}
    v_max3_f32 v{vM}, v{vM}, v{a0}, v{a1}
    """)

def v_tile(p, bank, refill, wreg, prefetch_next):
    base = bank_base(bank)
    a0, a1, p0, p1 = vT, vT+1, vT+6, vT+7
    neg = vT + 4
    p(f"""
    v_lshlrev_b32 v{a0}, 16, v{wreg}
    v_and_b32 v{a1}, s{sHI}, v{wreg}
    """)
    if prefetch_next is not None: prefetch_next()
    p(f"""
    v_fma_f32 v{p0}, v{a0}, s{sL2E}, -v{neg}
    v_fma_f32 v{p1}, v{a1}, s{sL2E}, -v{neg}
    v_exp_f32 v{p0}, v{p0}
    v_exp_f32 v{p1}, v{p1}
    v_add_f32 v{vL}, v{vL}, v{p0}
    v_cvt_pk_bf16_f32 v{a0}, v{p0}, v{p0}
    v_cvt_pk_bf16_f32 v{a1}, v{p1}, v{p1}
    v_add_f32 v{vL}, v{vL}, v{p1}
    """)
    def mk(t):
        for j in range(4):
            p(f"v_and_b32_dpp v{vA + 4*(t&1) + j}, v{a0 + (t & 1)}, v{vMASK+j} row_newbcast:{4*(t >> 1)} row_mask:0xf bank_mask:0xf")
    mk(0)
    for t in range(8):
        if t + 1 < 8: mk(t + 1)
        p.wait_vm(("L", 8 * bank + t))
        p(f"v_mfma_f32_16x16x32_bf16 {r4(vO)}, {r4(vA + 4*(t&1))}, {r4(base + 4*t)}, {r4(vO)}")
        refill(t)

def gate_math(p, z, t0, t1):
    p(f"""
    v_cvt_pk_bf16_f32 v{z}, v{z}, v{z}
    v_lshlrev_b32 v{z}, 16, v{z}
    v_mul_f32 v{z}, s{sL2E}, v{z}
    v_sub_f32 v{z}, 0, v{z}
    v_exp_f32 v{z}, v{z}
    v_add_f32 v{z}, 1.0, v{z}
    v_rcp_f32 v{z}, v{z}
    v_cvt_pk_bf16_f32 v{z}, v{z}, v{z}
    v_lshlrev_b32 v{z}, 16, v{z}
    v_sub_f32 v{t1}, 1.0, v{z}
    v_cvt_pk_bf16_f32 v{t1}, v{t1}, v{t1}
    v_lshlrev_b32 v{t1}, 16, v{t1}
    """)

def attention(p):
    if O.aprio: p(f"s_setprio {O.aprio}")
    sRED = 88
    p(f"""
    s_and_b32 s{sT0}, s2, 7
    s_lshr_b32 s{sT1}, s2, 3
    s_lshr_b32 s{sH}, s{sT1}, 3
    s_lshl_b32 s{sT0}, s{sT0}, 2
    s_add_u32 s{sH}, s{sH}, s{sT0}
    s_lshr_b32 s{sB}, s{sT1}, 1
    s_and_b32 s{sB}, s{sB}, 3
    s_and_b32 s{sT1}, s{sT1}, 1
    s_lshl_b32 s{sR}, s{sB}, 5
    s_add_u32 s{sR}, s{sR}, s{sH}
    s_lshl_b32 s{sR}, s{sR}, 1
    s_add_u32 s{sR}, s{sR}, s{sT1}
    s_and_b32 s{sRED}, s{sR}, 3
    """)
    if O.rot:
        p(f"""
        s_mul_i32 s{sROT}, s{sR}, {O.rot}
        s_lshr_b32 s{sT0}, s{sR}, 5
        s_add_u32 s{sROT}, s{sROT}, s{sT0}
        s_and_b32 s{sROT}, s{sROT}, 31
        s_lshl_b32 s{sROT}, s{sROT}, 15
        """)
    srd(p, srdWS, sWS, None, WS_BYTES)
    p(f"""
    s_lshl_b32 s{sT0}, s{sR}, 11
    s_lshl_b32 s{sT1}, s{sWAVE}, 9
    s_add_u32 s{sT0}, s{sT0}, s{sT1}
    v_lshlrev_b32 v{vT}, 3, v{vLANE}
    v_add_u32 v{vT}, s{sT0}, v{vT}
    v_mov_b32 v{vP}, -1
    v_mov_b32 v{vP+1}, -1
    s_lshl_b32 s{sT0}, s{sR}, 3
    s_add_u32 s{sT0}, s{sT0}, {WS_ML}
    v_mov_b32 v{vT+1}, s{sT0}
    """)
    p.vm(f"buffer_store_dwordx2 v[{vP}:{vP+1}], v{vT}, s[{srdWS}:{srdWS+3}], 0 offen sc1", "inv")
    p.vm(f"buffer_store_dwordx2 v[{vP}:{vP+1}], v{vT+1}, s[{srdWS}:{srdWS+3}], 0 offen sc1", "inv")
    srd(p, srdX, sX, None, 4096)
    sRHO = sOFF2
    if O.wqrot:
        p(f"""
        s_lshr_b32 s{sRHO}, s2, 3
        s_and_b32 s{sRHO}, s{sRHO}, 7
        s_lshl_b32 s{sRHO}, s{sRHO}, 2
        s_lshl_b32 s{sT0}, s{sWAVE}, 8
        s_lshl_b32 s{sT1}, s{sB}, 10
        s_add_u32 s{sT0}, s{sT0}, s{sT1}
        v_and_b32 v{vT}, 15, v{vLANE}
        v_add_u32 v{vT}, s{sRHO}, v{vT}
        v_and_b32 v{vT}, 31, v{vT}
        v_xor_b32 v{vT+1}, 16, v{vT}
        v_and_b32 v{vT+5}, 16, v{vT}
        v_and_b32 v{vT+6}, 16, v{vT+1}
        v_mul_u32_u24 v{vT+5}, 3, v{vT+5}
        v_mul_u32_u24 v{vT+6}, 3, v{vT+6}
        v_add_u32 v{vT}, v{vT}, v{vT+5}
        v_add_u32 v{vT+1}, v{vT+1}, v{vT+6}
        v_lshl_add_u32 v{vT}, v{vT+4}, 4, v{vT}
        v_lshl_add_u32 v{vT+1}, v{vT+4}, 4, v{vT+1}
        v_lshl_add_u32 v{vT}, v{vT}, 1, s{sT0}
        v_lshl_add_u32 v{vT+1}, v{vT+1}, 1, s{sT0}
        """)
        p.vm(f"buffer_load_ushort v{vX}, v{vT}, s[{srdX}:{srdX+3}], 0 offen", "x")
        p.vm(f"buffer_load_ushort v{vX+1}, v{vT+1}, s[{srdX}:{srdX+3}], 0 offen", "x")
    else:
        p(f"""
        s_lshl_b32 s{sT0}, s{sWAVE}, 8
        s_lshl_b32 s{sT1}, s{sB}, 10
        s_add_u32 s{sT0}, s{sT0}, s{sT1}
        v_lshlrev_b32 v{vT}, 1, v{vLANE}
        v_add_u32 v{vT}, s{sT0}, v{vT}
        """)
        p.vm(f"buffer_load_ushort v{vX}, v{vT}, s[{srdX}:{srdX+3}], 0 offen", "x")
        p.vm(f"buffer_load_ushort v{vX+1}, v{vT}, s[{srdX}:{srdX+3}], 0 offen offset:128", "x")
    p(f"s_lshl_b32 s{sT0}, s{sH}, 8")
    p(f"s_sub_u32 s{sT1}, {4 << 20}, s{sT0}")
    srd(p, srdW, sWQ, f"s{sT0}", f"s{sT1}")
    p(f"""
    s_lshl_b32 s{sT0}, s{sWAVE}, 20
    v_lshlrev_b32 v{vW}, 17, v{vT+4}
    v_add3_u32 v{vW}, v{vW}, v{vT+3}, s{sT0}
    s_lshl_b32 s{sT0}, s{sR}, 20
    s_lshr_b32 s{sT1}, s{sR}, 12
    """)
    for (d, b) in ((srdK, sK), (srdV, sV)):
        p(f"s_add_u32 s{d}, s{b}, s{sT0}")
        p(f"s_addc_u32 s{d+1}, s{b+1}, s{sT1}")
        p(f"s_and_b32 s{d+1}, s{d+1}, 0xffff")
        p(f"s_mov_b32 s{d+2}, {1 << 20}")
        p(f"s_mov_b32 s{d+3}, 0x20000")
    p(f"""
    s_lshl_b32 s{sT0}, s{sWAVE}, 13
    v_lshlrev_b32 v{vKV0}, 4, v{vLANE}
    v_add_u32 v{vKV0}, s{sT0}, v{vKV0}
    v_add_u32 v{vKV1}, 4096, v{vKV0}
    s_mov_b32 s{sOFF}, 0
    s_mov_b32 s{sT2}, 0
    """)
    for t in range(32):
        if O.wqrot and t % 4 == 0:
            p(f"""
            s_add_u32 s{sT2}, s{sRHO}, {t}
            s_and_b32 s{sT2}, s{sT2}, 31
            s_and_b32 s{sT0}, s{sT2}, 16
            s_mul_i32 s{sT0}, s{sT0}, 3
            s_add_u32 s{sT2}, s{sT2}, s{sT0}
            s_lshl_b32 s{sT2}, s{sT2}, 13
            """)
        p.vm(f"buffer_load_dwordx4 {r4(vWA + 4*t)}, v{vW}, s[{srdW}:{srdW+3}], s{sT2} offen {O.wpol}", ("W", t))
        if O.wqrot:
            if t % 4 != 3: p(f"s_add_u32 s{sT2}, s{sT2}, 8192")
        elif t == 15: p(f"s_add_u32 s{sT2}, s{sT2}, {49 * 8192}")
        elif t < 31: p(f"s_add_u32 s{sT2}, s{sT2}, 8192")
    for j in range(max(O.lead, O.pre)):
        if j % 8 == 0: set_off(p, sOFF, j // 8)
        kv_load(p, 64 + 4 * j, 0, j & 7, sOFF, ("L", j))
    p(f"""
    s_lshl_b32 s{sT0}, s{sWAVE}, 8
    v_lshlrev_b32 v{vWO}, 14, v{vT+4}
    v_add3_u32 v{vWO}, v{vWO}, v{vT+3}, s{sT0}
    v_lshlrev_b32 v{vG}, 1, v{vT+3}
    v_lshl_add_u32 v{vG+1}, v{vT+4}, 4, v{vG}
    s_lshl_b32 s{sT1}, s{sWAVE}, 9
    v_add_u32 v{vG+1}, s{sT1}, v{vG+1}
    v_mov_b32 v{vO}, 0
    v_mov_b32 v{vO+1}, 0
    v_mov_b32 v{vO+2}, 0
    v_mov_b32 v{vO+3}, 0
    """)
    p.wait_vm("x")
    p(f"""
    v_lshl_or_b32 v{vX}, v{vX}, 16, v{vX}
    v_lshl_or_b32 v{vX+1}, v{vX+1}, 16, v{vX+1}
    s_nop 1
    s_call_b64 s[{sRET}:{sRET+1}], L_proj
    """)
    mark = len(p.ins)
    proj_routine(p)
    routine = p.ins[mark:]
    p.ins = p.ins[:mark]
    stamp(p, 2)
    p(f"""
    s_mov_b64 exec, 0xffffffff
    ds_write_b128 v{vG+1}, {r4(vO)}
    s_mov_b64 exec, -1
    s_lshl_b32 s{sT0}, s{sH}, 17
    s_sub_u32 s{sT1}, {4 << 20}, s{sT0}
    """)
    srd(p, srdW, sWO, f"s{sT0}", f"s{sT1}")
    p(f"""
    s_waitcnt lgkmcnt(0)
    s_barrier
    """)
    qa = vP
    regs = [18, 26, 34, 52]
    for w in range(4):
        p(f"ds_read_b128 {r4(regs[w])}, v{vG} offset:{w*512}" if w < 3 else f"ds_read_b128 {r4(56)}, v{vG} offset:{w*512}")
        p(f"ds_read_b128 {r4(regs[w] + 4)}, v{vG} offset:{w*512 + 16}" if w < 3 else f"ds_read_b128 {r4(60)}, v{vG} offset:{w*512 + 16}")
    regs[3] = 56
    p(f"""
    v_mov_b32 v{vM}, 0xff7fffff
    v_mov_b32 v{vL}, 0
    v_mov_b32 v{vO}, 0
    v_mov_b32 v{vO+1}, 0
    v_mov_b32 v{vO+2}, 0
    v_mov_b32 v{vO+3}, 0
    s_waitcnt lgkmcnt(0)
    """)
    p(f"""
    s_add_u32 s{sTAG}, s{sTAG}, 1
    s_addc_u32 s{sTAG+1}, s{sTAG+1}, 0
    """)
    for i in range(8):
        p(f"v_add_f32 v{regs[0]+i}, v{regs[0]+i}, v{regs[1]+i}")
        p(f"v_add_f32 v{regs[2]+i}, v{regs[2]+i}, v{regs[3]+i}")
    for i in range(8):
        p(f"v_add_f32 v{regs[0]+i}, v{regs[0]+i}, v{regs[2]+i}")
    for j in range(4):
        p(f"v_cvt_pk_bf16_f32 v{vQ+j}, v{regs[0]+2*j}, v{regs[0]+2*j+1}")
    stamp(p, 3)
    LEAD, LEAD2 = O.lead, max(O.lead2, O.lead)
    sOFFA, sOFFB = sOFF, sOFF1
    st = {"J": max(O.lead, O.pre), "A": None, "B": None}
    def lead_at(j):
        if j < O.j0: return O.lead0
        if j >= 8 * (32 + O.vsw): return LEAD2
        return O.leadv if (O.leadv and j >= 256 - LEAD) else LEAD
    def announce():
        p(f"""
        s_lshl_b32 s{sT0}, s{sR}, 3
        s_add_u32 s{sT0}, s{sT0}, {WS_HINT}
        s_cmp_eq_u32 s{sWAVE}, 0
        s_cselect_b32 s{sT0}, s{sT0}, {WS_BYTES}
        v_mov_b32 v{vG}, s{sTAG}
        v_mov_b32 v{vG+1}, s{sTAG+1}
        v_mov_b32 v{vG+2}, s{sT0}
        s_mov_b64 exec, 1
        """)
        p.vm(f"buffer_store_dwordx2 v[{vG}:{vG+1}], v{vG+2}, s[{srdWS}:{srdWS+3}], 0 offen sc1", "ARR")
        p("s_mov_b64 exec, -1")
    def off_reg(k):
        if st["A"] == k: return sOFFA
        if st["B"] == k: return sOFFB
        if st["A"] is None or (st["B"] is not None and st["A"] <= st["B"]):
            set_off(p, sOFFA, k % 32); st["A"] = k; return sOFFA
        set_off(p, sOFFB, k % 32); st["B"] = k; return sOFFB
    def peeled_refill(i, extra=None):
        def f(t):
            j = 8 * i + t
            target = min(512, j + 1 + lead_at(j))
            n = 0
            while st["J"] < target and n < 3:
                J = st["J"]; k = J >> 3
                kv_load(p, 64 + 4 * (J % 16), k >= 32, J & 7, off_reg(k), ("L", J % 16))
                st["J"] += 1; n += 1
                if J == 511: announce()
            if extra: extra(t)
        return f
    def loop_refill(par, isv, L):
        DA = L >> 3
        def f(t):
            jt = t + L
            d, t2 = jt >> 3, jt & 7
            slot = (8 * par + jt) % 16
            kv_load(p, 64 + 4 * slot, isv, t2, sOFFA if d == DA else sOFFB, ("L", slot))
        return f
    def loop_enter(i, L):
        assert st["J"] == 8 * i + L, (st["J"], i, L)
        DA = L >> 3
        set_off(p, sOFFA, (i + DA) % 32); set_off(p, sOFFB, (i + DA + 1) % 32)
    def adv_pair():
        p(f"s_mov_b32 s{sOFFA}, s{sOFFB}")
        adv_off(p, sOFFB)
    def loop_exit(i_end, L):
        st["J"] = 8 * i_end + L; st["A"] = None; st["B"] = None
    nxt_sc = lambda n: p(f"v_add_u32 v{vSC}, {256*n}, v{vSC}")
    p(f"""
    s_lshl_b32 s{sT0}, s{sWAVE}, 13
    v_lshlrev_b32 v{vSC}, 2, v{vLANE}
    v_add_u32 v{vSC}, s{sT0}, v{vSC}
    """)
    WO0 = O.wo0
    NPEEL = WO0 + 10
    assert NPEEL % 2 == 0
    wo_next = [0]
    def wo_extra(t):
        if t % 2 == 0:
            wo_load(p, wo_next[0]); wo_next[0] += 1
    for i in range(NPEEL):
        k_tile(p, i & 1, peeled_refill(i, wo_extra if WO0 <= i < WO0 + 8 else None), 256 * (i & 1))
        if i & 1: nxt_sc(2)
        if O.kstamps and i == 3: stamp(p, 5)
        if O.kstamps and i == 11: stamp(p, 7)
    assert wo_next[0] == 32
    q0 = list(p.vmq)
    assert q0 == [("L", j % 16) for j in range(LEAD)], q0
    KEND = 28
    loop_enter(NPEEL, LEAD)
    p(f"s_mov_b32 s{sCNT}, {(KEND - NPEEL) // 2}")
    p("L_kloop:")
    for i in range(2):
        k_tile(p, i, loop_refill(i, False, LEAD), 256 * i)
        adv_pair()
    nxt_sc(2)
    assert p.vmq == q0
    p(f"""
    s_sub_u32 s{sCNT}, s{sCNT}, 1
    s_cmp_lg_u32 s{sCNT}, 0
    s_cbranch_scc1 L_kloop
    """)
    loop_exit(KEND, LEAD)
    srd(p, srdX, sX, None, 4096)
    p(f"""
    s_mov_b32 s{srdW}, s{sGW}
    s_and_b32 s{srdW+1}, s{sGW+1}, 0xffff
    s_mov_b32 s{srdW+2}, 1024
    s_lshl_b32 s{sT0}, s{sB}, 10
    v_lshlrev_b32 v{vG+2}, 2, v0
    v_add_u32 v{vG+3}, s{sT0}, v{vG+2}
    """)
    p.vm(f"buffer_load_dword v{vG+5}, v{vG+3}, s[{srdX}:{srdX+3}], 0 offen", "G")
    p.vm(f"buffer_load_dword v{vG+6}, v{vG+2}, s[{srdW}:{srdW+3}], 0 offen", "G")
    for i in range(KEND, 32):
        k_tile(p, i & 1, peeled_refill(i), 256 * (i & 1))
        if i & 1: nxt_sc(2)
    mx, neg = vT + 3, vT + 4
    p(f"""
    s_lshl_b32 s{sT0}, s{sWAVE}, 13
    v_lshlrev_b32 v{vSC}, 2, v{vLANE}
    v_add_u32 v{vSC}, s{sT0}, v{vSC}
    v_max_f32_dpp v{vM}, v{vM}, v{vM} row_half_mirror row_mask:0xf bank_mask:0xf
    s_waitcnt lgkmcnt(0)
    ds_read_b32 v{vW0}, v{vSC} offset:{LDS_SC}
    ds_read_b32 v{vW1}, v{vSC} offset:{LDS_SC + 256}
    v_max_f32_dpp v{vM}, v{vM}, v{vM} row_mirror row_mask:0xf bank_mask:0xf
    v_max_f32_dpp v{vM}, v{vM}, v{vM} row_bcast:15 row_mask:0xa bank_mask:0xf
    v_max_f32_dpp v{vM}, v{vM}, v{vM} row_bcast:31 row_mask:0xc bank_mask:0xf
    v_readlane_b32 s{sT0}, v{vM}, 63
    v_mov_b32 v{vM}, s{sT0}
    v_mul_f32 v{neg}, s{sL2E}, v{vM}
    v_add_u32 v{vSC}, 512, v{vSC}
    s_waitcnt lgkmcnt(0)
    """)
    stamp(p, 4)
    p.vmq = [t for t in p.vmq if t != "G"]
    def pf(dst, off):
        return lambda: p(f"ds_read_b32 v{dst}, v{vSC} offset:{LDS_SC + off}")
    def v_pair_tail():
        p(f"""
        v_add_u32 v{vSC}, 512, v{vSC}
        s_waitcnt lgkmcnt(0)
        """)
    def v_loop(label, v0, v1, L):
        if v1 <= v0: return
        qL = [("L", (8 * v0 + j) % 16) for j in range(L)]
        assert p.vmq == qL, (p.vmq, qL)
        loop_enter(32 + v0, L)
        p(f"s_mov_b32 s{sCNT}, {(v1 - v0) // 2}")
        p(label + ":")
        v_tile(p, 0, loop_refill(0, True, L), vW0, pf(vW0, 0))
        adv_pair()
        v_tile(p, 1, loop_refill(1, True, L), vW1, pf(vW1, 256))
        adv_pair()
        assert p.vmq == qL
        p(f"""
        v_add_u32 v{vSC}, 512, v{vSC}
        s_sub_u32 s{sCNT}, s{sCNT}, 1
        s_cmp_lg_u32 s{sCNT}, 0
        s_waitcnt lgkmcnt(0)
        s_cbranch_scc1 {label}
        """)
        loop_exit(32 + v1, L)
    def v_peeled_pair(v, last=False):
        v_tile(p, 0, peeled_refill(32 + v), vW0, None if last else pf(vW0, 0))
        v_tile(p, 1, peeled_refill(33 + v), vW1, None if last else pf(vW1, 256))
        if not last: v_pair_tail()
    VEND = 28
    if LEAD2 > LEAD and O.vsw < VEND:
        assert O.vsw % 2 == 0
        v_loop("L_vloop", 0, O.vsw, LEAD)
        v_peeled_pair(O.vsw)
        v_loop("L_vloop2", O.vsw + 2, VEND, LEAD2)
    else:
        v_loop("L_vloop", 0, VEND, LEAD)
    v_peeled_pair(28)
    if not O.kstamps: stamp(p, 5)
    v_peeled_pair(30, last=True)
    stamp(p, 6)
    p(f"""
    v_add_f32_dpp v{vL}, v{vL}, v{vL} row_half_mirror row_mask:0xf bank_mask:0xf
    v_add_f32_dpp v{vL}, v{vL}, v{vL} row_mirror row_mask:0xf bank_mask:0xf
    v_add_f32_dpp v{vL}, v{vL}, v{vL} row_bcast:15 row_mask:0xa bank_mask:0xf
    v_add_f32_dpp v{vL}, v{vL}, v{vL} row_bcast:31 row_mask:0xc bank_mask:0xf
    v_readlane_b32 s{sT0}, v{vL}, 63
    v_and_b32 v{vT+3}, 15, v{vLANE}
    v_lshrrev_b32 v{vT+4}, 4, v{vLANE}
    v_mov_b32 v{vL}, s{sT0}
    v_lshlrev_b32 v{vT}, 5, v{vT+3}
    v_lshl_add_u32 v{vT+1}, v{vT+4}, 4, v{vT}
    s_lshl_b32 s{sT1}, s{sWAVE}, 9
    s_lshl_b32 s{sT0}, s{sWAVE}, 3
    v_add_u32 v{vT+2}, s{sT1}, v{vT+1}
    v_mov_b32 v{vT+5}, s{sT0}
    s_mov_b64 exec, 0xffffffff
    ds_write_b128 v{vT+2}, {r4(vO)} offset:2048
    s_mov_b64 exec, -1
    ds_write_b64 v{vT+5}, v[{vM}:{vM+1}] offset:4096
    v_lshlrev_b32 v{vT+6}, 2, v{vLANE}
    v_mov_b32 v{vT+5}, 0
    s_waitcnt lgkmcnt(0)
    s_barrier
    ds_read_b128 {r4(vP)}, v{vT+5} offset:4096
    ds_read_b128 {r4(vP+4)}, v{vT+5} offset:4112
    """)
    ob = 64
    for w in range(4):
        p(f"ds_read_b32 v{ob+2*w}, v{vT+6} offset:{2048 + w*512}")
        p(f"ds_read_b32 v{ob+2*w+1}, v{vT+6} offset:{2048 + w*512 + 256}")
    m = [vP, vP+2, vP+4, vP+6]; l = [vP+1, vP+3, vP+5, vP+7]
    p(f"""
    s_waitcnt lgkmcnt(8)
    v_max_f32 v{vM}, v{m[0]}, v{m[1]}
    v_max3_f32 v{vM}, v{vM}, v{m[2]}, v{m[3]}
    v_mul_f32 v{vT+7}, s{sL2E}, v{vM}
    """)
    for w in range(4): p(f"v_fma_f32 v{m[w]}, v{m[w]}, s{sL2E}, -v{vT+7}")
    for w in range(4): p(f"v_exp_f32 v{m[w]}, v{m[w]}")
    p(f"v_mul_f32 v{vL}, v{m[0]}, v{l[0]}")
    for w in range(1, 4): p(f"v_fma_f32 v{vL}, v{m[w]}, v{l[w]}, v{vL}")
    p("s_waitcnt lgkmcnt(0)")
    for u in range(2):
        p(f"v_mul_f32 v{vX+u}, v{m[0]}, v{ob+u}")
    for w in range(1, 4):
        for u in range(2):
            p(f"v_fma_f32 v{vX+u}, v{m[w]}, v{ob+2*w+u}, v{vX+u}")
    p(f"""
    v_cvt_pk_bf16_f32 v{vX}, v{vX}, v{vX}
    v_cvt_pk_bf16_f32 v{vX+1}, v{vX+1}, v{vX+1}
    v_mov_b32 v{vO}, 0
    v_mov_b32 v{vO+1}, 0
    v_mov_b32 v{vO+2}, 0
    v_mov_b32 v{vO+3}, 0
    s_nop 1
    s_call_b64 s[{sRET}:{sRET+1}], L_proj
    """)
    p(f"""
    s_lshl_b32 s{sT0}, s{sR}, 11
    s_lshl_b32 s{sT1}, s{sWAVE}, 9
    s_add_u32 s{sT0}, s{sT0}, s{sT1}
    v_add_u32 v{vT+1}, s{sT0}, v{vT+1}
    s_mov_b64 exec, 0xffffffff
    buffer_store_dwordx4 {r4(vO)}, v{vT+1}, s[{srdWS}:{srdWS+3}], 0 offen sc1
    s_mov_b64 exec, 1
    s_lshl_b32 s{sT0}, s{sR}, 3
    s_add_u32 s{sT0}, s{sT0}, {WS_ML}
    v_mov_b32 v{vT+2}, s{sT0}
    s_cmp_lg_u32 s{sWAVE}, 0
    s_cbranch_scc1 L_noml
    buffer_store_dwordx2 v[{vM}:{vM+1}], v{vT+2}, s[{srdWS}:{srdWS+3}], 0 offen sc1
    L_noml:
    s_mov_b64 exec, -1
    """)
    if not O.kstamps: stamp(p, 7)
    p(f"""
    s_cmp_eq_u32 s{sR}, 1
    s_cbranch_scc1 L_keeper
    s_cmp_lg_u32 s{sRED}, 0
    s_cbranch_scc1 L_fin
    """)
    reducer(p)
    p("s_branch L_fin")
    keeper(p)
    return routine

def keeper(p):
    p(f"""
    L_keeper:
    v_lshlrev_b32 v64, 3, v0
    v_add_u32 v64, {WS_HINT}, v64
    v_and_b32 v65, 63, v0
    v_min_u32 v65, 55, v65
    v_lshrrev_b32 v66, 6, v0
    v_lshlrev_b32 v66, 9, v66
    v_lshl_add_u32 v65, v65, 3, v66
    v_add_u32 v65, {WS_F2}, v65
    s_mov_b32 s{sSPIN}, 0
    L_kpoll:
    buffer_load_dwordx2 v[68:69], v64, s[{srdWS}:{srdWS+3}], 0 offen sc1
    buffer_load_dwordx2 v[70:71], v65, s[{srdWS}:{srdWS+3}], 0 offen sc1
    s_waitcnt vmcnt(0)
    v_cmp_ne_u64 vcc, s[{sTAG}:{sTAG+1}], v[68:69]
    s_mov_b64 s[{sT0}:{sT0+1}], vcc
    """)
    if not (O.noffn or O.fnosync):
        p(f"""
        v_cmp_ne_u64 vcc, s[{sTAG}:{sTAG+1}], v[70:71]
        s_or_b64 s[{sT0}:{sT0+1}], s[{sT0}:{sT0+1}], vcc
        """)
    p(f"""
    s_cmp_eq_u64 s[{sT0}:{sT0+1}], 0
    s_cbranch_scc1 L_kok
    s_add_u32 s{sSPIN}, s{sSPIN}, 1
    s_cmp_ge_u32 s{sSPIN}, {SPIN_MAX}
    s_cbranch_scc1 L_fin
    s_sleep 64
    s_branch L_kpoll
    L_kok:
    s_barrier
    s_cmp_lg_u32 s{sWAVE}, 0
    s_cbranch_scc1 L_fin
    v_mov_b32 v64, {WS_EPOCH}
    v_mov_b32 v68, s{sTAG}
    v_mov_b32 v69, s{sTAG+1}
    s_mov_b64 exec, 1
    buffer_store_dwordx2 v[68:69], v64, s[{srdWS}:{srdWS+3}], 0 offen sc1
    s_mov_b64 exec, -1
    s_branch L_fin
    """)

def reducer(p):
    p.vmq = []
    vCOL, vGRP = 64, 65
    aP, aML, aQ = 66, 67, 68
    dP, dML, dQ = 72, 80, 112
    acc, accq = 100, 101
    sCB = sH
    gx, gw = vG+5, vG+6
    p(f"""
    s_lshr_b32 s{sCB}, s{sH}, 1
    v_and_b32 v{vCOL}, 31, v0
    v_lshrrev_b32 v{vGRP}, 5, v0
    s_lshl_b32 s{sT0}, s{sB}, 6
    v_lshl_add_u32 v{aML}, v{vGRP}, 3, s{sT0}
    v_lshlrev_b32 v{aP}, 11, v{aML}
    s_lshl_b32 s{sT1}, s{sCB}, 7
    v_lshl_add_u32 v{aQ}, v{vCOL}, 2, s{sT1}
    v_add_u32 v{aP}, v{aP}, v{aQ}
    v_lshlrev_b32 v{aML}, 3, v{aML}
    v_add_u32 v{aML}, {WS_ML}, v{aML}
    s_lshl_b32 s{sT0}, s{sB}, 11
    v_mul_u32_u24 v102, {7 * 8192}, v{vGRP}
    v_add3_u32 v{aQ}, v{aQ}, v102, s{sT0}
    s_mov_b32 s{sSPIN}, 0
    v_lshlrev_b32 v104, 16, v{gx}
    v_and_b32 v105, s{sHI}, v{gx}
    v_lshlrev_b32 v106, 16, v{gw}
    v_and_b32 v107, s{sHI}, v{gw}
    v_mul_f32 v104, v104, v106
    v_mul_f32 v105, v105, v107
    v_cvt_pk_bf16_f32 v104, v104, v105
    v_lshlrev_b32 v105, 16, v104
    v_and_b32 v104, s{sHI}, v104
    v_add_f32 v104, v104, v105
    v_add_f32_dpp v104, v104, v104 quad_perm:[1,0,3,2] row_mask:0xf bank_mask:0xf
    v_add_f32_dpp v104, v104, v104 quad_perm:[2,3,0,1] row_mask:0xf bank_mask:0xf
    v_add_f32_dpp v104, v104, v104 row_half_mirror row_mask:0xf bank_mask:0xf
    v_add_f32_dpp v104, v104, v104 row_mirror row_mask:0xf bank_mask:0xf
    v_add_f32_dpp v104, v104, v104 row_bcast:15 row_mask:0xa bank_mask:0xf
    v_add_f32_dpp v104, v104, v104 row_bcast:31 row_mask:0xc bank_mask:0xf
    v_readlane_b32 s{sT1}, v104, 63
    s_lshl_b32 s{sT2}, s{sWAVE}, 2
    v_mov_b32 v105, s{sT2}
    v_mov_b32 v104, s{sT1}
    ds_write_b32 v105, v104 offset:8192
    s_add_u32 s{srdV}, s{sWS}, {WS_Q}
    s_addc_u32 s{srdV+1}, s{sWS+1}, 0
    s_and_b32 s{srdV+1}, s{srdV+1}, 0xffff
    s_mov_b32 s{srdV+2}, {NQ * 8192}
    s_mov_b32 s{srdV+3}, 0x20000
    s_cmp_lg_u32 s{sWAVE}, 0
    s_cbranch_scc1 L_pollok
    s_lshl_b32 s{sT0}, s{sB}, 9
    s_add_u32 s{sT0}, s{sT0}, {WS_HINT}
    v_lshl_add_u32 v103, v{vLANE}, 3, s{sT0}
    s_lshr_b32 s{sT0}, s{sCB}, 2
    s_lshl_b32 s{sT0}, s{sT0}, 9
    s_add_u32 s{sT0}, s{sT0}, {WS_F2}
    v_min_u32 v108, 55, v{vLANE}
    v_lshl_add_u32 v108, v108, 3, s{sT0}
    L_apoll:
    buffer_load_dwordx2 v[110:111], v103, s[{srdWS}:{srdWS+3}], 0 offen sc1
    buffer_load_dwordx2 v[120:121], v108, s[{srdWS}:{srdWS+3}], 0 offen sc1
    s_waitcnt vmcnt(0)
    v_cmp_ne_u64 vcc, s[{sTAG}:{sTAG+1}], v[110:111]
    s_mov_b64 s[{sT0}:{sT0+1}], vcc
    """)
    if not (O.noffn or O.fnosync):
        p(f"""
        v_cmp_ne_u64 vcc, s[{sTAG}:{sTAG+1}], v[120:121]
        s_or_b64 s[{sT0}:{sT0+1}], s[{sT0}:{sT0+1}], vcc
        """)
    p(f"""
    s_cmp_eq_u64 s[{sT0}:{sT0+1}], 0
    s_cbranch_scc1 L_pollok
    s_add_u32 s{sSPIN}, s{sSPIN}, 1
    s_cmp_ge_u32 s{sSPIN}, {SPIN_MAX}
    s_cbranch_scc1 L_fin
    s_sleep {O.sleep}
    s_branch L_apoll
    L_pollok:
    s_barrier
    """)
    for i in range(7):
        p(f"s_mov_b32 s{sT2}, {i * 8192}")
        p(f"buffer_load_dword v{dQ+i}, v{aQ}, s[{srdV}:{srdV+3}], s{sT2} offen sc1")
    p("L_dpoll:")
    for k in range(8):
        p(f"s_mov_b32 s{sT2}, {k * 2048}")
        p(f"buffer_load_dword v{dP+k}, v{aP}, s[{srdWS}:{srdWS+3}], s{sT2} offen sc1")
    for i in range(4):
        p(f"buffer_load_dwordx4 {r4(dML+4*i)}, v{aML}, s[{srdWS}:{srdWS+3}], 0 offen offset:{16*i} sc1")
    p("s_waitcnt vmcnt(0)")
    p(f"v_max_u32 v102, v{dP}, v{dP+1}")
    for k in range(2, 8, 2): p(f"v_max3_u32 v102, v102, v{dP+k}, v{dP+k+1}")
    for k in range(0, 16, 2): p(f"v_max3_u32 v102, v102, v{dML+k}, v{dML+k+1}")
    p(f"""
    v_cmp_eq_u32 vcc, -1, v102
    s_cbranch_vccz L_dok
    s_add_u32 s{sSPIN}, s{sSPIN}, 1
    s_cmp_ge_u32 s{sSPIN}, {SPIN_MAX}
    s_cbranch_scc1 L_fin
    s_branch L_dpoll
    L_dok:
    v_mov_b32 v{acc}, 0
    """)
    for i in range(4):
        m0, l0, m1, l1 = dML+4*i, dML+4*i+1, dML+4*i+2, dML+4*i+3
        p(f"""
        v_max_f32 v102, v{m0}, v{m1}
        v_sub_f32 v{m0}, v{m0}, v102
        v_sub_f32 v{m1}, v{m1}, v102
        v_mul_f32 v{m0}, s{sL2E}, v{m0}
        v_mul_f32 v{m1}, s{sL2E}, v{m1}
        v_exp_f32 v{m0}, v{m0}
        v_exp_f32 v{m1}, v{m1}
        v_mul_f32 v102, v{m0}, v{l0}
        v_fma_f32 v102, v{m1}, v{l1}, v102
        v_rcp_f32 v102, v102
        v_mul_f32 v104, v{m0}, v{dP+2*i}
        v_fma_f32 v104, v{m1}, v{dP+2*i+1}, v104
        v_fma_f32 v{acc}, v104, v102, v{acc}
        """)
    p(f"""
    v_add_f32 v{dQ}, v{dQ}, v{dQ+1}
    v_add_f32 v{dQ+2}, v{dQ+2}, v{dQ+3}
    v_add_f32 v{dQ+4}, v{dQ+4}, v{dQ+5}
    v_add_f32 v{dQ}, v{dQ}, v{dQ+2}
    v_add_f32 v{dQ+4}, v{dQ+4}, v{dQ+6}
    v_add_f32 v{accq}, v{dQ}, v{dQ+4}
    v_lshlrev_b32 v102, 2, v0
    ds_write_b32 v102, v{acc} offset:5120
    ds_write_b32 v102, v{accq} offset:6144
    s_waitcnt lgkmcnt(0)
    s_barrier
    s_cmp_lg_u32 s{sWAVE}, 0
    s_cbranch_scc1 L_fin
    v_lshlrev_b32 v102, 2, v{vCOL}
    v_mov_b32 v103, 0
    ds_read_b128 v[104:107], v103 offset:8192
    """)
    for g in range(8):
        p(f"ds_read_b32 v{dP+g}, v102 offset:{5120 + g*128}")
        p(f"ds_read_b32 v{dML+g}, v102 offset:{6144 + g*128}")
    p("s_waitcnt lgkmcnt(0)")
    for base in (dP, dML):
        p(f"""
        v_add_f32 v{base}, v{base}, v{base+1}
        v_add_f32 v{base+2}, v{base+2}, v{base+3}
        v_add_f32 v{base+4}, v{base+4}, v{base+5}
        v_add_f32 v{base+6}, v{base+6}, v{base+7}
        v_add_f32 v{base}, v{base}, v{base+2}
        v_add_f32 v{base+4}, v{base+4}, v{base+6}
        v_add_f32 v{base}, v{base}, v{base+4}
        """)
    p(f"""
    v_add_f32 v104, v104, v105
    v_add_f32 v106, v106, v107
    v_add_f32 v104, v104, v106
    """)
    gate_math(p, 104, None, 105)
    srd(p, srdK, sOUT, None, 4096)
    p(f"""
    v_cvt_pk_bf16_f32 v106, v{dP}, v{dML}
    v_lshlrev_b32 v107, 16, v106
    v_and_b32 v106, s{sHI}, v106
    v_mul_f32 v107, v104, v107
    v_mul_f32 v106, v105, v106
    v_cvt_pk_bf16_f32 v106, v107, v106
    v_lshlrev_b32 v107, 16, v106
    v_and_b32 v106, s{sHI}, v106
    v_add_f32 v106, v106, v107
    v_cvt_pk_bf16_f32 v106, v106, v106
    s_lshl_b32 s{sT0}, s{sB}, 10
    s_lshl_b32 s{sT1}, s{sCB}, 6
    s_add_u32 s{sT0}, s{sT0}, s{sT1}
    v_lshlrev_b32 v102, 1, v{vCOL}
    v_add_u32 v102, s{sT0}, v102
    s_mov_b64 exec, 0xffffffff
    buffer_store_short v106, v102, s[{srdK}:{srdK+3}], 0 offen
    s_mov_b64 exec, -1
    """)

def ffn(p):
    sF, sFS, sRR = sH, sB, sR
    vXP, vSEL, vD0, vD1 = 50, 4, 12, 16
    vG1, vWD, vH = 64, 96, 112
    srdG = srdK
    vBC = 30
    p.vmq = []
    p("L_ffn:")
    if O.prio: p("s_setprio 3")
    p(f"""
    s_sub_u32 s{sF}, s2, {NATT}
    s_lshr_b32 s{sFS}, s{sF}, 4
    s_and_b32 s{sRR}, s{sF}, 15
    """)
    srd(p, srdX, sX, None, 4096)
    p(f"""
    s_and_b32 s{sT0}, s{sRR}, 7
    s_lshl_b32 s{sT0}, s{sT0}, 6
    s_lshl_b32 s{sT1}, s{sWAVE}, 4
    s_add_u32 s{sT0}, s{sT0}, s{sT1}
    v_lshl_add_u32 v{vT+5}, v{vT+4}, 2, s{sT0}
    v_and_b32 v{vT}, 3, v{vLANE}
    v_add_u32 v{vT}, v{vT}, v{vT+5}
    v_lshlrev_b32 v{vT}, 1, v{vT}
    v_add_u32 v{vT+1}, 2048, v{vT}
    """)
    xr = 22
    for b in range(4):
        p.vm(f"buffer_load_ushort v{xr + b}, v{vT + (b >> 1)}, s[{srdX}:{srdX+3}], 0 offen offset:{(b & 1) * 1024}", "x")
    p(f"""
    s_cmp_lt_u32 s{sRR}, 8
    s_cselect_b32 s{srdG}, s{sWG}, s{sWU}
    s_cselect_b32 s{srdG+1}, s{sWG+1}, s{sWU+1}
    s_lshl_b32 s{sT0}, s{sFS}, 8
    s_add_u32 s{srdG}, s{srdG}, s{sT0}
    s_addc_u32 s{srdG+1}, s{srdG+1}, 0
    s_and_b32 s{srdG+1}, s{srdG+1}, 0xffff
    s_sub_u32 s{srdG+2}, {512 * 3584}, s{sT0}
    s_mov_b32 s{srdG+3}, 0x20000
    v_mul_u32_u24 v20, 3584, v{vT+5}
    v_add_u32 v20, v20, v{vT+3}
    """)
    for t in range(4):
        p(f"s_mov_b32 s{sT2}, {t * 3584}")
        p.vm(f"buffer_load_dwordx4 {r4(vG1 + 4*t)}, v20, s[{srdG}:{srdG+3}], s{sT2} offen {O.fpol}", ("W", t))
    srd(p, srdW, sWD, None, 1792 * 1024)
    p(f"""
    s_lshl_b32 s{sT0}, s{sFS}, 7
    s_lshr_b32 s{sT1}, s{sRR}, 2
    s_lshl_b32 s{sT1}, s{sT1}, 5
    s_add_u32 s{sT0}, s{sT0}, s{sT1}
    s_lshl_b32 s{sT1}, s{sWAVE}, 3
    s_add_u32 s{sT0}, s{sT0}, s{sT1}
    v_lshl_add_u32 v{vW}, v{vT+4}, 1, s{sT0}
    v_lshlrev_b32 v{vW}, 10, v{vW}
    s_and_b32 s{sT0}, s{sRR}, 3
    s_lshl_b32 s{sT0}, s{sT0}, 8
    v_add3_u32 v{vW}, v{vW}, v{vT+3}, s{sT0}
    """)
    for t in range(2):
        p.vm(f"buffer_load_dwordx4 {r4(vWD + 4*t)}, v{vW}, s[{srdW}:{srdW+3}], 0 offen offset:{t * 1024} {O.fpol}", ("D", t))
    p(f"""
    v_and_b32 v{vT+5}, 8, v{vLANE}
    v_mov_b32 v{vT+6}, 0x0100
    v_mov_b32 v{vT+7}, 0x0302
    v_cmp_eq_u32 vcc, 0, v{vT+5}
    v_cndmask_b32 v{vT+6}, v{vT+7}, v{vT+6}, vcc
    v_lshlrev_b32 v{vT+7}, 16, v{vT+6}
    v_or_b32 v{vT+7}, 0x0c0c, v{vT+7}
    v_or_b32 v{vT+6}, 0x0c0c0000, v{vT+6}
    v_and_b32 v{vT+5}, 1, v{vLANE}
    v_cmp_eq_u32 vcc, 0, v{vT+5}
    v_cndmask_b32 v{vT+6}, v{vT+7}, v{vT+6}, vcc
    v_bfe_u32 v{vT+5}, v{vLANE}, 1, 2
    v_mov_b32 v{vT+7}, 0x0c0c0c0c
    """)
    for j in range(4):
        p(f"v_cmp_eq_u32 vcc, {j}, v{vT+5}")
        p(f"v_cndmask_b32 v{vSEL+j}, v{vT+7}, v{vT+6}, vcc")
    srd(p, srdWS, sWS, None, WS_BYTES)
    vRD = 54
    p(f"""
    s_lshr_b32 s{sT0}, s{sWAVE}, 1
    s_lshl_b32 s{sT0}, s{sT0}, 10
    s_and_b32 s{sT1}, s{sWAVE}, 1
    s_lshl_b32 s{sT1}, s{sT1}, 9
    s_add_u32 s{sT0}, s{sT0}, s{sT1}
    v_bfe_u32 v{vRD}, v{vLANE}, 1, 1
    v_lshlrev_b32 v{vRD}, 8, v{vRD}
    v_lshrrev_b32 v{vT+5}, 2, v{vLANE}
    v_lshl_add_u32 v{vRD}, v{vT+5}, 4, v{vRD}
    v_and_b32 v{vT+5}, 1, v{vLANE}
    v_lshl_add_u32 v{vRD}, v{vT+5}, 3, v{vRD}
    v_add_u32 v{vRD}, s{sT0}, v{vRD}
    """)
    def step(src_of_pair, lane):
        for pr in range(2):
            p(f"v_mov_b32_dpp v{vBC+pr}, v{src_of_pair(pr)} row_newbcast:{lane} row_mask:0xf bank_mask:0xf")
        for pr in range(2):
            for j in range(4):
                p(f"v_perm_b32 v{vA + 4*pr + j}, v{vBC+pr}, v{vBC+pr}, v{vSEL+j}")
    def cross_wave_sum(dst):
        p(f"""
        s_lshl_b32 s{sT0}, s{sWAVE}, 11
        v_lshlrev_b32 v{vT}, 4, v{vLANE}
        v_add_u32 v{vT}, s{sT0}, v{vT}
        ds_write_b128 v{vT}, {r4(vD0)}
        ds_write_b128 v{vT}, {r4(vD1)} offset:1024
        s_waitcnt lgkmcnt(0)
        s_barrier
        """)
        for w in range(4):
            p(f"ds_read_b64 v[{vP+2*w}:{vP+2*w+1}], v{vRD} offset:{w*2048}")
        p("s_waitcnt lgkmcnt(0)")
        for e in range(2):
            p(f"v_add_f32 v{vP+e}, v{vP+e}, v{vP+2+e}")
            p(f"v_add_f32 v{vP+4+e}, v{vP+4+e}, v{vP+6+e}")
        for e in range(2):
            p(f"v_add_f32 v{dst+e}, v{vP+e}, v{vP+4+e}")
    p.wait_vm("x")
    for pr in range(2):
        p(f"v_lshl_or_b32 v{vXP + pr}, v{xr + 2*pr + 1}, 16, v{xr + 2*pr}")
    for r in range(8): p(f"v_mov_b32 v{vD0 + r}, 0")
    stamp(p, 2)
    for t in range(4):
        step(lambda pr: vXP + pr, t)
        p.wait_vm(("W", t))
        p(f"v_mfma_f32_16x16x32_bf16 {r4(vD0)}, {r4(vA)}, {r4(vG1 + 4*t)}, {r4(vD0)}")
        p(f"v_mfma_f32_16x16x32_bf16 {r4(vD1)}, {r4(vA+4)}, {r4(vG1 + 4*t)}, {r4(vD1)}")
    cross_wave_sum(26)
    p(f"""
    s_lshl_b32 s{sT0}, s{sF}, 11
    s_lshl_b32 s{sT1}, s{sWAVE}, 9
    s_add_u32 s{sT0}, s{sT0}, s{sT1}
    s_add_u32 s{sT0}, s{sT0}, {WS_H}
    v_lshl_add_u32 v{vT}, v{vLANE}, 3, s{sT0}
    buffer_store_dwordx2 v[26:27], v{vT}, s[{srdWS}:{srdWS+3}], 0 offen sc1
    s_lshl_b32 s{sT0}, s{sF}, 3
    s_add_u32 s{sT0}, s{sT0}, {WS_F1}
    v_mov_b32 v{vT+1}, s{sT0}
    s_add_u32 s{sTAG}, s{sTAG}, 1
    s_addc_u32 s{sTAG+1}, s{sTAG+1}, 0
    v_mov_b32 v28, s{sTAG}
    v_mov_b32 v29, s{sTAG+1}
    s_lshl_b32 s{sT0}, s{sFS}, 7
    s_add_u32 s{sT0}, s{sT0}, {WS_F1}
    v_lshl_add_u32 v{vT+2}, v{vLANE}, 3, s{sT0}
    s_waitcnt vmcnt(0)
    s_barrier
    """)
    p.vmq = []
    stamp(p, 4)
    p(f"""
    s_cmp_lg_u32 s{sWAVE}, {99 if O.fnosync else 0}
    s_cbranch_scc1 L_f1ok
    s_mov_b64 exec, 1
    buffer_store_dwordx2 v[28:29], v{vT+1}, s[{srdWS}:{srdWS+3}], 0 offen sc1
    s_mov_b64 exec, 0xffff
    s_mov_b32 s{sSPIN}, 0
    L_f1poll:
    s_sleep {O.fsleep}
    buffer_load_dwordx2 v[{vT+6}:{vT+7}], v{vT+2}, s[{srdWS}:{srdWS+3}], 0 offen sc1
    s_waitcnt vmcnt(0)
    v_cmp_ne_u64 vcc, s[{sTAG}:{sTAG+1}], v[{vT+6}:{vT+7}]
    s_cmp_eq_u64 vcc, 0
    s_cbranch_scc1 L_f1seen
    s_add_u32 s{sSPIN}, s{sSPIN}, 1
    s_cmp_ge_u32 s{sSPIN}, {SPIN_MAX}
    s_cbranch_scc1 L_fin
    s_branch L_f1poll
    L_f1seen:
    s_mov_b64 exec, -1
    L_f1ok:
    s_barrier
    """)
    p(f"""
    s_lshl_b32 s{sT0}, s{sFS}, 4
    s_lshl_b32 s{sT1}, s{sWAVE}, 2
    s_add_u32 s{sT0}, s{sT0}, s{sT1}
    v_lshrrev_b32 v{vT}, 5, v{vLANE}
    v_add_u32 v{vT}, s{sT0}, v{vT}
    v_lshlrev_b32 v{vT}, 11, v{vT}
    v_bfe_u32 v{vT+1}, v{vLANE}, 3, 2
    v_lshl_add_u32 v{vT}, v{vT+1}, 9, v{vT}
    v_and_b32 v{vT+2}, 7, v{vLANE}
    v_lshl_add_u32 v{vT}, v{vT+2}, 4, v{vT}
    s_lshr_b32 s{sT1}, s{sRR}, 2
    s_lshl_b32 s{sT1}, s{sT1}, 7
    s_add_u32 s{sT1}, s{sT1}, {WS_H}
    v_add_u32 v{vT}, s{sT1}, v{vT}
    s_mov_b32 s{sT2}, 4096
    buffer_load_dwordx4 {r4(vH)}, v{vT}, s[{srdWS}:{srdWS+3}], 0 offen sc1
    buffer_load_dwordx4 {r4(vH+4)}, v{vT}, s[{srdWS}:{srdWS+3}], s{sT2} offen sc1
    s_lshl_b32 s{sT0}, s{sWAVE}, 11
    v_lshrrev_b32 v{vT+5}, 5, v{vLANE}
    v_lshlrev_b32 v{vT+5}, 9, v{vT+5}
    v_lshl_add_u32 v{vT+5}, v{vT+1}, 7, v{vT+5}
    v_lshl_add_u32 v{vT+5}, v{vT+2}, 4, v{vT+5}
    v_add_u32 v{vT+5}, s{sT0}, v{vT+5}
    s_waitcnt vmcnt(0)
    ds_write_b128 v{vT+5}, {r4(vH)} offset:8192
    ds_write_b128 v{vT+5}, {r4(vH+4)} offset:9216
    v_and_b32 v{vT}, 127, v0
    v_lshlrev_b32 v{vT}, 2, v{vT}
    s_waitcnt lgkmcnt(0)
    s_barrier
    """)
    for pi in range(16):
        p(f"ds_read_b32 v{vG1+pi}, v{vT} offset:{8192 + pi*512}")
    p("s_waitcnt lgkmcnt(0)")
    for base in (vG1, vG1 + 8):
        p(f"""
        v_add_f32 v{base}, v{base}, v{base+1}
        v_add_f32 v{base+2}, v{base+2}, v{base+3}
        v_add_f32 v{base+4}, v{base+4}, v{base+5}
        v_add_f32 v{base+6}, v{base+6}, v{base+7}
        v_add_f32 v{base}, v{base}, v{base+2}
        v_add_f32 v{base+4}, v{base+4}, v{base+6}
        v_add_f32 v{base}, v{base}, v{base+4}
        """)
    h1, h2, t0, t1 = vP, vP+4, vP+1, vP+2
    C0 = 0x3F4C422A
    C1 = 0x3D372713
    p(f"""
    v_cvt_pk_bf16_f32 v{t0}, v{vG1}, v{vG1+8}
    v_lshlrev_b32 v{h1}, 16, v{t0}
    v_and_b32 v{h2}, s{sHI}, v{t0}
    v_mul_f32 v{t0}, v{h1}, v{h1}
    v_mul_f32 v{t0}, v{t0}, v{h1}
    v_mov_b32 v{t1}, {hex(C1)}
    v_fma_f32 v{t0}, v{t0}, v{t1}, v{h1}
    v_mul_f32 v{t0}, {hex(C0)}, v{t0}
    v_mul_f32 v{t0}, s{sL2E}, v{t0}
    v_mul_f32 v{t0}, -2.0, v{t0}
    v_exp_f32 v{t0}, v{t0}
    v_add_f32 v{t0}, 1.0, v{t0}
    v_rcp_f32 v{t0}, v{t0}
    v_mul_f32 v{t0}, v{h1}, v{t0}
    v_cvt_pk_bf16_f32 v{t0}, v{t0}, v{t0}
    v_lshlrev_b32 v{t0}, 16, v{t0}
    v_mul_f32 v{t0}, v{t0}, v{h2}
    v_cvt_pk_bf16_f32 v{t0}, v{t0}, v{t0}
    v_bfe_u32 v{vT+1}, v0, 6, 1
    v_lshlrev_b32 v{vT+1}, 7, v{vT+1}
    v_and_b32 v{vT+2}, 31, v0
    v_lshl_add_u32 v{vT+1}, v{vT+2}, 2, v{vT+1}
    v_bfe_u32 v{vT+2}, v0, 5, 1
    v_lshl_add_u32 v{vT+1}, v{vT+2}, 1, v{vT+1}
    ds_write_b16 v{vT+1}, v{t0} offset:16384
    s_lshl_b32 s{sT0}, s{sWAVE}, 3
    v_lshl_add_u32 v{vT+2}, v{vT+4}, 1, s{sT0}
    v_and_b32 v{vT+5}, 1, v{vLANE}
    v_add_u32 v{vT+2}, v{vT+2}, v{vT+5}
    v_lshlrev_b32 v{vT+2}, 2, v{vT+2}
    s_waitcnt lgkmcnt(0)
    s_barrier
    ds_read_b32 v{vXP}, v{vT+2} offset:16384
    ds_read_b32 v{vXP+1}, v{vT+2} offset:16512
    """)
    for r in range(8): p(f"v_mov_b32 v{vD0 + r}, 0")
    p("s_waitcnt lgkmcnt(0)")
    stamp(p, 5)
    for t in range(2):
        step(lambda pr: vXP + pr, t)
        p(f"v_mfma_f32_16x16x32_bf16 {r4(vD0)}, {r4(vA)}, {r4(vWD + 4*t)}, {r4(vD0)}")
        p(f"v_mfma_f32_16x16x32_bf16 {r4(vD1)}, {r4(vA+4)}, {r4(vWD + 4*t)}, {r4(vD1)}")
    cross_wave_sum(26)
    stamp(p, 6)
    p(f"""
    s_lshl_b32 s{sT0}, s{sFS}, 2
    s_lshr_b32 s{sT1}, s{sRR}, 2
    s_add_u32 s{sT0}, s{sT0}, s{sT1}
    s_lshl_b32 s{sT0}, s{sT0}, 13
    s_lshl_b32 s{sT1}, s{sWAVE}, 11
    s_add_u32 s{sT0}, s{sT0}, s{sT1}
    s_and_b32 s{sT1}, s{sRR}, 3
    s_lshl_b32 s{sT1}, s{sT1}, 9
    s_add_u32 s{sT0}, s{sT0}, s{sT1}
    s_add_u32 s{sT0}, s{sT0}, {WS_Q}
    v_lshl_add_u32 v{vT}, v{vLANE}, 3, s{sT0}
    buffer_store_dwordx2 v[26:27], v{vT}, s[{srdWS}:{srdWS+3}], 0 offen sc1
    s_and_b32 s{sT0}, s{sRR}, 3
    s_lshl_b32 s{sT0}, s{sT0}, 6
    s_lshl_b32 s{sT1}, s{sFS}, 2
    s_add_u32 s{sT0}, s{sT0}, s{sT1}
    s_lshr_b32 s{sT1}, s{sRR}, 2
    s_add_u32 s{sT0}, s{sT0}, s{sT1}
    s_lshl_b32 s{sT0}, s{sT0}, 3
    s_add_u32 s{sT0}, s{sT0}, {WS_F2}
    v_mov_b32 v{vT+1}, s{sT0}
    s_waitcnt vmcnt(0)
    s_barrier
    s_cmp_lg_u32 s{sWAVE}, {99 if O.fnosync else 0}
    s_cbranch_scc1 L_fin
    s_mov_b64 exec, 1
    buffer_store_dwordx2 v[28:29], v{vT+1}, s[{srdWS}:{srdWS+3}], 0 offen sc1
    s_mov_b64 exec, -1
    """)

def kernel1():
    p = Prog()
    common_prologue(p)
    p("s_waitcnt lgkmcnt(0)")
    stamp(p, 1)
    p(f"""
    s_load_dwordx2 s[{sTAG}:{sTAG+1}], s[{sWS}:{sWS+1}], {hex(WS_EPOCH)}
    s_cmp_ge_u32 s2, {NATT}
    s_cbranch_scc1 L_ffn
    """)
    routine = attention(p)
    p.ins += routine
    ffn(p)
    p("L_fin:")
    if O.dbgtime:
        p(f"""
        s_cmp_lg_u32 s{sWAVE}, 0
        s_cbranch_scc1 L_end
        s_and_b32 s74, s2, 0x1f
        s_cmp_lg_u32 s74, 0
        s_cbranch_scc1 L_end
        s_waitcnt vmcnt(0)
        s_memrealtime s[72:73]
        s_mov_b64 exec, 1
        s_mov_b32 s64, s38
        s_and_b32 s65, s39, 0xffff
        s_mov_b32 s66, 256
        s_mov_b32 s67, 0x20000
        s_waitcnt lgkmcnt(0)
        s_not_b32 s70, s70
        v_mov_b32 v60, s70
        v_mov_b32 v61, s72
        v_mov_b32 v62, 16
        buffer_atomic_umax v60, v62, s[64:67], 0 offen sc1
        buffer_atomic_umax v61, v62, s[64:67], 0 offen offset:4 sc1
        """)
    if O.stamps:
        p("s_waitcnt vmcnt(0)")
        stamp(p, 8)
        write_stamps(p, 9)
    p("L_end:")
    p("s_endpgm")
    p.finish()
    p.check_loop("L_kloop", "s_cbranch_scc1 L_kloop")
    p.check_loop("L_vloop", "s_cbranch_scc1 L_vloop")
    if any(i.text.strip() == "L_vloop2:" for i in p.ins): p.check_loop("L_vloop2", "s_cbranch_scc1 L_vloop2")
    return p

def desc(name, vgpr, sgpr):
    acc = (vgpr + 3) // 4 * 4
    return f""".amdhsa_kernel {name}
  .amdhsa_next_free_vgpr {vgpr}
  .amdhsa_next_free_sgpr {sgpr}
  .amdhsa_accum_offset {acc}
  .amdhsa_group_segment_fixed_size 0
  .amdhsa_kernarg_size 104
  .amdhsa_user_sgpr_count 2
  .amdhsa_user_sgpr_kernarg_segment_ptr 1
  .amdhsa_system_sgpr_workgroup_id_x 1
  .amdhsa_float_denorm_mode_32 3
.end_amdhsa_kernel
"""

def gen():
    k1 = NAME + "_kernel"
    out = HEADER
    out += f"; @launch grid=({nwg()},1,1) block=(256,1,1) lds=49152\n"
    out += '.amdgcn_target "amdgcn-amd-amdhsa--gfx950"\n.text\n'
    out += f".globl {k1}\n.p2align 8\n.type {k1},@function\n{k1}:\n" + kernel1().text()
    out += '.section .rodata,"a"\n.p2align 6\n' + desc(k1, 256, 102 if O.stamps else 94)
    return out

if __name__ == "__main__":
    for a in sys.argv[2:]:
        if "=" in a:
            k, v = a.split("=", 1); setattr(O, k, v.replace("_", " ").replace("def", "") if k.endswith("pol") else eval(v))
        else: setattr(O, a, True)
    open(sys.argv[1], "w").write(gen())
```

```python
import sys
from asmlib import Prog

NAME = "gated_mix__mha_block_cached__geglu_ffn__decode"
HEADER = open("gated_mix__mha_block_cached__geglu_ffn__decode.s.ref").read().split("; Override launch")[0]

NATT = 256
NFFN = 224
NQ = 56
L2E = 0x3FB8AA3B
SCALE = 0x3DB504F3
WS_P, WS_ML, WS_Q = 0, 0x80000, 0x100000
WS_H = 0x180000
WS_EPOCH, WS_HINT, WS_F1, WS_F2 = 0x90000, 0x90400, 0x91000, 0x92000
WS_BYTES = 0x200000
WS_ST = 0x200000
SPIN_MAX = 1 << 22

class O:
    stamps = False
    wpol = ""
    kvpol = "nt"
    vpol = None
    ffn_even = False
    prio = False
    aprio = 0
    noffn = False
    sleep = 16
    rot = 0
    dbgtime = False
    lead = 16
    lead2 = 0
    qinline = 16
    first = 8
    dry = None
    pstamps = False
    mix = None
    stagger = False
    lead0 = 16
    j0 = 0
    leadv = 0
    kstamps = False
    vsw = 99
    pre = 0
    flead = 0
    fnosync = False
    fpol = "nt"
    fsleep = 16
    wqrot = False
    wo0 = 2

sX, sK, sV, sWQ, sWO, sBX, sWG, sWU, sWD, sGW, sOUT, sDBG, sWS = 16, 18, 20, 22, 24, 26, 28, 30, 32, 34, 36, 38, 40
srdK, srdV, srdW, srdX, srdWS, srdD = 44, 48, 52, 56, 60, 64
sWAVE, sH, sB, sR = 3, 4, 5, 6
sOFF, sCNT, sL2E, sSCALE, sRET = 8, 9, 10, 11, 12
sT0, sT1, sT2 = 14, 15, 7
sHI, sOFF1, sOFF2, sSPIN = 68, 69, 42, 43
sST = 70
sROT = 89
sTAG = 90
vLANE, vKV0, vKV1 = 1, 2, 3
vMASK, vQ, vO = 4, 8, 12
vM, vL = 16, 17
vP, vR, vU, vA, vT = 18, 26, 30, 32, 40
vW, vWO, vX = 48, 49, 50
vSC, vW0, vW1 = 62, 60, 61
LDS_SC = 16384
vG = 52
BANK_A, BANK_B, BANK_C = 64, 128, 192
vWA = 128

def nwg(): return NATT if O.noffn else NATT + NFFN

def srd(p, dst, base, off_lo=None, size=None):
    if off_lo is None:
        p(f"s_mov_b32 s{dst}, s{base}")
        p(f"s_and_b32 s{dst+1}, s{base+1}, 0xffff")
    else:
        p(f"s_add_u32 s{dst}, s{base}, {off_lo}")
        p(f"s_addc_u32 s{dst+1}, s{base+1}, 0")
        p(f"s_and_b32 s{dst+1}, s{dst+1}, 0xffff")
    p(f"s_mov_b32 s{dst+2}, {size}")
    p(f"s_mov_b32 s{dst+3}, 0x20000")

def r4(b): return f"v[{b}:{b+3}]"

def stamp(p, k):
    if O.stamps: p(f"s_memrealtime s[{sST+2*k}:{sST+2*k+1}]")

def write_stamps(p, n):
    if not O.stamps: return
    p("s_mov_b64 exec, 1")
    p(f"s_getreg_b32 s{sST+22}, hwreg(HW_REG_HW_ID)")
    p(f"s_getreg_b32 s{sST+23}, hwreg(HW_REG_XCC_ID)")
    p("s_waitcnt lgkmcnt(0)")
    p(f"s_lshl_b32 s{sST+24}, s2, 2")
    p(f"s_add_u32 s{sST+24}, s{sST+24}, s{sWAVE}")
    p(f"s_lshl_b32 s{sST+24}, s{sST+24}, 6")
    p(f"s_add_u32 s{sST+24}, s{sST+24}, {WS_ST}")
    p(f"v_mov_b32 v60, s{sST+24}")
    p("s_mov_b32 s96, s40")
    p("s_and_b32 s97, s41, 0xffff")
    p("s_mov_b32 s98, 0x400000")
    p("s_mov_b32 s99, 0x20000")
    for k in range(n):
        p(f"v_mov_b32 v61, s{sST+2*k}")
        p(f"buffer_store_dword v61, v60, s[96:99], 0 offen offset:{4*k}")
    p(f"v_mov_b32 v61, s{sST+22}")
    p("buffer_store_dword v61, v60, s[96:99], 0 offen offset:56")
    p(f"v_mov_b32 v61, s{sST+23}")
    p("buffer_store_dword v61, v60, s[96:99], 0 offen offset:60")

def common_prologue(p):
    p(f"""
    s_cmp_ge_u32 s2, {nwg()}
    s_cbranch_scc1 L_end
    """)
    stamp(p, 0)
    if O.dbgtime: p("s_memrealtime s[70:71]")
    p(f"""
    s_load_dwordx16 s[16:31], s[0:1], 0
    s_load_dwordx8 s[32:39], s[0:1], 64
    s_load_dwordx2 s[40:41], s[0:1], 96
    v_and_b32 v{vLANE}, 63, v0
    v_lshrrev_b32 v{vT}, 6, v0
    v_and_b32 v{vT+3}, 15, v{vLANE}
    v_readfirstlane_b32 s{sWAVE}, v{vT}
    v_lshlrev_b32 v{vT+3}, 4, v{vT+3}
    v_lshrrev_b32 v{vT+4}, 4, v{vLANE}
    """)

def constants_and_masks(p):
    p(f"""
    s_mov_b32 s{sL2E}, {hex(L2E)}
    s_mov_b32 s{sSCALE}, {hex(SCALE)}
    s_mov_b32 s{sHI}, 0xffff0000
    v_and_b32 v{vT+5}, 1, v{vLANE}
    v_lshlrev_b32 v{vT+5}, 4, v{vT+5}
    v_mov_b32 v{vT+6}, 0xffff
    v_lshlrev_b32 v{vT+6}, v{vT+5}, v{vT+6}
    v_bfe_u32 v{vT+7}, v{vLANE}, 1, 3
    """)
    for j in range(4):
        p(f"v_cmp_eq_u32 vcc, {j}, v{vT+7}")
        p(f"v_cndmask_b32 v{vMASK+j}, 0, v{vT+6}, vcc")

def set_off(p, reg, k):
    if O.rot:
        p(f"s_add_u32 s{reg}, s{sROT}, {k * 32768}")
        p(f"s_and_b32 s{reg}, s{reg}, 0xfffff")
    else:
        p(f"s_mov_b32 s{reg}, {k * 32768}")

def adv_off(p, reg):
    p(f"s_add_u32 s{reg}, s{reg}, 32768")
    if O.rot: p(f"s_and_b32 s{reg}, s{reg}, 0xfffff")

def kv_load(p, reg, isv, t, soff, tag):
    d = srdV if isv else srdK
    p.vm(f"buffer_load_dwordx4 {r4(reg)}, v{vKV0 + (t >> 2)}, s[{d}:{d+3}], s{soff} offen offset:{(t & 3) * 1024} {O.vpol if (isv and O.vpol is not None) else O.kvpol}", tag)

def wo_load(p, t):
    u, tt = t >> 4, t & 15
    if tt & 3 == 0: p(f"s_mov_b32 s{sT2}, {(64 * u + (tt & ~3)) * 1024}")
    p.vm(f"buffer_load_dwordx4 {r4(vWA + 4*t)}, v{vWO}, s[{srdW}:{srdW+3}], s{sT2} offen offset:{(tt & 3) * 1024} {O.wpol}", ("W", t))

def proj_routine(p, label="L_proj", inline=False):
    if not inline: p(label + ":")
    def mk(t):
        for j in range(4):
            p(f"v_and_b32_dpp v{vA + 4*(t&1) + j}, v{vX + (t >> 4)}, v{vMASK+j} row_newbcast:{t & 15} row_mask:0xf bank_mask:0xf")
    mk(0)
    for t in range(32):
        if t + 1 < 32: mk(t + 1)
        if t % 2 == 0: p.wait_vm(("W", t + 1))
        if inline and t in (0, 8, 16): stamp(p, {0: 5, 8: 7, 16: 6}[t])
        p(f"v_mfma_f32_16x16x32_bf16 {r4(vO)}, {r4(vA + 4*(t&1))}, {r4(vWA + 4*t)}, {r4(vO)}")
    p("s_nop 7")
    if not inline: p(f"s_setpc_b64 s[{sRET}:{sRET+1}]")

def bank_base(bank): return 64 + 32 * bank

def k_tile(p, bank, refill, scoff):
    base = bank_base(bank)
    for t in range(8):
        p.wait_vm(("L", 8 * bank + t))
        k = base + 4 * t
        p(f"v_dot2_f32_bf16 v{vP+t}, v{k}, v{vQ}, 0")
        for j in range(1, 4):
            p(f"v_dot2_f32_bf16 v{vP+t}, v{k+j}, v{vQ+j}, v{vP+t}")
        refill(t)
    for a in range(4):
        p(f"v_add_f32_dpp v{vR+a}, v{vP+a}, v{vP+a} row_mirror row_mask:0xf bank_mask:0x3")
    for a in range(4):
        p(f"v_add_f32_dpp v{vR+a}, v{vP+a+4}, v{vP+a+4} row_mirror row_mask:0xf bank_mask:0xc")
    p(f"v_add_f32_dpp v{vU}, v{vR}, v{vR} row_half_mirror row_mask:0xf bank_mask:0x5")
    p(f"v_add_f32_dpp v{vU+1}, v{vR+1}, v{vR+1} row_half_mirror row_mask:0xf bank_mask:0x5")
    p(f"v_add_f32_dpp v{vU}, v{vR+2}, v{vR+2} row_half_mirror row_mask:0xf bank_mask:0xa")
    p(f"v_add_f32_dpp v{vU+1}, v{vR+3}, v{vR+3} row_half_mirror row_mask:0xf bank_mask:0xa")
    for qp in ("[1,0,3,2]", "[2,3,0,1]"):
        for u in range(2):
            p(f"v_add_f32_dpp v{vU+u}, v{vU+u}, v{vU+u} quad_perm:{qp} row_mask:0xf bank_mask:0xf")
    a0, a1, w = vT, vT+1, vT+2
    p(f"""
    v_cvt_pk_bf16_f32 v{w}, v{vU}, v{vU+1}
    v_lshlrev_b32 v{a0}, 16, v{w}
    v_and_b32 v{a1}, s{sHI}, v{w}
    v_mul_f32 v{a0}, s{sSCALE}, v{a0}
    v_mul_f32 v{a1}, s{sSCALE}, v{a1}
    v_cvt_pk_bf16_f32 v{w}, v{a0}, v{a1}
    v_lshlrev_b32 v{a0}, 16, v{w}
    v_and_b32 v{a1}, s{sHI}, v{w}
    ds_write_b32 v{vSC}, v{w} offset:{LDS_SC + scoff}
    v_max3_f32 v{vM}, v{vM}, v{a0}, v{a1}
    """)

def v_tile(p, bank, refill, wreg, prefetch_next):
    base = bank_base(bank)
    a0, a1, p0, p1 = vT, vT+1, vT+6, vT+7
    neg = vT + 4
    p(f"""
    v_lshlrev_b32 v{a0}, 16, v{wreg}
    v_and_b32 v{a1}, s{sHI}, v{wreg}
    """)
    if prefetch_next is not None: prefetch_next()
    p(f"""
    v_fma_f32 v{p0}, v{a0}, s{sL2E}, -v{neg}
    v_fma_f32 v{p1}, v{a1}, s{sL2E}, -v{neg}
    v_exp_f32 v{p0}, v{p0}
    v_exp_f32 v{p1}, v{p1}
    v_add_f32 v{vL}, v{vL}, v{p0}
    v_cvt_pk_bf16_f32 v{a0}, v{p0}, v{p0}
    v_cvt_pk_bf16_f32 v{a1}, v{p1}, v{p1}
    v_add_f32 v{vL}, v{vL}, v{p1}
    """)
    def mk(t):
        for j in range(4):
            p(f"v_and_b32_dpp v{vA + 4*(t&1) + j}, v{a0 + (t & 1)}, v{vMASK+j} row_newbcast:{4*(t >> 1)} row_mask:0xf bank_mask:0xf")
    mk(0)
    for t in range(8):
        if t + 1 < 8: mk(t + 1)
        p.wait_vm(("L", 8 * bank + t))
        p(f"v_mfma_f32_16x16x32_bf16 {r4(vO)}, {r4(vA + 4*(t&1))}, {r4(base + 4*t)}, {r4(vO)}")
        refill(t)

def gate_math(p, z, t0, t1):
    p(f"""
    v_cvt_pk_bf16_f32 v{z}, v{z}, v{z}
    v_lshlrev_b32 v{z}, 16, v{z}
    v_mul_f32 v{z}, s{sL2E}, v{z}
    v_sub_f32 v{z}, 0, v{z}
    v_exp_f32 v{z}, v{z}
    v_add_f32 v{z}, 1.0, v{z}
    v_rcp_f32 v{z}, v{z}
    v_cvt_pk_bf16_f32 v{z}, v{z}, v{z}
    v_lshlrev_b32 v{z}, 16, v{z}
    v_sub_f32 v{t1}, 1.0, v{z}
    v_cvt_pk_bf16_f32 v{t1}, v{t1}, v{t1}
    v_lshlrev_b32 v{t1}, 16, v{t1}
    """)

def attention(p):
    if O.aprio: p(f"s_setprio {O.aprio}")
    sRED = 88
    sRHO, sKVL, sKVH, sWQO = sOFF2, 92, 93, 94
    vINV, vINVM = vG + 2, vG + 3
    p(f"""
    s_and_b32 s{sT0}, s2, 7
    s_lshr_b32 s{sT1}, s2, 3
    s_lshr_b32 s{sH}, s2, 6
    s_lshl_b32 s{sT0}, s{sT0}, 2
    s_add_u32 s{sH}, s{sH}, s{sT0}
    s_and_b32 s{sRHO}, s{sT1}, 7
    s_lshl_b32 s{sRHO}, s{sRHO}, 2
    s_lshl_b32 s{sT0}, s{sWAVE}, 20
    v_lshlrev_b32 v{vW}, 17, v{vT+4}
    s_lshl_b32 s{sWQO}, s{sH}, 8
    v_add3_u32 v{vW}, v{vW}, v{vT+3}, s{sT0}
    s_sub_u32 s{srdW+2}, {4 << 20}, s{sWQO}
    s_mov_b32 s{srdW+3}, 0x20000
    s_and_b32 s{sT0}, s{sRHO}, 16
    s_mul_i32 s{sT0}, s{sT0}, 3
    s_add_u32 s{sT2}, s{sRHO}, s{sT0}
    s_lshl_b32 s{sT2}, s{sT2}, 13
    s_waitcnt lgkmcnt(0)
    """)
    stamp(p, 1)
    p(f"""
    s_add_u32 s{srdW}, s{sWQ}, s{sWQO}
    s_addc_u32 s{srdW+1}, s{sWQ+1}, 0
    s_and_b32 s{srdW+1}, s{srdW+1}, 0xffff
    """)
    seq = [("W", t) for t in range(32)] + [("L", j) for j in range(max(O.lead, O.pre))]
    pos = [0]
    def issue_next():
        if pos[0] >= len(seq): return
        kind, i = seq[pos[0]]; pos[0] += 1
        if kind == "W":
            if i % 4 == 0 and i > 0:
                p(f"""
                s_add_u32 s{sT2}, s{sRHO}, {i}
                s_and_b32 s{sT2}, s{sT2}, 31
                s_and_b32 s{sT0}, s{sT2}, 16
                s_mul_i32 s{sT0}, s{sT0}, 3
                s_add_u32 s{sT2}, s{sT2}, s{sT0}
                s_lshl_b32 s{sT2}, s{sT2}, 13
                """)
            p.vm(f"buffer_load_dwordx4 {r4(vWA + 4*i)}, v{vW}, s[{srdW}:{srdW+3}], s{sT2} offen {O.wpol}", ("W", i))
            if i % 4 != 3: p(f"s_add_u32 s{sT2}, s{sT2}, 8192")
        else:
            if i % 8 == 0: set_off(p, sOFF, i // 8)
            kv_load(p, 64 + 4 * i, 0, i & 7, sOFF, ("L", i))
    for _ in range(O.first): issue_next()
    p(f"""
    s_lshr_b32 s{sB}, s{sT1}, 1
    s_and_b32 s{sB}, s{sB}, 3
    s_and_b32 s{sT1}, s{sT1}, 1
    s_lshl_b32 s{sR}, s{sB}, 5
    s_add_u32 s{sR}, s{sR}, s{sH}
    s_lshl_b32 s{sR}, s{sR}, 1
    s_add_u32 s{sR}, s{sR}, s{sT1}
    s_lshl_b32 s{sKVL}, s{sWAVE}, 8
    s_lshl_b32 s{sT1}, s{sB}, 10
    s_add_u32 s{sKVL}, s{sKVL}, s{sT1}
    v_and_b32 v{vT}, 15, v{vLANE}
    v_add_u32 v{vT}, s{sRHO}, v{vT}
    v_and_b32 v{vT}, 31, v{vT}
    v_xor_b32 v{vT+1}, 16, v{vT}
    v_and_b32 v{vT+5}, 16, v{vT}
    v_and_b32 v{vT+6}, 16, v{vT+1}
    v_mul_u32_u24 v{vT+5}, 3, v{vT+5}
    v_mul_u32_u24 v{vT+6}, 3, v{vT+6}
    v_add_u32 v{vT}, v{vT}, v{vT+5}
    v_add_u32 v{vT+1}, v{vT+1}, v{vT+6}
    v_lshl_add_u32 v{vT}, v{vT+4}, 4, v{vT}
    v_lshl_add_u32 v{vT+1}, v{vT+4}, 4, v{vT+1}
    v_lshl_add_u32 v{vT}, v{vT}, 1, s{sKVL}
    v_lshl_add_u32 v{vT+1}, v{vT+1}, 1, s{sKVL}
    s_mov_b32 s{srdX}, s{sX}
    s_and_b32 s{srdX+1}, s{sX+1}, 0xffff
    s_mov_b32 s{srdX+2}, 4096
    s_mov_b32 s{srdX+3}, 0x20000
    """)
    p.vm(f"buffer_load_ushort v{vX}, v{vT}, s[{srdX}:{srdX+3}], 0 offen", "x")
    p.vm(f"buffer_load_ushort v{vX+1}, v{vT+1}, s[{srdX}:{srdX+3}], 0 offen", "x")
    p(f"s_load_dwordx2 s[{sTAG}:{sTAG+1}], s[{sWS}:{sWS+1}], {hex(WS_EPOCH)}")
    for _ in range(O.qinline - O.first): issue_next()
    p(f"""
    s_and_b32 s{sRED}, s{sR}, 3
    s_mul_i32 s{sROT}, s{sR}, {O.rot}
    s_lshr_b32 s{sT0}, s{sR}, 5
    s_add_u32 s{sROT}, s{sROT}, s{sT0}
    s_and_b32 s{sROT}, s{sROT}, 31
    s_lshl_b32 s{sROT}, s{sROT}, 15
    s_lshl_b32 s{sT0}, s{sR}, 11
    s_lshl_b32 s{sT1}, s{sWAVE}, 9
    s_add_u32 s{sT0}, s{sT0}, s{sT1}
    v_lshlrev_b32 v{vINV}, 3, v{vLANE}
    v_add_u32 v{vINV}, s{sT0}, v{vINV}
    v_mov_b32 v{vP}, -1
    v_mov_b32 v{vP+1}, -1
    s_lshl_b32 s{sT0}, s{sR}, 3
    s_add_u32 s{sT0}, s{sT0}, {WS_ML}
    v_mov_b32 v{vINVM}, s{sT0}
    s_mov_b32 s{srdWS}, s{sWS}
    s_and_b32 s{srdWS+1}, s{sWS+1}, 0xffff
    s_mov_b32 s{srdWS+2}, {WS_BYTES}
    s_mov_b32 s{srdWS+3}, 0x20000
    """)
    p.vm(f"buffer_store_dwordx2 v[{vP}:{vP+1}], v{vINV}, s[{srdWS}:{srdWS+3}], 0 offen sc1", "inv")
    p.vm(f"buffer_store_dwordx2 v[{vP}:{vP+1}], v{vINVM}, s[{srdWS}:{srdWS+3}], 0 offen sc1", "inv")
    p(f"""
    s_lshl_b32 s{sKVL}, s{sR}, 20
    s_lshr_b32 s{sKVH}, s{sR}, 12
    """)
    for (d, b) in ((srdK, sK), (srdV, sV)):
        p(f"s_add_u32 s{d}, s{b}, s{sKVL}")
        p(f"s_addc_u32 s{d+1}, s{b+1}, s{sKVH}")
        p(f"s_and_b32 s{d+1}, s{d+1}, 0xffff")
        p(f"s_mov_b32 s{d+2}, {1 << 20}")
        p(f"s_mov_b32 s{d+3}, 0x20000")
    p(f"""
    s_lshl_b32 s{sT0}, s{sWAVE}, 13
    v_lshlrev_b32 v{vKV0}, 4, v{vLANE}
    v_add_u32 v{vKV0}, s{sT0}, v{vKV0}
    v_add_u32 v{vKV1}, 4096, v{vKV0}
    s_lshl_b32 s{sT0}, s{sWAVE}, 8
    v_lshlrev_b32 v{vWO}, 14, v{vT+4}
    v_add3_u32 v{vWO}, v{vWO}, v{vT+3}, s{sT0}
    v_lshlrev_b32 v{vG}, 1, v{vT+3}
    v_lshl_add_u32 v{vG+1}, v{vT+4}, 4, v{vG}
    s_lshl_b32 s{sT1}, s{sWAVE}, 9
    v_add_u32 v{vG+1}, s{sT1}, v{vG+1}
    v_mov_b32 v{vO}, 0
    v_mov_b32 v{vO+1}, 0
    v_mov_b32 v{vO+2}, 0
    v_mov_b32 v{vO+3}, 0
    """)
    constants_and_masks(p)
    p.wait_vm("x")
    p(f"""
    v_lshl_or_b32 v{vX}, v{vX}, 16, v{vX}
    v_lshl_or_b32 v{vX+1}, v{vX+1}, 16, v{vX+1}
    """)
    def mk(t):
        for j in range(4):
            p(f"v_and_b32_dpp v{vA + 4*(t&1) + j}, v{vX + (t >> 4)}, v{vMASK+j} row_newbcast:{t & 15} row_mask:0xf bank_mask:0xf")
    mk(0)
    for t in range(32):
        if t + 1 < 32: mk(t + 1)
        issue_next()
        p.wait_vm(("W", t))
        p(f"v_mfma_f32_16x16x32_bf16 {r4(vO)}, {r4(vA + 4*(t&1))}, {r4(vWA + 4*t)}, {r4(vO)}")
    while pos[0] < len(seq): issue_next()
    saved = list(p.vmq)
    mark = len(p.ins)
    p.vmq = []
    proj_routine(p)
    routine = p.ins[mark:]
    p.ins = p.ins[:mark]
    p.vmq = saved
    stamp(p, 2)
    p(f"""
    s_mov_b64 exec, 0xffffffff
    ds_write_b128 v{vG+1}, {r4(vO)}
    s_mov_b64 exec, -1
    s_lshl_b32 s{sT0}, s{sH}, 17
    s_sub_u32 s{sT1}, {4 << 20}, s{sT0}
    """)
    srd(p, srdW, sWO, f"s{sT0}", f"s{sT1}")
    p(f"""
    s_waitcnt lgkmcnt(0)
    s_barrier
    """)
    qa = vP
    regs = [18, 26, 34, 52]
    for w in range(4):
        p(f"ds_read_b128 {r4(regs[w])}, v{vG} offset:{w*512}" if w < 3 else f"ds_read_b128 {r4(56)}, v{vG} offset:{w*512}")
        p(f"ds_read_b128 {r4(regs[w] + 4)}, v{vG} offset:{w*512 + 16}" if w < 3 else f"ds_read_b128 {r4(60)}, v{vG} offset:{w*512 + 16}")
    regs[3] = 56
    p(f"""
    v_mov_b32 v{vM}, 0xff7fffff
    v_mov_b32 v{vL}, 0
    v_mov_b32 v{vO}, 0
    v_mov_b32 v{vO+1}, 0
    v_mov_b32 v{vO+2}, 0
    v_mov_b32 v{vO+3}, 0
    s_waitcnt lgkmcnt(0)
    """)
    p(f"""
    s_add_u32 s{sTAG}, s{sTAG}, 1
    s_addc_u32 s{sTAG+1}, s{sTAG+1}, 0
    """)
    for i in range(8):
        p(f"v_add_f32 v{regs[0]+i}, v{regs[0]+i}, v{regs[1]+i}")
        p(f"v_add_f32 v{regs[2]+i}, v{regs[2]+i}, v{regs[3]+i}")
    for i in range(8):
        p(f"v_add_f32 v{regs[0]+i}, v{regs[0]+i}, v{regs[2]+i}")
    for j in range(4):
        p(f"v_cvt_pk_bf16_f32 v{vQ+j}, v{regs[0]+2*j}, v{regs[0]+2*j+1}")
    stamp(p, 3)
    LEAD, LEAD2 = O.lead, max(O.lead2, O.lead)
    sOFFA, sOFFB = sOFF, sOFF1
    st = {"J": max(O.lead, O.pre), "A": None, "B": None}
    def lead_at(j):
        if j < O.j0: return O.lead0
        if j >= 8 * (32 + O.vsw): return LEAD2
        return O.leadv if (O.leadv and j >= 256 - LEAD) else LEAD
    def announce():
        p(f"""
        s_lshl_b32 s{sT0}, s{sR}, 3
        s_add_u32 s{sT0}, s{sT0}, {WS_HINT}
        s_cmp_eq_u32 s{sWAVE}, 0
        s_cselect_b32 s{sT0}, s{sT0}, {WS_BYTES}
        v_mov_b32 v{vG}, s{sTAG}
        v_mov_b32 v{vG+1}, s{sTAG+1}
        v_mov_b32 v{vG+2}, s{sT0}
        s_mov_b64 exec, 1
        """)
        p.vm(f"buffer_store_dwordx2 v[{vG}:{vG+1}], v{vG+2}, s[{srdWS}:{srdWS+3}], 0 offen sc1", "ARR")
        p("s_mov_b64 exec, -1")
    def off_reg(k):
        if st["A"] == k: return sOFFA
        if st["B"] == k: return sOFFB
        if st["A"] is None or (st["B"] is not None and st["A"] <= st["B"]):
            set_off(p, sOFFA, k % 32); st["A"] = k; return sOFFA
        set_off(p, sOFFB, k % 32); st["B"] = k; return sOFFB
    def peeled_refill(i, extra=None):
        def f(t):
            j = 8 * i + t
            target = min(512, j + 1 + lead_at(j))
            n = 0
            while st["J"] < target and n < 3:
                J = st["J"]; k = J >> 3
                kv_load(p, 64 + 4 * (J % 16), k >= 32, J & 7, off_reg(k), ("L", J % 16))
                st["J"] += 1; n += 1
                if J == 511: announce()
            if extra: extra(t)
        return f
    def loop_refill(par, isv, L):
        DA = L >> 3
        def f(t):
            jt = t + L
            d, t2 = jt >> 3, jt & 7
            slot = (8 * par + jt) % 16
            kv_load(p, 64 + 4 * slot, isv, t2, sOFFA if d == DA else sOFFB, ("L", slot))
        return f
    def loop_enter(i, L):
        assert st["J"] == 8 * i + L, (st["J"], i, L)
        DA = L >> 3
        set_off(p, sOFFA, (i + DA) % 32); set_off(p, sOFFB, (i + DA + 1) % 32)
    def adv_pair():
        p(f"s_mov_b32 s{sOFFA}, s{sOFFB}")
        adv_off(p, sOFFB)
    def loop_exit(i_end, L):
        st["J"] = 8 * i_end + L; st["A"] = None; st["B"] = None
    nxt_sc = lambda n: p(f"v_add_u32 v{vSC}, {256*n}, v{vSC}")
    p(f"""
    s_lshl_b32 s{sT0}, s{sWAVE}, 13
    v_lshlrev_b32 v{vSC}, 2, v{vLANE}
    v_add_u32 v{vSC}, s{sT0}, v{vSC}
    """)
    WO0 = O.wo0
    NPEEL = WO0 + 10
    assert NPEEL % 2 == 0
    wo_next = [0]
    def wo_extra(t):
        if t % 2 == 0:
            wo_load(p, wo_next[0]); wo_next[0] += 1
    for i in range(NPEEL):
        k_tile(p, i & 1, peeled_refill(i, wo_extra if WO0 <= i < WO0 + 8 else None), 256 * (i & 1))
        if i & 1: nxt_sc(2)
        if O.dry is not None and i == O.dry:
            p(f"s_call_b64 s[{sRET}:{sRET+1}], L_proj")
            for r in range(4): p(f"v_mov_b32 v{vO+r}, 0")
        if O.kstamps and i == 3: stamp(p, 5)
        if O.kstamps and i == 11: stamp(p, 7)
    assert wo_next[0] == 32
    q0 = list(p.vmq)
    assert q0 == [("L", j % 16) for j in range(LEAD)], q0
    KEND = 28
    loop_enter(NPEEL, LEAD)
    p(f"s_mov_b32 s{sCNT}, {(KEND - NPEEL) // 2}")
    p("L_kloop:")
    for i in range(2):
        k_tile(p, i, loop_refill(i, False, LEAD), 256 * i)
        adv_pair()
    nxt_sc(2)
    assert p.vmq == q0
    p(f"""
    s_sub_u32 s{sCNT}, s{sCNT}, 1
    s_cmp_lg_u32 s{sCNT}, 0
    s_cbranch_scc1 L_kloop
    """)
    loop_exit(KEND, LEAD)
    srd(p, srdX, sX, None, 4096)
    p(f"""
    s_mov_b32 s{srdW}, s{sGW}
    s_and_b32 s{srdW+1}, s{sGW+1}, 0xffff
    s_mov_b32 s{srdW+2}, 1024
    s_lshl_b32 s{sT0}, s{sB}, 10
    v_lshlrev_b32 v{vG+2}, 2, v0
    v_add_u32 v{vG+3}, s{sT0}, v{vG+2}
    """)
    p.vm(f"buffer_load_dword v{vG+5}, v{vG+3}, s[{srdX}:{srdX+3}], 0 offen", "G")
    p.vm(f"buffer_load_dword v{vG+6}, v{vG+2}, s[{srdW}:{srdW+3}], 0 offen", "G")
    for i in range(KEND, 32):
        k_tile(p, i & 1, peeled_refill(i), 256 * (i & 1))
        if i & 1: nxt_sc(2)
    mx, neg = vT + 3, vT + 4
    p(f"""
    s_lshl_b32 s{sT0}, s{sWAVE}, 13
    v_lshlrev_b32 v{vSC}, 2, v{vLANE}
    v_add_u32 v{vSC}, s{sT0}, v{vSC}
    v_max_f32_dpp v{vM}, v{vM}, v{vM} row_half_mirror row_mask:0xf bank_mask:0xf
    s_waitcnt lgkmcnt(0)
    ds_read_b32 v{vW0}, v{vSC} offset:{LDS_SC}
    ds_read_b32 v{vW1}, v{vSC} offset:{LDS_SC + 256}
    v_max_f32_dpp v{vM}, v{vM}, v{vM} row_mirror row_mask:0xf bank_mask:0xf
    v_max_f32_dpp v{vM}, v{vM}, v{vM} row_bcast:15 row_mask:0xa bank_mask:0xf
    v_max_f32_dpp v{vM}, v{vM}, v{vM} row_bcast:31 row_mask:0xc bank_mask:0xf
    v_readlane_b32 s{sT0}, v{vM}, 63
    v_mov_b32 v{vM}, s{sT0}
    v_mul_f32 v{neg}, s{sL2E}, v{vM}
    v_add_u32 v{vSC}, 512, v{vSC}
    s_waitcnt lgkmcnt(0)
    """)
    if not O.pstamps: stamp(p, 4)
    p.vmq = [t for t in p.vmq if t != "G"]
    def pf(dst, off):
        return lambda: p(f"ds_read_b32 v{dst}, v{vSC} offset:{LDS_SC + off}")
    def v_pair_tail():
        p(f"""
        v_add_u32 v{vSC}, 512, v{vSC}
        s_waitcnt lgkmcnt(0)
        """)
    def v_loop(label, v0, v1, L):
        if v1 <= v0: return
        qL = [("L", (8 * v0 + j) % 16) for j in range(L)]
        assert p.vmq == qL, (p.vmq, qL)
        loop_enter(32 + v0, L)
        p(f"s_mov_b32 s{sCNT}, {(v1 - v0) // 2}")
        p(label + ":")
        v_tile(p, 0, loop_refill(0, True, L), vW0, pf(vW0, 0))
        adv_pair()
        v_tile(p, 1, loop_refill(1, True, L), vW1, pf(vW1, 256))
        adv_pair()
        assert p.vmq == qL
        p(f"""
        v_add_u32 v{vSC}, 512, v{vSC}
        s_sub_u32 s{sCNT}, s{sCNT}, 1
        s_cmp_lg_u32 s{sCNT}, 0
        s_waitcnt lgkmcnt(0)
        s_cbranch_scc1 {label}
        """)
        loop_exit(32 + v1, L)
    def v_peeled_pair(v, last=False):
        v_tile(p, 0, peeled_refill(32 + v), vW0, None if last else pf(vW0, 0))
        v_tile(p, 1, peeled_refill(33 + v), vW1, None if last else pf(vW1, 256))
        if not last: v_pair_tail()
    VEND = 28
    if LEAD2 > LEAD and O.vsw < VEND:
        assert O.vsw % 2 == 0
        v_loop("L_vloop", 0, O.vsw, LEAD)
        v_peeled_pair(O.vsw)
        v_loop("L_vloop2", O.vsw + 2, VEND, LEAD2)
    else:
        v_loop("L_vloop", 0, VEND, LEAD)
    v_peeled_pair(28)
    if not (O.kstamps or O.pstamps): stamp(p, 5)
    v_peeled_pair(30, last=True)
    if not O.pstamps: stamp(p, 6)
    p(f"""
    v_add_f32_dpp v{vL}, v{vL}, v{vL} row_half_mirror row_mask:0xf bank_mask:0xf
    v_add_f32_dpp v{vL}, v{vL}, v{vL} row_mirror row_mask:0xf bank_mask:0xf
    v_add_f32_dpp v{vL}, v{vL}, v{vL} row_bcast:15 row_mask:0xa bank_mask:0xf
    v_add_f32_dpp v{vL}, v{vL}, v{vL} row_bcast:31 row_mask:0xc bank_mask:0xf
    v_readlane_b32 s{sT0}, v{vL}, 63
    v_and_b32 v{vT+3}, 15, v{vLANE}
    v_lshrrev_b32 v{vT+4}, 4, v{vLANE}
    v_mov_b32 v{vL}, s{sT0}
    v_lshlrev_b32 v{vT}, 5, v{vT+3}
    v_lshl_add_u32 v{vT+1}, v{vT+4}, 4, v{vT}
    s_lshl_b32 s{sT1}, s{sWAVE}, 9
    s_lshl_b32 s{sT0}, s{sWAVE}, 3
    v_add_u32 v{vT+2}, s{sT1}, v{vT+1}
    v_mov_b32 v{vT+5}, s{sT0}
    s_mov_b64 exec, 0xffffffff
    ds_write_b128 v{vT+2}, {r4(vO)} offset:2048
    s_mov_b64 exec, -1
    ds_write_b64 v{vT+5}, v[{vM}:{vM+1}] offset:4096
    v_lshlrev_b32 v{vT+6}, 2, v{vLANE}
    v_mov_b32 v{vT+5}, 0
    s_waitcnt lgkmcnt(0)
    s_barrier
    ds_read_b128 {r4(vP)}, v{vT+5} offset:4096
    ds_read_b128 {r4(vP+4)}, v{vT+5} offset:4112
    """)
    ob = 64
    for w in range(4):
        p(f"ds_read_b32 v{ob+2*w}, v{vT+6} offset:{2048 + w*512}")
        p(f"ds_read_b32 v{ob+2*w+1}, v{vT+6} offset:{2048 + w*512 + 256}")
    m = [vP, vP+2, vP+4, vP+6]; l = [vP+1, vP+3, vP+5, vP+7]
    p(f"""
    s_waitcnt lgkmcnt(8)
    v_max_f32 v{vM}, v{m[0]}, v{m[1]}
    v_max3_f32 v{vM}, v{vM}, v{m[2]}, v{m[3]}
    v_mul_f32 v{vT+7}, s{sL2E}, v{vM}
    """)
    for w in range(4): p(f"v_fma_f32 v{m[w]}, v{m[w]}, s{sL2E}, -v{vT+7}")
    for w in range(4): p(f"v_exp_f32 v{m[w]}, v{m[w]}")
    p(f"v_mul_f32 v{vL}, v{m[0]}, v{l[0]}")
    for w in range(1, 4): p(f"v_fma_f32 v{vL}, v{m[w]}, v{l[w]}, v{vL}")
    p("s_waitcnt lgkmcnt(0)")
    for u in range(2):
        p(f"v_mul_f32 v{vX+u}, v{m[0]}, v{ob+u}")
    for w in range(1, 4):
        for u in range(2):
            p(f"v_fma_f32 v{vX+u}, v{m[w]}, v{ob+2*w+u}, v{vX+u}")
    p(f"""
    v_cvt_pk_bf16_f32 v{vX}, v{vX}, v{vX}
    v_cvt_pk_bf16_f32 v{vX+1}, v{vX+1}, v{vX+1}
    v_mov_b32 v{vO}, 0
    v_mov_b32 v{vO+1}, 0
    v_mov_b32 v{vO+2}, 0
    v_mov_b32 v{vO+3}, 0
    """)
    p(f"""
    s_nop 1
    s_call_b64 s[{sRET}:{sRET+1}], L_proj
    """)
    p(f"""
    s_lshl_b32 s{sT0}, s{sR}, 11
    s_lshl_b32 s{sT1}, s{sWAVE}, 9
    s_add_u32 s{sT0}, s{sT0}, s{sT1}
    v_add_u32 v{vT+1}, s{sT0}, v{vT+1}
    s_mov_b64 exec, 0xffffffff
    buffer_store_dwordx4 {r4(vO)}, v{vT+1}, s[{srdWS}:{srdWS+3}], 0 offen sc1
    s_mov_b64 exec, 1
    s_lshl_b32 s{sT0}, s{sR}, 3
    s_add_u32 s{sT0}, s{sT0}, {WS_ML}
    v_mov_b32 v{vT+2}, s{sT0}
    s_cmp_lg_u32 s{sWAVE}, 0
    s_cbranch_scc1 L_noml
    buffer_store_dwordx2 v[{vM}:{vM+1}], v{vT+2}, s[{srdWS}:{srdWS+3}], 0 offen sc1
    L_noml:
    s_mov_b64 exec, -1
    """)
    if not (O.kstamps or O.pstamps): stamp(p, 7)
    p(f"""
    s_cmp_eq_u32 s{sR}, 1
    s_cbranch_scc1 L_keeper
    s_cmp_lg_u32 s{sRED}, 0
    s_cbranch_scc1 L_fin
    """)
    reducer(p)
    p("s_branch L_fin")
    keeper(p)
    return routine

def keeper(p):
    p(f"""
    L_keeper:
    v_lshlrev_b32 v64, 3, v0
    v_add_u32 v64, {WS_HINT}, v64
    v_and_b32 v65, 63, v0
    v_min_u32 v65, 55, v65
    v_lshrrev_b32 v66, 6, v0
    v_lshlrev_b32 v66, 9, v66
    v_lshl_add_u32 v65, v65, 3, v66
    v_add_u32 v65, {WS_F2}, v65
    s_mov_b32 s{sSPIN}, 0
    L_kpoll:
    buffer_load_dwordx2 v[68:69], v64, s[{srdWS}:{srdWS+3}], 0 offen sc1
    buffer_load_dwordx2 v[70:71], v65, s[{srdWS}:{srdWS+3}], 0 offen sc1
    s_waitcnt vmcnt(0)
    v_cmp_ne_u64 vcc, s[{sTAG}:{sTAG+1}], v[68:69]
    s_mov_b64 s[{sT0}:{sT0+1}], vcc
    """)
    if not (O.noffn or O.fnosync):
        p(f"""
        v_cmp_ne_u64 vcc, s[{sTAG}:{sTAG+1}], v[70:71]
        s_or_b64 s[{sT0}:{sT0+1}], s[{sT0}:{sT0+1}], vcc
        """)
    p(f"""
    s_cmp_eq_u64 s[{sT0}:{sT0+1}], 0
    s_cbranch_scc1 L_kok
    s_add_u32 s{sSPIN}, s{sSPIN}, 1
    s_cmp_ge_u32 s{sSPIN}, {SPIN_MAX}
    s_cbranch_scc1 L_fin
    s_sleep 64
    s_branch L_kpoll
    L_kok:
    s_barrier
    s_cmp_lg_u32 s{sWAVE}, 0
    s_cbranch_scc1 L_fin
    v_mov_b32 v64, {WS_EPOCH}
    v_mov_b32 v68, s{sTAG}
    v_mov_b32 v69, s{sTAG+1}
    s_mov_b64 exec, 1
    buffer_store_dwordx2 v[68:69], v64, s[{srdWS}:{srdWS+3}], 0 offen sc1
    s_mov_b64 exec, -1
    s_branch L_fin
    """)

def reducer(p):
    p.vmq = []
    vCOL, vGRP = 64, 65
    aP, aML, aQ = 66, 67, 68
    dP, dML, dQ = 72, 80, 112
    acc, accq = 100, 101
    sCB = sH
    gx, gw = vG+5, vG+6
    p(f"""
    s_lshr_b32 s{sCB}, s{sH}, 1
    v_and_b32 v{vCOL}, 31, v0
    v_lshrrev_b32 v{vGRP}, 5, v0
    s_lshl_b32 s{sT0}, s{sB}, 6
    v_lshl_add_u32 v{aML}, v{vGRP}, 3, s{sT0}
    v_lshlrev_b32 v{aP}, 11, v{aML}
    s_lshl_b32 s{sT1}, s{sCB}, 7
    v_lshl_add_u32 v{aQ}, v{vCOL}, 2, s{sT1}
    v_add_u32 v{aP}, v{aP}, v{aQ}
    v_lshlrev_b32 v{aML}, 3, v{aML}
    v_add_u32 v{aML}, {WS_ML}, v{aML}
    s_lshl_b32 s{sT0}, s{sB}, 11
    v_mul_u32_u24 v102, {7 * 8192}, v{vGRP}
    v_add3_u32 v{aQ}, v{aQ}, v102, s{sT0}
    s_mov_b32 s{sSPIN}, 0
    v_lshlrev_b32 v104, 16, v{gx}
    v_and_b32 v105, s{sHI}, v{gx}
    v_lshlrev_b32 v106, 16, v{gw}
    v_and_b32 v107, s{sHI}, v{gw}
    v_mul_f32 v104, v104, v106
    v_mul_f32 v105, v105, v107
    v_cvt_pk_bf16_f32 v104, v104, v105
    v_lshlrev_b32 v105, 16, v104
    v_and_b32 v104, s{sHI}, v104
    v_add_f32 v104, v104, v105
    v_add_f32_dpp v104, v104, v104 quad_perm:[1,0,3,2] row_mask:0xf bank_mask:0xf
    v_add_f32_dpp v104, v104, v104 quad_perm:[2,3,0,1] row_mask:0xf bank_mask:0xf
    v_add_f32_dpp v104, v104, v104 row_half_mirror row_mask:0xf bank_mask:0xf
    v_add_f32_dpp v104, v104, v104 row_mirror row_mask:0xf bank_mask:0xf
    v_add_f32_dpp v104, v104, v104 row_bcast:15 row_mask:0xa bank_mask:0xf
    v_add_f32_dpp v104, v104, v104 row_bcast:31 row_mask:0xc bank_mask:0xf
    v_readlane_b32 s{sT1}, v104, 63
    s_lshl_b32 s{sT2}, s{sWAVE}, 2
    v_mov_b32 v105, s{sT2}
    v_mov_b32 v104, s{sT1}
    ds_write_b32 v105, v104 offset:8192
    s_add_u32 s{srdV}, s{sWS}, {WS_Q}
    s_addc_u32 s{srdV+1}, s{sWS+1}, 0
    s_and_b32 s{srdV+1}, s{srdV+1}, 0xffff
    s_mov_b32 s{srdV+2}, {NQ * 8192}
    s_mov_b32 s{srdV+3}, 0x20000
    s_cmp_lg_u32 s{sWAVE}, 0
    s_cbranch_scc1 L_pollok
    s_lshl_b32 s{sT0}, s{sB}, 9
    s_add_u32 s{sT0}, s{sT0}, {WS_HINT}
    v_lshl_add_u32 v103, v{vLANE}, 3, s{sT0}
    s_lshr_b32 s{sT0}, s{sCB}, 2
    s_lshl_b32 s{sT0}, s{sT0}, 9
    s_add_u32 s{sT0}, s{sT0}, {WS_F2}
    v_min_u32 v108, 55, v{vLANE}
    v_lshl_add_u32 v108, v108, 3, s{sT0}
    L_apoll:
    buffer_load_dwordx2 v[110:111], v103, s[{srdWS}:{srdWS+3}], 0 offen sc1
    buffer_load_dwordx2 v[120:121], v108, s[{srdWS}:{srdWS+3}], 0 offen sc1
    s_waitcnt vmcnt(0)
    v_cmp_ne_u64 vcc, s[{sTAG}:{sTAG+1}], v[110:111]
    s_mov_b64 s[{sT0}:{sT0+1}], vcc
    """)
    if not (O.noffn or O.fnosync):
        p(f"""
        v_cmp_ne_u64 vcc, s[{sTAG}:{sTAG+1}], v[120:121]
        s_or_b64 s[{sT0}:{sT0+1}], s[{sT0}:{sT0+1}], vcc
        """)
    p(f"""
    s_cmp_eq_u64 s[{sT0}:{sT0+1}], 0
    s_cbranch_scc1 L_pollok
    s_add_u32 s{sSPIN}, s{sSPIN}, 1
    s_cmp_ge_u32 s{sSPIN}, {SPIN_MAX}
    s_cbranch_scc1 L_fin
    s_sleep {O.sleep}
    s_branch L_apoll
    L_pollok:
    s_barrier
    """)
    for i in range(7):
        p(f"s_mov_b32 s{sT2}, {i * 8192}")
        p(f"buffer_load_dword v{dQ+i}, v{aQ}, s[{srdV}:{srdV+3}], s{sT2} offen sc1")
    p("L_dpoll:")
    for k in range(8):
        p(f"s_mov_b32 s{sT2}, {k * 2048}")
        p(f"buffer_load_dword v{dP+k}, v{aP}, s[{srdWS}:{srdWS+3}], s{sT2} offen sc1")
    for i in range(4):
        p(f"buffer_load_dwordx4 {r4(dML+4*i)}, v{aML}, s[{srdWS}:{srdWS+3}], 0 offen offset:{16*i} sc1")
    p("s_waitcnt vmcnt(0)")
    p(f"v_max_u32 v102, v{dP}, v{dP+1}")
    for k in range(2, 8, 2): p(f"v_max3_u32 v102, v102, v{dP+k}, v{dP+k+1}")
    for k in range(0, 16, 2): p(f"v_max3_u32 v102, v102, v{dML+k}, v{dML+k+1}")
    p(f"""
    v_cmp_eq_u32 vcc, -1, v102
    s_cbranch_vccz L_dok
    s_add_u32 s{sSPIN}, s{sSPIN}, 1
    s_cmp_ge_u32 s{sSPIN}, {SPIN_MAX}
    s_cbranch_scc1 L_fin
    s_branch L_dpoll
    L_dok:
    v_mov_b32 v{acc}, 0
    """)
    for i in range(4):
        m0, l0, m1, l1 = dML+4*i, dML+4*i+1, dML+4*i+2, dML+4*i+3
        p(f"""
        v_max_f32 v102, v{m0}, v{m1}
        v_sub_f32 v{m0}, v{m0}, v102
        v_sub_f32 v{m1}, v{m1}, v102
        v_mul_f32 v{m0}, s{sL2E}, v{m0}
        v_mul_f32 v{m1}, s{sL2E}, v{m1}
        v_exp_f32 v{m0}, v{m0}
        v_exp_f32 v{m1}, v{m1}
        v_mul_f32 v102, v{m0}, v{l0}
        v_fma_f32 v102, v{m1}, v{l1}, v102
        v_rcp_f32 v102, v102
        v_mul_f32 v104, v{m0}, v{dP+2*i}
        v_fma_f32 v104, v{m1}, v{dP+2*i+1}, v104
        v_fma_f32 v{acc}, v104, v102, v{acc}
        """)
    p(f"""
    v_add_f32 v{dQ}, v{dQ}, v{dQ+1}
    v_add_f32 v{dQ+2}, v{dQ+2}, v{dQ+3}
    v_add_f32 v{dQ+4}, v{dQ+4}, v{dQ+5}
    v_add_f32 v{dQ}, v{dQ}, v{dQ+2}
    v_add_f32 v{dQ+4}, v{dQ+4}, v{dQ+6}
    v_add_f32 v{accq}, v{dQ}, v{dQ+4}
    v_lshlrev_b32 v102, 2, v0
    ds_write_b32 v102, v{acc} offset:5120
    ds_write_b32 v102, v{accq} offset:6144
    s_waitcnt lgkmcnt(0)
    s_barrier
    s_cmp_lg_u32 s{sWAVE}, 0
    s_cbranch_scc1 L_fin
    v_lshlrev_b32 v102, 2, v{vCOL}
    v_mov_b32 v103, 0
    ds_read_b128 v[104:107], v103 offset:8192
    """)
    for g in range(8):
        p(f"ds_read_b32 v{dP+g}, v102 offset:{5120 + g*128}")
        p(f"ds_read_b32 v{dML+g}, v102 offset:{6144 + g*128}")
    p("s_waitcnt lgkmcnt(0)")
    for base in (dP, dML):
        p(f"""
        v_add_f32 v{base}, v{base}, v{base+1}
        v_add_f32 v{base+2}, v{base+2}, v{base+3}
        v_add_f32 v{base+4}, v{base+4}, v{base+5}
        v_add_f32 v{base+6}, v{base+6}, v{base+7}
        v_add_f32 v{base}, v{base}, v{base+2}
        v_add_f32 v{base+4}, v{base+4}, v{base+6}
        v_add_f32 v{base}, v{base}, v{base+4}
        """)
    p(f"""
    v_add_f32 v104, v104, v105
    v_add_f32 v106, v106, v107
    v_add_f32 v104, v104, v106
    """)
    gate_math(p, 104, None, 105)
    srd(p, srdK, sOUT, None, 4096)
    p(f"""
    v_cvt_pk_bf16_f32 v106, v{dP}, v{dML}
    v_lshlrev_b32 v107, 16, v106
    v_and_b32 v106, s{sHI}, v106
    v_mul_f32 v107, v104, v107
    v_mul_f32 v106, v105, v106
    v_cvt_pk_bf16_f32 v106, v107, v106
    v_lshlrev_b32 v107, 16, v106
    v_and_b32 v106, s{sHI}, v106
    v_add_f32 v106, v106, v107
    v_cvt_pk_bf16_f32 v106, v106, v106
    s_lshl_b32 s{sT0}, s{sB}, 10
    s_lshl_b32 s{sT1}, s{sCB}, 6
    s_add_u32 s{sT0}, s{sT0}, s{sT1}
    v_lshlrev_b32 v102, 1, v{vCOL}
    v_add_u32 v102, s{sT0}, v102
    s_mov_b64 exec, 0xffffffff
    buffer_store_short v106, v102, s[{srdK}:{srdK+3}], 0 offen
    s_mov_b64 exec, -1
    """)

def ffn(p):
    sF, sFS, sRR = sH, sB, sR
    vXP, vSEL, vD0, vD1 = 50, 4, 12, 16
    vG1, vWD, vH = 64, 96, 112
    srdG = srdK
    vBC = 30
    p.vmq = []
    p("L_ffn:")
    if O.prio: p("s_setprio 3")
    constants_and_masks(p)
    p("s_waitcnt lgkmcnt(0)")
    stamp(p, 1)
    p(f"s_load_dwordx2 s[{sTAG}:{sTAG+1}], s[{sWS}:{sWS+1}], {hex(WS_EPOCH)}")
    p(f"""
    s_sub_u32 s{sF}, s2, {NATT}
    s_lshr_b32 s{sFS}, s{sF}, 4
    s_and_b32 s{sRR}, s{sF}, 15
    """)
    srd(p, srdX, sX, None, 4096)
    p(f"""
    s_and_b32 s{sT0}, s{sRR}, 7
    s_lshl_b32 s{sT0}, s{sT0}, 6
    s_lshl_b32 s{sT1}, s{sWAVE}, 4
    s_add_u32 s{sT0}, s{sT0}, s{sT1}
    v_lshl_add_u32 v{vT+5}, v{vT+4}, 2, s{sT0}
    v_and_b32 v{vT}, 3, v{vLANE}
    v_add_u32 v{vT}, v{vT}, v{vT+5}
    v_lshlrev_b32 v{vT}, 1, v{vT}
    v_add_u32 v{vT+1}, 2048, v{vT}
    """)
    xr = 22
    for b in range(4):
        p.vm(f"buffer_load_ushort v{xr + b}, v{vT + (b >> 1)}, s[{srdX}:{srdX+3}], 0 offen offset:{(b & 1) * 1024}", "x")
    p(f"""
    s_cmp_lt_u32 s{sRR}, 8
    s_cselect_b32 s{srdG}, s{sWG}, s{sWU}
    s_cselect_b32 s{srdG+1}, s{sWG+1}, s{sWU+1}
    s_lshl_b32 s{sT0}, s{sFS}, 8
    s_add_u32 s{srdG}, s{srdG}, s{sT0}
    s_addc_u32 s{srdG+1}, s{srdG+1}, 0
    s_and_b32 s{srdG+1}, s{srdG+1}, 0xffff
    s_sub_u32 s{srdG+2}, {512 * 3584}, s{sT0}
    s_mov_b32 s{srdG+3}, 0x20000
    v_mul_u32_u24 v20, 3584, v{vT+5}
    v_add_u32 v20, v20, v{vT+3}
    """)
    for t in range(4):
        p(f"s_mov_b32 s{sT2}, {t * 3584}")
        p.vm(f"buffer_load_dwordx4 {r4(vG1 + 4*t)}, v20, s[{srdG}:{srdG+3}], s{sT2} offen {O.fpol}", ("W", t))
    srd(p, srdW, sWD, None, 1792 * 1024)
    p(f"""
    s_lshl_b32 s{sT0}, s{sFS}, 7
    s_lshr_b32 s{sT1}, s{sRR}, 2
    s_lshl_b32 s{sT1}, s{sT1}, 5
    s_add_u32 s{sT0}, s{sT0}, s{sT1}
    s_lshl_b32 s{sT1}, s{sWAVE}, 3
    s_add_u32 s{sT0}, s{sT0}, s{sT1}
    v_lshl_add_u32 v{vW}, v{vT+4}, 1, s{sT0}
    v_lshlrev_b32 v{vW}, 10, v{vW}
    s_and_b32 s{sT0}, s{sRR}, 3
    s_lshl_b32 s{sT0}, s{sT0}, 8
    v_add3_u32 v{vW}, v{vW}, v{vT+3}, s{sT0}
    """)
    for t in range(2):
        p.vm(f"buffer_load_dwordx4 {r4(vWD + 4*t)}, v{vW}, s[{srdW}:{srdW+3}], 0 offen offset:{t * 1024} {O.fpol}", ("D", t))
    p(f"""
    v_and_b32 v{vT+5}, 8, v{vLANE}
    v_mov_b32 v{vT+6}, 0x0100
    v_mov_b32 v{vT+7}, 0x0302
    v_cmp_eq_u32 vcc, 0, v{vT+5}
    v_cndmask_b32 v{vT+6}, v{vT+7}, v{vT+6}, vcc
    v_lshlrev_b32 v{vT+7}, 16, v{vT+6}
    v_or_b32 v{vT+7}, 0x0c0c, v{vT+7}
    v_or_b32 v{vT+6}, 0x0c0c0000, v{vT+6}
    v_and_b32 v{vT+5}, 1, v{vLANE}
    v_cmp_eq_u32 vcc, 0, v{vT+5}
    v_cndmask_b32 v{vT+6}, v{vT+7}, v{vT+6}, vcc
    v_bfe_u32 v{vT+5}, v{vLANE}, 1, 2
    v_mov_b32 v{vT+7}, 0x0c0c0c0c
    """)
    for j in range(4):
        p(f"v_cmp_eq_u32 vcc, {j}, v{vT+5}")
        p(f"v_cndmask_b32 v{vSEL+j}, v{vT+7}, v{vT+6}, vcc")
    srd(p, srdWS, sWS, None, WS_BYTES)
    vRD = 54
    p(f"""
    s_lshr_b32 s{sT0}, s{sWAVE}, 1
    s_lshl_b32 s{sT0}, s{sT0}, 10
    s_and_b32 s{sT1}, s{sWAVE}, 1
    s_lshl_b32 s{sT1}, s{sT1}, 9
    s_add_u32 s{sT0}, s{sT0}, s{sT1}
    v_bfe_u32 v{vRD}, v{vLANE}, 1, 1
    v_lshlrev_b32 v{vRD}, 8, v{vRD}
    v_lshrrev_b32 v{vT+5}, 2, v{vLANE}
    v_lshl_add_u32 v{vRD}, v{vT+5}, 4, v{vRD}
    v_and_b32 v{vT+5}, 1, v{vLANE}
    v_lshl_add_u32 v{vRD}, v{vT+5}, 3, v{vRD}
    v_add_u32 v{vRD}, s{sT0}, v{vRD}
    """)
    def step(src_of_pair, lane):
        for pr in range(2):
            p(f"v_mov_b32_dpp v{vBC+pr}, v{src_of_pair(pr)} row_newbcast:{lane} row_mask:0xf bank_mask:0xf")
        for pr in range(2):
            for j in range(4):
                p(f"v_perm_b32 v{vA + 4*pr + j}, v{vBC+pr}, v{vBC+pr}, v{vSEL+j}")
    def cross_wave_sum(dst):
        p(f"""
        s_lshl_b32 s{sT0}, s{sWAVE}, 11
        v_lshlrev_b32 v{vT}, 4, v{vLANE}
        v_add_u32 v{vT}, s{sT0}, v{vT}
        ds_write_b128 v{vT}, {r4(vD0)}
        ds_write_b128 v{vT}, {r4(vD1)} offset:1024
        s_waitcnt lgkmcnt(0)
        s_barrier
        """)
        for w in range(4):
            p(f"ds_read_b64 v[{vP+2*w}:{vP+2*w+1}], v{vRD} offset:{w*2048}")
        p("s_waitcnt lgkmcnt(0)")
        for e in range(2):
            p(f"v_add_f32 v{vP+e}, v{vP+e}, v{vP+2+e}")
            p(f"v_add_f32 v{vP+4+e}, v{vP+4+e}, v{vP+6+e}")
        for e in range(2):
            p(f"v_add_f32 v{dst+e}, v{vP+e}, v{vP+4+e}")
    p.wait_vm("x")
    for pr in range(2):
        p(f"v_lshl_or_b32 v{vXP + pr}, v{xr + 2*pr + 1}, 16, v{xr + 2*pr}")
    for r in range(8): p(f"v_mov_b32 v{vD0 + r}, 0")
    stamp(p, 2)
    for t in range(4):
        step(lambda pr: vXP + pr, t)
        p.wait_vm(("W", t))
        p(f"v_mfma_f32_16x16x32_bf16 {r4(vD0)}, {r4(vA)}, {r4(vG1 + 4*t)}, {r4(vD0)}")
        p(f"v_mfma_f32_16x16x32_bf16 {r4(vD1)}, {r4(vA+4)}, {r4(vG1 + 4*t)}, {r4(vD1)}")
    cross_wave_sum(26)
    p(f"""
    s_lshl_b32 s{sT0}, s{sF}, 11
    s_lshl_b32 s{sT1}, s{sWAVE}, 9
    s_add_u32 s{sT0}, s{sT0}, s{sT1}
    s_add_u32 s{sT0}, s{sT0}, {WS_H}
    v_lshl_add_u32 v{vT}, v{vLANE}, 3, s{sT0}
    buffer_store_dwordx2 v[26:27], v{vT}, s[{srdWS}:{srdWS+3}], 0 offen sc1
    s_lshl_b32 s{sT0}, s{sF}, 3
    s_add_u32 s{sT0}, s{sT0}, {WS_F1}
    v_mov_b32 v{vT+1}, s{sT0}
    s_add_u32 s{sTAG}, s{sTAG}, 1
    s_addc_u32 s{sTAG+1}, s{sTAG+1}, 0
    v_mov_b32 v28, s{sTAG}
    v_mov_b32 v29, s{sTAG+1}
    s_lshl_b32 s{sT0}, s{sFS}, 7
    s_add_u32 s{sT0}, s{sT0}, {WS_F1}
    v_lshl_add_u32 v{vT+2}, v{vLANE}, 3, s{sT0}
    s_waitcnt vmcnt(0)
    s_barrier
    """)
    p.vmq = []
    stamp(p, 4)
    p(f"""
    s_cmp_lg_u32 s{sWAVE}, {99 if O.fnosync else 0}
    s_cbranch_scc1 L_f1ok
    s_mov_b64 exec, 1
    buffer_store_dwordx2 v[28:29], v{vT+1}, s[{srdWS}:{srdWS+3}], 0 offen sc1
    s_mov_b64 exec, 0xffff
    s_mov_b32 s{sSPIN}, 0
    L_f1poll:
    s_sleep {O.fsleep}
    buffer_load_dwordx2 v[{vT+6}:{vT+7}], v{vT+2}, s[{srdWS}:{srdWS+3}], 0 offen sc1
    s_waitcnt vmcnt(0)
    v_cmp_ne_u64 vcc, s[{sTAG}:{sTAG+1}], v[{vT+6}:{vT+7}]
    s_cmp_eq_u64 vcc, 0
    s_cbranch_scc1 L_f1seen
    s_add_u32 s{sSPIN}, s{sSPIN}, 1
    s_cmp_ge_u32 s{sSPIN}, {SPIN_MAX}
    s_cbranch_scc1 L_fin
    s_branch L_f1poll
    L_f1seen:
    s_mov_b64 exec, -1
    L_f1ok:
    s_barrier
    """)
    p(f"""
    s_lshl_b32 s{sT0}, s{sFS}, 4
    s_lshl_b32 s{sT1}, s{sWAVE}, 2
    s_add_u32 s{sT0}, s{sT0}, s{sT1}
    v_lshrrev_b32 v{vT}, 5, v{vLANE}
    v_add_u32 v{vT}, s{sT0}, v{vT}
    v_lshlrev_b32 v{vT}, 11, v{vT}
    v_bfe_u32 v{vT+1}, v{vLANE}, 3, 2
    v_lshl_add_u32 v{vT}, v{vT+1}, 9, v{vT}
    v_and_b32 v{vT+2}, 7, v{vLANE}
    v_lshl_add_u32 v{vT}, v{vT+2}, 4, v{vT}
    s_lshr_b32 s{sT1}, s{sRR}, 2
    s_lshl_b32 s{sT1}, s{sT1}, 7
    s_add_u32 s{sT1}, s{sT1}, {WS_H}
    v_add_u32 v{vT}, s{sT1}, v{vT}
    s_mov_b32 s{sT2}, 4096
    buffer_load_dwordx4 {r4(vH)}, v{vT}, s[{srdWS}:{srdWS+3}], 0 offen sc1
    buffer_load_dwordx4 {r4(vH+4)}, v{vT}, s[{srdWS}:{srdWS+3}], s{sT2} offen sc1
    s_lshl_b32 s{sT0}, s{sWAVE}, 11
    v_lshrrev_b32 v{vT+5}, 5, v{vLANE}
    v_lshlrev_b32 v{vT+5}, 9, v{vT+5}
    v_lshl_add_u32 v{vT+5}, v{vT+1}, 7, v{vT+5}
    v_lshl_add_u32 v{vT+5}, v{vT+2}, 4, v{vT+5}
    v_add_u32 v{vT+5}, s{sT0}, v{vT+5}
    s_waitcnt vmcnt(0)
    ds_write_b128 v{vT+5}, {r4(vH)} offset:8192
    ds_write_b128 v{vT+5}, {r4(vH+4)} offset:9216
    v_and_b32 v{vT}, 127, v0
    v_lshlrev_b32 v{vT}, 2, v{vT}
    s_waitcnt lgkmcnt(0)
    s_barrier
    """)
    for pi in range(16):
        p(f"ds_read_b32 v{vG1+pi}, v{vT} offset:{8192 + pi*512}")
    p("s_waitcnt lgkmcnt(0)")
    for base in (vG1, vG1 + 8):
        p(f"""
        v_add_f32 v{base}, v{base}, v{base+1}
        v_add_f32 v{base+2}, v{base+2}, v{base+3}
        v_add_f32 v{base+4}, v{base+4}, v{base+5}
        v_add_f32 v{base+6}, v{base+6}, v{base+7}
        v_add_f32 v{base}, v{base}, v{base+2}
        v_add_f32 v{base+4}, v{base+4}, v{base+6}
        v_add_f32 v{base}, v{base}, v{base+4}
        """)
    h1, h2, t0, t1 = vP, vP+4, vP+1, vP+2
    C0 = 0x3F4C422A
    C1 = 0x3D372713
    p(f"""
    v_cvt_pk_bf16_f32 v{t0}, v{vG1}, v{vG1+8}
    v_lshlrev_b32 v{h1}, 16, v{t0}
    v_and_b32 v{h2}, s{sHI}, v{t0}
    v_mul_f32 v{t0}, v{h1}, v{h1}
    v_mul_f32 v{t0}, v{t0}, v{h1}
    v_mov_b32 v{t1}, {hex(C1)}
    v_fma_f32 v{t0}, v{t0}, v{t1}, v{h1}
    v_mul_f32 v{t0}, {hex(C0)}, v{t0}
    v_mul_f32 v{t0}, s{sL2E}, v{t0}
    v_mul_f32 v{t0}, -2.0, v{t0}
    v_exp_f32 v{t0}, v{t0}
    v_add_f32 v{t0}, 1.0, v{t0}
    v_rcp_f32 v{t0}, v{t0}
    v_mul_f32 v{t0}, v{h1}, v{t0}
    v_cvt_pk_bf16_f32 v{t0}, v{t0}, v{t0}
    v_lshlrev_b32 v{t0}, 16, v{t0}
    v_mul_f32 v{t0}, v{t0}, v{h2}
    v_cvt_pk_bf16_f32 v{t0}, v{t0}, v{t0}
    v_bfe_u32 v{vT+1}, v0, 6, 1
    v_lshlrev_b32 v{vT+1}, 7, v{vT+1}
    v_and_b32 v{vT+2}, 31, v0
    v_lshl_add_u32 v{vT+1}, v{vT+2}, 2, v{vT+1}
    v_bfe_u32 v{vT+2}, v0, 5, 1
    v_lshl_add_u32 v{vT+1}, v{vT+2}, 1, v{vT+1}
    ds_write_b16 v{vT+1}, v{t0} offset:16384
    s_lshl_b32 s{sT0}, s{sWAVE}, 3
    v_lshl_add_u32 v{vT+2}, v{vT+4}, 1, s{sT0}
    v_and_b32 v{vT+5}, 1, v{vLANE}
    v_add_u32 v{vT+2}, v{vT+2}, v{vT+5}
    v_lshlrev_b32 v{vT+2}, 2, v{vT+2}
    s_waitcnt lgkmcnt(0)
    s_barrier
    ds_read_b32 v{vXP}, v{vT+2} offset:16384
    ds_read_b32 v{vXP+1}, v{vT+2} offset:16512
    """)
    for r in range(8): p(f"v_mov_b32 v{vD0 + r}, 0")
    p("s_waitcnt lgkmcnt(0)")
    stamp(p, 5)
    for t in range(2):
        step(lambda pr: vXP + pr, t)
        p(f"v_mfma_f32_16x16x32_bf16 {r4(vD0)}, {r4(vA)}, {r4(vWD + 4*t)}, {r4(vD0)}")
        p(f"v_mfma_f32_16x16x32_bf16 {r4(vD1)}, {r4(vA+4)}, {r4(vWD + 4*t)}, {r4(vD1)}")
    cross_wave_sum(26)
    stamp(p, 6)
    p(f"""
    s_lshl_b32 s{sT0}, s{sFS}, 2
    s_lshr_b32 s{sT1}, s{sRR}, 2
    s_add_u32 s{sT0}, s{sT0}, s{sT1}
    s_lshl_b32 s{sT0}, s{sT0}, 13
    s_lshl_b32 s{sT1}, s{sWAVE}, 11
    s_add_u32 s{sT0}, s{sT0}, s{sT1}
    s_and_b32 s{sT1}, s{sRR}, 3
    s_lshl_b32 s{sT1}, s{sT1}, 9
    s_add_u32 s{sT0}, s{sT0}, s{sT1}
    s_add_u32 s{sT0}, s{sT0}, {WS_Q}
    v_lshl_add_u32 v{vT}, v{vLANE}, 3, s{sT0}
    buffer_store_dwordx2 v[26:27], v{vT}, s[{srdWS}:{srdWS+3}], 0 offen sc1
    s_and_b32 s{sT0}, s{sRR}, 3
    s_lshl_b32 s{sT0}, s{sT0}, 6
    s_lshl_b32 s{sT1}, s{sFS}, 2
    s_add_u32 s{sT0}, s{sT0}, s{sT1}
    s_lshr_b32 s{sT1}, s{sRR}, 2
    s_add_u32 s{sT0}, s{sT0}, s{sT1}
    s_lshl_b32 s{sT0}, s{sT0}, 3
    s_add_u32 s{sT0}, s{sT0}, {WS_F2}
    v_mov_b32 v{vT+1}, s{sT0}
    s_waitcnt vmcnt(0)
    s_barrier
    s_cmp_lg_u32 s{sWAVE}, {99 if O.fnosync else 0}
    s_cbranch_scc1 L_fin
    s_mov_b64 exec, 1
    buffer_store_dwordx2 v[28:29], v{vT+1}, s[{srdWS}:{srdWS+3}], 0 offen sc1
    s_mov_b64 exec, -1
    """)

def kernel1():
    p = Prog()
    common_prologue(p)
    p(f"""
    s_cmp_ge_u32 s2, {NATT}
    s_cbranch_scc1 L_ffn
    """)
    routine = attention(p)
    p.ins += routine
    ffn(p)
    p("L_fin:")
    if O.dbgtime:
        p(f"""
        s_cmp_lg_u32 s{sWAVE}, 0
        s_cbranch_scc1 L_end
        s_and_b32 s74, s2, 0x1f
        s_cmp_lg_u32 s74, 0
        s_cbranch_scc1 L_end
        s_waitcnt vmcnt(0)
        s_memrealtime s[72:73]
        s_mov_b64 exec, 1
        s_mov_b32 s64, s38
        s_and_b32 s65, s39, 0xffff
        s_mov_b32 s66, 256
        s_mov_b32 s67, 0x20000
        s_waitcnt lgkmcnt(0)
        s_not_b32 s70, s70
        v_mov_b32 v60, s70
        v_mov_b32 v61, s72
        v_mov_b32 v62, 16
        buffer_atomic_umax v60, v62, s[64:67], 0 offen sc1
        buffer_atomic_umax v61, v62, s[64:67], 0 offen offset:4 sc1
        """)
    if O.stamps:
        p("s_waitcnt vmcnt(0)")
        stamp(p, 8)
        write_stamps(p, 9)
    p("L_end:")
    p("s_endpgm")
    p.finish()
    p.check_loop("L_kloop", "s_cbranch_scc1 L_kloop")
    p.check_loop("L_vloop", "s_cbranch_scc1 L_vloop")
    if any(i.text.strip() == "L_vloop2:" for i in p.ins): p.check_loop("L_vloop2", "s_cbranch_scc1 L_vloop2")
    return p

def desc(name, vgpr, sgpr):
    acc = (vgpr + 3) // 4 * 4
    return f""".amdhsa_kernel {name}
  .amdhsa_next_free_vgpr {vgpr}
  .amdhsa_next_free_sgpr {sgpr}
  .amdhsa_accum_offset {acc}
  .amdhsa_group_segment_fixed_size 0
  .amdhsa_kernarg_size 104
  .amdhsa_user_sgpr_count 2
  .amdhsa_user_sgpr_kernarg_segment_ptr 1
  .amdhsa_system_sgpr_workgroup_id_x 1
  .amdhsa_float_denorm_mode_32 3
.end_amdhsa_kernel
"""

def gen():
    k1 = NAME + "_kernel"
    out = HEADER
    out += f"; @launch grid=({nwg()},1,1) block=(256,1,1) lds=49152\n"
    out += '.amdgcn_target "amdgcn-amd-amdhsa--gfx950"\n.text\n'
    out += f".globl {k1}\n.p2align 8\n.type {k1},@function\n{k1}:\n" + kernel1().text()
    out += '.section .rodata,"a"\n.p2align 6\n' + desc(k1, 256, 102 if O.stamps else 96)
    return out

if __name__ == "__main__":
    for a in sys.argv[2:]:
        if "=" in a:
            k, v = a.split("=", 1); setattr(O, k, v.replace("_", " ").replace("def", "") if k.endswith("pol") else eval(v))
        else: setattr(O, a, True)
    open(sys.argv[1], "w").write(gen())
```

```python
import sys
from asmlib import Prog

NAME = "gated_mix__mha_block_cached__geglu_ffn__decode"
HEADER = open("gated_mix__mha_block_cached__geglu_ffn__decode.s.ref").read().split("; Override launch")[0]

NATT = 256
NFFN = 224
NQ = 56
L2E = 0x3FB8AA3B
SCALE = 0x3DB504F3
WS_P, WS_ML, WS_Q = 0, 0x80000, 0x100000
WS_H = 0x180000
WS_EPOCH, WS_HINT, WS_F1, WS_F2 = 0x90000, 0x90400, 0x91000, 0x92000
WS_BYTES = 0x200000
WS_ST = 0x200000
SPIN_MAX = 1 << 22

class O:
    stamps = False
    wpol = ""
    kvpol = "nt"
    vpol = None
    ffn_even = False
    prio = False
    aprio = 0
    noffn = False
    sleep = 16
    rot = 0
    dbgtime = False
    lead = 16
    lead2 = 0
    qinline = 16
    first = 8
    tstep = 32768
    wmul = 1
    bidir = 0
    rot2 = 1
    dry = None
    pstamps = False
    mix = None
    stagger = False
    lead0 = 16
    j0 = 0
    leadv = 0
    kstamps = False
    vsw = 99
    pre = 0
    flead = 0
    fnosync = False
    fpol = "nt"
    fsleep = 16
    wqrot = False
    wo0 = 2

sX, sK, sV, sWQ, sWO, sBX, sWG, sWU, sWD, sGW, sOUT, sDBG, sWS = 16, 18, 20, 22, 24, 26, 28, 30, 32, 34, 36, 38, 40
srdK, srdV, srdW, srdX, srdWS, srdD = 44, 48, 52, 56, 60, 64
sWAVE, sH, sB, sR = 3, 4, 5, 6
sOFF, sCNT, sL2E, sSCALE, sRET = 8, 9, 10, 11, 12
sT0, sT1, sT2 = 14, 15, 7
sHI, sOFF1, sOFF2, sSPIN = 68, 69, 42, 43
sST = 70
sROT = 89
sSTEP = 95
sTAG = 90
vLANE, vKV0, vKV1 = 1, 2, 3
vMASK, vQ, vO = 4, 8, 12
vM, vL = 16, 17
vP, vR, vU, vA, vT = 18, 26, 30, 32, 40
vW, vWO, vX = 48, 49, 50
vSC, vW0, vW1 = 62, 60, 61
LDS_SC = 16384
vG = 52
BANK_A, BANK_B, BANK_C = 64, 128, 192
vWA = 128

def nwg(): return NATT if O.noffn else NATT + NFFN

def srd(p, dst, base, off_lo=None, size=None):
    if off_lo is None:
        p(f"s_mov_b32 s{dst}, s{base}")
        p(f"s_and_b32 s{dst+1}, s{base+1}, 0xffff")
    else:
        p(f"s_add_u32 s{dst}, s{base}, {off_lo}")
        p(f"s_addc_u32 s{dst+1}, s{base+1}, 0")
        p(f"s_and_b32 s{dst+1}, s{dst+1}, 0xffff")
    p(f"s_mov_b32 s{dst+2}, {size}")
    p(f"s_mov_b32 s{dst+3}, 0x20000")

def r4(b): return f"v[{b}:{b+3}]"

def stamp(p, k):
    if O.stamps: p(f"s_memrealtime s[{sST+2*k}:{sST+2*k+1}]")

def write_stamps(p, n):
    if not O.stamps: return
    p("s_mov_b64 exec, 1")
    p(f"s_getreg_b32 s{sST+22}, hwreg(HW_REG_HW_ID)")
    p(f"s_getreg_b32 s{sST+23}, hwreg(HW_REG_XCC_ID)")
    p("s_waitcnt lgkmcnt(0)")
    p(f"s_lshl_b32 s{sST+24}, s2, 2")
    p(f"s_add_u32 s{sST+24}, s{sST+24}, s{sWAVE}")
    p(f"s_lshl_b32 s{sST+24}, s{sST+24}, 6")
    p(f"s_add_u32 s{sST+24}, s{sST+24}, {WS_ST}")
    p(f"v_mov_b32 v60, s{sST+24}")
    p("s_mov_b32 s96, s40")
    p("s_and_b32 s97, s41, 0xffff")
    p("s_mov_b32 s98, 0x400000")
    p("s_mov_b32 s99, 0x20000")
    for k in range(n):
        p(f"v_mov_b32 v61, s{sST+2*k}")
        p(f"buffer_store_dword v61, v60, s[96:99], 0 offen offset:{4*k}")
    p(f"v_mov_b32 v61, s{sST+22}")
    p("buffer_store_dword v61, v60, s[96:99], 0 offen offset:56")
    p(f"v_mov_b32 v61, s{sST+23}")
    p("buffer_store_dword v61, v60, s[96:99], 0 offen offset:60")

def common_prologue(p):
    p(f"""
    s_cmp_ge_u32 s2, {nwg()}
    s_cbranch_scc1 L_end
    """)
    stamp(p, 0)
    if O.dbgtime: p("s_memrealtime s[70:71]")
    p(f"""
    s_load_dwordx16 s[16:31], s[0:1], 0
    s_load_dwordx8 s[32:39], s[0:1], 64
    s_load_dwordx2 s[40:41], s[0:1], 96
    v_and_b32 v{vLANE}, 63, v0
    v_lshrrev_b32 v{vT}, 6, v0
    v_and_b32 v{vT+3}, 15, v{vLANE}
    v_readfirstlane_b32 s{sWAVE}, v{vT}
    v_lshlrev_b32 v{vT+3}, 4, v{vT+3}
    v_lshrrev_b32 v{vT+4}, 4, v{vLANE}
    """)

def constants_and_masks(p):
    p(f"""
    s_mov_b32 s{sL2E}, {hex(L2E)}
    s_mov_b32 s{sSCALE}, {hex(SCALE)}
    s_mov_b32 s{sHI}, 0xffff0000
    v_and_b32 v{vT+5}, 1, v{vLANE}
    v_lshlrev_b32 v{vT+5}, 4, v{vT+5}
    v_mov_b32 v{vT+6}, 0xffff
    v_lshlrev_b32 v{vT+6}, v{vT+5}, v{vT+6}
    v_bfe_u32 v{vT+7}, v{vLANE}, 1, 3
    """)
    for j in range(4):
        p(f"v_cmp_eq_u32 vcc, {j}, v{vT+7}")
        p(f"v_cndmask_b32 v{vMASK+j}, 0, v{vT+6}, vcc")

def set_off(p, reg, k):
    if O.bidir:
        p(f"s_mul_i32 s{reg}, s{sSTEP}, {k}")
        p(f"s_add_u32 s{reg}, s{reg}, s{sROT}")
        p(f"s_and_b32 s{reg}, s{reg}, 0xfffff")
    elif O.rot:
        p(f"s_add_u32 s{reg}, s{sROT}, {k * O.tstep}")
        p(f"s_and_b32 s{reg}, s{reg}, 0xfffff")
    else:
        p(f"s_mov_b32 s{reg}, {k * 32768}")

def adv_off(p, reg):
    if O.bidir: p(f"s_add_u32 s{reg}, s{reg}, s{sSTEP}")
    else: p(f"s_add_u32 s{reg}, s{reg}, {O.tstep}")
    if O.rot: p(f"s_and_b32 s{reg}, s{reg}, 0xfffff")

def kv_load(p, reg, isv, t, soff, tag):
    d = srdV if isv else srdK
    p.vm(f"buffer_load_dwordx4 {r4(reg)}, v{vKV0 + (t >> 2)}, s[{d}:{d+3}], s{soff} offen offset:{(t & 3) * 1024} {O.vpol if (isv and O.vpol is not None) else O.kvpol}", tag)

def wo_load(p, t):
    u, tt = t >> 4, t & 15
    if tt & 3 == 0: p(f"s_mov_b32 s{sT2}, {(64 * u + (tt & ~3)) * 1024}")
    p.vm(f"buffer_load_dwordx4 {r4(vWA + 4*t)}, v{vWO}, s[{srdW}:{srdW+3}], s{sT2} offen offset:{(tt & 3) * 1024} {O.wpol}", ("W", t))

def proj_routine(p, label="L_proj", inline=False):
    if not inline: p(label + ":")
    def mk(t):
        for j in range(4):
            p(f"v_and_b32_dpp v{vA + 4*(t&1) + j}, v{vX + (t >> 4)}, v{vMASK+j} row_newbcast:{t & 15} row_mask:0xf bank_mask:0xf")
    mk(0)
    for t in range(32):
        if t + 1 < 32: mk(t + 1)
        if t % 2 == 0: p.wait_vm(("W", t + 1))
        if inline and t in (0, 8, 16): stamp(p, {0: 5, 8: 7, 16: 6}[t])
        p(f"v_mfma_f32_16x16x32_bf16 {r4(vO)}, {r4(vA + 4*(t&1))}, {r4(vWA + 4*t)}, {r4(vO)}")
    p("s_nop 7")
    if not inline: p(f"s_setpc_b64 s[{sRET}:{sRET+1}]")

def bank_base(bank): return 64 + 32 * bank

def k_tile(p, bank, refill, scoff):
    base = bank_base(bank)
    for t in range(8):
        p.wait_vm(("L", 8 * bank + t))
        k = base + 4 * t
        p(f"v_dot2_f32_bf16 v{vP+t}, v{k}, v{vQ}, 0")
        for j in range(1, 4):
            p(f"v_dot2_f32_bf16 v{vP+t}, v{k+j}, v{vQ+j}, v{vP+t}")
        refill(t)
    for a in range(4):
        p(f"v_add_f32_dpp v{vR+a}, v{vP+a}, v{vP+a} row_mirror row_mask:0xf bank_mask:0x3")
    for a in range(4):
        p(f"v_add_f32_dpp v{vR+a}, v{vP+a+4}, v{vP+a+4} row_mirror row_mask:0xf bank_mask:0xc")
    p(f"v_add_f32_dpp v{vU}, v{vR}, v{vR} row_half_mirror row_mask:0xf bank_mask:0x5")
    p(f"v_add_f32_dpp v{vU+1}, v{vR+1}, v{vR+1} row_half_mirror row_mask:0xf bank_mask:0x5")
    p(f"v_add_f32_dpp v{vU}, v{vR+2}, v{vR+2} row_half_mirror row_mask:0xf bank_mask:0xa")
    p(f"v_add_f32_dpp v{vU+1}, v{vR+3}, v{vR+3} row_half_mirror row_mask:0xf bank_mask:0xa")
    for qp in ("[1,0,3,2]", "[2,3,0,1]"):
        for u in range(2):
            p(f"v_add_f32_dpp v{vU+u}, v{vU+u}, v{vU+u} quad_perm:{qp} row_mask:0xf bank_mask:0xf")
    a0, a1, w = vT, vT+1, vT+2
    p(f"""
    v_cvt_pk_bf16_f32 v{w}, v{vU}, v{vU+1}
    v_lshlrev_b32 v{a0}, 16, v{w}
    v_and_b32 v{a1}, s{sHI}, v{w}
    v_mul_f32 v{a0}, s{sSCALE}, v{a0}
    v_mul_f32 v{a1}, s{sSCALE}, v{a1}
    v_cvt_pk_bf16_f32 v{w}, v{a0}, v{a1}
    v_lshlrev_b32 v{a0}, 16, v{w}
    v_and_b32 v{a1}, s{sHI}, v{w}
    ds_write_b32 v{vSC}, v{w} offset:{LDS_SC + scoff}
    v_max3_f32 v{vM}, v{vM}, v{a0}, v{a1}
    """)

def v_tile(p, bank, refill, wreg, prefetch_next):
    base = bank_base(bank)
    a0, a1, p0, p1 = vT, vT+1, vT+6, vT+7
    neg = vT + 4
    p(f"""
    v_lshlrev_b32 v{a0}, 16, v{wreg}
    v_and_b32 v{a1}, s{sHI}, v{wreg}
    """)
    if prefetch_next is not None: prefetch_next()
    p(f"""
    v_fma_f32 v{p0}, v{a0}, s{sL2E}, -v{neg}
    v_fma_f32 v{p1}, v{a1}, s{sL2E}, -v{neg}
    v_exp_f32 v{p0}, v{p0}
    v_exp_f32 v{p1}, v{p1}
    v_add_f32 v{vL}, v{vL}, v{p0}
    v_cvt_pk_bf16_f32 v{a0}, v{p0}, v{p0}
    v_cvt_pk_bf16_f32 v{a1}, v{p1}, v{p1}
    v_add_f32 v{vL}, v{vL}, v{p1}
    """)
    def mk(t):
        for j in range(4):
            p(f"v_and_b32_dpp v{vA + 4*(t&1) + j}, v{a0 + (t & 1)}, v{vMASK+j} row_newbcast:{4*(t >> 1)} row_mask:0xf bank_mask:0xf")
    mk(0)
    for t in range(8):
        if t + 1 < 8: mk(t + 1)
        p.wait_vm(("L", 8 * bank + t))
        p(f"v_mfma_f32_16x16x32_bf16 {r4(vO)}, {r4(vA + 4*(t&1))}, {r4(base + 4*t)}, {r4(vO)}")
        refill(t)

def gate_math(p, z, t0, t1):
    p(f"""
    v_cvt_pk_bf16_f32 v{z}, v{z}, v{z}
    v_lshlrev_b32 v{z}, 16, v{z}
    v_mul_f32 v{z}, s{sL2E}, v{z}
    v_sub_f32 v{z}, 0, v{z}
    v_exp_f32 v{z}, v{z}
    v_add_f32 v{z}, 1.0, v{z}
    v_rcp_f32 v{z}, v{z}
    v_cvt_pk_bf16_f32 v{z}, v{z}, v{z}
    v_lshlrev_b32 v{z}, 16, v{z}
    v_sub_f32 v{t1}, 1.0, v{z}
    v_cvt_pk_bf16_f32 v{t1}, v{t1}, v{t1}
    v_lshlrev_b32 v{t1}, 16, v{t1}
    """)

def attention(p):
    if O.aprio: p(f"s_setprio {O.aprio}")
    sRED = 88
    sRHO, sKVL, sKVH, sWQO = sOFF2, 92, 93, 94
    vINV, vINVM = vG + 2, vG + 3
    p(f"""
    s_and_b32 s{sT0}, s2, 7
    s_lshr_b32 s{sT1}, s2, 3
    s_lshr_b32 s{sH}, s2, 6
    s_lshl_b32 s{sT0}, s{sT0}, 2
    s_add_u32 s{sH}, s{sH}, s{sT0}
    s_and_b32 s{sRHO}, s{sT1}, 7
    s_lshl_b32 s{sRHO}, s{sRHO}, 2
    s_lshl_b32 s{sT0}, s{sWAVE}, 20
    v_lshlrev_b32 v{vW}, 17, v{vT+4}
    s_lshl_b32 s{sWQO}, s{sH}, 8
    v_add3_u32 v{vW}, v{vW}, v{vT+3}, s{sT0}
    s_sub_u32 s{srdW+2}, {4 << 20}, s{sWQO}
    s_mov_b32 s{srdW+3}, 0x20000
    s_and_b32 s{sT0}, s{sRHO}, 16
    s_mul_i32 s{sT0}, s{sT0}, 3
    s_add_u32 s{sT2}, s{sRHO}, s{sT0}
    s_lshl_b32 s{sT2}, s{sT2}, 13
    s_waitcnt lgkmcnt(0)
    """)
    stamp(p, 1)
    p(f"""
    s_add_u32 s{srdW}, s{sWQ}, s{sWQO}
    s_addc_u32 s{srdW+1}, s{sWQ+1}, 0
    s_and_b32 s{srdW+1}, s{srdW+1}, 0xffff
    """)
    seq = [("W", t) for t in range(32)] + [("L", j) for j in range(max(O.lead, O.pre))]
    pos = [0]
    def issue_next():
        if pos[0] >= len(seq): return
        kind, i = seq[pos[0]]; pos[0] += 1
        if kind == "W":
            if i % 4 == 0 and i > 0:
                p(f"""
                s_add_u32 s{sT2}, s{sRHO}, {i}
                s_and_b32 s{sT2}, s{sT2}, 31
                s_and_b32 s{sT0}, s{sT2}, 16
                s_mul_i32 s{sT0}, s{sT0}, 3
                s_add_u32 s{sT2}, s{sT2}, s{sT0}
                s_lshl_b32 s{sT2}, s{sT2}, 13
                """)
            p.vm(f"buffer_load_dwordx4 {r4(vWA + 4*i)}, v{vW}, s[{srdW}:{srdW+3}], s{sT2} offen {O.wpol}", ("W", i))
            if i % 4 != 3: p(f"s_add_u32 s{sT2}, s{sT2}, 8192")
        else:
            if i % 8 == 0: set_off(p, sOFF, i // 8)
            kv_load(p, 64 + 4 * i, 0, i & 7, sOFF, ("L", i))
    for _ in range(O.first): issue_next()
    p(f"""
    s_lshr_b32 s{sB}, s{sT1}, 1
    s_and_b32 s{sB}, s{sB}, 3
    s_and_b32 s{sT1}, s{sT1}, 1
    s_lshl_b32 s{sR}, s{sB}, 5
    s_add_u32 s{sR}, s{sR}, s{sH}
    s_lshl_b32 s{sR}, s{sR}, 1
    s_add_u32 s{sR}, s{sR}, s{sT1}
    s_lshl_b32 s{sKVL}, s{sWAVE}, 8
    s_lshl_b32 s{sT1}, s{sB}, 10
    s_add_u32 s{sKVL}, s{sKVL}, s{sT1}
    v_and_b32 v{vT}, 15, v{vLANE}
    v_add_u32 v{vT}, s{sRHO}, v{vT}
    v_and_b32 v{vT}, 31, v{vT}
    v_xor_b32 v{vT+1}, 16, v{vT}
    v_and_b32 v{vT+5}, 16, v{vT}
    v_and_b32 v{vT+6}, 16, v{vT+1}
    v_mul_u32_u24 v{vT+5}, 3, v{vT+5}
    v_mul_u32_u24 v{vT+6}, 3, v{vT+6}
    v_add_u32 v{vT}, v{vT}, v{vT+5}
    v_add_u32 v{vT+1}, v{vT+1}, v{vT+6}
    v_lshl_add_u32 v{vT}, v{vT+4}, 4, v{vT}
    v_lshl_add_u32 v{vT+1}, v{vT+4}, 4, v{vT+1}
    v_lshl_add_u32 v{vT}, v{vT}, 1, s{sKVL}
    v_lshl_add_u32 v{vT+1}, v{vT+1}, 1, s{sKVL}
    s_mov_b32 s{srdX}, s{sX}
    s_and_b32 s{srdX+1}, s{sX+1}, 0xffff
    s_mov_b32 s{srdX+2}, 4096
    s_mov_b32 s{srdX+3}, 0x20000
    """)
    p.vm(f"buffer_load_ushort v{vX}, v{vT}, s[{srdX}:{srdX+3}], 0 offen", "x")
    p.vm(f"buffer_load_ushort v{vX+1}, v{vT+1}, s[{srdX}:{srdX+3}], 0 offen", "x")
    p(f"s_load_dwordx2 s[{sTAG}:{sTAG+1}], s[{sWS}:{sWS+1}], {hex(WS_EPOCH)}")
    for _ in range(O.qinline - O.first): issue_next()
    p(f"""
    s_and_b32 s{sRED}, s{sR}, 3
    s_mul_i32 s{sROT}, s{sR}, {O.rot}
    s_lshr_b32 s{sT0}, s{sR}, 5
    s_mul_i32 s{sT0}, s{sT0}, {O.rot2}
    s_add_u32 s{sROT}, s{sROT}, s{sT0}
    s_mul_i32 s{sT0}, s{sWAVE}, {O.wmul}
    s_add_u32 s{sROT}, s{sROT}, s{sT0}
    s_and_b32 s{sROT}, s{sROT}, 127
    s_lshl_b32 s{sROT}, s{sROT}, 13
    s_lshr_b32 s{sT0}, s{sR}, {max(O.bidir - 1, 0)}
    s_and_b32 s{sT0}, s{sT0}, 1
    s_mov_b32 s{sSTEP}, 32768
    s_cmp_eq_u32 s{sT0}, 0
    s_cselect_b32 s{sSTEP}, s{sSTEP}, 0xffff8000
    s_lshl_b32 s{sT0}, s{sR}, 11
    s_lshl_b32 s{sT1}, s{sWAVE}, 9
    s_add_u32 s{sT0}, s{sT0}, s{sT1}
    v_lshlrev_b32 v{vINV}, 3, v{vLANE}
    v_add_u32 v{vINV}, s{sT0}, v{vINV}
    v_mov_b32 v{vP}, -1
    v_mov_b32 v{vP+1}, -1
    s_lshl_b32 s{sT0}, s{sR}, 3
    s_add_u32 s{sT0}, s{sT0}, {WS_ML}
    v_mov_b32 v{vINVM}, s{sT0}
    s_mov_b32 s{srdWS}, s{sWS}
    s_and_b32 s{srdWS+1}, s{sWS+1}, 0xffff
    s_mov_b32 s{srdWS+2}, {WS_BYTES}
    s_mov_b32 s{srdWS+3}, 0x20000
    """)
    p.vm(f"buffer_store_dwordx2 v[{vP}:{vP+1}], v{vINV}, s[{srdWS}:{srdWS+3}], 0 offen sc1", "inv")
    p.vm(f"buffer_store_dwordx2 v[{vP}:{vP+1}], v{vINVM}, s[{srdWS}:{srdWS+3}], 0 offen sc1", "inv")
    p(f"""
    s_lshl_b32 s{sKVL}, s{sR}, 20
    s_lshr_b32 s{sKVH}, s{sR}, 12
    """)
    for (d, b) in ((srdK, sK), (srdV, sV)):
        p(f"s_add_u32 s{d}, s{b}, s{sKVL}")
        p(f"s_addc_u32 s{d+1}, s{b+1}, s{sKVH}")
        p(f"s_and_b32 s{d+1}, s{d+1}, 0xffff")
        p(f"s_mov_b32 s{d+2}, {1 << 20}")
        p(f"s_mov_b32 s{d+3}, 0x20000")
    p(f"""
    v_lshlrev_b32 v{vKV0}, 4, v{vLANE}
    v_add_u32 v{vKV1}, 4096, v{vKV0}
    s_lshl_b32 s{sT0}, s{sWAVE}, 8
    v_lshlrev_b32 v{vWO}, 14, v{vT+4}
    v_add3_u32 v{vWO}, v{vWO}, v{vT+3}, s{sT0}
    v_lshlrev_b32 v{vG}, 1, v{vT+3}
    v_lshl_add_u32 v{vG+1}, v{vT+4}, 4, v{vG}
    s_lshl_b32 s{sT1}, s{sWAVE}, 9
    v_add_u32 v{vG+1}, s{sT1}, v{vG+1}
    v_mov_b32 v{vO}, 0
    v_mov_b32 v{vO+1}, 0
    v_mov_b32 v{vO+2}, 0
    v_mov_b32 v{vO+3}, 0
    """)
    constants_and_masks(p)
    p.wait_vm("x")
    p(f"""
    v_lshl_or_b32 v{vX}, v{vX}, 16, v{vX}
    v_lshl_or_b32 v{vX+1}, v{vX+1}, 16, v{vX+1}
    """)
    def mk(t):
        for j in range(4):
            p(f"v_and_b32_dpp v{vA + 4*(t&1) + j}, v{vX + (t >> 4)}, v{vMASK+j} row_newbcast:{t & 15} row_mask:0xf bank_mask:0xf")
    mk(0)
    for t in range(32):
        if t + 1 < 32: mk(t + 1)
        issue_next()
        p.wait_vm(("W", t))
        p(f"v_mfma_f32_16x16x32_bf16 {r4(vO)}, {r4(vA + 4*(t&1))}, {r4(vWA + 4*t)}, {r4(vO)}")
    while pos[0] < len(seq): issue_next()
    saved = list(p.vmq)
    mark = len(p.ins)
    p.vmq = []
    proj_routine(p)
    routine = p.ins[mark:]
    p.ins = p.ins[:mark]
    p.vmq = saved
    stamp(p, 2)
    p(f"""
    s_mov_b64 exec, 0xffffffff
    ds_write_b128 v{vG+1}, {r4(vO)}
    s_mov_b64 exec, -1
    s_lshl_b32 s{sT0}, s{sH}, 17
    s_sub_u32 s{sT1}, {4 << 20}, s{sT0}
    """)
    srd(p, srdW, sWO, f"s{sT0}", f"s{sT1}")
    p(f"""
    s_waitcnt lgkmcnt(0)
    s_barrier
    """)
    qa = vP
    regs = [18, 26, 34, 52]
    for w in range(4):
        p(f"ds_read_b128 {r4(regs[w])}, v{vG} offset:{w*512}" if w < 3 else f"ds_read_b128 {r4(56)}, v{vG} offset:{w*512}")
        p(f"ds_read_b128 {r4(regs[w] + 4)}, v{vG} offset:{w*512 + 16}" if w < 3 else f"ds_read_b128 {r4(60)}, v{vG} offset:{w*512 + 16}")
    regs[3] = 56
    p(f"""
    v_mov_b32 v{vM}, 0xff7fffff
    v_mov_b32 v{vL}, 0
    v_mov_b32 v{vO}, 0
    v_mov_b32 v{vO+1}, 0
    v_mov_b32 v{vO+2}, 0
    v_mov_b32 v{vO+3}, 0
    s_waitcnt lgkmcnt(0)
    """)
    p(f"""
    s_add_u32 s{sTAG}, s{sTAG}, 1
    s_addc_u32 s{sTAG+1}, s{sTAG+1}, 0
    """)
    for i in range(8):
        p(f"v_add_f32 v{regs[0]+i}, v{regs[0]+i}, v{regs[1]+i}")
        p(f"v_add_f32 v{regs[2]+i}, v{regs[2]+i}, v{regs[3]+i}")
    for i in range(8):
        p(f"v_add_f32 v{regs[0]+i}, v{regs[0]+i}, v{regs[2]+i}")
    for j in range(4):
        p(f"v_cvt_pk_bf16_f32 v{vQ+j}, v{regs[0]+2*j}, v{regs[0]+2*j+1}")
    stamp(p, 3)
    LEAD, LEAD2 = O.lead, max(O.lead2, O.lead)
    sOFFA, sOFFB = sOFF, sOFF1
    st = {"J": max(O.lead, O.pre), "A": None, "B": None}
    def lead_at(j):
        if j < O.j0: return O.lead0
        if j >= 8 * (32 + O.vsw): return LEAD2
        return O.leadv if (O.leadv and j >= 8 * 30) else LEAD
    def announce():
        p(f"""
        s_lshl_b32 s{sT0}, s{sR}, 3
        s_add_u32 s{sT0}, s{sT0}, {WS_HINT}
        s_cmp_eq_u32 s{sWAVE}, 0
        s_cselect_b32 s{sT0}, s{sT0}, {WS_BYTES}
        v_mov_b32 v{vG}, s{sTAG}
        v_mov_b32 v{vG+1}, s{sTAG+1}
        v_mov_b32 v{vG+2}, s{sT0}
        s_mov_b64 exec, 1
        """)
        p.vm(f"buffer_store_dwordx2 v[{vG}:{vG+1}], v{vG+2}, s[{srdWS}:{srdWS+3}], 0 offen sc1", "ARR")
        p("s_mov_b64 exec, -1")
    def off_reg(k):
        if st["A"] == k: return sOFFA
        if st["B"] == k: return sOFFB
        if st["A"] is None or (st["B"] is not None and st["A"] <= st["B"]):
            set_off(p, sOFFA, k % 32); st["A"] = k; return sOFFA
        set_off(p, sOFFB, k % 32); st["B"] = k; return sOFFB
    def peeled_refill(i, extra=None):
        def f(t):
            j = 8 * i + t
            target = min(512, j + 1 + lead_at(j))
            n = 0
            while st["J"] < target and n < 3:
                J = st["J"]; k = J >> 3
                kv_load(p, 64 + 4 * (J % 16), k >= 32, J & 7, off_reg(k), ("L", J % 16))
                st["J"] += 1; n += 1
                if J == 511: announce()
            if extra: extra(t)
        return f
    def loop_refill(par, isv, L):
        DA = L >> 3
        def f(t):
            jt = t + L
            d, t2 = jt >> 3, jt & 7
            slot = (8 * par + jt) % 16
            kv_load(p, 64 + 4 * slot, isv, t2, sOFFA if d == DA else sOFFB, ("L", slot))
        return f
    def loop_enter(i, L):
        assert st["J"] == 8 * i + L, (st["J"], i, L)
        DA = L >> 3
        set_off(p, sOFFA, (i + DA) % 32); set_off(p, sOFFB, (i + DA + 1) % 32)
    def adv_pair():
        p(f"s_mov_b32 s{sOFFA}, s{sOFFB}")
        adv_off(p, sOFFB)
    def loop_exit(i_end, L):
        st["J"] = 8 * i_end + L; st["A"] = None; st["B"] = None
    nxt_sc = lambda n: p(f"v_add_u32 v{vSC}, {256*n}, v{vSC}")
    p(f"""
    s_lshl_b32 s{sT0}, s{sWAVE}, 13
    v_lshlrev_b32 v{vSC}, 2, v{vLANE}
    v_add_u32 v{vSC}, s{sT0}, v{vSC}
    """)
    WO0 = O.wo0
    NPEEL = WO0 + 10
    assert NPEEL % 2 == 0
    wo_next = [0]
    def wo_extra(t):
        if t % 2 == 0:
            wo_load(p, wo_next[0]); wo_next[0] += 1
    for i in range(NPEEL):
        k_tile(p, i & 1, peeled_refill(i, wo_extra if WO0 <= i < WO0 + 8 else None), 256 * (i & 1))
        if i & 1: nxt_sc(2)
        if O.dry is not None and i == O.dry:
            p(f"s_call_b64 s[{sRET}:{sRET+1}], L_proj")
            for r in range(4): p(f"v_mov_b32 v{vO+r}, 0")
        if O.kstamps and i == 3: stamp(p, 5)
        if O.kstamps and i == 11: stamp(p, 7)
    assert wo_next[0] == 32
    q0 = list(p.vmq)
    assert q0 == [("L", j % 16) for j in range(LEAD)], q0
    KEND = 28
    loop_enter(NPEEL, LEAD)
    p(f"s_mov_b32 s{sCNT}, {(KEND - NPEEL) // 2}")
    p("L_kloop:")
    for i in range(2):
        k_tile(p, i, loop_refill(i, False, LEAD), 256 * i)
        adv_pair()
    nxt_sc(2)
    assert p.vmq == q0
    p(f"""
    s_sub_u32 s{sCNT}, s{sCNT}, 1
    s_cmp_lg_u32 s{sCNT}, 0
    s_cbranch_scc1 L_kloop
    """)
    loop_exit(KEND, LEAD)
    srd(p, srdX, sX, None, 4096)
    p(f"""
    s_mov_b32 s{srdW}, s{sGW}
    s_and_b32 s{srdW+1}, s{sGW+1}, 0xffff
    s_mov_b32 s{srdW+2}, 1024
    s_lshl_b32 s{sT0}, s{sB}, 10
    v_lshlrev_b32 v{vG+2}, 2, v0
    v_add_u32 v{vG+3}, s{sT0}, v{vG+2}
    """)
    p.vm(f"buffer_load_dword v{vG+5}, v{vG+3}, s[{srdX}:{srdX+3}], 0 offen", "G")
    p.vm(f"buffer_load_dword v{vG+6}, v{vG+2}, s[{srdW}:{srdW+3}], 0 offen", "G")
    for i in range(KEND, 32):
        k_tile(p, i & 1, peeled_refill(i), 256 * (i & 1))
        if i & 1: nxt_sc(2)
    mx, neg = vT + 3, vT + 4
    p(f"""
    s_lshl_b32 s{sT0}, s{sWAVE}, 13
    v_lshlrev_b32 v{vSC}, 2, v{vLANE}
    v_add_u32 v{vSC}, s{sT0}, v{vSC}
    v_max_f32_dpp v{vM}, v{vM}, v{vM} row_half_mirror row_mask:0xf bank_mask:0xf
    s_waitcnt lgkmcnt(0)
    ds_read_b32 v{vW0}, v{vSC} offset:{LDS_SC}
    ds_read_b32 v{vW1}, v{vSC} offset:{LDS_SC + 256}
    v_max_f32_dpp v{vM}, v{vM}, v{vM} row_mirror row_mask:0xf bank_mask:0xf
    v_max_f32_dpp v{vM}, v{vM}, v{vM} row_bcast:15 row_mask:0xa bank_mask:0xf
    v_max_f32_dpp v{vM}, v{vM}, v{vM} row_bcast:31 row_mask:0xc bank_mask:0xf
    v_readlane_b32 s{sT0}, v{vM}, 63
    v_mov_b32 v{vM}, s{sT0}
    v_mul_f32 v{neg}, s{sL2E}, v{vM}
    v_add_u32 v{vSC}, 512, v{vSC}
    s_waitcnt lgkmcnt(0)
    """)
    if not O.pstamps: stamp(p, 4)
    p.vmq = [t for t in p.vmq if t != "G"]
    def pf(dst, off):
        return lambda: p(f"ds_read_b32 v{dst}, v{vSC} offset:{LDS_SC + off}")
    def v_pair_tail():
        p(f"""
        v_add_u32 v{vSC}, 512, v{vSC}
        s_waitcnt lgkmcnt(0)
        """)
    def v_loop(label, v0, v1, L):
        if v1 <= v0: return
        qL = [("L", (8 * v0 + j) % 16) for j in range(L)]
        assert p.vmq == qL, (p.vmq, qL)
        loop_enter(32 + v0, L)
        p(f"s_mov_b32 s{sCNT}, {(v1 - v0) // 2}")
        p(label + ":")
        v_tile(p, 0, loop_refill(0, True, L), vW0, pf(vW0, 0))
        adv_pair()
        v_tile(p, 1, loop_refill(1, True, L), vW1, pf(vW1, 256))
        adv_pair()
        assert p.vmq == qL
        p(f"""
        v_add_u32 v{vSC}, 512, v{vSC}
        s_sub_u32 s{sCNT}, s{sCNT}, 1
        s_cmp_lg_u32 s{sCNT}, 0
        s_waitcnt lgkmcnt(0)
        s_cbranch_scc1 {label}
        """)
        loop_exit(32 + v1, L)
    def v_peeled_pair(v, last=False):
        v_tile(p, 0, peeled_refill(32 + v), vW0, None if last else pf(vW0, 0))
        v_tile(p, 1, peeled_refill(33 + v), vW1, None if last else pf(vW1, 256))
        if not last: v_pair_tail()
    VEND = 28
    LV = O.leadv or LEAD
    if LEAD2 > LV and O.vsw < VEND:
        assert O.vsw % 2 == 0
        v_loop("L_vloop", 0, O.vsw, LV)
        v_peeled_pair(O.vsw)
        v_loop("L_vloop2", O.vsw + 2, VEND, LEAD2)
    else:
        v_loop("L_vloop", 0, VEND, LV)
    v_peeled_pair(28)
    if not (O.kstamps or O.pstamps): stamp(p, 5)
    v_peeled_pair(30, last=True)
    if not O.pstamps: stamp(p, 6)
    p(f"""
    v_add_f32_dpp v{vL}, v{vL}, v{vL} row_half_mirror row_mask:0xf bank_mask:0xf
    v_add_f32_dpp v{vL}, v{vL}, v{vL} row_mirror row_mask:0xf bank_mask:0xf
    v_add_f32_dpp v{vL}, v{vL}, v{vL} row_bcast:15 row_mask:0xa bank_mask:0xf
    v_add_f32_dpp v{vL}, v{vL}, v{vL} row_bcast:31 row_mask:0xc bank_mask:0xf
    v_readlane_b32 s{sT0}, v{vL}, 63
    v_and_b32 v{vT+3}, 15, v{vLANE}
    v_lshrrev_b32 v{vT+4}, 4, v{vLANE}
    v_mov_b32 v{vL}, s{sT0}
    v_lshlrev_b32 v{vT}, 5, v{vT+3}
    v_lshl_add_u32 v{vT+1}, v{vT+4}, 4, v{vT}
    s_lshl_b32 s{sT1}, s{sWAVE}, 9
    s_lshl_b32 s{sT0}, s{sWAVE}, 3
    v_add_u32 v{vT+2}, s{sT1}, v{vT+1}
    v_mov_b32 v{vT+5}, s{sT0}
    s_mov_b64 exec, 0xffffffff
    ds_write_b128 v{vT+2}, {r4(vO)} offset:2048
    s_mov_b64 exec, -1
    ds_write_b64 v{vT+5}, v[{vM}:{vM+1}] offset:4096
    v_lshlrev_b32 v{vT+6}, 2, v{vLANE}
    v_mov_b32 v{vT+5}, 0
    s_waitcnt lgkmcnt(0)
    s_barrier
    ds_read_b128 {r4(vP)}, v{vT+5} offset:4096
    ds_read_b128 {r4(vP+4)}, v{vT+5} offset:4112
    """)
    ob = 64
    for w in range(4):
        p(f"ds_read_b32 v{ob+2*w}, v{vT+6} offset:{2048 + w*512}")
        p(f"ds_read_b32 v{ob+2*w+1}, v{vT+6} offset:{2048 + w*512 + 256}")
    m = [vP, vP+2, vP+4, vP+6]; l = [vP+1, vP+3, vP+5, vP+7]
    p(f"""
    s_waitcnt lgkmcnt(8)
    v_max_f32 v{vM}, v{m[0]}, v{m[1]}
    v_max3_f32 v{vM}, v{vM}, v{m[2]}, v{m[3]}
    v_mul_f32 v{vT+7}, s{sL2E}, v{vM}
    """)
    for w in range(4): p(f"v_fma_f32 v{m[w]}, v{m[w]}, s{sL2E}, -v{vT+7}")
    for w in range(4): p(f"v_exp_f32 v{m[w]}, v{m[w]}")
    p(f"v_mul_f32 v{vL}, v{m[0]}, v{l[0]}")
    for w in range(1, 4): p(f"v_fma_f32 v{vL}, v{m[w]}, v{l[w]}, v{vL}")
    p("s_waitcnt lgkmcnt(0)")
    for u in range(2):
        p(f"v_mul_f32 v{vX+u}, v{m[0]}, v{ob+u}")
    for w in range(1, 4):
        for u in range(2):
            p(f"v_fma_f32 v{vX+u}, v{m[w]}, v{ob+2*w+u}, v{vX+u}")
    p(f"""
    v_cvt_pk_bf16_f32 v{vX}, v{vX}, v{vX}
    v_cvt_pk_bf16_f32 v{vX+1}, v{vX+1}, v{vX+1}
    v_mov_b32 v{vO}, 0
    v_mov_b32 v{vO+1}, 0
    v_mov_b32 v{vO+2}, 0
    v_mov_b32 v{vO+3}, 0
    """)
    p(f"""
    s_nop 1
    s_call_b64 s[{sRET}:{sRET+1}], L_proj
    """)
    p(f"""
    s_lshl_b32 s{sT0}, s{sR}, 11
    s_lshl_b32 s{sT1}, s{sWAVE}, 9
    s_add_u32 s{sT0}, s{sT0}, s{sT1}
    v_add_u32 v{vT+1}, s{sT0}, v{vT+1}
    s_mov_b64 exec, 0xffffffff
    buffer_store_dwordx4 {r4(vO)}, v{vT+1}, s[{srdWS}:{srdWS+3}], 0 offen sc1
    s_mov_b64 exec, 1
    s_lshl_b32 s{sT0}, s{sR}, 3
    s_add_u32 s{sT0}, s{sT0}, {WS_ML}
    v_mov_b32 v{vT+2}, s{sT0}
    s_cmp_lg_u32 s{sWAVE}, 0
    s_cbranch_scc1 L_noml
    buffer_store_dwordx2 v[{vM}:{vM+1}], v{vT+2}, s[{srdWS}:{srdWS+3}], 0 offen sc1
    L_noml:
    s_mov_b64 exec, -1
    """)
    if not (O.kstamps or O.pstamps): stamp(p, 7)
    p(f"""
    s_cmp_eq_u32 s{sR}, 1
    s_cbranch_scc1 L_keeper
    s_cmp_lg_u32 s{sRED}, 0
    s_cbranch_scc1 L_fin
    """)
    reducer(p)
    p("s_branch L_fin")
    keeper(p)
    return routine

def keeper(p):
    p(f"""
    L_keeper:
    v_lshlrev_b32 v64, 3, v0
    v_add_u32 v64, {WS_HINT}, v64
    v_and_b32 v65, 63, v0
    v_min_u32 v65, 55, v65
    v_lshrrev_b32 v66, 6, v0
    v_lshlrev_b32 v66, 9, v66
    v_lshl_add_u32 v65, v65, 3, v66
    v_add_u32 v65, {WS_F2}, v65
    s_mov_b32 s{sSPIN}, 0
    L_kpoll:
    buffer_load_dwordx2 v[68:69], v64, s[{srdWS}:{srdWS+3}], 0 offen sc1
    buffer_load_dwordx2 v[70:71], v65, s[{srdWS}:{srdWS+3}], 0 offen sc1
    s_waitcnt vmcnt(0)
    v_cmp_ne_u64 vcc, s[{sTAG}:{sTAG+1}], v[68:69]
    s_mov_b64 s[{sT0}:{sT0+1}], vcc
    """)
    if not (O.noffn or O.fnosync):
        p(f"""
        v_cmp_ne_u64 vcc, s[{sTAG}:{sTAG+1}], v[70:71]
        s_or_b64 s[{sT0}:{sT0+1}], s[{sT0}:{sT0+1}], vcc
        """)
    p(f"""
    s_cmp_eq_u64 s[{sT0}:{sT0+1}], 0
    s_cbranch_scc1 L_kok
    s_add_u32 s{sSPIN}, s{sSPIN}, 1
    s_cmp_ge_u32 s{sSPIN}, {SPIN_MAX}
    s_cbranch_scc1 L_fin
    s_sleep 64
    s_branch L_kpoll
    L_kok:
    s_barrier
    s_cmp_lg_u32 s{sWAVE}, 0
    s_cbranch_scc1 L_fin
    v_mov_b32 v64, {WS_EPOCH}
    v_mov_b32 v68, s{sTAG}
    v_mov_b32 v69, s{sTAG+1}
    s_mov_b64 exec, 1
    buffer_store_dwordx2 v[68:69], v64, s[{srdWS}:{srdWS+3}], 0 offen sc1
    s_mov_b64 exec, -1
    s_branch L_fin
    """)

def reducer(p):
    p.vmq = []
    vCOL, vGRP = 64, 65
    aP, aML, aQ = 66, 67, 68
    dP, dML, dQ = 72, 80, 112
    acc, accq = 100, 101
    sCB = sH
    gx, gw = vG+5, vG+6
    p(f"""
    s_lshr_b32 s{sCB}, s{sH}, 1
    v_and_b32 v{vCOL}, 31, v0
    v_lshrrev_b32 v{vGRP}, 5, v0
    s_lshl_b32 s{sT0}, s{sB}, 6
    v_lshl_add_u32 v{aML}, v{vGRP}, 3, s{sT0}
    v_lshlrev_b32 v{aP}, 11, v{aML}
    s_lshl_b32 s{sT1}, s{sCB}, 7
    v_lshl_add_u32 v{aQ}, v{vCOL}, 2, s{sT1}
    v_add_u32 v{aP}, v{aP}, v{aQ}
    v_lshlrev_b32 v{aML}, 3, v{aML}
    v_add_u32 v{aML}, {WS_ML}, v{aML}
    s_lshl_b32 s{sT0}, s{sB}, 11
    v_mul_u32_u24 v102, {7 * 8192}, v{vGRP}
    v_add3_u32 v{aQ}, v{aQ}, v102, s{sT0}
    s_mov_b32 s{sSPIN}, 0
    v_lshlrev_b32 v104, 16, v{gx}
    v_and_b32 v105, s{sHI}, v{gx}
    v_lshlrev_b32 v106, 16, v{gw}
    v_and_b32 v107, s{sHI}, v{gw}
    v_mul_f32 v104, v104, v106
    v_mul_f32 v105, v105, v107
    v_cvt_pk_bf16_f32 v104, v104, v105
    v_lshlrev_b32 v105, 16, v104
    v_and_b32 v104, s{sHI}, v104
    v_add_f32 v104, v104, v105
    v_add_f32_dpp v104, v104, v104 quad_perm:[1,0,3,2] row_mask:0xf bank_mask:0xf
    v_add_f32_dpp v104, v104, v104 quad_perm:[2,3,0,1] row_mask:0xf bank_mask:0xf
    v_add_f32_dpp v104, v104, v104 row_half_mirror row_mask:0xf bank_mask:0xf
    v_add_f32_dpp v104, v104, v104 row_mirror row_mask:0xf bank_mask:0xf
    v_add_f32_dpp v104, v104, v104 row_bcast:15 row_mask:0xa bank_mask:0xf
    v_add_f32_dpp v104, v104, v104 row_bcast:31 row_mask:0xc bank_mask:0xf
    v_readlane_b32 s{sT1}, v104, 63
    s_lshl_b32 s{sT2}, s{sWAVE}, 2
    v_mov_b32 v105, s{sT2}
    v_mov_b32 v104, s{sT1}
    ds_write_b32 v105, v104 offset:8192
    s_add_u32 s{srdV}, s{sWS}, {WS_Q}
    s_addc_u32 s{srdV+1}, s{sWS+1}, 0
    s_and_b32 s{srdV+1}, s{srdV+1}, 0xffff
    s_mov_b32 s{srdV+2}, {NQ * 8192}
    s_mov_b32 s{srdV+3}, 0x20000
    s_cmp_lg_u32 s{sWAVE}, 0
    s_cbranch_scc1 L_pollok
    s_lshl_b32 s{sT0}, s{sB}, 9
    s_add_u32 s{sT0}, s{sT0}, {WS_HINT}
    v_lshl_add_u32 v103, v{vLANE}, 3, s{sT0}
    s_lshr_b32 s{sT0}, s{sCB}, 2
    s_lshl_b32 s{sT0}, s{sT0}, 9
    s_add_u32 s{sT0}, s{sT0}, {WS_F2}
    v_min_u32 v108, 55, v{vLANE}
    v_lshl_add_u32 v108, v108, 3, s{sT0}
    L_apoll:
    buffer_load_dwordx2 v[110:111], v103, s[{srdWS}:{srdWS+3}], 0 offen sc1
    buffer_load_dwordx2 v[120:121], v108, s[{srdWS}:{srdWS+3}], 0 offen sc1
    s_waitcnt vmcnt(0)
    v_cmp_ne_u64 vcc, s[{sTAG}:{sTAG+1}], v[110:111]
    s_mov_b64 s[{sT0}:{sT0+1}], vcc
    """)
    if not (O.noffn or O.fnosync):
        p(f"""
        v_cmp_ne_u64 vcc, s[{sTAG}:{sTAG+1}], v[120:121]
        s_or_b64 s[{sT0}:{sT0+1}], s[{sT0}:{sT0+1}], vcc
        """)
    p(f"""
    s_cmp_eq_u64 s[{sT0}:{sT0+1}], 0
    s_cbranch_scc1 L_pollok
    s_add_u32 s{sSPIN}, s{sSPIN}, 1
    s_cmp_ge_u32 s{sSPIN}, {SPIN_MAX}
    s_cbranch_scc1 L_fin
    s_sleep {O.sleep}
    s_branch L_apoll
    L_pollok:
    s_barrier
    """)
    for i in range(7):
        p(f"s_mov_b32 s{sT2}, {i * 8192}")
        p(f"buffer_load_dword v{dQ+i}, v{aQ}, s[{srdV}:{srdV+3}], s{sT2} offen sc1")
    p("L_dpoll:")
    for k in range(8):
        p(f"s_mov_b32 s{sT2}, {k * 2048}")
        p(f"buffer_load_dword v{dP+k}, v{aP}, s[{srdWS}:{srdWS+3}], s{sT2} offen sc1")
    for i in range(4):
        p(f"buffer_load_dwordx4 {r4(dML+4*i)}, v{aML}, s[{srdWS}:{srdWS+3}], 0 offen offset:{16*i} sc1")
    p("s_waitcnt vmcnt(0)")
    p(f"v_max_u32 v102, v{dP}, v{dP+1}")
    for k in range(2, 8, 2): p(f"v_max3_u32 v102, v102, v{dP+k}, v{dP+k+1}")
    for k in range(0, 16, 2): p(f"v_max3_u32 v102, v102, v{dML+k}, v{dML+k+1}")
    p(f"""
    v_cmp_eq_u32 vcc, -1, v102
    s_cbranch_vccz L_dok
    s_add_u32 s{sSPIN}, s{sSPIN}, 1
    s_cmp_ge_u32 s{sSPIN}, {SPIN_MAX}
    s_cbranch_scc1 L_fin
    s_branch L_dpoll
    L_dok:
    v_mov_b32 v{acc}, 0
    """)
    for i in range(4):
        m0, l0, m1, l1 = dML+4*i, dML+4*i+1, dML+4*i+2, dML+4*i+3
        p(f"""
        v_max_f32 v102, v{m0}, v{m1}
        v_sub_f32 v{m0}, v{m0}, v102
        v_sub_f32 v{m1}, v{m1}, v102
        v_mul_f32 v{m0}, s{sL2E}, v{m0}
        v_mul_f32 v{m1}, s{sL2E}, v{m1}
        v_exp_f32 v{m0}, v{m0}
        v_exp_f32 v{m1}, v{m1}
        v_mul_f32 v102, v{m0}, v{l0}
        v_fma_f32 v102, v{m1}, v{l1}, v102
        v_rcp_f32 v102, v102
        v_mul_f32 v104, v{m0}, v{dP+2*i}
        v_fma_f32 v104, v{m1}, v{dP+2*i+1}, v104
        v_fma_f32 v{acc}, v104, v102, v{acc}
        """)
    p(f"""
    v_add_f32 v{dQ}, v{dQ}, v{dQ+1}
    v_add_f32 v{dQ+2}, v{dQ+2}, v{dQ+3}
    v_add_f32 v{dQ+4}, v{dQ+4}, v{dQ+5}
    v_add_f32 v{dQ}, v{dQ}, v{dQ+2}
    v_add_f32 v{dQ+4}, v{dQ+4}, v{dQ+6}
    v_add_f32 v{accq}, v{dQ}, v{dQ+4}
    v_lshlrev_b32 v102, 2, v0
    ds_write_b32 v102, v{acc} offset:5120
    ds_write_b32 v102, v{accq} offset:6144
    s_waitcnt lgkmcnt(0)
    s_barrier
    s_cmp_lg_u32 s{sWAVE}, 0
    s_cbranch_scc1 L_fin
    v_lshlrev_b32 v102, 2, v{vCOL}
    v_mov_b32 v103, 0
    ds_read_b128 v[104:107], v103 offset:8192
    """)
    for g in range(8):
        p(f"ds_read_b32 v{dP+g}, v102 offset:{5120 + g*128}")
        p(f"ds_read_b32 v{dML+g}, v102 offset:{6144 + g*128}")
    p("s_waitcnt lgkmcnt(0)")
    for base in (dP, dML):
        p(f"""
        v_add_f32 v{base}, v{base}, v{base+1}
        v_add_f32 v{base+2}, v{base+2}, v{base+3}
        v_add_f32 v{base+4}, v{base+4}, v{base+5}
        v_add_f32 v{base+6}, v{base+6}, v{base+7}
        v_add_f32 v{base}, v{base}, v{base+2}
        v_add_f32 v{base+4}, v{base+4}, v{base+6}
        v_add_f32 v{base}, v{base}, v{base+4}
        """)
    p(f"""
    v_add_f32 v104, v104, v105
    v_add_f32 v106, v106, v107
    v_add_f32 v104, v104, v106
    """)
    gate_math(p, 104, None, 105)
    srd(p, srdK, sOUT, None, 4096)
    p(f"""
    v_cvt_pk_bf16_f32 v106, v{dP}, v{dML}
    v_lshlrev_b32 v107, 16, v106
    v_and_b32 v106, s{sHI}, v106
    v_mul_f32 v107, v104, v107
    v_mul_f32 v106, v105, v106
    v_cvt_pk_bf16_f32 v106, v107, v106
    v_lshlrev_b32 v107, 16, v106
    v_and_b32 v106, s{sHI}, v106
    v_add_f32 v106, v106, v107
    v_cvt_pk_bf16_f32 v106, v106, v106
    s_lshl_b32 s{sT0}, s{sB}, 10
    s_lshl_b32 s{sT1}, s{sCB}, 6
    s_add_u32 s{sT0}, s{sT0}, s{sT1}
    v_lshlrev_b32 v102, 1, v{vCOL}
    v_add_u32 v102, s{sT0}, v102
    s_mov_b64 exec, 0xffffffff
    buffer_store_short v106, v102, s[{srdK}:{srdK+3}], 0 offen
    s_mov_b64 exec, -1
    """)

def ffn(p):
    sF, sFS, sRR = sH, sB, sR
    vXP, vSEL, vD0, vD1 = 50, 4, 12, 16
    vG1, vWD, vH = 64, 96, 112
    srdG = srdK
    vBC = 30
    p.vmq = []
    p("L_ffn:")
    if O.prio: p("s_setprio 3")
    constants_and_masks(p)
    p("s_waitcnt lgkmcnt(0)")
    stamp(p, 1)
    p(f"s_load_dwordx2 s[{sTAG}:{sTAG+1}], s[{sWS}:{sWS+1}], {hex(WS_EPOCH)}")
    p(f"""
    s_sub_u32 s{sF}, s2, {NATT}
    s_lshr_b32 s{sFS}, s{sF}, 4
    s_and_b32 s{sRR}, s{sF}, 15
    """)
    srd(p, srdX, sX, None, 4096)
    p(f"""
    s_and_b32 s{sT0}, s{sRR}, 7
    s_lshl_b32 s{sT0}, s{sT0}, 6
    s_lshl_b32 s{sT1}, s{sWAVE}, 4
    s_add_u32 s{sT0}, s{sT0}, s{sT1}
    v_lshl_add_u32 v{vT+5}, v{vT+4}, 2, s{sT0}
    v_and_b32 v{vT}, 3, v{vLANE}
    v_add_u32 v{vT}, v{vT}, v{vT+5}
    v_lshlrev_b32 v{vT}, 1, v{vT}
    v_add_u32 v{vT+1}, 2048, v{vT}
    """)
    xr = 22
    for b in range(4):
        p.vm(f"buffer_load_ushort v{xr + b}, v{vT + (b >> 1)}, s[{srdX}:{srdX+3}], 0 offen offset:{(b & 1) * 1024}", "x")
    p(f"""
    s_cmp_lt_u32 s{sRR}, 8
    s_cselect_b32 s{srdG}, s{sWG}, s{sWU}
    s_cselect_b32 s{srdG+1}, s{sWG+1}, s{sWU+1}
    s_lshl_b32 s{sT0}, s{sFS}, 8
    s_add_u32 s{srdG}, s{srdG}, s{sT0}
    s_addc_u32 s{srdG+1}, s{srdG+1}, 0
    s_and_b32 s{srdG+1}, s{srdG+1}, 0xffff
    s_sub_u32 s{srdG+2}, {512 * 3584}, s{sT0}
    s_mov_b32 s{srdG+3}, 0x20000
    v_mul_u32_u24 v20, 3584, v{vT+5}
    v_add_u32 v20, v20, v{vT+3}
    """)
    for t in range(4):
        p(f"s_mov_b32 s{sT2}, {t * 3584}")
        p.vm(f"buffer_load_dwordx4 {r4(vG1 + 4*t)}, v20, s[{srdG}:{srdG+3}], s{sT2} offen {O.fpol}", ("W", t))
    srd(p, srdW, sWD, None, 1792 * 1024)
    p(f"""
    s_lshl_b32 s{sT0}, s{sFS}, 7
    s_lshr_b32 s{sT1}, s{sRR}, 2
    s_lshl_b32 s{sT1}, s{sT1}, 5
    s_add_u32 s{sT0}, s{sT0}, s{sT1}
    s_lshl_b32 s{sT1}, s{sWAVE}, 3
    s_add_u32 s{sT0}, s{sT0}, s{sT1}
    v_lshl_add_u32 v{vW}, v{vT+4}, 1, s{sT0}
    v_lshlrev_b32 v{vW}, 10, v{vW}
    s_and_b32 s{sT0}, s{sRR}, 3
    s_lshl_b32 s{sT0}, s{sT0}, 8
    v_add3_u32 v{vW}, v{vW}, v{vT+3}, s{sT0}
    """)
    for t in range(2):
        p.vm(f"buffer_load_dwordx4 {r4(vWD + 4*t)}, v{vW}, s[{srdW}:{srdW+3}], 0 offen offset:{t * 1024} {O.fpol}", ("D", t))
    p(f"""
    v_and_b32 v{vT+5}, 8, v{vLANE}
    v_mov_b32 v{vT+6}, 0x0100
    v_mov_b32 v{vT+7}, 0x0302
    v_cmp_eq_u32 vcc, 0, v{vT+5}
    v_cndmask_b32 v{vT+6}, v{vT+7}, v{vT+6}, vcc
    v_lshlrev_b32 v{vT+7}, 16, v{vT+6}
    v_or_b32 v{vT+7}, 0x0c0c, v{vT+7}
    v_or_b32 v{vT+6}, 0x0c0c0000, v{vT+6}
    v_and_b32 v{vT+5}, 1, v{vLANE}
    v_cmp_eq_u32 vcc, 0, v{vT+5}
    v_cndmask_b32 v{vT+6}, v{vT+7}, v{vT+6}, vcc
    v_bfe_u32 v{vT+5}, v{vLANE}, 1, 2
    v_mov_b32 v{vT+7}, 0x0c0c0c0c
    """)
    for j in range(4):
        p(f"v_cmp_eq_u32 vcc, {j}, v{vT+5}")
        p(f"v_cndmask_b32 v{vSEL+j}, v{vT+7}, v{vT+6}, vcc")
    srd(p, srdWS, sWS, None, WS_BYTES)
    vRD = 54
    p(f"""
    s_lshr_b32 s{sT0}, s{sWAVE}, 1
    s_lshl_b32 s{sT0}, s{sT0}, 10
    s_and_b32 s{sT1}, s{sWAVE}, 1
    s_lshl_b32 s{sT1}, s{sT1}, 9
    s_add_u32 s{sT0}, s{sT0}, s{sT1}
    v_bfe_u32 v{vRD}, v{vLANE}, 1, 1
    v_lshlrev_b32 v{vRD}, 8, v{vRD}
    v_lshrrev_b32 v{vT+5}, 2, v{vLANE}
    v_lshl_add_u32 v{vRD}, v{vT+5}, 4, v{vRD}
    v_and_b32 v{vT+5}, 1, v{vLANE}
    v_lshl_add_u32 v{vRD}, v{vT+5}, 3, v{vRD}
    v_add_u32 v{vRD}, s{sT0}, v{vRD}
    """)
    def step(src_of_pair, lane):
        for pr in range(2):
            p(f"v_mov_b32_dpp v{vBC+pr}, v{src_of_pair(pr)} row_newbcast:{lane} row_mask:0xf bank_mask:0xf")
        for pr in range(2):
            for j in range(4):
                p(f"v_perm_b32 v{vA + 4*pr + j}, v{vBC+pr}, v{vBC+pr}, v{vSEL+j}")
    def cross_wave_sum(dst):
        p(f"""
        s_lshl_b32 s{sT0}, s{sWAVE}, 11
        v_lshlrev_b32 v{vT}, 4, v{vLANE}
        v_add_u32 v{vT}, s{sT0}, v{vT}
        ds_write_b128 v{vT}, {r4(vD0)}
        ds_write_b128 v{vT}, {r4(vD1)} offset:1024
        s_waitcnt lgkmcnt(0)
        s_barrier
        """)
        for w in range(4):
            p(f"ds_read_b64 v[{vP+2*w}:{vP+2*w+1}], v{vRD} offset:{w*2048}")
        p("s_waitcnt lgkmcnt(0)")
        for e in range(2):
            p(f"v_add_f32 v{vP+e}, v{vP+e}, v{vP+2+e}")
            p(f"v_add_f32 v{vP+4+e}, v{vP+4+e}, v{vP+6+e}")
        for e in range(2):
            p(f"v_add_f32 v{dst+e}, v{vP+e}, v{vP+4+e}")
    p.wait_vm("x")
    for pr in range(2):
        p(f"v_lshl_or_b32 v{vXP + pr}, v{xr + 2*pr + 1}, 16, v{xr + 2*pr}")
    for r in range(8): p(f"v_mov_b32 v{vD0 + r}, 0")
    stamp(p, 2)
    for t in range(4):
        step(lambda pr: vXP + pr, t)
        p.wait_vm(("W", t))
        p(f"v_mfma_f32_16x16x32_bf16 {r4(vD0)}, {r4(vA)}, {r4(vG1 + 4*t)}, {r4(vD0)}")
        p(f"v_mfma_f32_16x16x32_bf16 {r4(vD1)}, {r4(vA+4)}, {r4(vG1 + 4*t)}, {r4(vD1)}")
    cross_wave_sum(26)
    p(f"""
    s_lshl_b32 s{sT0}, s{sF}, 11
    s_lshl_b32 s{sT1}, s{sWAVE}, 9
    s_add_u32 s{sT0}, s{sT0}, s{sT1}
    s_add_u32 s{sT0}, s{sT0}, {WS_H}
    v_lshl_add_u32 v{vT}, v{vLANE}, 3, s{sT0}
    buffer_store_dwordx2 v[26:27], v{vT}, s[{srdWS}:{srdWS+3}], 0 offen sc1
    s_lshl_b32 s{sT0}, s{sF}, 3
    s_add_u32 s{sT0}, s{sT0}, {WS_F1}
    v_mov_b32 v{vT+1}, s{sT0}
    s_add_u32 s{sTAG}, s{sTAG}, 1
    s_addc_u32 s{sTAG+1}, s{sTAG+1}, 0
    v_mov_b32 v28, s{sTAG}
    v_mov_b32 v29, s{sTAG+1}
    s_lshl_b32 s{sT0}, s{sFS}, 7
    s_add_u32 s{sT0}, s{sT0}, {WS_F1}
    v_lshl_add_u32 v{vT+2}, v{vLANE}, 3, s{sT0}
    s_waitcnt vmcnt(0)
    s_barrier
    """)
    p.vmq = []
    stamp(p, 4)
    p(f"""
    s_cmp_lg_u32 s{sWAVE}, {99 if O.fnosync else 0}
    s_cbranch_scc1 L_f1ok
    s_mov_b64 exec, 1
    buffer_store_dwordx2 v[28:29], v{vT+1}, s[{srdWS}:{srdWS+3}], 0 offen sc1
    s_mov_b64 exec, 0xffff
    s_mov_b32 s{sSPIN}, 0
    L_f1poll:
    s_sleep {O.fsleep}
    buffer_load_dwordx2 v[{vT+6}:{vT+7}], v{vT+2}, s[{srdWS}:{srdWS+3}], 0 offen sc1
    s_waitcnt vmcnt(0)
    v_cmp_ne_u64 vcc, s[{sTAG}:{sTAG+1}], v[{vT+6}:{vT+7}]
    s_cmp_eq_u64 vcc, 0
    s_cbranch_scc1 L_f1seen
    s_add_u32 s{sSPIN}, s{sSPIN}, 1
    s_cmp_ge_u32 s{sSPIN}, {SPIN_MAX}
    s_cbranch_scc1 L_fin
    s_branch L_f1poll
    L_f1seen:
    s_mov_b64 exec, -1
    L_f1ok:
    s_barrier
    """)
    p(f"""
    s_lshl_b32 s{sT0}, s{sFS}, 4
    s_lshl_b32 s{sT1}, s{sWAVE}, 2
    s_add_u32 s{sT0}, s{sT0}, s{sT1}
    v_lshrrev_b32 v{vT}, 5, v{vLANE}
    v_add_u32 v{vT}, s{sT0}, v{vT}
    v_lshlrev_b32 v{vT}, 11, v{vT}
    v_bfe_u32 v{vT+1}, v{vLANE}, 3, 2
    v_lshl_add_u32 v{vT}, v{vT+1}, 9, v{vT}
    v_and_b32 v{vT+2}, 7, v{vLANE}
    v_lshl_add_u32 v{vT}, v{vT+2}, 4, v{vT}
    s_lshr_b32 s{sT1}, s{sRR}, 2
    s_lshl_b32 s{sT1}, s{sT1}, 7
    s_add_u32 s{sT1}, s{sT1}, {WS_H}
    v_add_u32 v{vT}, s{sT1}, v{vT}
    s_mov_b32 s{sT2}, 4096
    buffer_load_dwordx4 {r4(vH)}, v{vT}, s[{srdWS}:{srdWS+3}], 0 offen sc1
    buffer_load_dwordx4 {r4(vH+4)}, v{vT}, s[{srdWS}:{srdWS+3}], s{sT2} offen sc1
    s_lshl_b32 s{sT0}, s{sWAVE}, 11
    v_lshrrev_b32 v{vT+5}, 5, v{vLANE}
    v_lshlrev_b32 v{vT+5}, 9, v{vT+5}
    v_lshl_add_u32 v{vT+5}, v{vT+1}, 7, v{vT+5}
    v_lshl_add_u32 v{vT+5}, v{vT+2}, 4, v{vT+5}
    v_add_u32 v{vT+5}, s{sT0}, v{vT+5}
    s_waitcnt vmcnt(0)
    ds_write_b128 v{vT+5}, {r4(vH)} offset:8192
    ds_write_b128 v{vT+5}, {r4(vH+4)} offset:9216
    v_and_b32 v{vT}, 127, v0
    v_lshlrev_b32 v{vT}, 2, v{vT}
    s_waitcnt lgkmcnt(0)
    s_barrier
    """)
    for pi in range(16):
        p(f"ds_read_b32 v{vG1+pi}, v{vT} offset:{8192 + pi*512}")
    p("s_waitcnt lgkmcnt(0)")
    for base in (vG1, vG1 + 8):
        p(f"""
        v_add_f32 v{base}, v{base}, v{base+1}
        v_add_f32 v{base+2}, v{base+2}, v{base+3}
        v_add_f32 v{base+4}, v{base+4}, v{base+5}
        v_add_f32 v{base+6}, v{base+6}, v{base+7}
        v_add_f32 v{base}, v{base}, v{base+2}
        v_add_f32 v{base+4}, v{base+4}, v{base+6}
        v_add_f32 v{base}, v{base}, v{base+4}
        """)
    h1, h2, t0, t1 = vP, vP+4, vP+1, vP+2
    C0 = 0x3F4C422A
    C1 = 0x3D372713
    p(f"""
    v_cvt_pk_bf16_f32 v{t0}, v{vG1}, v{vG1+8}
    v_lshlrev_b32 v{h1}, 16, v{t0}
    v_and_b32 v{h2}, s{sHI}, v{t0}
    v_mul_f32 v{t0}, v{h1}, v{h1}
    v_mul_f32 v{t0}, v{t0}, v{h1}
    v_mov_b32 v{t1}, {hex(C1)}
    v_fma_f32 v{t0}, v{t0}, v{t1}, v{h1}
    v_mul_f32 v{t0}, {hex(C0)}, v{t0}
    v_mul_f32 v{t0}, s{sL2E}, v{t0}
    v_mul_f32 v{t0}, -2.0, v{t0}
    v_exp_f32 v{t0}, v{t0}
    v_add_f32 v{t0}, 1.0, v{t0}
    v_rcp_f32 v{t0}, v{t0}
    v_mul_f32 v{t0}, v{h1}, v{t0}
    v_cvt_pk_bf16_f32 v{t0}, v{t0}, v{t0}
    v_lshlrev_b32 v{t0}, 16, v{t0}
    v_mul_f32 v{t0}, v{t0}, v{h2}
    v_cvt_pk_bf16_f32 v{t0}, v{t0}, v{t0}
    v_bfe_u32 v{vT+1}, v0, 6, 1
    v_lshlrev_b32 v{vT+1}, 7, v{vT+1}
    v_and_b32 v{vT+2}, 31, v0
    v_lshl_add_u32 v{vT+1}, v{vT+2}, 2, v{vT+1}
    v_bfe_u32 v{vT+2}, v0, 5, 1
    v_lshl_add_u32 v{vT+1}, v{vT+2}, 1, v{vT+1}
    ds_write_b16 v{vT+1}, v{t0} offset:16384
    s_lshl_b32 s{sT0}, s{sWAVE}, 3
    v_lshl_add_u32 v{vT+2}, v{vT+4}, 1, s{sT0}
    v_and_b32 v{vT+5}, 1, v{vLANE}
    v_add_u32 v{vT+2}, v{vT+2}, v{vT+5}
    v_lshlrev_b32 v{vT+2}, 2, v{vT+2}
    s_waitcnt lgkmcnt(0)
    s_barrier
    ds_read_b32 v{vXP}, v{vT+2} offset:16384
    ds_read_b32 v{vXP+1}, v{vT+2} offset:16512
    """)
    for r in range(8): p(f"v_mov_b32 v{vD0 + r}, 0")
    p("s_waitcnt lgkmcnt(0)")
    stamp(p, 5)
    for t in range(2):
        step(lambda pr: vXP + pr, t)
        p(f"v_mfma_f32_16x16x32_bf16 {r4(vD0)}, {r4(vA)}, {r4(vWD + 4*t)}, {r4(vD0)}")
        p(f"v_mfma_f32_16x16x32_bf16 {r4(vD1)}, {r4(vA+4)}, {r4(vWD + 4*t)}, {r4(vD1)}")
    cross_wave_sum(26)
    stamp(p, 6)
    p(f"""
    s_lshl_b32 s{sT0}, s{sFS}, 2
    s_lshr_b32 s{sT1}, s{sRR}, 2
    s_add_u32 s{sT0}, s{sT0}, s{sT1}
    s_lshl_b32 s{sT0}, s{sT0}, 13
    s_lshl_b32 s{sT1}, s{sWAVE}, 11
    s_add_u32 s{sT0}, s{sT0}, s{sT1}
    s_and_b32 s{sT1}, s{sRR}, 3
    s_lshl_b32 s{sT1}, s{sT1}, 9
    s_add_u32 s{sT0}, s{sT0}, s{sT1}
    s_add_u32 s{sT0}, s{sT0}, {WS_Q}
    v_lshl_add_u32 v{vT}, v{vLANE}, 3, s{sT0}
    buffer_store_dwordx2 v[26:27], v{vT}, s[{srdWS}:{srdWS+3}], 0 offen sc1
    s_and_b32 s{sT0}, s{sRR}, 3
    s_lshl_b32 s{sT0}, s{sT0}, 6
    s_lshl_b32 s{sT1}, s{sFS}, 2
    s_add_u32 s{sT0}, s{sT0}, s{sT1}
    s_lshr_b32 s{sT1}, s{sRR}, 2
    s_add_u32 s{sT0}, s{sT0}, s{sT1}
    s_lshl_b32 s{sT0}, s{sT0}, 3
    s_add_u32 s{sT0}, s{sT0}, {WS_F2}
    v_mov_b32 v{vT+1}, s{sT0}
    s_waitcnt vmcnt(0)
    s_barrier
    s_cmp_lg_u32 s{sWAVE}, {99 if O.fnosync else 0}
    s_cbranch_scc1 L_fin
    s_mov_b64 exec, 1
    buffer_store_dwordx2 v[28:29], v{vT+1}, s[{srdWS}:{srdWS+3}], 0 offen sc1
    s_mov_b64 exec, -1
    """)

def kernel1():
    p = Prog()
    common_prologue(p)
    p(f"""
    s_cmp_ge_u32 s2, {NATT}
    s_cbranch_scc1 L_ffn
    """)
    routine = attention(p)
    p.ins += routine
    ffn(p)
    p("L_fin:")
    if O.dbgtime:
        p(f"""
        s_cmp_lg_u32 s{sWAVE}, 0
        s_cbranch_scc1 L_end
        s_and_b32 s74, s2, 0x1f
        s_cmp_lg_u32 s74, 0
        s_cbranch_scc1 L_end
        s_waitcnt vmcnt(0)
        s_memrealtime s[72:73]
        s_mov_b64 exec, 1
        s_mov_b32 s64, s38
        s_and_b32 s65, s39, 0xffff
        s_mov_b32 s66, 256
        s_mov_b32 s67, 0x20000
        s_waitcnt lgkmcnt(0)
        s_not_b32 s70, s70
        v_mov_b32 v60, s70
        v_mov_b32 v61, s72
        v_mov_b32 v62, 16
        buffer_atomic_umax v60, v62, s[64:67], 0 offen sc1
        buffer_atomic_umax v61, v62, s[64:67], 0 offen offset:4 sc1
        """)
    if O.stamps:
        p("s_waitcnt vmcnt(0)")
        stamp(p, 8)
        write_stamps(p, 9)
    p("L_end:")
    p("s_endpgm")
    p.finish()
    p.check_loop("L_kloop", "s_cbranch_scc1 L_kloop")
    p.check_loop("L_vloop", "s_cbranch_scc1 L_vloop")
    if any(i.text.strip() == "L_vloop2:" for i in p.ins): p.check_loop("L_vloop2", "s_cbranch_scc1 L_vloop2")
    return p

def desc(name, vgpr, sgpr):
    acc = (vgpr + 3) // 4 * 4
    return f""".amdhsa_kernel {name}
  .amdhsa_next_free_vgpr {vgpr}
  .amdhsa_next_free_sgpr {sgpr}
  .amdhsa_accum_offset {acc}
  .amdhsa_group_segment_fixed_size 0
  .amdhsa_kernarg_size 104
  .amdhsa_user_sgpr_count 2
  .amdhsa_user_sgpr_kernarg_segment_ptr 1
  .amdhsa_system_sgpr_workgroup_id_x 1
  .amdhsa_float_denorm_mode_32 3
.end_amdhsa_kernel
"""

def gen():
    k1 = NAME + "_kernel"
    out = HEADER
    out += f"; @launch grid=({nwg()},1,1) block=(256,1,1) lds=49152\n"
    out += '.amdgcn_target "amdgcn-amd-amdhsa--gfx950"\n.text\n'
    out += f".globl {k1}\n.p2align 8\n.type {k1},@function\n{k1}:\n" + kernel1().text()
    out += '.section .rodata,"a"\n.p2align 6\n' + desc(k1, 256, 102 if O.stamps else 96)
    return out

if __name__ == "__main__":
    for a in sys.argv[2:]:
        if "=" in a:
            k, v = a.split("=", 1); setattr(O, k, v.replace("_", " ").replace("def", "") if k.endswith("pol") else eval(v))
        else: setattr(O, a, True)
    open(sys.argv[1], "w").write(gen())
```

```python
import sys
from asmlib import Prog

NAME = "gated_mix__mha_block_cached__geglu_ffn__decode"
HEADER = open("gated_mix__mha_block_cached__geglu_ffn__decode.s.ref").read().split("; Override launch")[0]

NATT = 256
NFFN = 224
NQ = 56
L2E = 0x3FB8AA3B
SCALE = 0x3DB504F3
WS_P, WS_ML, WS_Q = 0, 0x80000, 0x100000
WS_H = 0x180000
WS_EPOCH, WS_HINT, WS_F1, WS_F2 = 0x90000, 0x90400, 0x91000, 0x92000
WS_BYTES = 0x200000
WS_ST = 0x200000
SPIN_MAX = 1 << 22

class O:
    stamps = False
    wpol = ""
    kvpol = "nt"
    vpol = None
    ffn_even = False
    prio = False
    aprio = 0
    noffn = False
    sleep = 16
    rot = 0
    dbgtime = False
    lead = 16
    lead2 = 0
    qinline = 16
    first = 8
    hintv = None
    acc2 = False
    rstamps = False
    phase = None
    pat = ""
    gran = 8
    tstep = 32768
    wmul = 1
    bidir = 0
    rot2 = 1
    dry = None
    pstamps = False
    mix = None
    stagger = False
    lead0 = 16
    j0 = 0
    leadv = 0
    kstamps = False
    vsw = 99
    pre = 0
    flead = 0
    fnosync = False
    fpol = "nt"
    fsleep = 16
    wqrot = False
    wo0 = 2

sX, sK, sV, sWQ, sWO, sBX, sWG, sWU, sWD, sGW, sOUT, sDBG, sWS = 16, 18, 20, 22, 24, 26, 28, 30, 32, 34, 36, 38, 40
srdK, srdV, srdW, srdX, srdWS, srdD = 44, 48, 52, 56, 60, 64
sWAVE, sH, sB, sR = 3, 4, 5, 6
sOFF, sCNT, sL2E, sSCALE, sRET = 8, 9, 10, 11, 12
sT0, sT1, sT2 = 14, 15, 7
sHI, sOFF1, sOFF2, sSPIN = 68, 69, 42, 43
sST = 70
sROT = 89
sSTEP = 95
sKB = 95
sKVT = 87
sTAG = 90
vLANE, vKV0, vKV1 = 1, 2, 3
vMASK, vQ, vO = 4, 8, 12
vM, vL = 16, 17
vP, vR, vU, vA, vT = 18, 26, 30, 32, 40
vW, vWO, vX = 48, 49, 50
vSC, vW0, vW1 = 62, 60, 61
LDS_SC = 16384
vG = 52
BANK_A, BANK_B, BANK_C = 64, 128, 192
vWA = 128

def nwg(): return NATT if O.noffn else NATT + NFFN

def srd(p, dst, base, off_lo=None, size=None):
    if off_lo is None:
        p(f"s_mov_b32 s{dst}, s{base}")
        p(f"s_and_b32 s{dst+1}, s{base+1}, 0xffff")
    else:
        p(f"s_add_u32 s{dst}, s{base}, {off_lo}")
        p(f"s_addc_u32 s{dst+1}, s{base+1}, 0")
        p(f"s_and_b32 s{dst+1}, s{dst+1}, 0xffff")
    p(f"s_mov_b32 s{dst+2}, {size}")
    p(f"s_mov_b32 s{dst+3}, 0x20000")

def r4(b): return f"v[{b}:{b+3}]"

def stamp(p, k):
    if O.stamps: p(f"s_memrealtime s[{sST+2*k}:{sST+2*k+1}]")

def write_stamps(p, n):
    if not O.stamps: return
    p("s_mov_b64 exec, 1")
    p(f"s_getreg_b32 s{sST+22}, hwreg(HW_REG_HW_ID)")
    p(f"s_getreg_b32 s{sST+23}, hwreg(HW_REG_XCC_ID)")
    p("s_waitcnt lgkmcnt(0)")
    p(f"s_lshl_b32 s{sST+24}, s2, 2")
    p(f"s_add_u32 s{sST+24}, s{sST+24}, s{sWAVE}")
    p(f"s_lshl_b32 s{sST+24}, s{sST+24}, 6")
    p(f"s_add_u32 s{sST+24}, s{sST+24}, {WS_ST}")
    p(f"v_mov_b32 v60, s{sST+24}")
    p("s_mov_b32 s96, s40")
    p("s_and_b32 s97, s41, 0xffff")
    p("s_mov_b32 s98, 0x400000")
    p("s_mov_b32 s99, 0x20000")
    for k in range(n):
        p(f"v_mov_b32 v61, s{sST+2*k}")
        p(f"buffer_store_dword v61, v60, s[96:99], 0 offen offset:{4*k}")
    p(f"v_mov_b32 v61, s{sST+22}")
    p("buffer_store_dword v61, v60, s[96:99], 0 offen offset:56")
    p(f"v_mov_b32 v61, s{sST+23}")
    p("buffer_store_dword v61, v60, s[96:99], 0 offen offset:60")

def common_prologue(p):
    p(f"""
    s_cmp_ge_u32 s2, {nwg()}
    s_cbranch_scc1 L_end
    """)
    stamp(p, 0)
    if O.dbgtime: p("s_memrealtime s[70:71]")
    p(f"""
    s_load_dwordx16 s[16:31], s[0:1], 0
    s_load_dwordx8 s[32:39], s[0:1], 64
    s_load_dwordx2 s[40:41], s[0:1], 96
    v_and_b32 v{vLANE}, 63, v0
    v_lshrrev_b32 v{vT}, 6, v0
    v_and_b32 v{vT+3}, 15, v{vLANE}
    v_readfirstlane_b32 s{sWAVE}, v{vT}
    v_lshlrev_b32 v{vT+3}, 4, v{vT+3}
    v_lshrrev_b32 v{vT+4}, 4, v{vLANE}
    """)

def constants_and_masks(p):
    p(f"""
    s_mov_b32 s{sL2E}, {hex(L2E)}
    s_mov_b32 s{sSCALE}, {hex(SCALE)}
    s_mov_b32 s{sHI}, 0xffff0000
    v_and_b32 v{vT+5}, 1, v{vLANE}
    v_lshlrev_b32 v{vT+5}, 4, v{vT+5}
    v_mov_b32 v{vT+6}, 0xffff
    v_lshlrev_b32 v{vT+6}, v{vT+5}, v{vT+6}
    v_bfe_u32 v{vT+7}, v{vLANE}, 1, 3
    """)
    for j in range(4):
        p(f"v_cmp_eq_u32 vcc, {j}, v{vT+7}")
        p(f"v_cndmask_b32 v{vMASK+j}, 0, v{vT+6}, vcc")

def tile_bytes(k):
    if O.pat == "rows": return ((k >> 2) << 17) + ((k & 3) << 13)
    return k * O.tstep

def set_off(p, reg, k):
    if O.pat == "rows" and reg == sOFF1: p(f"s_mov_b32 s{sKB}, {k}")
    if O.bidir:
        p(f"s_mul_i32 s{reg}, s{sSTEP}, {k}")
        p(f"s_add_u32 s{reg}, s{reg}, s{sROT}")
        p(f"s_and_b32 s{reg}, s{reg}, 0xfffff")
    elif O.rot:
        p(f"s_add_u32 s{reg}, s{sROT}, {tile_bytes(k)}")
        p(f"s_and_b32 s{reg}, s{reg}, 0xfffff")
    else:
        p(f"s_mov_b32 s{reg}, {k * 32768}")

def adv_off(p, reg):
    if O.pat == "rows":
        p(f"""
        s_add_u32 s{sKB}, s{sKB}, 1
        s_and_b32 s{sKB}, s{sKB}, 31
        s_lshr_b32 s{sKVT}, s{sKB}, 2
        s_lshl_b32 s{sKVT}, s{sKVT}, 17
        s_and_b32 s{reg}, s{sKB}, 3
        s_lshl_b32 s{reg}, s{reg}, 13
        s_add_u32 s{reg}, s{reg}, s{sKVT}
        s_add_u32 s{reg}, s{reg}, s{sROT}
        s_and_b32 s{reg}, s{reg}, 0xfffff
        """)
        return
    if O.bidir: p(f"s_add_u32 s{reg}, s{reg}, s{sSTEP}")
    else: p(f"s_add_u32 s{reg}, s{reg}, {O.tstep}")
    if O.rot: p(f"s_and_b32 s{reg}, s{reg}, 0xfffff")

def kv_load(p, reg, isv, t, soff, tag):
    d = srdV if isv else srdK
    pol = O.vpol if (isv and O.vpol is not None) else O.kvpol
    g = O.gran
    if g == 8:
        p.vm(f"buffer_load_dwordx4 {r4(reg)}, v{vKV0 + (t >> 2)}, s[{d}:{d+3}], s{soff} offen offset:{(t & 3) * 1024} {pol}", tag)
        return
    base = (t // g) * 4 * g * 1024
    so = f"s{soff}"
    if base:
        p(f"s_add_u32 s{sKVT}, s{soff}, {base}")
        so = f"s{sKVT}"
    p.vm(f"buffer_load_dwordx4 {r4(reg)}, v{vKV0}, s[{d}:{d+3}], {so} offen offset:{(t % g) * 1024} {pol}", tag)

def wo_load(p, t):
    u, tt = t >> 4, t & 15
    if tt & 3 == 0: p(f"s_mov_b32 s{sT2}, {(64 * u + (tt & ~3)) * 1024}")
    p.vm(f"buffer_load_dwordx4 {r4(vWA + 4*t)}, v{vWO}, s[{srdW}:{srdW+3}], s{sT2} offen offset:{(tt & 3) * 1024} {O.wpol}", ("W", t))

def proj_routine(p, label="L_proj", inline=False):
    if not inline: p(label + ":")
    vO2 = vP if O.acc2 else vO
    def mk(t):
        for j in range(4):
            p(f"v_and_b32_dpp v{vA + 4*(t&1) + j}, v{vX + (t >> 4)}, v{vMASK+j} row_newbcast:{t & 15} row_mask:0xf bank_mask:0xf")
    mk(0)
    for t in range(32):
        if t + 1 < 32: mk(t + 1)
        if t % 2 == 0: p.wait_vm(("W", t + 1))
        d = vO2 if t & 1 else vO
        src = "0" if (O.acc2 and t == 1) else r4(d)
        p(f"v_mfma_f32_16x16x32_bf16 {r4(d)}, {r4(vA + 4*(t&1))}, {r4(vWA + 4*t)}, {src}")
    if O.acc2:
        p("s_nop 7")
        for r in range(4): p(f"v_add_f32 v{vO+r}, v{vO+r}, v{vO2+r}")
    else:
        p("s_nop 7")
    if not inline: p(f"s_setpc_b64 s[{sRET}:{sRET+1}]")

def bank_base(bank): return 64 + 32 * bank

def k_tile(p, bank, refill, scoff):
    base = bank_base(bank)
    for t in range(8):
        p.wait_vm(("L", 8 * bank + t))
        k = base + 4 * t
        p(f"v_dot2_f32_bf16 v{vP+t}, v{k}, v{vQ}, 0")
        for j in range(1, 4):
            p(f"v_dot2_f32_bf16 v{vP+t}, v{k+j}, v{vQ+j}, v{vP+t}")
        refill(t)
    for a in range(4):
        p(f"v_add_f32_dpp v{vR+a}, v{vP+a}, v{vP+a} row_mirror row_mask:0xf bank_mask:0x3")
    for a in range(4):
        p(f"v_add_f32_dpp v{vR+a}, v{vP+a+4}, v{vP+a+4} row_mirror row_mask:0xf bank_mask:0xc")
    p(f"v_add_f32_dpp v{vU}, v{vR}, v{vR} row_half_mirror row_mask:0xf bank_mask:0x5")
    p(f"v_add_f32_dpp v{vU+1}, v{vR+1}, v{vR+1} row_half_mirror row_mask:0xf bank_mask:0x5")
    p(f"v_add_f32_dpp v{vU}, v{vR+2}, v{vR+2} row_half_mirror row_mask:0xf bank_mask:0xa")
    p(f"v_add_f32_dpp v{vU+1}, v{vR+3}, v{vR+3} row_half_mirror row_mask:0xf bank_mask:0xa")
    for qp in ("[1,0,3,2]", "[2,3,0,1]"):
        for u in range(2):
            p(f"v_add_f32_dpp v{vU+u}, v{vU+u}, v{vU+u} quad_perm:{qp} row_mask:0xf bank_mask:0xf")
    a0, a1, w = vT, vT+1, vT+2
    p(f"""
    v_cvt_pk_bf16_f32 v{w}, v{vU}, v{vU+1}
    v_lshlrev_b32 v{a0}, 16, v{w}
    v_and_b32 v{a1}, s{sHI}, v{w}
    v_mul_f32 v{a0}, s{sSCALE}, v{a0}
    v_mul_f32 v{a1}, s{sSCALE}, v{a1}
    v_cvt_pk_bf16_f32 v{w}, v{a0}, v{a1}
    v_lshlrev_b32 v{a0}, 16, v{w}
    v_and_b32 v{a1}, s{sHI}, v{w}
    ds_write_b32 v{vSC}, v{w} offset:{LDS_SC + scoff}
    v_max3_f32 v{vM}, v{vM}, v{a0}, v{a1}
    """)

def v_tile(p, bank, refill, wreg, prefetch_next):
    base = bank_base(bank)
    a0, a1, p0, p1 = vT, vT+1, vT+6, vT+7
    neg = vT + 4
    p(f"""
    v_lshlrev_b32 v{a0}, 16, v{wreg}
    v_and_b32 v{a1}, s{sHI}, v{wreg}
    """)
    if prefetch_next is not None: prefetch_next()
    p(f"""
    v_fma_f32 v{p0}, v{a0}, s{sL2E}, -v{neg}
    v_fma_f32 v{p1}, v{a1}, s{sL2E}, -v{neg}
    v_exp_f32 v{p0}, v{p0}
    v_exp_f32 v{p1}, v{p1}
    v_add_f32 v{vL}, v{vL}, v{p0}
    v_cvt_pk_bf16_f32 v{a0}, v{p0}, v{p0}
    v_cvt_pk_bf16_f32 v{a1}, v{p1}, v{p1}
    v_add_f32 v{vL}, v{vL}, v{p1}
    """)
    def mk(t):
        for j in range(4):
            p(f"v_and_b32_dpp v{vA + 4*(t&1) + j}, v{a0 + (t & 1)}, v{vMASK+j} row_newbcast:{4*(t >> 1)} row_mask:0xf bank_mask:0xf")
    mk(0)
    for t in range(8):
        if t + 1 < 8: mk(t + 1)
        p.wait_vm(("L", 8 * bank + t))
        p(f"v_mfma_f32_16x16x32_bf16 {r4(vO)}, {r4(vA + 4*(t&1))}, {r4(base + 4*t)}, {r4(vO)}")
        refill(t)

def gate_math(p, z, t0, t1):
    p(f"""
    v_cvt_pk_bf16_f32 v{z}, v{z}, v{z}
    v_lshlrev_b32 v{z}, 16, v{z}
    v_mul_f32 v{z}, s{sL2E}, v{z}
    v_sub_f32 v{z}, 0, v{z}
    v_exp_f32 v{z}, v{z}
    v_add_f32 v{z}, 1.0, v{z}
    v_rcp_f32 v{z}, v{z}
    v_cvt_pk_bf16_f32 v{z}, v{z}, v{z}
    v_lshlrev_b32 v{z}, 16, v{z}
    v_sub_f32 v{t1}, 1.0, v{z}
    v_cvt_pk_bf16_f32 v{t1}, v{t1}, v{t1}
    v_lshlrev_b32 v{t1}, 16, v{t1}
    """)

def attention(p):
    if O.aprio: p(f"s_setprio {O.aprio}")
    sRED = 88
    sRHO, sKVL, sKVH, sWQO = sOFF2, 92, 93, 94
    vINV, vINVM = vG + 2, vG + 3
    p(f"""
    s_and_b32 s{sT0}, s2, 7
    s_lshr_b32 s{sT1}, s2, 3
    s_lshr_b32 s{sH}, s2, 6
    s_lshl_b32 s{sT0}, s{sT0}, 2
    s_add_u32 s{sH}, s{sH}, s{sT0}
    s_and_b32 s{sRHO}, s{sT1}, 7
    s_lshl_b32 s{sRHO}, s{sRHO}, 2
    s_lshl_b32 s{sT0}, s{sWAVE}, 20
    v_lshlrev_b32 v{vW}, 17, v{vT+4}
    s_lshl_b32 s{sWQO}, s{sH}, 8
    v_add3_u32 v{vW}, v{vW}, v{vT+3}, s{sT0}
    s_sub_u32 s{srdW+2}, {4 << 20}, s{sWQO}
    s_mov_b32 s{srdW+3}, 0x20000
    s_and_b32 s{sT0}, s{sRHO}, 16
    s_mul_i32 s{sT0}, s{sT0}, 3
    s_add_u32 s{sT2}, s{sRHO}, s{sT0}
    s_lshl_b32 s{sT2}, s{sT2}, 13
    s_waitcnt lgkmcnt(0)
    """)
    stamp(p, 1)
    p(f"""
    s_add_u32 s{srdW}, s{sWQ}, s{sWQO}
    s_addc_u32 s{srdW+1}, s{sWQ+1}, 0
    s_and_b32 s{srdW+1}, s{srdW+1}, 0xffff
    """)
    seq = [("W", t) for t in range(32)] + [("L", j) for j in range(max(O.lead, O.pre))]
    pos = [0]
    def issue_next():
        if pos[0] >= len(seq): return
        kind, i = seq[pos[0]]; pos[0] += 1
        if kind == "W":
            if i % 4 == 0 and i > 0:
                p(f"""
                s_add_u32 s{sT2}, s{sRHO}, {i}
                s_and_b32 s{sT2}, s{sT2}, 31
                s_and_b32 s{sT0}, s{sT2}, 16
                s_mul_i32 s{sT0}, s{sT0}, 3
                s_add_u32 s{sT2}, s{sT2}, s{sT0}
                s_lshl_b32 s{sT2}, s{sT2}, 13
                """)
            p.vm(f"buffer_load_dwordx4 {r4(vWA + 4*i)}, v{vW}, s[{srdW}:{srdW+3}], s{sT2} offen {O.wpol}", ("W", i))
            if i % 4 != 3: p(f"s_add_u32 s{sT2}, s{sT2}, 8192")
        else:
            if i % 8 == 0: set_off(p, sOFF, i // 8)
            kv_load(p, 64 + 4 * i, 0, i & 7, sOFF, ("L", i))
    for _ in range(O.first): issue_next()
    p(f"""
    s_lshr_b32 s{sB}, s{sT1}, 1
    s_and_b32 s{sB}, s{sB}, 3
    s_and_b32 s{sT1}, s{sT1}, 1
    s_lshl_b32 s{sR}, s{sB}, 5
    s_add_u32 s{sR}, s{sR}, s{sH}
    s_lshl_b32 s{sR}, s{sR}, 1
    s_add_u32 s{sR}, s{sR}, s{sT1}
    s_lshl_b32 s{sKVL}, s{sWAVE}, 8
    s_lshl_b32 s{sT1}, s{sB}, 10
    s_add_u32 s{sKVL}, s{sKVL}, s{sT1}
    v_and_b32 v{vT}, 15, v{vLANE}
    v_add_u32 v{vT}, s{sRHO}, v{vT}
    v_and_b32 v{vT}, 31, v{vT}
    v_xor_b32 v{vT+1}, 16, v{vT}
    v_and_b32 v{vT+5}, 16, v{vT}
    v_and_b32 v{vT+6}, 16, v{vT+1}
    v_mul_u32_u24 v{vT+5}, 3, v{vT+5}
    v_mul_u32_u24 v{vT+6}, 3, v{vT+6}
    v_add_u32 v{vT}, v{vT}, v{vT+5}
    v_add_u32 v{vT+1}, v{vT+1}, v{vT+6}
    v_lshl_add_u32 v{vT}, v{vT+4}, 4, v{vT}
    v_lshl_add_u32 v{vT+1}, v{vT+4}, 4, v{vT+1}
    v_lshl_add_u32 v{vT}, v{vT}, 1, s{sKVL}
    v_lshl_add_u32 v{vT+1}, v{vT+1}, 1, s{sKVL}
    s_mov_b32 s{srdX}, s{sX}
    s_and_b32 s{srdX+1}, s{sX+1}, 0xffff
    s_mov_b32 s{srdX+2}, 4096
    s_mov_b32 s{srdX+3}, 0x20000
    """)
    p.vm(f"buffer_load_ushort v{vX}, v{vT}, s[{srdX}:{srdX+3}], 0 offen", "x")
    p.vm(f"buffer_load_ushort v{vX+1}, v{vT+1}, s[{srdX}:{srdX+3}], 0 offen", "x")
    p(f"s_load_dwordx2 s[{sTAG}:{sTAG+1}], s[{sWS}:{sWS+1}], {hex(WS_EPOCH)}")
    for _ in range(O.qinline - O.first): issue_next()
    p(f"""
    s_and_b32 s{sRED}, s{sR}, 3
    """)
    if O.phase:
        a_s, a_h, a_b = O.phase
        p(f"""
        s_and_b32 s{sT0}, s{sR}, 1
        s_mul_i32 s{sROT}, s{sT0}, {a_s}
        s_mul_i32 s{sT0}, s{sH}, {a_h}
        s_add_u32 s{sROT}, s{sROT}, s{sT0}
        s_mul_i32 s{sT0}, s{sB}, {a_b}
        s_add_u32 s{sROT}, s{sROT}, s{sT0}
        """)
    else:
        p(f"""
        s_mul_i32 s{sROT}, s{sR}, {O.rot}
        s_lshr_b32 s{sT0}, s{sR}, 5
        s_mul_i32 s{sT0}, s{sT0}, {O.rot2}
        s_add_u32 s{sROT}, s{sROT}, s{sT0}
        """)
    p(f"""
    s_mul_i32 s{sT0}, s{sWAVE}, {O.wmul if O.gran == 8 else 0}
    s_add_u32 s{sROT}, s{sROT}, s{sT0}
    s_and_b32 s{sROT}, s{sROT}, 127
    s_lshl_b32 s{sROT}, s{sROT}, 13
    s_lshr_b32 s{sT0}, s{sR}, {max(O.bidir - 1, 0)}
    s_and_b32 s{sT0}, s{sT0}, 1
    s_mov_b32 s{sSTEP}, 32768
    s_cmp_eq_u32 s{sT0}, 0
    s_cselect_b32 s{sSTEP}, s{sSTEP}, 0xffff8000
    s_lshl_b32 s{sT0}, s{sR}, 11
    s_lshl_b32 s{sT1}, s{sWAVE}, 9
    s_add_u32 s{sT0}, s{sT0}, s{sT1}
    v_lshlrev_b32 v{vINV}, 3, v{vLANE}
    v_add_u32 v{vINV}, s{sT0}, v{vINV}
    v_mov_b32 v{vP}, -1
    v_mov_b32 v{vP+1}, -1
    s_lshl_b32 s{sT0}, s{sR}, 3
    s_add_u32 s{sT0}, s{sT0}, {WS_ML}
    v_mov_b32 v{vINVM}, s{sT0}
    s_mov_b32 s{srdWS}, s{sWS}
    s_and_b32 s{srdWS+1}, s{sWS+1}, 0xffff
    s_mov_b32 s{srdWS+2}, {WS_BYTES}
    s_mov_b32 s{srdWS+3}, 0x20000
    """)
    p.vm(f"buffer_store_dwordx2 v[{vP}:{vP+1}], v{vINV}, s[{srdWS}:{srdWS+3}], 0 offen sc1", "inv")
    p.vm(f"buffer_store_dwordx2 v[{vP}:{vP+1}], v{vINVM}, s[{srdWS}:{srdWS+3}], 0 offen sc1", "inv")
    p(f"""
    s_lshl_b32 s{sKVL}, s{sR}, 20
    s_lshr_b32 s{sKVH}, s{sR}, 12
    """)
    for (d, b) in ((srdK, sK), (srdV, sV)):
        p(f"s_add_u32 s{d}, s{b}, s{sKVL}")
        p(f"s_addc_u32 s{d+1}, s{b+1}, s{sKVH}")
        p(f"s_and_b32 s{d+1}, s{d+1}, 0xffff")
        p(f"s_mov_b32 s{d+2}, {1 << 20}")
        p(f"s_mov_b32 s{d+3}, 0x20000")
    p(f"""
    s_mul_i32 s{sT0}, s{sWAVE}, {0 if O.gran == 8 else O.gran * 1024}
    v_lshlrev_b32 v{vKV0}, 4, v{vLANE}
    v_add_u32 v{vKV0}, s{sT0}, v{vKV0}
    v_add_u32 v{vKV1}, 4096, v{vKV0}
    s_lshl_b32 s{sT0}, s{sWAVE}, 8
    v_lshlrev_b32 v{vWO}, 14, v{vT+4}
    v_add3_u32 v{vWO}, v{vWO}, v{vT+3}, s{sT0}
    v_lshlrev_b32 v{vG}, 1, v{vT+3}
    v_lshl_add_u32 v{vG+1}, v{vT+4}, 4, v{vG}
    s_lshl_b32 s{sT1}, s{sWAVE}, 9
    v_add_u32 v{vG+1}, s{sT1}, v{vG+1}
    v_mov_b32 v{vO}, 0
    v_mov_b32 v{vO+1}, 0
    v_mov_b32 v{vO+2}, 0
    v_mov_b32 v{vO+3}, 0
    """)
    constants_and_masks(p)
    p.wait_vm("x")
    p(f"""
    v_lshl_or_b32 v{vX}, v{vX}, 16, v{vX}
    v_lshl_or_b32 v{vX+1}, v{vX+1}, 16, v{vX+1}
    """)
    def mk(t):
        for j in range(4):
            p(f"v_and_b32_dpp v{vA + 4*(t&1) + j}, v{vX + (t >> 4)}, v{vMASK+j} row_newbcast:{t & 15} row_mask:0xf bank_mask:0xf")
    mk(0)
    for t in range(32):
        if t + 1 < 32: mk(t + 1)
        issue_next()
        p.wait_vm(("W", t))
        p(f"v_mfma_f32_16x16x32_bf16 {r4(vO)}, {r4(vA + 4*(t&1))}, {r4(vWA + 4*t)}, {r4(vO)}")
    while pos[0] < len(seq): issue_next()
    saved = list(p.vmq)
    mark = len(p.ins)
    p.vmq = []
    proj_routine(p)
    routine = p.ins[mark:]
    p.ins = p.ins[:mark]
    p.vmq = saved
    stamp(p, 2)
    p(f"""
    s_mov_b64 exec, 0xffffffff
    ds_write_b128 v{vG+1}, {r4(vO)}
    s_mov_b64 exec, -1
    s_lshl_b32 s{sT0}, s{sH}, 17
    s_sub_u32 s{sT1}, {4 << 20}, s{sT0}
    """)
    srd(p, srdW, sWO, f"s{sT0}", f"s{sT1}")
    p(f"""
    s_waitcnt lgkmcnt(0)
    s_barrier
    """)
    qa = vP
    regs = [18, 26, 34, 52]
    for w in range(4):
        p(f"ds_read_b128 {r4(regs[w])}, v{vG} offset:{w*512}" if w < 3 else f"ds_read_b128 {r4(56)}, v{vG} offset:{w*512}")
        p(f"ds_read_b128 {r4(regs[w] + 4)}, v{vG} offset:{w*512 + 16}" if w < 3 else f"ds_read_b128 {r4(60)}, v{vG} offset:{w*512 + 16}")
    regs[3] = 56
    p(f"""
    v_mov_b32 v{vM}, 0xff7fffff
    v_mov_b32 v{vL}, 0
    v_mov_b32 v{vO}, 0
    v_mov_b32 v{vO+1}, 0
    v_mov_b32 v{vO+2}, 0
    v_mov_b32 v{vO+3}, 0
    s_waitcnt lgkmcnt(0)
    """)
    p(f"""
    s_add_u32 s{sTAG}, s{sTAG}, 1
    s_addc_u32 s{sTAG+1}, s{sTAG+1}, 0
    """)
    for i in range(8):
        p(f"v_add_f32 v{regs[0]+i}, v{regs[0]+i}, v{regs[1]+i}")
        p(f"v_add_f32 v{regs[2]+i}, v{regs[2]+i}, v{regs[3]+i}")
    for i in range(8):
        p(f"v_add_f32 v{regs[0]+i}, v{regs[0]+i}, v{regs[2]+i}")
    for j in range(4):
        p(f"v_cvt_pk_bf16_f32 v{vQ+j}, v{regs[0]+2*j}, v{regs[0]+2*j+1}")
    stamp(p, 3)
    LEAD, LEAD2 = O.lead, max(O.lead2, O.lead)
    sOFFA, sOFFB = sOFF, sOFF1
    st = {"J": max(O.lead, O.pre), "A": None, "B": None}
    def lead_at(j):
        if j < O.j0: return O.lead0
        if j >= 8 * (32 + O.vsw): return LEAD2
        return O.leadv if (O.leadv and j >= 8 * 30) else LEAD
    announced = []
    def announce():
        p(f"""
        s_lshl_b32 s{sT0}, s{sR}, 3
        s_add_u32 s{sT0}, s{sT0}, {WS_HINT}
        s_cmp_eq_u32 s{sWAVE}, 0
        s_cselect_b32 s{sT0}, s{sT0}, {WS_BYTES}
        v_mov_b32 v{vG}, s{sTAG}
        v_mov_b32 v{vG+1}, s{sTAG+1}
        v_mov_b32 v{vG+2}, s{sT0}
        s_mov_b64 exec, 1
        """)
        text = f"buffer_store_dwordx2 v[{vG}:{vG+1}], v{vG+2}, s[{srdWS}:{srdWS+3}], 0 offen sc1"
        if O.hintv is None: p.vm(text, "ARR")
        else: p(text)
        p("s_mov_b64 exec, -1")
        announced.append(1)
    def off_reg(k):
        if st["A"] == k: return sOFFA
        if st["B"] == k: return sOFFB
        if st["A"] is None or (st["B"] is not None and st["A"] <= st["B"]):
            set_off(p, sOFFA, k % 32); st["A"] = k; return sOFFA
        set_off(p, sOFFB, k % 32); st["B"] = k; return sOFFB
    def peeled_refill(i, extra=None):
        def f(t):
            j = 8 * i + t
            target = min(512, j + 1 + lead_at(j))
            n = 0
            while st["J"] < target and n < 3:
                J = st["J"]; k = J >> 3
                kv_load(p, 64 + 4 * (J % 16), k >= 32, J & 7, off_reg(k), ("L", J % 16))
                st["J"] += 1; n += 1
                if O.hintv is None and J == 511: announce()
            if extra: extra(t)
        return f
    def loop_refill(par, isv, L):
        DA = L >> 3
        def f(t):
            jt = t + L
            d, t2 = jt >> 3, jt & 7
            slot = (8 * par + jt) % 16
            kv_load(p, 64 + 4 * slot, isv, t2, sOFFA if d == DA else sOFFB, ("L", slot))
        return f
    def loop_enter(i, L):
        assert st["J"] == 8 * i + L, (st["J"], i, L)
        DA = L >> 3
        set_off(p, sOFFA, (i + DA) % 32); set_off(p, sOFFB, (i + DA + 1) % 32)
    def adv_pair():
        p(f"s_mov_b32 s{sOFFA}, s{sOFFB}")
        adv_off(p, sOFFB)
    def loop_exit(i_end, L):
        st["J"] = 8 * i_end + L; st["A"] = None; st["B"] = None
    nxt_sc = lambda n: p(f"v_add_u32 v{vSC}, {256*n}, v{vSC}")
    p(f"""
    s_lshl_b32 s{sT0}, s{sWAVE}, 13
    v_lshlrev_b32 v{vSC}, 2, v{vLANE}
    v_add_u32 v{vSC}, s{sT0}, v{vSC}
    """)
    WO0 = O.wo0
    NPEEL = WO0 + 10
    assert NPEEL % 2 == 0
    wo_next = [0]
    def wo_extra(t):
        if t % 2 == 0:
            wo_load(p, wo_next[0]); wo_next[0] += 1
    for i in range(NPEEL):
        k_tile(p, i & 1, peeled_refill(i, wo_extra if WO0 <= i < WO0 + 8 else None), 256 * (i & 1))
        if i & 1: nxt_sc(2)
        if O.dry is not None and i == O.dry:
            p(f"s_call_b64 s[{sRET}:{sRET+1}], L_proj")
            for r in range(4): p(f"v_mov_b32 v{vO+r}, 0")
        if O.kstamps and i == 3: stamp(p, 5)
        if O.kstamps and i == 11: stamp(p, 7)
    assert wo_next[0] == 32
    q0 = list(p.vmq)
    assert q0 == [("L", j % 16) for j in range(LEAD)], q0
    KEND = 28
    loop_enter(NPEEL, LEAD)
    p(f"s_mov_b32 s{sCNT}, {(KEND - NPEEL) // 2}")
    p("L_kloop:")
    for i in range(2):
        k_tile(p, i, loop_refill(i, False, LEAD), 256 * i)
        adv_pair()
    nxt_sc(2)
    assert p.vmq == q0
    p(f"""
    s_sub_u32 s{sCNT}, s{sCNT}, 1
    s_cmp_lg_u32 s{sCNT}, 0
    s_cbranch_scc1 L_kloop
    """)
    loop_exit(KEND, LEAD)
    srd(p, srdX, sX, None, 4096)
    p(f"""
    s_mov_b32 s{srdW}, s{sGW}
    s_and_b32 s{srdW+1}, s{sGW+1}, 0xffff
    s_mov_b32 s{srdW+2}, 1024
    s_lshl_b32 s{sT0}, s{sB}, 10
    v_lshlrev_b32 v{vG+2}, 2, v0
    v_add_u32 v{vG+3}, s{sT0}, v{vG+2}
    """)
    p.vm(f"buffer_load_dword v{vG+5}, v{vG+3}, s[{srdX}:{srdX+3}], 0 offen", "G")
    p.vm(f"buffer_load_dword v{vG+6}, v{vG+2}, s[{srdW}:{srdW+3}], 0 offen", "G")
    for i in range(KEND, 32):
        k_tile(p, i & 1, peeled_refill(i), 256 * (i & 1))
        if i & 1: nxt_sc(2)
    mx, neg = vT + 3, vT + 4
    p(f"""
    s_lshl_b32 s{sT0}, s{sWAVE}, 13
    v_lshlrev_b32 v{vSC}, 2, v{vLANE}
    v_add_u32 v{vSC}, s{sT0}, v{vSC}
    v_max_f32_dpp v{vM}, v{vM}, v{vM} row_half_mirror row_mask:0xf bank_mask:0xf
    s_waitcnt lgkmcnt(0)
    ds_read_b32 v{vW0}, v{vSC} offset:{LDS_SC}
    ds_read_b32 v{vW1}, v{vSC} offset:{LDS_SC + 256}
    v_max_f32_dpp v{vM}, v{vM}, v{vM} row_mirror row_mask:0xf bank_mask:0xf
    v_max_f32_dpp v{vM}, v{vM}, v{vM} row_bcast:15 row_mask:0xa bank_mask:0xf
    v_max_f32_dpp v{vM}, v{vM}, v{vM} row_bcast:31 row_mask:0xc bank_mask:0xf
    v_readlane_b32 s{sT0}, v{vM}, 63
    v_mov_b32 v{vM}, s{sT0}
    v_mul_f32 v{neg}, s{sL2E}, v{vM}
    v_add_u32 v{vSC}, 512, v{vSC}
    s_waitcnt lgkmcnt(0)
    """)
    if not O.pstamps: stamp(p, 4)
    p.vmq = [t for t in p.vmq if t != "G"]
    def pf(dst, off):
        return lambda: p(f"ds_read_b32 v{dst}, v{vSC} offset:{LDS_SC + off}")
    def v_pair_tail():
        p(f"""
        v_add_u32 v{vSC}, 512, v{vSC}
        s_waitcnt lgkmcnt(0)
        """)
    def v_loop(label, v0, v1, L):
        if v1 <= v0: return
        qL = [("L", (8 * v0 + j) % 16) for j in range(L)]
        assert p.vmq == qL, (p.vmq, qL)
        loop_enter(32 + v0, L)
        p(f"s_mov_b32 s{sCNT}, {(v1 - v0) // 2}")
        p(label + ":")
        v_tile(p, 0, loop_refill(0, True, L), vW0, pf(vW0, 0))
        adv_pair()
        v_tile(p, 1, loop_refill(1, True, L), vW1, pf(vW1, 256))
        adv_pair()
        assert p.vmq == qL
        p(f"""
        v_add_u32 v{vSC}, 512, v{vSC}
        s_sub_u32 s{sCNT}, s{sCNT}, 1
        s_cmp_lg_u32 s{sCNT}, 0
        s_waitcnt lgkmcnt(0)
        s_cbranch_scc1 {label}
        """)
        loop_exit(32 + v1, L)
    def v_peeled_pair(v, last=False):
        v_tile(p, 0, peeled_refill(32 + v), vW0, None if last else pf(vW0, 0))
        v_tile(p, 1, peeled_refill(33 + v), vW1, None if last else pf(vW1, 256))
        if not last: v_pair_tail()
    VEND = 28
    LV = O.leadv or LEAD
    if LEAD2 > LV and O.vsw < VEND:
        assert O.vsw % 2 == 0
        v_loop("L_vloop", 0, O.vsw, LV)
        if O.hintv == O.vsw: announce()
        v_peeled_pair(O.vsw)
        if O.hintv == O.vsw + 2: announce()
        v_loop("L_vloop2", O.vsw + 2, VEND, LEAD2)
    else:
        v_loop("L_vloop", 0, VEND, LV)
    if O.hintv == 28 and not announced: announce()
    v_peeled_pair(28)
    if not (O.kstamps or O.pstamps): stamp(p, 5)
    if O.hintv == 30 and not announced: announce()
    v_peeled_pair(30, last=True)
    assert len(announced) == 1
    if not O.pstamps: stamp(p, 6)
    p(f"""
    v_add_f32_dpp v{vL}, v{vL}, v{vL} row_half_mirror row_mask:0xf bank_mask:0xf
    v_add_f32_dpp v{vL}, v{vL}, v{vL} row_mirror row_mask:0xf bank_mask:0xf
    v_add_f32_dpp v{vL}, v{vL}, v{vL} row_bcast:15 row_mask:0xa bank_mask:0xf
    v_add_f32_dpp v{vL}, v{vL}, v{vL} row_bcast:31 row_mask:0xc bank_mask:0xf
    v_readlane_b32 s{sT0}, v{vL}, 63
    v_and_b32 v{vT+3}, 15, v{vLANE}
    v_lshrrev_b32 v{vT+4}, 4, v{vLANE}
    v_mov_b32 v{vL}, s{sT0}
    v_lshlrev_b32 v{vT}, 5, v{vT+3}
    v_lshl_add_u32 v{vT+1}, v{vT+4}, 4, v{vT}
    s_lshl_b32 s{sT1}, s{sWAVE}, 9
    s_lshl_b32 s{sT0}, s{sWAVE}, 3
    v_add_u32 v{vT+2}, s{sT1}, v{vT+1}
    v_mov_b32 v{vT+5}, s{sT0}
    s_mov_b64 exec, 0xffffffff
    ds_write_b128 v{vT+2}, {r4(vO)} offset:2048
    s_mov_b64 exec, -1
    ds_write_b64 v{vT+5}, v[{vM}:{vM+1}] offset:4096
    v_lshlrev_b32 v{vT+6}, 2, v{vLANE}
    v_mov_b32 v{vT+5}, 0
    s_waitcnt lgkmcnt(0)
    s_barrier
    ds_read_b128 {r4(vP)}, v{vT+5} offset:4096
    ds_read_b128 {r4(vP+4)}, v{vT+5} offset:4112
    """)
    ob = 64
    for w in range(4):
        p(f"ds_read_b32 v{ob+2*w}, v{vT+6} offset:{2048 + w*512}")
        p(f"ds_read_b32 v{ob+2*w+1}, v{vT+6} offset:{2048 + w*512 + 256}")
    m = [vP, vP+2, vP+4, vP+6]; l = [vP+1, vP+3, vP+5, vP+7]
    p(f"""
    s_waitcnt lgkmcnt(8)
    v_max_f32 v{vM}, v{m[0]}, v{m[1]}
    v_max3_f32 v{vM}, v{vM}, v{m[2]}, v{m[3]}
    v_mul_f32 v{vT+7}, s{sL2E}, v{vM}
    """)
    for w in range(4): p(f"v_fma_f32 v{m[w]}, v{m[w]}, s{sL2E}, -v{vT+7}")
    for w in range(4): p(f"v_exp_f32 v{m[w]}, v{m[w]}")
    p(f"v_mul_f32 v{vL}, v{m[0]}, v{l[0]}")
    for w in range(1, 4): p(f"v_fma_f32 v{vL}, v{m[w]}, v{l[w]}, v{vL}")
    p("s_waitcnt lgkmcnt(0)")
    for u in range(2):
        p(f"v_mul_f32 v{vX+u}, v{m[0]}, v{ob+u}")
    for w in range(1, 4):
        for u in range(2):
            p(f"v_fma_f32 v{vX+u}, v{m[w]}, v{ob+2*w+u}, v{vX+u}")
    p(f"""
    v_cvt_pk_bf16_f32 v{vX}, v{vX}, v{vX}
    v_cvt_pk_bf16_f32 v{vX+1}, v{vX+1}, v{vX+1}
    v_mov_b32 v{vO}, 0
    v_mov_b32 v{vO+1}, 0
    v_mov_b32 v{vO+2}, 0
    v_mov_b32 v{vO+3}, 0
    """)
    p(f"""
    s_nop 1
    s_call_b64 s[{sRET}:{sRET+1}], L_proj
    """)
    p(f"""
    s_lshl_b32 s{sT0}, s{sR}, 11
    s_lshl_b32 s{sT1}, s{sWAVE}, 9
    s_add_u32 s{sT0}, s{sT0}, s{sT1}
    v_add_u32 v{vT+1}, s{sT0}, v{vT+1}
    s_mov_b64 exec, 0xffffffff
    buffer_store_dwordx4 {r4(vO)}, v{vT+1}, s[{srdWS}:{srdWS+3}], 0 offen sc1
    s_mov_b64 exec, 1
    s_lshl_b32 s{sT0}, s{sR}, 3
    s_add_u32 s{sT0}, s{sT0}, {WS_ML}
    v_mov_b32 v{vT+2}, s{sT0}
    s_cmp_lg_u32 s{sWAVE}, 0
    s_cbranch_scc1 L_noml
    buffer_store_dwordx2 v[{vM}:{vM+1}], v{vT+2}, s[{srdWS}:{srdWS+3}], 0 offen sc1
    L_noml:
    s_mov_b64 exec, -1
    """)
    if not (O.kstamps or O.pstamps): stamp(p, 7)
    p(f"""
    s_cmp_eq_u32 s{sR}, 1
    s_cbranch_scc1 L_keeper
    s_cmp_lg_u32 s{sRED}, 0
    s_cbranch_scc1 L_fin
    """)
    reducer(p)
    p("s_branch L_fin")
    keeper(p)
    return routine

def keeper(p):
    p(f"""
    L_keeper:
    v_lshlrev_b32 v64, 3, v0
    v_add_u32 v64, {WS_HINT}, v64
    v_and_b32 v65, 63, v0
    v_min_u32 v65, 55, v65
    v_lshrrev_b32 v66, 6, v0
    v_lshlrev_b32 v66, 9, v66
    v_lshl_add_u32 v65, v65, 3, v66
    v_add_u32 v65, {WS_F2}, v65
    s_mov_b32 s{sSPIN}, 0
    L_kpoll:
    buffer_load_dwordx2 v[68:69], v64, s[{srdWS}:{srdWS+3}], 0 offen sc1
    buffer_load_dwordx2 v[70:71], v65, s[{srdWS}:{srdWS+3}], 0 offen sc1
    s_waitcnt vmcnt(0)
    v_cmp_ne_u64 vcc, s[{sTAG}:{sTAG+1}], v[68:69]
    s_mov_b64 s[{sT0}:{sT0+1}], vcc
    """)
    if not (O.noffn or O.fnosync):
        p(f"""
        v_cmp_ne_u64 vcc, s[{sTAG}:{sTAG+1}], v[70:71]
        s_or_b64 s[{sT0}:{sT0+1}], s[{sT0}:{sT0+1}], vcc
        """)
    p(f"""
    s_cmp_eq_u64 s[{sT0}:{sT0+1}], 0
    s_cbranch_scc1 L_kok
    s_add_u32 s{sSPIN}, s{sSPIN}, 1
    s_cmp_ge_u32 s{sSPIN}, {SPIN_MAX}
    s_cbranch_scc1 L_fin
    s_sleep 64
    s_branch L_kpoll
    L_kok:
    s_barrier
    s_cmp_lg_u32 s{sWAVE}, 0
    s_cbranch_scc1 L_fin
    v_mov_b32 v64, {WS_EPOCH}
    v_mov_b32 v68, s{sTAG}
    v_mov_b32 v69, s{sTAG+1}
    s_mov_b64 exec, 1
    buffer_store_dwordx2 v[68:69], v64, s[{srdWS}:{srdWS+3}], 0 offen sc1
    s_mov_b64 exec, -1
    s_branch L_fin
    """)

def reducer(p):
    p.vmq = []
    vCOL, vGRP = 64, 65
    aP, aML, aQ = 66, 67, 68
    dP, dML, dQ = 72, 80, 112
    acc, accq = 100, 101
    sCB = sH
    gx, gw = vG+5, vG+6
    p(f"""
    s_lshr_b32 s{sCB}, s{sH}, 1
    v_and_b32 v{vCOL}, 31, v0
    v_lshrrev_b32 v{vGRP}, 5, v0
    s_lshl_b32 s{sT0}, s{sB}, 6
    v_lshl_add_u32 v{aML}, v{vGRP}, 3, s{sT0}
    v_lshlrev_b32 v{aP}, 11, v{aML}
    s_lshl_b32 s{sT1}, s{sCB}, 7
    v_lshl_add_u32 v{aQ}, v{vCOL}, 2, s{sT1}
    v_add_u32 v{aP}, v{aP}, v{aQ}
    v_lshlrev_b32 v{aML}, 3, v{aML}
    v_add_u32 v{aML}, {WS_ML}, v{aML}
    s_lshl_b32 s{sT0}, s{sB}, 11
    v_mul_u32_u24 v102, {7 * 8192}, v{vGRP}
    v_add3_u32 v{aQ}, v{aQ}, v102, s{sT0}
    s_mov_b32 s{sSPIN}, 0
    v_lshlrev_b32 v104, 16, v{gx}
    v_and_b32 v105, s{sHI}, v{gx}
    v_lshlrev_b32 v106, 16, v{gw}
    v_and_b32 v107, s{sHI}, v{gw}
    v_mul_f32 v104, v104, v106
    v_mul_f32 v105, v105, v107
    v_cvt_pk_bf16_f32 v104, v104, v105
    v_lshlrev_b32 v105, 16, v104
    v_and_b32 v104, s{sHI}, v104
    v_add_f32 v104, v104, v105
    v_add_f32_dpp v104, v104, v104 quad_perm:[1,0,3,2] row_mask:0xf bank_mask:0xf
    v_add_f32_dpp v104, v104, v104 quad_perm:[2,3,0,1] row_mask:0xf bank_mask:0xf
    v_add_f32_dpp v104, v104, v104 row_half_mirror row_mask:0xf bank_mask:0xf
    v_add_f32_dpp v104, v104, v104 row_mirror row_mask:0xf bank_mask:0xf
    v_add_f32_dpp v104, v104, v104 row_bcast:15 row_mask:0xa bank_mask:0xf
    v_add_f32_dpp v104, v104, v104 row_bcast:31 row_mask:0xc bank_mask:0xf
    v_readlane_b32 s{sT1}, v104, 63
    s_lshl_b32 s{sT2}, s{sWAVE}, 2
    v_mov_b32 v105, s{sT2}
    v_mov_b32 v104, s{sT1}
    ds_write_b32 v105, v104 offset:8192
    s_add_u32 s{srdV}, s{sWS}, {WS_Q}
    s_addc_u32 s{srdV+1}, s{sWS+1}, 0
    s_and_b32 s{srdV+1}, s{srdV+1}, 0xffff
    s_mov_b32 s{srdV+2}, {NQ * 8192}
    s_mov_b32 s{srdV+3}, 0x20000
    s_cmp_lg_u32 s{sWAVE}, 0
    s_cbranch_scc1 L_pollok
    s_lshl_b32 s{sT0}, s{sB}, 9
    s_add_u32 s{sT0}, s{sT0}, {WS_HINT}
    v_lshl_add_u32 v103, v{vLANE}, 3, s{sT0}
    s_lshr_b32 s{sT0}, s{sCB}, 2
    s_lshl_b32 s{sT0}, s{sT0}, 9
    s_add_u32 s{sT0}, s{sT0}, {WS_F2}
    v_min_u32 v108, 55, v{vLANE}
    v_lshl_add_u32 v108, v108, 3, s{sT0}
    L_apoll:
    buffer_load_dwordx2 v[110:111], v103, s[{srdWS}:{srdWS+3}], 0 offen sc1
    buffer_load_dwordx2 v[120:121], v108, s[{srdWS}:{srdWS+3}], 0 offen sc1
    s_waitcnt vmcnt(0)
    v_cmp_ne_u64 vcc, s[{sTAG}:{sTAG+1}], v[110:111]
    s_mov_b64 s[{sT0}:{sT0+1}], vcc
    """)
    if not (O.noffn or O.fnosync):
        p(f"""
        v_cmp_ne_u64 vcc, s[{sTAG}:{sTAG+1}], v[120:121]
        s_or_b64 s[{sT0}:{sT0+1}], s[{sT0}:{sT0+1}], vcc
        """)
    p(f"""
    s_cmp_eq_u64 s[{sT0}:{sT0+1}], 0
    s_cbranch_scc1 L_pollok
    s_add_u32 s{sSPIN}, s{sSPIN}, 1
    s_cmp_ge_u32 s{sSPIN}, {SPIN_MAX}
    s_cbranch_scc1 L_fin
    s_sleep {O.sleep}
    s_branch L_apoll
    L_pollok:
    s_waitcnt lgkmcnt(0)
    s_barrier
    """)
    if O.rstamps: stamp(p, 2)
    for i in range(7):
        p(f"s_mov_b32 s{sT2}, {i * 8192}")
        p(f"buffer_load_dword v{dQ+i}, v{aQ}, s[{srdV}:{srdV+3}], s{sT2} offen sc1")
    def data_loads():
        for k in range(8):
            p(f"s_mov_b32 s{sT2}, {k * 2048}")
            p(f"buffer_load_dword v{dP+k}, v{aP}, s[{srdWS}:{srdWS+3}], s{sT2} offen sc1")
        for i in range(4):
            p(f"buffer_load_dwordx4 {r4(dML+4*i)}, v{aML}, s[{srdWS}:{srdWS+3}], 0 offen offset:{16*i} sc1")
    data_loads()
    p(f"""
    v_mov_b32 v103, 0
    ds_read_b128 v[104:107], v103 offset:8192
    s_waitcnt lgkmcnt(0)
    v_add_f32 v104, v104, v105
    v_add_f32 v106, v106, v107
    v_add_f32 v122, v104, v106
    """)
    gate_math(p, 122, None, 123)
    srd(p, srdK, sOUT, None, 4096)
    p(f"""
    s_lshl_b32 s{sT0}, s{sB}, 10
    s_lshl_b32 s{sT1}, s{sCB}, 6
    s_add_u32 s{sT0}, s{sT0}, s{sT1}
    v_lshlrev_b32 v124, 1, v{vCOL}
    v_add_u32 v124, s{sT0}, v124
    v_lshlrev_b32 v125, 2, v0
    v_lshlrev_b32 v126, 2, v{vCOL}
    L_dcheck:
    s_waitcnt vmcnt(0)
    """)
    p(f"v_max_u32 v102, v{dP}, v{dP+1}")
    for k in range(2, 8, 2): p(f"v_max3_u32 v102, v102, v{dP+k}, v{dP+k+1}")
    for k in range(0, 16, 2): p(f"v_max3_u32 v102, v102, v{dML+k}, v{dML+k+1}")
    p(f"""
    v_cmp_eq_u32 vcc, -1, v102
    s_cbranch_vccz L_dok
    s_add_u32 s{sSPIN}, s{sSPIN}, 1
    s_cmp_ge_u32 s{sSPIN}, {SPIN_MAX}
    s_cbranch_scc1 L_fin
    s_mov_b64 exec, vcc
    """)
    data_loads()
    p(f"""
    s_branch L_dcheck
    L_dok:
    s_mov_b64 exec, -1
    v_mov_b32 v{acc}, 0
    """)
    if O.rstamps:
        stamp(p, 3)
        p(f"s_mov_b32 s{sST+2*1}, s{sSPIN}")
    for i in range(4):
        m0, l0, m1, l1 = dML+4*i, dML+4*i+1, dML+4*i+2, dML+4*i+3
        p(f"""
        v_max_f32 v102, v{m0}, v{m1}
        v_sub_f32 v{m0}, v{m0}, v102
        v_sub_f32 v{m1}, v{m1}, v102
        v_mul_f32 v{m0}, s{sL2E}, v{m0}
        v_mul_f32 v{m1}, s{sL2E}, v{m1}
        v_exp_f32 v{m0}, v{m0}
        v_exp_f32 v{m1}, v{m1}
        v_mul_f32 v102, v{m0}, v{l0}
        v_fma_f32 v102, v{m1}, v{l1}, v102
        v_rcp_f32 v102, v102
        v_mul_f32 v104, v{m0}, v{dP+2*i}
        v_fma_f32 v104, v{m1}, v{dP+2*i+1}, v104
        v_fma_f32 v{acc}, v104, v102, v{acc}
        """)
    p(f"""
    v_add_f32 v{dQ}, v{dQ}, v{dQ+1}
    v_add_f32 v{dQ+2}, v{dQ+2}, v{dQ+3}
    v_add_f32 v{dQ+4}, v{dQ+4}, v{dQ+5}
    v_add_f32 v{dQ}, v{dQ}, v{dQ+2}
    v_add_f32 v{dQ+4}, v{dQ+4}, v{dQ+6}
    v_add_f32 v{accq}, v{dQ}, v{dQ+4}
    ds_write_b32 v125, v{acc} offset:5120
    ds_write_b32 v125, v{accq} offset:6144
    s_waitcnt lgkmcnt(0)
    s_barrier
    s_cmp_lg_u32 s{sWAVE}, 0
    s_cbranch_scc1 L_fin
    """)
    for g in range(8):
        p(f"ds_read_b32 v{dP+g}, v126 offset:{5120 + g*128}")
        p(f"ds_read_b32 v{dML+g}, v126 offset:{6144 + g*128}")
    p("s_waitcnt lgkmcnt(0)")
    for pair in ((0, 1), (2, 3), (4, 5), (6, 7), (0, 2), (4, 6), (0, 4)):
        for base in (dP, dML):
            p(f"v_add_f32 v{base+pair[0]}, v{base+pair[0]}, v{base+pair[1]}")
    p(f"""
    v_cvt_pk_bf16_f32 v106, v{dP}, v{dML}
    v_lshlrev_b32 v107, 16, v106
    v_and_b32 v106, s{sHI}, v106
    v_mul_f32 v107, v122, v107
    v_mul_f32 v106, v123, v106
    v_cvt_pk_bf16_f32 v106, v107, v106
    v_lshlrev_b32 v107, 16, v106
    v_and_b32 v106, s{sHI}, v106
    v_add_f32 v106, v106, v107
    v_cvt_pk_bf16_f32 v106, v106, v106
    s_mov_b64 exec, 0xffffffff
    buffer_store_short v106, v124, s[{srdK}:{srdK+3}], 0 offen
    s_mov_b64 exec, -1
    """)

def ffn(p):
    sF, sFS, sRR = sH, sB, sR
    vXP, vSEL, vD0, vD1 = 50, 4, 12, 16
    vG1, vWD, vH = 64, 96, 112
    srdG = srdK
    vBC = 30
    p.vmq = []
    p("L_ffn:")
    if O.prio: p("s_setprio 3")
    constants_and_masks(p)
    p("s_waitcnt lgkmcnt(0)")
    stamp(p, 1)
    p(f"s_load_dwordx2 s[{sTAG}:{sTAG+1}], s[{sWS}:{sWS+1}], {hex(WS_EPOCH)}")
    p(f"""
    s_sub_u32 s{sF}, s2, {NATT}
    s_lshr_b32 s{sFS}, s{sF}, 4
    s_and_b32 s{sRR}, s{sF}, 15
    """)
    srd(p, srdX, sX, None, 4096)
    p(f"""
    s_and_b32 s{sT0}, s{sRR}, 7
    s_lshl_b32 s{sT0}, s{sT0}, 6
    s_lshl_b32 s{sT1}, s{sWAVE}, 4
    s_add_u32 s{sT0}, s{sT0}, s{sT1}
    v_lshl_add_u32 v{vT+5}, v{vT+4}, 2, s{sT0}
    v_and_b32 v{vT}, 3, v{vLANE}
    v_add_u32 v{vT}, v{vT}, v{vT+5}
    v_lshlrev_b32 v{vT}, 1, v{vT}
    v_add_u32 v{vT+1}, 2048, v{vT}
    """)
    xr = 22
    for b in range(4):
        p.vm(f"buffer_load_ushort v{xr + b}, v{vT + (b >> 1)}, s[{srdX}:{srdX+3}], 0 offen offset:{(b & 1) * 1024}", "x")
    p(f"""
    s_cmp_lt_u32 s{sRR}, 8
    s_cselect_b32 s{srdG}, s{sWG}, s{sWU}
    s_cselect_b32 s{srdG+1}, s{sWG+1}, s{sWU+1}
    s_lshl_b32 s{sT0}, s{sFS}, 8
    s_add_u32 s{srdG}, s{srdG}, s{sT0}
    s_addc_u32 s{srdG+1}, s{srdG+1}, 0
    s_and_b32 s{srdG+1}, s{srdG+1}, 0xffff
    s_sub_u32 s{srdG+2}, {512 * 3584}, s{sT0}
    s_mov_b32 s{srdG+3}, 0x20000
    v_mul_u32_u24 v20, 3584, v{vT+5}
    v_add_u32 v20, v20, v{vT+3}
    """)
    for t in range(4):
        p(f"s_mov_b32 s{sT2}, {t * 3584}")
        p.vm(f"buffer_load_dwordx4 {r4(vG1 + 4*t)}, v20, s[{srdG}:{srdG+3}], s{sT2} offen {O.fpol}", ("W", t))
    srd(p, srdW, sWD, None, 1792 * 1024)
    p(f"""
    s_lshl_b32 s{sT0}, s{sFS}, 7
    s_lshr_b32 s{sT1}, s{sRR}, 2
    s_lshl_b32 s{sT1}, s{sT1}, 5
    s_add_u32 s{sT0}, s{sT0}, s{sT1}
    s_lshl_b32 s{sT1}, s{sWAVE}, 3
    s_add_u32 s{sT0}, s{sT0}, s{sT1}
    v_lshl_add_u32 v{vW}, v{vT+4}, 1, s{sT0}
    v_lshlrev_b32 v{vW}, 10, v{vW}
    s_and_b32 s{sT0}, s{sRR}, 3
    s_lshl_b32 s{sT0}, s{sT0}, 8
    v_add3_u32 v{vW}, v{vW}, v{vT+3}, s{sT0}
    """)
    for t in range(2):
        p.vm(f"buffer_load_dwordx4 {r4(vWD + 4*t)}, v{vW}, s[{srdW}:{srdW+3}], 0 offen offset:{t * 1024} {O.fpol}", ("D", t))
    p(f"""
    v_and_b32 v{vT+5}, 8, v{vLANE}
    v_mov_b32 v{vT+6}, 0x0100
    v_mov_b32 v{vT+7}, 0x0302
    v_cmp_eq_u32 vcc, 0, v{vT+5}
    v_cndmask_b32 v{vT+6}, v{vT+7}, v{vT+6}, vcc
    v_lshlrev_b32 v{vT+7}, 16, v{vT+6}
    v_or_b32 v{vT+7}, 0x0c0c, v{vT+7}
    v_or_b32 v{vT+6}, 0x0c0c0000, v{vT+6}
    v_and_b32 v{vT+5}, 1, v{vLANE}
    v_cmp_eq_u32 vcc, 0, v{vT+5}
    v_cndmask_b32 v{vT+6}, v{vT+7}, v{vT+6}, vcc
    v_bfe_u32 v{vT+5}, v{vLANE}, 1, 2
    v_mov_b32 v{vT+7}, 0x0c0c0c0c
    """)
    for j in range(4):
        p(f"v_cmp_eq_u32 vcc, {j}, v{vT+5}")
        p(f"v_cndmask_b32 v{vSEL+j}, v{vT+7}, v{vT+6}, vcc")
    srd(p, srdWS, sWS, None, WS_BYTES)
    vRD = 54
    p(f"""
    s_lshr_b32 s{sT0}, s{sWAVE}, 1
    s_lshl_b32 s{sT0}, s{sT0}, 10
    s_and_b32 s{sT1}, s{sWAVE}, 1
    s_lshl_b32 s{sT1}, s{sT1}, 9
    s_add_u32 s{sT0}, s{sT0}, s{sT1}
    v_bfe_u32 v{vRD}, v{vLANE}, 1, 1
    v_lshlrev_b32 v{vRD}, 8, v{vRD}
    v_lshrrev_b32 v{vT+5}, 2, v{vLANE}
    v_lshl_add_u32 v{vRD}, v{vT+5}, 4, v{vRD}
    v_and_b32 v{vT+5}, 1, v{vLANE}
    v_lshl_add_u32 v{vRD}, v{vT+5}, 3, v{vRD}
    v_add_u32 v{vRD}, s{sT0}, v{vRD}
    """)
    def step(src_of_pair, lane):
        for pr in range(2):
            p(f"v_mov_b32_dpp v{vBC+pr}, v{src_of_pair(pr)} row_newbcast:{lane} row_mask:0xf bank_mask:0xf")
        for pr in range(2):
            for j in range(4):
                p(f"v_perm_b32 v{vA + 4*pr + j}, v{vBC+pr}, v{vBC+pr}, v{vSEL+j}")
    def cross_wave_sum(dst):
        p(f"""
        s_lshl_b32 s{sT0}, s{sWAVE}, 11
        v_lshlrev_b32 v{vT}, 4, v{vLANE}
        v_add_u32 v{vT}, s{sT0}, v{vT}
        ds_write_b128 v{vT}, {r4(vD0)}
        ds_write_b128 v{vT}, {r4(vD1)} offset:1024
        s_waitcnt lgkmcnt(0)
        s_barrier
        """)
        for w in range(4):
            p(f"ds_read_b64 v[{vP+2*w}:{vP+2*w+1}], v{vRD} offset:{w*2048}")
        p("s_waitcnt lgkmcnt(0)")
        for e in range(2):
            p(f"v_add_f32 v{vP+e}, v{vP+e}, v{vP+2+e}")
            p(f"v_add_f32 v{vP+4+e}, v{vP+4+e}, v{vP+6+e}")
        for e in range(2):
            p(f"v_add_f32 v{dst+e}, v{vP+e}, v{vP+4+e}")
    p.wait_vm("x")
    for pr in range(2):
        p(f"v_lshl_or_b32 v{vXP + pr}, v{xr + 2*pr + 1}, 16, v{xr + 2*pr}")
    for r in range(8): p(f"v_mov_b32 v{vD0 + r}, 0")
    stamp(p, 2)
    for t in range(4):
        step(lambda pr: vXP + pr, t)
        p.wait_vm(("W", t))
        p(f"v_mfma_f32_16x16x32_bf16 {r4(vD0)}, {r4(vA)}, {r4(vG1 + 4*t)}, {r4(vD0)}")
        p(f"v_mfma_f32_16x16x32_bf16 {r4(vD1)}, {r4(vA+4)}, {r4(vG1 + 4*t)}, {r4(vD1)}")
    cross_wave_sum(26)
    p(f"""
    s_lshl_b32 s{sT0}, s{sF}, 11
    s_lshl_b32 s{sT1}, s{sWAVE}, 9
    s_add_u32 s{sT0}, s{sT0}, s{sT1}
    s_add_u32 s{sT0}, s{sT0}, {WS_H}
    v_lshl_add_u32 v{vT}, v{vLANE}, 3, s{sT0}
    buffer_store_dwordx2 v[26:27], v{vT}, s[{srdWS}:{srdWS+3}], 0 offen sc1
    s_lshl_b32 s{sT0}, s{sF}, 3
    s_add_u32 s{sT0}, s{sT0}, {WS_F1}
    v_mov_b32 v{vT+1}, s{sT0}
    s_add_u32 s{sTAG}, s{sTAG}, 1
    s_addc_u32 s{sTAG+1}, s{sTAG+1}, 0
    v_mov_b32 v28, s{sTAG}
    v_mov_b32 v29, s{sTAG+1}
    s_lshl_b32 s{sT0}, s{sFS}, 7
    s_add_u32 s{sT0}, s{sT0}, {WS_F1}
    v_lshl_add_u32 v{vT+2}, v{vLANE}, 3, s{sT0}
    s_waitcnt vmcnt(0)
    s_barrier
    """)
    p.vmq = []
    stamp(p, 4)
    p(f"""
    s_cmp_lg_u32 s{sWAVE}, {99 if O.fnosync else 0}
    s_cbranch_scc1 L_f1ok
    s_mov_b64 exec, 1
    buffer_store_dwordx2 v[28:29], v{vT+1}, s[{srdWS}:{srdWS+3}], 0 offen sc1
    s_mov_b64 exec, 0xffff
    s_mov_b32 s{sSPIN}, 0
    L_f1poll:
    s_sleep {O.fsleep}
    buffer_load_dwordx2 v[{vT+6}:{vT+7}], v{vT+2}, s[{srdWS}:{srdWS+3}], 0 offen sc1
    s_waitcnt vmcnt(0)
    v_cmp_ne_u64 vcc, s[{sTAG}:{sTAG+1}], v[{vT+6}:{vT+7}]
    s_cmp_eq_u64 vcc, 0
    s_cbranch_scc1 L_f1seen
    s_add_u32 s{sSPIN}, s{sSPIN}, 1
    s_cmp_ge_u32 s{sSPIN}, {SPIN_MAX}
    s_cbranch_scc1 L_fin
    s_branch L_f1poll
    L_f1seen:
    s_mov_b64 exec, -1
    L_f1ok:
    s_barrier
    """)
    p(f"""
    s_lshl_b32 s{sT0}, s{sFS}, 4
    s_lshl_b32 s{sT1}, s{sWAVE}, 2
    s_add_u32 s{sT0}, s{sT0}, s{sT1}
    v_lshrrev_b32 v{vT}, 5, v{vLANE}
    v_add_u32 v{vT}, s{sT0}, v{vT}
    v_lshlrev_b32 v{vT}, 11, v{vT}
    v_bfe_u32 v{vT+1}, v{vLANE}, 3, 2
    v_lshl_add_u32 v{vT}, v{vT+1}, 9, v{vT}
    v_and_b32 v{vT+2}, 7, v{vLANE}
    v_lshl_add_u32 v{vT}, v{vT+2}, 4, v{vT}
    s_lshr_b32 s{sT1}, s{sRR}, 2
    s_lshl_b32 s{sT1}, s{sT1}, 7
    s_add_u32 s{sT1}, s{sT1}, {WS_H}
    v_add_u32 v{vT}, s{sT1}, v{vT}
    s_mov_b32 s{sT2}, 4096
    buffer_load_dwordx4 {r4(vH)}, v{vT}, s[{srdWS}:{srdWS+3}], 0 offen sc1
    buffer_load_dwordx4 {r4(vH+4)}, v{vT}, s[{srdWS}:{srdWS+3}], s{sT2} offen sc1
    s_lshl_b32 s{sT0}, s{sWAVE}, 11
    v_lshrrev_b32 v{vT+5}, 5, v{vLANE}
    v_lshlrev_b32 v{vT+5}, 9, v{vT+5}
    v_lshl_add_u32 v{vT+5}, v{vT+1}, 7, v{vT+5}
    v_lshl_add_u32 v{vT+5}, v{vT+2}, 4, v{vT+5}
    v_add_u32 v{vT+5}, s{sT0}, v{vT+5}
    s_waitcnt vmcnt(0)
    ds_write_b128 v{vT+5}, {r4(vH)} offset:8192
    ds_write_b128 v{vT+5}, {r4(vH+4)} offset:9216
    v_and_b32 v{vT}, 127, v0
    v_lshlrev_b32 v{vT}, 2, v{vT}
    s_waitcnt lgkmcnt(0)
    s_barrier
    """)
    for pi in range(16):
        p(f"ds_read_b32 v{vG1+pi}, v{vT} offset:{8192 + pi*512}")
    p("s_waitcnt lgkmcnt(0)")
    for base in (vG1, vG1 + 8):
        p(f"""
        v_add_f32 v{base}, v{base}, v{base+1}
        v_add_f32 v{base+2}, v{base+2}, v{base+3}
        v_add_f32 v{base+4}, v{base+4}, v{base+5}
        v_add_f32 v{base+6}, v{base+6}, v{base+7}
        v_add_f32 v{base}, v{base}, v{base+2}
        v_add_f32 v{base+4}, v{base+4}, v{base+6}
        v_add_f32 v{base}, v{base}, v{base+4}
        """)
    h1, h2, t0, t1 = vP, vP+4, vP+1, vP+2
    C0 = 0x3F4C422A
    C1 = 0x3D372713
    p(f"""
    v_cvt_pk_bf16_f32 v{t0}, v{vG1}, v{vG1+8}
    v_lshlrev_b32 v{h1}, 16, v{t0}
    v_and_b32 v{h2}, s{sHI}, v{t0}
    v_mul_f32 v{t0}, v{h1}, v{h1}
    v_mul_f32 v{t0}, v{t0}, v{h1}
    v_mov_b32 v{t1}, {hex(C1)}
    v_fma_f32 v{t0}, v{t0}, v{t1}, v{h1}
    v_mul_f32 v{t0}, {hex(C0)}, v{t0}
    v_mul_f32 v{t0}, s{sL2E}, v{t0}
    v_mul_f32 v{t0}, -2.0, v{t0}
    v_exp_f32 v{t0}, v{t0}
    v_add_f32 v{t0}, 1.0, v{t0}
    v_rcp_f32 v{t0}, v{t0}
    v_mul_f32 v{t0}, v{h1}, v{t0}
    v_cvt_pk_bf16_f32 v{t0}, v{t0}, v{t0}
    v_lshlrev_b32 v{t0}, 16, v{t0}
    v_mul_f32 v{t0}, v{t0}, v{h2}
    v_cvt_pk_bf16_f32 v{t0}, v{t0}, v{t0}
    v_bfe_u32 v{vT+1}, v0, 6, 1
    v_lshlrev_b32 v{vT+1}, 7, v{vT+1}
    v_and_b32 v{vT+2}, 31, v0
    v_lshl_add_u32 v{vT+1}, v{vT+2}, 2, v{vT+1}
    v_bfe_u32 v{vT+2}, v0, 5, 1
    v_lshl_add_u32 v{vT+1}, v{vT+2}, 1, v{vT+1}
    ds_write_b16 v{vT+1}, v{t0} offset:16384
    s_lshl_b32 s{sT0}, s{sWAVE}, 3
    v_lshl_add_u32 v{vT+2}, v{vT+4}, 1, s{sT0}
    v_and_b32 v{vT+5}, 1, v{vLANE}
    v_add_u32 v{vT+2}, v{vT+2}, v{vT+5}
    v_lshlrev_b32 v{vT+2}, 2, v{vT+2}
    s_waitcnt lgkmcnt(0)
    s_barrier
    ds_read_b32 v{vXP}, v{vT+2} offset:16384
    ds_read_b32 v{vXP+1}, v{vT+2} offset:16512
    """)
    for r in range(8): p(f"v_mov_b32 v{vD0 + r}, 0")
    p("s_waitcnt lgkmcnt(0)")
    stamp(p, 5)
    for t in range(2):
        step(lambda pr: vXP + pr, t)
        p(f"v_mfma_f32_16x16x32_bf16 {r4(vD0)}, {r4(vA)}, {r4(vWD + 4*t)}, {r4(vD0)}")
        p(f"v_mfma_f32_16x16x32_bf16 {r4(vD1)}, {r4(vA+4)}, {r4(vWD + 4*t)}, {r4(vD1)}")
    cross_wave_sum(26)
    stamp(p, 6)
    p(f"""
    s_lshl_b32 s{sT0}, s{sFS}, 2
    s_lshr_b32 s{sT1}, s{sRR}, 2
    s_add_u32 s{sT0}, s{sT0}, s{sT1}
    s_lshl_b32 s{sT0}, s{sT0}, 13
    s_lshl_b32 s{sT1}, s{sWAVE}, 11
    s_add_u32 s{sT0}, s{sT0}, s{sT1}
    s_and_b32 s{sT1}, s{sRR}, 3
    s_lshl_b32 s{sT1}, s{sT1}, 9
    s_add_u32 s{sT0}, s{sT0}, s{sT1}
    s_add_u32 s{sT0}, s{sT0}, {WS_Q}
    v_lshl_add_u32 v{vT}, v{vLANE}, 3, s{sT0}
    buffer_store_dwordx2 v[26:27], v{vT}, s[{srdWS}:{srdWS+3}], 0 offen sc1
    s_and_b32 s{sT0}, s{sRR}, 3
    s_lshl_b32 s{sT0}, s{sT0}, 6
    s_lshl_b32 s{sT1}, s{sFS}, 2
    s_add_u32 s{sT0}, s{sT0}, s{sT1}
    s_lshr_b32 s{sT1}, s{sRR}, 2
    s_add_u32 s{sT0}, s{sT0}, s{sT1}
    s_lshl_b32 s{sT0}, s{sT0}, 3
    s_add_u32 s{sT0}, s{sT0}, {WS_F2}
    v_mov_b32 v{vT+1}, s{sT0}
    s_waitcnt vmcnt(0)
    s_barrier
    s_cmp_lg_u32 s{sWAVE}, {99 if O.fnosync else 0}
    s_cbranch_scc1 L_fin
    s_mov_b64 exec, 1
    buffer_store_dwordx2 v[28:29], v{vT+1}, s[{srdWS}:{srdWS+3}], 0 offen sc1
    s_mov_b64 exec, -1
    """)

def kernel1():
    p = Prog()
    common_prologue(p)
    p(f"""
    s_cmp_ge_u32 s2, {NATT}
    s_cbranch_scc1 L_ffn
    """)
    routine = attention(p)
    p.ins += routine
    ffn(p)
    p("L_fin:")
    if O.dbgtime:
        p(f"""
        s_cmp_lg_u32 s{sWAVE}, 0
        s_cbranch_scc1 L_end
        s_and_b32 s74, s2, 0x1f
        s_cmp_lg_u32 s74, 0
        s_cbranch_scc1 L_end
        s_waitcnt vmcnt(0)
        s_memrealtime s[72:73]
        s_mov_b64 exec, 1
        s_mov_b32 s64, s38
        s_and_b32 s65, s39, 0xffff
        s_mov_b32 s66, 256
        s_mov_b32 s67, 0x20000
        s_waitcnt lgkmcnt(0)
        s_not_b32 s70, s70
        v_mov_b32 v60, s70
        v_mov_b32 v61, s72
        v_mov_b32 v62, 16
        buffer_atomic_umax v60, v62, s[64:67], 0 offen sc1
        buffer_atomic_umax v61, v62, s[64:67], 0 offen offset:4 sc1
        """)
    if O.stamps:
        p("s_waitcnt vmcnt(0)")
        stamp(p, 8)
        write_stamps(p, 9)
    p("L_end:")
    p("s_endpgm")
    p.finish()
    p.check_loop("L_kloop", "s_cbranch_scc1 L_kloop")
    p.check_loop("L_vloop", "s_cbranch_scc1 L_vloop")
    if any(i.text.strip() == "L_vloop2:" for i in p.ins): p.check_loop("L_vloop2", "s_cbranch_scc1 L_vloop2")
    return p

def desc(name, vgpr, sgpr):
    acc = (vgpr + 3) // 4 * 4
    return f""".amdhsa_kernel {name}
  .amdhsa_next_free_vgpr {vgpr}
  .amdhsa_next_free_sgpr {sgpr}
  .amdhsa_accum_offset {acc}
  .amdhsa_group_segment_fixed_size 0
  .amdhsa_kernarg_size 104
  .amdhsa_user_sgpr_count 2
  .amdhsa_user_sgpr_kernarg_segment_ptr 1
  .amdhsa_system_sgpr_workgroup_id_x 1
  .amdhsa_float_denorm_mode_32 3
.end_amdhsa_kernel
"""

def gen():
    k1 = NAME + "_kernel"
    out = HEADER
    out += f"; @launch grid=({nwg()},1,1) block=(256,1,1) lds=49152\n"
    out += '.amdgcn_target "amdgcn-amd-amdhsa--gfx950"\n.text\n'
    out += f".globl {k1}\n.p2align 8\n.type {k1},@function\n{k1}:\n" + kernel1().text()
    out += '.section .rodata,"a"\n.p2align 6\n' + desc(k1, 256, 102 if O.stamps else 96)
    return out

if __name__ == "__main__":
    for a in sys.argv[2:]:
        if "=" in a:
            k, v = a.split("=", 1); setattr(O, k, v.replace("_", " ").replace("def", "") if k.endswith("pol") else (v if k == "pat" else eval(v)))
        else: setattr(O, a, True)
    open(sys.argv[1], "w").write(gen())
```

```python
import sys
from asmlib import Prog

NAME = "gated_mix__mha_block_cached__geglu_ffn__decode"
HEADER = open("gated_mix__mha_block_cached__geglu_ffn__decode.s.ref").read().split("; Override launch")[0]

NATT = 256
NFFN = 224
NQ = 56
L2E = 0x3FB8AA3B
SCALE = 0x3DB504F3
WS_P, WS_ML, WS_Q = 0, 0x80000, 0x100000
WS_H = 0x180000
WS_EPOCH, WS_HINT, WS_F1, WS_F2 = 0x90000, 0x90400, 0x91000, 0x92000
WS_BYTES = 0x200000
WS_ST = 0x200000
SPIN_MAX = 1 << 22

DOC = """;
;
;   1. q[b,h,:] = x[b] . wq[:, head]  (MFMA; every 1 KiB load holds 4 rows x 128 columns, the A operand is the row
;      weight placed on a diagonal so that the contraction runs over the 4 rows), rounded to bf16.
;      record P[512], (M, L).
;   stage 1: partial x . w_gate / x . w_up over 64 rows; stage 2: gelu(h1) * h2, then 32 rows of w_down.
;
;   the record was emptied; they then poll the record words until none is all-ones.
"""

class O:
    stamps = False
    wpol = ""
    kvpol = "nt"
    vpol = None
    ffn_even = False
    prio = True
    aprio = 0
    noffn = False
    sleep = 32
    rot = 4
    dbgtime = False
    lead = 5
    lead2 = 16
    qinline = 16
    first = 4
    hintv = None
    ks1 = 3
    ks2 = 11
    dsleep = 0
    acc2 = True
    rstamps = False
    phase = None
    pat = ""
    gran = 8
    tstep = 32768
    wmul = 1
    bidir = 0
    rot2 = 0
    dry = None
    pstamps = False
    mix = None
    stagger = False
    lead0 = 16
    j0 = 16
    leadv = 0
    kstamps = False
    vsw = 24
    pre = 16
    flead = 0
    fnosync = False
    fpol = "nt"
    fsleep = 16
    wqrot = False
    wo0 = 2

sX, sK, sV, sWQ, sWO, sBX, sWG, sWU, sWD, sGW, sOUT, sDBG, sWS = 16, 18, 20, 22, 24, 26, 28, 30, 32, 34, 36, 38, 40
srdK, srdV, srdW, srdX, srdWS, srdD = 44, 48, 52, 56, 60, 64
sWAVE, sH, sB, sR = 3, 4, 5, 6
sOFF, sCNT, sL2E, sSCALE, sRET = 8, 9, 10, 11, 12
sT0, sT1, sT2 = 14, 15, 7
sHI, sOFF1, sOFF2, sSPIN = 68, 69, 42, 43
sST = 70
sROT = 89
sSTEP = 95
sKB = 95
sKVT = 87
sTAG = 90
vLANE, vKV0, vKV1 = 1, 2, 3
vMASK, vQ, vO = 4, 8, 12
vM, vL = 16, 17
vP, vR, vU, vA, vT = 18, 26, 30, 32, 40
vW, vWO, vX = 48, 49, 50
vSC, vW0, vW1 = 62, 60, 61
LDS_SC = 16384
vG = 52
BANK_A, BANK_B, BANK_C = 64, 128, 192
vWA = 128

def nwg(): return NATT if O.noffn else NATT + NFFN

def srd(p, dst, base, off_lo=None, size=None):
    if off_lo is None:
        p(f"s_mov_b32 s{dst}, s{base}")
        p(f"s_and_b32 s{dst+1}, s{base+1}, 0xffff")
    else:
        p(f"s_add_u32 s{dst}, s{base}, {off_lo}")
        p(f"s_addc_u32 s{dst+1}, s{base+1}, 0")
        p(f"s_and_b32 s{dst+1}, s{dst+1}, 0xffff")
    p(f"s_mov_b32 s{dst+2}, {size}")
    p(f"s_mov_b32 s{dst+3}, 0x20000")

def r4(b): return f"v[{b}:{b+3}]"

def stamp(p, k):
    if O.stamps: p(f"s_memrealtime s[{sST+2*k}:{sST+2*k+1}]")

def write_stamps(p, n):
    if not O.stamps: return
    p("s_mov_b64 exec, 1")
    p(f"s_getreg_b32 s{sST+22}, hwreg(HW_REG_HW_ID)")
    p(f"s_getreg_b32 s{sST+23}, hwreg(HW_REG_XCC_ID)")
    p("s_waitcnt lgkmcnt(0)")
    p(f"s_lshl_b32 s{sST+24}, s2, 2")
    p(f"s_add_u32 s{sST+24}, s{sST+24}, s{sWAVE}")
    p(f"s_lshl_b32 s{sST+24}, s{sST+24}, 6")
    p(f"s_add_u32 s{sST+24}, s{sST+24}, {WS_ST}")
    p(f"v_mov_b32 v60, s{sST+24}")
    p("s_mov_b32 s96, s40")
    p("s_and_b32 s97, s41, 0xffff")
    p("s_mov_b32 s98, 0x400000")
    p("s_mov_b32 s99, 0x20000")
    for k in range(n):
        p(f"v_mov_b32 v61, s{sST+2*k}")
        p(f"buffer_store_dword v61, v60, s[96:99], 0 offen offset:{4*k}")
    p(f"v_mov_b32 v61, s{sST+22}")
    p("buffer_store_dword v61, v60, s[96:99], 0 offen offset:56")
    p(f"v_mov_b32 v61, s{sST+23}")
    p("buffer_store_dword v61, v60, s[96:99], 0 offen offset:60")

def common_prologue(p):
    p(f"""
    s_cmp_ge_u32 s2, {nwg()}
    s_cbranch_scc1 L_end
    """)
    stamp(p, 0)
    if O.dbgtime: p("s_memrealtime s[70:71]")
    p(f"""
    s_load_dwordx16 s[16:31], s[0:1], 0
    s_load_dwordx8 s[32:39], s[0:1], 64
    s_load_dwordx2 s[40:41], s[0:1], 96
    v_and_b32 v{vLANE}, 63, v0
    v_lshrrev_b32 v{vT}, 6, v0
    v_and_b32 v{vT+3}, 15, v{vLANE}
    v_readfirstlane_b32 s{sWAVE}, v{vT}
    v_lshlrev_b32 v{vT+3}, 4, v{vT+3}
    v_lshrrev_b32 v{vT+4}, 4, v{vLANE}
    """)

def constants_and_masks(p):
    p(f"""
    s_mov_b32 s{sL2E}, {hex(L2E)}
    s_mov_b32 s{sSCALE}, {hex(SCALE)}
    s_mov_b32 s{sHI}, 0xffff0000
    v_and_b32 v{vT+5}, 1, v{vLANE}
    v_lshlrev_b32 v{vT+5}, 4, v{vT+5}
    v_mov_b32 v{vT+6}, 0xffff
    v_lshlrev_b32 v{vT+6}, v{vT+5}, v{vT+6}
    v_bfe_u32 v{vT+7}, v{vLANE}, 1, 3
    """)
    for j in range(4):
        p(f"v_cmp_eq_u32 vcc, {j}, v{vT+7}")
        p(f"v_cndmask_b32 v{vMASK+j}, 0, v{vT+6}, vcc")

def tile_bytes(k):
    if O.pat == "rows": return ((k >> 2) << 17) + ((k & 3) << 13)
    return k * O.tstep

def set_off(p, reg, k):
    if O.pat == "rows" and reg == sOFF1: p(f"s_mov_b32 s{sKB}, {k}")
    if O.bidir:
        p(f"s_mul_i32 s{reg}, s{sSTEP}, {k}")
        p(f"s_add_u32 s{reg}, s{reg}, s{sROT}")
        p(f"s_and_b32 s{reg}, s{reg}, 0xfffff")
    elif O.rot:
        p(f"s_add_u32 s{reg}, s{sROT}, {tile_bytes(k)}")
        p(f"s_and_b32 s{reg}, s{reg}, 0xfffff")
    else:
        p(f"s_mov_b32 s{reg}, {k * 32768}")

def adv_off(p, reg):
    if O.pat == "rows":
        p(f"""
        s_add_u32 s{sKB}, s{sKB}, 1
        s_and_b32 s{sKB}, s{sKB}, 31
        s_lshr_b32 s{sKVT}, s{sKB}, 2
        s_lshl_b32 s{sKVT}, s{sKVT}, 17
        s_and_b32 s{reg}, s{sKB}, 3
        s_lshl_b32 s{reg}, s{reg}, 13
        s_add_u32 s{reg}, s{reg}, s{sKVT}
        s_add_u32 s{reg}, s{reg}, s{sROT}
        s_and_b32 s{reg}, s{reg}, 0xfffff
        """)
        return
    if O.bidir: p(f"s_add_u32 s{reg}, s{reg}, s{sSTEP}")
    else: p(f"s_add_u32 s{reg}, s{reg}, {O.tstep}")
    if O.rot: p(f"s_and_b32 s{reg}, s{reg}, 0xfffff")

def kv_load(p, reg, isv, t, soff, tag):
    d = srdV if isv else srdK
    pol = O.vpol if (isv and O.vpol is not None) else O.kvpol
    g = O.gran
    if g == 8:
        p.vm(f"buffer_load_dwordx4 {r4(reg)}, v{vKV0 + (t >> 2)}, s[{d}:{d+3}], s{soff} offen offset:{(t & 3) * 1024} {pol}", tag)
        return
    base = (t // g) * 4 * g * 1024
    so = f"s{soff}"
    if base:
        p(f"s_add_u32 s{sKVT}, s{soff}, {base}")
        so = f"s{sKVT}"
    p.vm(f"buffer_load_dwordx4 {r4(reg)}, v{vKV0}, s[{d}:{d+3}], {so} offen offset:{(t % g) * 1024} {pol}", tag)

def wo_load(p, t):
    u, tt = t >> 4, t & 15
    if tt & 3 == 0: p(f"s_mov_b32 s{sT2}, {(64 * u + (tt & ~3)) * 1024}")
    p.vm(f"buffer_load_dwordx4 {r4(vWA + 4*t)}, v{vWO}, s[{srdW}:{srdW+3}], s{sT2} offen offset:{(tt & 3) * 1024} {O.wpol}", ("W", t))

def proj_routine(p, label="L_proj", inline=False):
    if not inline:
        p("; ---- routine: O = sum over the 32 slots of the W area, weights broadcast from vX ----")
        p(label + ":")
    vO2 = vP if O.acc2 else vO
    def mk(t):
        for j in range(4):
            p(f"v_and_b32_dpp v{vA + 4*(t&1) + j}, v{vX + (t >> 4)}, v{vMASK+j} row_newbcast:{t & 15} row_mask:0xf bank_mask:0xf")
    mk(0)
    for t in range(32):
        if t + 1 < 32: mk(t + 1)
        if t % 2 == 0: p.wait_vm(("W", t + 1))
        d = vO2 if t & 1 else vO
        src = "0" if (O.acc2 and t == 1) else r4(d)
        p(f"v_mfma_f32_16x16x32_bf16 {r4(d)}, {r4(vA + 4*(t&1))}, {r4(vWA + 4*t)}, {src}")
    if O.acc2:
        p("s_nop 7")
        for r in range(4): p(f"v_add_f32 v{vO+r}, v{vO+r}, v{vO2+r}")
    else:
        p("s_nop 7")
    if not inline: p(f"s_setpc_b64 s[{sRET}:{sRET+1}]")

def bank_base(bank): return 64 + 32 * bank

def k_tile(p, bank, refill, scoff):
    base = bank_base(bank)
    for t in range(8):
        p.wait_vm(("L", 8 * bank + t))
        k = base + 4 * t
        p(f"v_dot2_f32_bf16 v{vP+t}, v{k}, v{vQ}, 0")
        for j in range(1, 4):
            p(f"v_dot2_f32_bf16 v{vP+t}, v{k+j}, v{vQ+j}, v{vP+t}")
        refill(t)
    for a in range(4):
        p(f"v_add_f32_dpp v{vR+a}, v{vP+a}, v{vP+a} row_mirror row_mask:0xf bank_mask:0x3")
    for a in range(4):
        p(f"v_add_f32_dpp v{vR+a}, v{vP+a+4}, v{vP+a+4} row_mirror row_mask:0xf bank_mask:0xc")
    p(f"v_add_f32_dpp v{vU}, v{vR}, v{vR} row_half_mirror row_mask:0xf bank_mask:0x5")
    p(f"v_add_f32_dpp v{vU+1}, v{vR+1}, v{vR+1} row_half_mirror row_mask:0xf bank_mask:0x5")
    p(f"v_add_f32_dpp v{vU}, v{vR+2}, v{vR+2} row_half_mirror row_mask:0xf bank_mask:0xa")
    p(f"v_add_f32_dpp v{vU+1}, v{vR+3}, v{vR+3} row_half_mirror row_mask:0xf bank_mask:0xa")
    for qp in ("[1,0,3,2]", "[2,3,0,1]"):
        for u in range(2):
            p(f"v_add_f32_dpp v{vU+u}, v{vU+u}, v{vU+u} quad_perm:{qp} row_mask:0xf bank_mask:0xf")
    a0, a1, w = vT, vT+1, vT+2
    p(f"""
    v_cvt_pk_bf16_f32 v{w}, v{vU}, v{vU+1}
    v_lshlrev_b32 v{a0}, 16, v{w}
    v_and_b32 v{a1}, s{sHI}, v{w}
    v_mul_f32 v{a0}, s{sSCALE}, v{a0}
    v_mul_f32 v{a1}, s{sSCALE}, v{a1}
    v_cvt_pk_bf16_f32 v{w}, v{a0}, v{a1}
    v_lshlrev_b32 v{a0}, 16, v{w}
    v_and_b32 v{a1}, s{sHI}, v{w}
    ds_write_b32 v{vSC}, v{w} offset:{LDS_SC + scoff}
    v_max3_f32 v{vM}, v{vM}, v{a0}, v{a1}
    """)

def v_tile(p, bank, refill, wreg, prefetch_next):
    base = bank_base(bank)
    a0, a1, p0, p1 = vT, vT+1, vT+6, vT+7
    neg = vT + 4
    p(f"""
    v_lshlrev_b32 v{a0}, 16, v{wreg}
    v_and_b32 v{a1}, s{sHI}, v{wreg}
    """)
    if prefetch_next is not None: prefetch_next()
    p(f"""
    v_fma_f32 v{p0}, v{a0}, s{sL2E}, -v{neg}
    v_fma_f32 v{p1}, v{a1}, s{sL2E}, -v{neg}
    v_exp_f32 v{p0}, v{p0}
    v_exp_f32 v{p1}, v{p1}
    v_add_f32 v{vL}, v{vL}, v{p0}
    v_cvt_pk_bf16_f32 v{a0}, v{p0}, v{p0}
    v_cvt_pk_bf16_f32 v{a1}, v{p1}, v{p1}
    v_add_f32 v{vL}, v{vL}, v{p1}
    """)
    def mk(t):
        for j in range(4):
            p(f"v_and_b32_dpp v{vA + 4*(t&1) + j}, v{a0 + (t & 1)}, v{vMASK+j} row_newbcast:{4*(t >> 1)} row_mask:0xf bank_mask:0xf")
    mk(0)
    for t in range(8):
        if t + 1 < 8: mk(t + 1)
        p.wait_vm(("L", 8 * bank + t))
        p(f"v_mfma_f32_16x16x32_bf16 {r4(vO)}, {r4(vA + 4*(t&1))}, {r4(base + 4*t)}, {r4(vO)}")
        refill(t)

def gate_math(p, z, t0, t1):
    p(f"""
    v_cvt_pk_bf16_f32 v{z}, v{z}, v{z}
    v_lshlrev_b32 v{z}, 16, v{z}
    v_mul_f32 v{z}, s{sL2E}, v{z}
    v_sub_f32 v{z}, 0, v{z}
    v_exp_f32 v{z}, v{z}
    v_add_f32 v{z}, 1.0, v{z}
    v_rcp_f32 v{z}, v{z}
    v_cvt_pk_bf16_f32 v{z}, v{z}, v{z}
    v_lshlrev_b32 v{z}, 16, v{z}
    v_sub_f32 v{t1}, 1.0, v{z}
    v_cvt_pk_bf16_f32 v{t1}, v{t1}, v{t1}
    v_lshlrev_b32 v{t1}, 16, v{t1}
    """)

def attention(p):
    if O.aprio: p(f"s_setprio {O.aprio}")
    sRED = 88
    sRHO, sKVL, sKVH, sWQO = sOFF2, 92, 93, 94
    vINV, vINVM = vG + 2, vG + 3
    p(f"""
    s_and_b32 s{sT0}, s2, 7
    s_lshr_b32 s{sT1}, s2, 3
    s_lshr_b32 s{sH}, s2, 6
    s_lshl_b32 s{sT0}, s{sT0}, 2
    s_add_u32 s{sH}, s{sH}, s{sT0}
    s_and_b32 s{sRHO}, s{sT1}, 7
    s_lshl_b32 s{sRHO}, s{sRHO}, 2
    s_lshl_b32 s{sT0}, s{sWAVE}, 20
    v_lshlrev_b32 v{vW}, 17, v{vT+4}
    s_lshl_b32 s{sWQO}, s{sH}, 8
    v_add3_u32 v{vW}, v{vW}, v{vT+3}, s{sT0}
    s_sub_u32 s{srdW+2}, {4 << 20}, s{sWQO}
    s_mov_b32 s{srdW+3}, 0x20000
    s_and_b32 s{sT0}, s{sRHO}, 16
    s_mul_i32 s{sT0}, s{sT0}, 3
    s_add_u32 s{sT2}, s{sRHO}, s{sT0}
    s_lshl_b32 s{sT2}, s{sT2}, 13
    s_waitcnt lgkmcnt(0)
    """)
    stamp(p, 1)
    p(f"""
    s_add_u32 s{srdW}, s{sWQ}, s{sWQO}
    s_addc_u32 s{srdW+1}, s{sWQ+1}, 0
    s_and_b32 s{srdW+1}, s{srdW+1}, 0xffff
    """)
    seq = [("W", t) for t in range(32)] + [("L", j) for j in range(max(O.lead, O.pre))]
    pos = [0]
    def issue_next():
        if pos[0] >= len(seq): return
        kind, i = seq[pos[0]]; pos[0] += 1
        if kind == "W":
            if i % 4 == 0 and i > 0:
                p(f"""
                s_add_u32 s{sT2}, s{sRHO}, {i}
                s_and_b32 s{sT2}, s{sT2}, 31
                s_and_b32 s{sT0}, s{sT2}, 16
                s_mul_i32 s{sT0}, s{sT0}, 3
                s_add_u32 s{sT2}, s{sT2}, s{sT0}
                s_lshl_b32 s{sT2}, s{sT2}, 13
                """)
            p.vm(f"buffer_load_dwordx4 {r4(vWA + 4*i)}, v{vW}, s[{srdW}:{srdW+3}], s{sT2} offen {O.wpol}", ("W", i))
            if i % 4 != 3: p(f"s_add_u32 s{sT2}, s{sT2}, 8192")
        else:
            if i % 8 == 0: set_off(p, sOFF, i // 8)
            kv_load(p, 64 + 4 * i, 0, i & 7, sOFF, ("L", i))
    for _ in range(O.first): issue_next()
    p(f"""
    s_lshr_b32 s{sB}, s{sT1}, 1
    s_and_b32 s{sB}, s{sB}, 3
    s_and_b32 s{sT1}, s{sT1}, 1
    s_lshl_b32 s{sR}, s{sB}, 5
    s_add_u32 s{sR}, s{sR}, s{sH}
    s_lshl_b32 s{sR}, s{sR}, 1
    s_add_u32 s{sR}, s{sR}, s{sT1}
    s_lshl_b32 s{sKVL}, s{sWAVE}, 8
    s_lshl_b32 s{sT1}, s{sB}, 10
    s_add_u32 s{sKVL}, s{sKVL}, s{sT1}
    v_and_b32 v{vT}, 15, v{vLANE}
    v_add_u32 v{vT}, s{sRHO}, v{vT}
    v_and_b32 v{vT}, 31, v{vT}
    v_xor_b32 v{vT+1}, 16, v{vT}
    v_and_b32 v{vT+5}, 16, v{vT}
    v_and_b32 v{vT+6}, 16, v{vT+1}
    v_mul_u32_u24 v{vT+5}, 3, v{vT+5}
    v_mul_u32_u24 v{vT+6}, 3, v{vT+6}
    v_add_u32 v{vT}, v{vT}, v{vT+5}
    v_add_u32 v{vT+1}, v{vT+1}, v{vT+6}
    v_lshl_add_u32 v{vT}, v{vT+4}, 4, v{vT}
    v_lshl_add_u32 v{vT+1}, v{vT+4}, 4, v{vT+1}
    v_lshl_add_u32 v{vT}, v{vT}, 1, s{sKVL}
    v_lshl_add_u32 v{vT+1}, v{vT+1}, 1, s{sKVL}
    s_mov_b32 s{srdX}, s{sX}
    s_and_b32 s{srdX+1}, s{sX+1}, 0xffff
    s_mov_b32 s{srdX+2}, 4096
    s_mov_b32 s{srdX+3}, 0x20000
    """)
    p.vm(f"buffer_load_ushort v{vX}, v{vT}, s[{srdX}:{srdX+3}], 0 offen", "x")
    p.vm(f"buffer_load_ushort v{vX+1}, v{vT+1}, s[{srdX}:{srdX+3}], 0 offen", "x")
    p(f"s_load_dwordx2 s[{sTAG}:{sTAG+1}], s[{sWS}:{sWS+1}], {hex(WS_EPOCH)}")
    for _ in range(O.qinline - O.first): issue_next()
    p(f"""
    s_and_b32 s{sRED}, s{sR}, 3
    """)
    if O.phase:
        a_s, a_h, a_b = O.phase
        p(f"""
        s_and_b32 s{sT0}, s{sR}, 1
        s_mul_i32 s{sROT}, s{sT0}, {a_s}
        s_mul_i32 s{sT0}, s{sH}, {a_h}
        s_add_u32 s{sROT}, s{sROT}, s{sT0}
        s_mul_i32 s{sT0}, s{sB}, {a_b}
        s_add_u32 s{sROT}, s{sROT}, s{sT0}
        """)
    else:
        p(f"""
        s_mul_i32 s{sROT}, s{sR}, {O.rot}
        s_lshr_b32 s{sT0}, s{sR}, 5
        s_mul_i32 s{sT0}, s{sT0}, {O.rot2}
        s_add_u32 s{sROT}, s{sROT}, s{sT0}
        """)
    p(f"""
    s_mul_i32 s{sT0}, s{sWAVE}, {O.wmul if O.gran == 8 else 0}
    s_add_u32 s{sROT}, s{sROT}, s{sT0}
    s_and_b32 s{sROT}, s{sROT}, 127
    s_lshl_b32 s{sROT}, s{sROT}, 13
    s_lshr_b32 s{sT0}, s{sR}, {max(O.bidir - 1, 0)}
    s_and_b32 s{sT0}, s{sT0}, 1
    s_mov_b32 s{sSTEP}, 32768
    s_cmp_eq_u32 s{sT0}, 0
    s_cselect_b32 s{sSTEP}, s{sSTEP}, 0xffff8000
    s_lshl_b32 s{sT0}, s{sR}, 11
    s_lshl_b32 s{sT1}, s{sWAVE}, 9
    s_add_u32 s{sT0}, s{sT0}, s{sT1}
    v_lshlrev_b32 v{vINV}, 3, v{vLANE}
    v_add_u32 v{vINV}, s{sT0}, v{vINV}
    v_mov_b32 v{vP}, -1
    v_mov_b32 v{vP+1}, -1
    s_lshl_b32 s{sT0}, s{sR}, 3
    s_add_u32 s{sT0}, s{sT0}, {WS_ML}
    v_mov_b32 v{vINVM}, s{sT0}
    s_mov_b32 s{srdWS}, s{sWS}
    s_and_b32 s{srdWS+1}, s{sWS+1}, 0xffff
    s_mov_b32 s{srdWS+2}, {WS_BYTES}
    s_mov_b32 s{srdWS+3}, 0x20000
    """)
    p.vm(f"buffer_store_dwordx2 v[{vP}:{vP+1}], v{vINV}, s[{srdWS}:{srdWS+3}], 0 offen sc1", "inv")
    p.vm(f"buffer_store_dwordx2 v[{vP}:{vP+1}], v{vINVM}, s[{srdWS}:{srdWS+3}], 0 offen sc1", "inv")
    p(f"""
    s_lshl_b32 s{sKVL}, s{sR}, 20
    s_lshr_b32 s{sKVH}, s{sR}, 12
    """)
    for (d, b) in ((srdK, sK), (srdV, sV)):
        p(f"s_add_u32 s{d}, s{b}, s{sKVL}")
        p(f"s_addc_u32 s{d+1}, s{b+1}, s{sKVH}")
        p(f"s_and_b32 s{d+1}, s{d+1}, 0xffff")
        p(f"s_mov_b32 s{d+2}, {1 << 20}")
        p(f"s_mov_b32 s{d+3}, 0x20000")
    p(f"""
    s_mul_i32 s{sT0}, s{sWAVE}, {0 if O.gran == 8 else O.gran * 1024}
    v_lshlrev_b32 v{vKV0}, 4, v{vLANE}
    v_add_u32 v{vKV0}, s{sT0}, v{vKV0}
    v_add_u32 v{vKV1}, 4096, v{vKV0}
    s_lshl_b32 s{sT0}, s{sWAVE}, 8
    v_lshlrev_b32 v{vWO}, 14, v{vT+4}
    v_add3_u32 v{vWO}, v{vWO}, v{vT+3}, s{sT0}
    v_lshlrev_b32 v{vG}, 1, v{vT+3}
    v_lshl_add_u32 v{vG+1}, v{vT+4}, 4, v{vG}
    s_lshl_b32 s{sT1}, s{sWAVE}, 9
    v_add_u32 v{vG+1}, s{sT1}, v{vG+1}
    v_mov_b32 v{vO}, 0
    v_mov_b32 v{vO+1}, 0
    v_mov_b32 v{vO+2}, 0
    v_mov_b32 v{vO+3}, 0
    """)
    constants_and_masks(p)
    p.wait_vm("x")
    p(f"""
    v_lshl_or_b32 v{vX}, v{vX}, 16, v{vX}
    v_lshl_or_b32 v{vX+1}, v{vX+1}, 16, v{vX+1}
    """)
    def mk(t):
        for j in range(4):
            p(f"v_and_b32_dpp v{vA + 4*(t&1) + j}, v{vX + (t >> 4)}, v{vMASK+j} row_newbcast:{t & 15} row_mask:0xf bank_mask:0xf")
    mk(0)
    for t in range(32):
        if t + 1 < 32: mk(t + 1)
        issue_next()
        p.wait_vm(("W", t))
        p(f"v_mfma_f32_16x16x32_bf16 {r4(vO)}, {r4(vA + 4*(t&1))}, {r4(vWA + 4*t)}, {r4(vO)}")
    while pos[0] < len(seq): issue_next()
    saved = list(p.vmq)
    mark = len(p.ins)
    p.vmq = []
    proj_routine(p)
    routine = p.ins[mark:]
    p.ins = p.ins[:mark]
    p.vmq = saved
    stamp(p, 2)
    p(f"""
    s_mov_b64 exec, 0xffffffff
    ds_write_b128 v{vG+1}, {r4(vO)}
    s_mov_b64 exec, -1
    s_lshl_b32 s{sT0}, s{sH}, 17
    s_sub_u32 s{sT1}, {4 << 20}, s{sT0}
    """)
    srd(p, srdW, sWO, f"s{sT0}", f"s{sT1}")
    p(f"""
    s_waitcnt lgkmcnt(0)
    s_barrier
    """)
    qa = vP
    regs = [18, 26, 34, 52]
    for w in range(4):
        p(f"ds_read_b128 {r4(regs[w])}, v{vG} offset:{w*512}" if w < 3 else f"ds_read_b128 {r4(56)}, v{vG} offset:{w*512}")
        p(f"ds_read_b128 {r4(regs[w] + 4)}, v{vG} offset:{w*512 + 16}" if w < 3 else f"ds_read_b128 {r4(60)}, v{vG} offset:{w*512 + 16}")
    regs[3] = 56
    p(f"""
    v_mov_b32 v{vM}, 0xff7fffff
    v_mov_b32 v{vL}, 0
    v_mov_b32 v{vO}, 0
    v_mov_b32 v{vO+1}, 0
    v_mov_b32 v{vO+2}, 0
    v_mov_b32 v{vO+3}, 0
    s_waitcnt lgkmcnt(0)
    """)
    p(f"""
    s_add_u32 s{sTAG}, s{sTAG}, 1
    s_addc_u32 s{sTAG+1}, s{sTAG+1}, 0
    """)
    for i in range(8):
        p(f"v_add_f32 v{regs[0]+i}, v{regs[0]+i}, v{regs[1]+i}")
        p(f"v_add_f32 v{regs[2]+i}, v{regs[2]+i}, v{regs[3]+i}")
    for i in range(8):
        p(f"v_add_f32 v{regs[0]+i}, v{regs[0]+i}, v{regs[2]+i}")
    for j in range(4):
        p(f"v_cvt_pk_bf16_f32 v{vQ+j}, v{regs[0]+2*j}, v{regs[0]+2*j+1}")
    stamp(p, 3)
    LEAD, LEAD2 = O.lead, max(O.lead2, O.lead)
    sOFFA, sOFFB = sOFF, sOFF1
    st = {"J": max(O.lead, O.pre), "A": None, "B": None}
    def lead_at(j):
        if j < O.j0: return O.lead0
        if j >= 8 * (32 + O.vsw): return LEAD2
        return O.leadv if (O.leadv and j >= 8 * 30) else LEAD
    announced = []
    def announce():
        p(f"""
        s_lshl_b32 s{sT0}, s{sR}, 3
        s_add_u32 s{sT0}, s{sT0}, {WS_HINT}
        s_cmp_eq_u32 s{sWAVE}, 0
        s_cselect_b32 s{sT0}, s{sT0}, {WS_BYTES}
        v_mov_b32 v{vG}, s{sTAG}
        v_mov_b32 v{vG+1}, s{sTAG+1}
        v_mov_b32 v{vG+2}, s{sT0}
        s_mov_b64 exec, 1
        """)
        text = f"buffer_store_dwordx2 v[{vG}:{vG+1}], v{vG+2}, s[{srdWS}:{srdWS+3}], 0 offen sc1"
        if O.hintv is None: p.vm(text, "ARR")
        else: p(text)
        p("s_mov_b64 exec, -1")
        announced.append(1)
    def off_reg(k):
        if st["A"] == k: return sOFFA
        if st["B"] == k: return sOFFB
        if st["A"] is None or (st["B"] is not None and st["A"] <= st["B"]):
            set_off(p, sOFFA, k % 32); st["A"] = k; return sOFFA
        set_off(p, sOFFB, k % 32); st["B"] = k; return sOFFB
    def peeled_refill(i, extra=None):
        def f(t):
            j = 8 * i + t
            target = min(512, j + 1 + lead_at(j))
            n = 0
            while st["J"] < target and n < 3:
                J = st["J"]; k = J >> 3
                kv_load(p, 64 + 4 * (J % 16), k >= 32, J & 7, off_reg(k), ("L", J % 16))
                st["J"] += 1; n += 1
                if O.hintv is None and J == 511: announce()
            if extra: extra(t)
        return f
    def loop_refill(par, isv, L):
        DA = L >> 3
        def f(t):
            jt = t + L
            d, t2 = jt >> 3, jt & 7
            slot = (8 * par + jt) % 16
            kv_load(p, 64 + 4 * slot, isv, t2, sOFFA if d == DA else sOFFB, ("L", slot))
        return f
    def loop_enter(i, L):
        assert st["J"] == 8 * i + L, (st["J"], i, L)
        DA = L >> 3
        set_off(p, sOFFA, (i + DA) % 32); set_off(p, sOFFB, (i + DA + 1) % 32)
    def adv_pair():
        p(f"s_mov_b32 s{sOFFA}, s{sOFFB}")
        adv_off(p, sOFFB)
    def loop_exit(i_end, L):
        st["J"] = 8 * i_end + L; st["A"] = None; st["B"] = None
    nxt_sc = lambda n: p(f"v_add_u32 v{vSC}, {256*n}, v{vSC}")
    p(f"""
    s_lshl_b32 s{sT0}, s{sWAVE}, 13
    v_lshlrev_b32 v{vSC}, 2, v{vLANE}
    v_add_u32 v{vSC}, s{sT0}, v{vSC}
    """)
    WO0 = O.wo0
    NPEEL = WO0 + 10
    assert NPEEL % 2 == 0
    wo_next = [0]
    def wo_extra(t):
        if t % 2 == 0:
            wo_load(p, wo_next[0]); wo_next[0] += 1
    for i in range(NPEEL):
        k_tile(p, i & 1, peeled_refill(i, wo_extra if WO0 <= i < WO0 + 8 else None), 256 * (i & 1))
        if i & 1: nxt_sc(2)
        if O.dry is not None and i == O.dry:
            p(f"s_call_b64 s[{sRET}:{sRET+1}], L_proj")
            for r in range(4): p(f"v_mov_b32 v{vO+r}, 0")
        if O.kstamps and i == O.ks1: stamp(p, 5)
        if O.kstamps and i == O.ks2: stamp(p, 7)
    assert wo_next[0] == 32
    q0 = list(p.vmq)
    assert q0 == [("L", j % 16) for j in range(LEAD)], q0
    KEND = 28
    loop_enter(NPEEL, LEAD)
    p(f"s_mov_b32 s{sCNT}, {(KEND - NPEEL) // 2}")
    p("L_kloop:")
    for i in range(2):
        k_tile(p, i, loop_refill(i, False, LEAD), 256 * i)
        adv_pair()
    nxt_sc(2)
    assert p.vmq == q0
    p(f"""
    s_sub_u32 s{sCNT}, s{sCNT}, 1
    s_cmp_lg_u32 s{sCNT}, 0
    s_cbranch_scc1 L_kloop
    """)
    loop_exit(KEND, LEAD)
    srd(p, srdX, sX, None, 4096)
    p(f"""
    s_mov_b32 s{srdW}, s{sGW}
    s_and_b32 s{srdW+1}, s{sGW+1}, 0xffff
    s_mov_b32 s{srdW+2}, 1024
    s_lshl_b32 s{sT0}, s{sB}, 10
    v_lshlrev_b32 v{vG+2}, 2, v0
    v_add_u32 v{vG+3}, s{sT0}, v{vG+2}
    """)
    p.vm(f"buffer_load_dword v{vG+5}, v{vG+3}, s[{srdX}:{srdX+3}], 0 offen", "G")
    p.vm(f"buffer_load_dword v{vG+6}, v{vG+2}, s[{srdW}:{srdW+3}], 0 offen", "G")
    for i in range(KEND, 32):
        k_tile(p, i & 1, peeled_refill(i), 256 * (i & 1))
        if i & 1: nxt_sc(2)
    mx, neg = vT + 3, vT + 4
    p(f"""
    s_lshl_b32 s{sT0}, s{sWAVE}, 13
    v_lshlrev_b32 v{vSC}, 2, v{vLANE}
    v_add_u32 v{vSC}, s{sT0}, v{vSC}
    v_max_f32_dpp v{vM}, v{vM}, v{vM} row_half_mirror row_mask:0xf bank_mask:0xf
    s_waitcnt lgkmcnt(0)
    ds_read_b32 v{vW0}, v{vSC} offset:{LDS_SC}
    ds_read_b32 v{vW1}, v{vSC} offset:{LDS_SC + 256}
    v_max_f32_dpp v{vM}, v{vM}, v{vM} row_mirror row_mask:0xf bank_mask:0xf
    v_max_f32_dpp v{vM}, v{vM}, v{vM} row_bcast:15 row_mask:0xa bank_mask:0xf
    v_max_f32_dpp v{vM}, v{vM}, v{vM} row_bcast:31 row_mask:0xc bank_mask:0xf
    v_readlane_b32 s{sT0}, v{vM}, 63
    v_mov_b32 v{vM}, s{sT0}
    v_mul_f32 v{neg}, s{sL2E}, v{vM}
    v_add_u32 v{vSC}, 512, v{vSC}
    s_waitcnt lgkmcnt(0)
    """)
    if not O.pstamps: stamp(p, 4)
    p.vmq = [t for t in p.vmq if t != "G"]
    def pf(dst, off):
        return lambda: p(f"ds_read_b32 v{dst}, v{vSC} offset:{LDS_SC + off}")
    def v_pair_tail():
        p(f"""
        v_add_u32 v{vSC}, 512, v{vSC}
        s_waitcnt lgkmcnt(0)
        """)
    def v_loop(label, v0, v1, L):
        if v1 <= v0: return
        qL = [("L", (8 * v0 + j) % 16) for j in range(L)]
        assert p.vmq == qL, (p.vmq, qL)
        loop_enter(32 + v0, L)
        p(f"s_mov_b32 s{sCNT}, {(v1 - v0) // 2}")
        p(label + ":")
        v_tile(p, 0, loop_refill(0, True, L), vW0, pf(vW0, 0))
        adv_pair()
        v_tile(p, 1, loop_refill(1, True, L), vW1, pf(vW1, 256))
        adv_pair()
        assert p.vmq == qL
        p(f"""
        v_add_u32 v{vSC}, 512, v{vSC}
        s_sub_u32 s{sCNT}, s{sCNT}, 1
        s_cmp_lg_u32 s{sCNT}, 0
        s_waitcnt lgkmcnt(0)
        s_cbranch_scc1 {label}
        """)
        loop_exit(32 + v1, L)
    def v_peeled_pair(v, last=False):
        v_tile(p, 0, peeled_refill(32 + v), vW0, None if last else pf(vW0, 0))
        v_tile(p, 1, peeled_refill(33 + v), vW1, None if last else pf(vW1, 256))
        if not last: v_pair_tail()
    p("; ---- V pass ----")
    VEND = 28
    LV = O.leadv or LEAD
    if LEAD2 > LV and O.vsw < VEND:
        assert O.vsw % 2 == 0
        v_loop("L_vloop", 0, O.vsw, LV)
        if O.hintv == O.vsw: announce()
        v_peeled_pair(O.vsw)
        if O.hintv == O.vsw + 2: announce()
        v_loop("L_vloop2", O.vsw + 2, VEND, LEAD2)
    else:
        v_loop("L_vloop", 0, VEND, LV)
    if O.hintv == 28 and not announced: announce()
    v_peeled_pair(28)
    if not (O.kstamps or O.pstamps): stamp(p, 5)
    if O.hintv == 30 and not announced: announce()
    v_peeled_pair(30, last=True)
    if O.hintv == 32: announce()
    assert len(announced) == 1
    if not O.pstamps: stamp(p, 6)
    p(f"""
    v_add_f32_dpp v{vL}, v{vL}, v{vL} row_half_mirror row_mask:0xf bank_mask:0xf
    v_add_f32_dpp v{vL}, v{vL}, v{vL} row_mirror row_mask:0xf bank_mask:0xf
    v_add_f32_dpp v{vL}, v{vL}, v{vL} row_bcast:15 row_mask:0xa bank_mask:0xf
    v_add_f32_dpp v{vL}, v{vL}, v{vL} row_bcast:31 row_mask:0xc bank_mask:0xf
    v_readlane_b32 s{sT0}, v{vL}, 63
    v_and_b32 v{vT+3}, 15, v{vLANE}
    v_lshrrev_b32 v{vT+4}, 4, v{vLANE}
    v_mov_b32 v{vL}, s{sT0}
    v_lshlrev_b32 v{vT}, 5, v{vT+3}
    v_lshl_add_u32 v{vT+1}, v{vT+4}, 4, v{vT}
    s_lshl_b32 s{sT1}, s{sWAVE}, 9
    s_lshl_b32 s{sT0}, s{sWAVE}, 3
    v_add_u32 v{vT+2}, s{sT1}, v{vT+1}
    v_mov_b32 v{vT+5}, s{sT0}
    s_mov_b64 exec, 0xffffffff
    ds_write_b128 v{vT+2}, {r4(vO)} offset:2048
    s_mov_b64 exec, -1
    ds_write_b64 v{vT+5}, v[{vM}:{vM+1}] offset:4096
    v_lshlrev_b32 v{vT+6}, 2, v{vLANE}
    v_mov_b32 v{vT+5}, 0
    s_waitcnt lgkmcnt(0)
    s_barrier
    ds_read_b128 {r4(vP)}, v{vT+5} offset:4096
    ds_read_b128 {r4(vP+4)}, v{vT+5} offset:4112
    """)
    ob = 64
    for w in range(4):
        p(f"ds_read_b32 v{ob+2*w}, v{vT+6} offset:{2048 + w*512}")
        p(f"ds_read_b32 v{ob+2*w+1}, v{vT+6} offset:{2048 + w*512 + 256}")
    m = [vP, vP+2, vP+4, vP+6]; l = [vP+1, vP+3, vP+5, vP+7]
    p(f"""
    s_waitcnt lgkmcnt(8)
    v_max_f32 v{vM}, v{m[0]}, v{m[1]}
    v_max3_f32 v{vM}, v{vM}, v{m[2]}, v{m[3]}
    v_mul_f32 v{vT+7}, s{sL2E}, v{vM}
    """)
    for w in range(4): p(f"v_fma_f32 v{m[w]}, v{m[w]}, s{sL2E}, -v{vT+7}")
    for w in range(4): p(f"v_exp_f32 v{m[w]}, v{m[w]}")
    p(f"v_mul_f32 v{vL}, v{m[0]}, v{l[0]}")
    for w in range(1, 4): p(f"v_fma_f32 v{vL}, v{m[w]}, v{l[w]}, v{vL}")
    p("s_waitcnt lgkmcnt(0)")
    for u in range(2):
        p(f"v_mul_f32 v{vX+u}, v{m[0]}, v{ob+u}")
    for w in range(1, 4):
        for u in range(2):
            p(f"v_fma_f32 v{vX+u}, v{m[w]}, v{ob+2*w+u}, v{vX+u}")
    p(f"""
    v_cvt_pk_bf16_f32 v{vX}, v{vX}, v{vX}
    v_cvt_pk_bf16_f32 v{vX+1}, v{vX+1}, v{vX+1}
    v_mov_b32 v{vO}, 0
    v_mov_b32 v{vO+1}, 0
    v_mov_b32 v{vO+2}, 0
    v_mov_b32 v{vO+3}, 0
    """)
    p(f"""
    s_nop 1
    s_call_b64 s[{sRET}:{sRET+1}], L_proj
    """)
    p(f"""
    s_lshl_b32 s{sT0}, s{sR}, 11
    s_lshl_b32 s{sT1}, s{sWAVE}, 9
    s_add_u32 s{sT0}, s{sT0}, s{sT1}
    v_add_u32 v{vT+1}, s{sT0}, v{vT+1}
    s_mov_b64 exec, 0xffffffff
    buffer_store_dwordx4 {r4(vO)}, v{vT+1}, s[{srdWS}:{srdWS+3}], 0 offen sc1
    s_mov_b64 exec, 1
    s_lshl_b32 s{sT0}, s{sR}, 3
    s_add_u32 s{sT0}, s{sT0}, {WS_ML}
    v_mov_b32 v{vT+2}, s{sT0}
    s_cmp_lg_u32 s{sWAVE}, 0
    s_cbranch_scc1 L_noml
    buffer_store_dwordx2 v[{vM}:{vM+1}], v{vT+2}, s[{srdWS}:{srdWS+3}], 0 offen sc1
    L_noml:
    s_mov_b64 exec, -1
    """)
    if not (O.kstamps or O.pstamps): stamp(p, 7)
    p(f"""
    s_cmp_eq_u32 s{sR}, 1
    s_cbranch_scc1 L_keeper
    s_cmp_lg_u32 s{sRED}, 0
    s_cbranch_scc1 L_fin
    """)
    reducer(p)
    p("s_branch L_fin")
    keeper(p)
    return routine

def keeper(p):
    p("; ---- epoch keeper ----")
    p(f"""
    L_keeper:
    v_lshlrev_b32 v64, 3, v0
    v_add_u32 v64, {WS_HINT}, v64
    v_and_b32 v65, 63, v0
    v_min_u32 v65, 55, v65
    v_lshrrev_b32 v66, 6, v0
    v_lshlrev_b32 v66, 9, v66
    v_lshl_add_u32 v65, v65, 3, v66
    v_add_u32 v65, {WS_F2}, v65
    s_mov_b32 s{sSPIN}, 0
    L_kpoll:
    buffer_load_dwordx2 v[68:69], v64, s[{srdWS}:{srdWS+3}], 0 offen sc1
    buffer_load_dwordx2 v[70:71], v65, s[{srdWS}:{srdWS+3}], 0 offen sc1
    s_waitcnt vmcnt(0)
    v_cmp_ne_u64 vcc, s[{sTAG}:{sTAG+1}], v[68:69]
    s_mov_b64 s[{sT0}:{sT0+1}], vcc
    """)
    if not (O.noffn or O.fnosync):
        p(f"""
        v_cmp_ne_u64 vcc, s[{sTAG}:{sTAG+1}], v[70:71]
        s_or_b64 s[{sT0}:{sT0+1}], s[{sT0}:{sT0+1}], vcc
        """)
    p(f"""
    s_cmp_eq_u64 s[{sT0}:{sT0+1}], 0
    s_cbranch_scc1 L_kok
    s_add_u32 s{sSPIN}, s{sSPIN}, 1
    s_cmp_ge_u32 s{sSPIN}, {SPIN_MAX}
    s_cbranch_scc1 L_fin
    s_sleep 64
    s_branch L_kpoll
    L_kok:
    s_barrier
    s_cmp_lg_u32 s{sWAVE}, 0
    s_cbranch_scc1 L_fin
    v_mov_b32 v64, {WS_EPOCH}
    v_mov_b32 v68, s{sTAG}
    v_mov_b32 v69, s{sTAG+1}
    s_mov_b64 exec, 1
    buffer_store_dwordx2 v[68:69], v64, s[{srdWS}:{srdWS+3}], 0 offen sc1
    s_mov_b64 exec, -1
    s_branch L_fin
    """)

def reducer(p):
    p.vmq = []
    vCOL, vGRP = 64, 65
    aP, aML, aQ = 66, 67, 68
    dP, dML, dQ = 72, 80, 112
    acc, accq = 100, 101
    sCB = sH
    gx, gw = vG+5, vG+6
    p(f"""
    s_lshr_b32 s{sCB}, s{sH}, 1
    v_and_b32 v{vCOL}, 31, v0
    v_lshrrev_b32 v{vGRP}, 5, v0
    s_lshl_b32 s{sT0}, s{sB}, 6
    v_lshl_add_u32 v{aML}, v{vGRP}, 3, s{sT0}
    v_lshlrev_b32 v{aP}, 11, v{aML}
    s_lshl_b32 s{sT1}, s{sCB}, 7
    v_lshl_add_u32 v{aQ}, v{vCOL}, 2, s{sT1}
    v_add_u32 v{aP}, v{aP}, v{aQ}
    v_lshlrev_b32 v{aML}, 3, v{aML}
    v_add_u32 v{aML}, {WS_ML}, v{aML}
    s_lshl_b32 s{sT0}, s{sB}, 11
    v_mul_u32_u24 v102, {7 * 8192}, v{vGRP}
    v_add3_u32 v{aQ}, v{aQ}, v102, s{sT0}
    s_mov_b32 s{sSPIN}, 0
    v_lshlrev_b32 v104, 16, v{gx}
    v_and_b32 v105, s{sHI}, v{gx}
    v_lshlrev_b32 v106, 16, v{gw}
    v_and_b32 v107, s{sHI}, v{gw}
    v_mul_f32 v104, v104, v106
    v_mul_f32 v105, v105, v107
    v_cvt_pk_bf16_f32 v104, v104, v105
    v_lshlrev_b32 v105, 16, v104
    v_and_b32 v104, s{sHI}, v104
    v_add_f32 v104, v104, v105
    v_add_f32_dpp v104, v104, v104 quad_perm:[1,0,3,2] row_mask:0xf bank_mask:0xf
    v_add_f32_dpp v104, v104, v104 quad_perm:[2,3,0,1] row_mask:0xf bank_mask:0xf
    v_add_f32_dpp v104, v104, v104 row_half_mirror row_mask:0xf bank_mask:0xf
    v_add_f32_dpp v104, v104, v104 row_mirror row_mask:0xf bank_mask:0xf
    v_add_f32_dpp v104, v104, v104 row_bcast:15 row_mask:0xa bank_mask:0xf
    v_add_f32_dpp v104, v104, v104 row_bcast:31 row_mask:0xc bank_mask:0xf
    v_readlane_b32 s{sT1}, v104, 63
    s_lshl_b32 s{sT2}, s{sWAVE}, 2
    v_mov_b32 v105, s{sT2}
    v_mov_b32 v104, s{sT1}
    ds_write_b32 v105, v104 offset:8192
    s_add_u32 s{srdV}, s{sWS}, {WS_Q}
    s_addc_u32 s{srdV+1}, s{sWS+1}, 0
    s_and_b32 s{srdV+1}, s{srdV+1}, 0xffff
    s_mov_b32 s{srdV+2}, {NQ * 8192}
    s_mov_b32 s{srdV+3}, 0x20000
    s_cmp_lg_u32 s{sWAVE}, 0
    s_cbranch_scc1 L_pollok
    s_lshl_b32 s{sT0}, s{sB}, 9
    s_add_u32 s{sT0}, s{sT0}, {WS_HINT}
    v_lshl_add_u32 v103, v{vLANE}, 3, s{sT0}
    s_lshr_b32 s{sT0}, s{sCB}, 2
    s_lshl_b32 s{sT0}, s{sT0}, 9
    s_add_u32 s{sT0}, s{sT0}, {WS_F2}
    v_min_u32 v108, 55, v{vLANE}
    v_lshl_add_u32 v108, v108, 3, s{sT0}
    L_apoll:
    buffer_load_dwordx2 v[110:111], v103, s[{srdWS}:{srdWS+3}], 0 offen sc1
    buffer_load_dwordx2 v[120:121], v108, s[{srdWS}:{srdWS+3}], 0 offen sc1
    s_waitcnt vmcnt(0)
    v_cmp_ne_u64 vcc, s[{sTAG}:{sTAG+1}], v[110:111]
    s_mov_b64 s[{sT0}:{sT0+1}], vcc
    """)
    if not (O.noffn or O.fnosync):
        p(f"""
        v_cmp_ne_u64 vcc, s[{sTAG}:{sTAG+1}], v[120:121]
        s_or_b64 s[{sT0}:{sT0+1}], s[{sT0}:{sT0+1}], vcc
        """)
    p(f"""
    s_cmp_eq_u64 s[{sT0}:{sT0+1}], 0
    s_cbranch_scc1 L_pollok
    s_add_u32 s{sSPIN}, s{sSPIN}, 1
    s_cmp_ge_u32 s{sSPIN}, {SPIN_MAX}
    s_cbranch_scc1 L_fin
    s_sleep {O.sleep}
    s_branch L_apoll
    L_pollok:
    s_waitcnt lgkmcnt(0)
    s_barrier
    """)
    if O.rstamps: stamp(p, 2)
    for i in range(7):
        p(f"s_mov_b32 s{sT2}, {i * 8192}")
        p(f"buffer_load_dword v{dQ+i}, v{aQ}, s[{srdV}:{srdV+3}], s{sT2} offen sc1")
    def data_loads():
        for k in range(8):
            p(f"s_mov_b32 s{sT2}, {k * 2048}")
            p(f"buffer_load_dword v{dP+k}, v{aP}, s[{srdWS}:{srdWS+3}], s{sT2} offen sc1")
        for i in range(4):
            p(f"buffer_load_dwordx4 {r4(dML+4*i)}, v{aML}, s[{srdWS}:{srdWS+3}], 0 offen offset:{16*i} sc1")
    data_loads()
    p(f"""
    v_mov_b32 v103, 0
    ds_read_b128 v[104:107], v103 offset:8192
    s_waitcnt lgkmcnt(0)
    v_add_f32 v104, v104, v105
    v_add_f32 v106, v106, v107
    v_add_f32 v122, v104, v106
    """)
    gate_math(p, 122, None, 123)
    srd(p, srdK, sOUT, None, 4096)
    p(f"""
    s_lshl_b32 s{sT0}, s{sB}, 10
    s_lshl_b32 s{sT1}, s{sCB}, 6
    s_add_u32 s{sT0}, s{sT0}, s{sT1}
    v_lshlrev_b32 v124, 1, v{vCOL}
    v_add_u32 v124, s{sT0}, v124
    v_lshlrev_b32 v125, 2, v0
    v_lshlrev_b32 v126, 2, v{vCOL}
    L_dcheck:
    s_waitcnt vmcnt(0)
    """)
    p(f"v_max_u32 v102, v{dP}, v{dP+1}")
    for k in range(2, 8, 2): p(f"v_max3_u32 v102, v102, v{dP+k}, v{dP+k+1}")
    for k in range(0, 16, 2): p(f"v_max3_u32 v102, v102, v{dML+k}, v{dML+k+1}")
    p(f"""
    v_cmp_eq_u32 vcc, -1, v102
    s_cbranch_vccz L_dok
    s_add_u32 s{sSPIN}, s{sSPIN}, 1
    s_cmp_ge_u32 s{sSPIN}, {SPIN_MAX}
    s_cbranch_scc1 L_fin
    s_mov_b64 exec, vcc
    """)
    if O.dsleep: p(f"s_sleep {O.dsleep}")
    data_loads()
    p(f"""
    s_branch L_dcheck
    L_dok:
    s_mov_b64 exec, -1
    v_mov_b32 v{acc}, 0
    """)
    if O.rstamps:
        stamp(p, 3)
        p(f"s_mov_b32 s{sST+2*1}, s{sSPIN}")
    for i in range(4):
        m0, l0, m1, l1 = dML+4*i, dML+4*i+1, dML+4*i+2, dML+4*i+3
        p(f"""
        v_max_f32 v102, v{m0}, v{m1}
        v_sub_f32 v{m0}, v{m0}, v102
        v_sub_f32 v{m1}, v{m1}, v102
        v_mul_f32 v{m0}, s{sL2E}, v{m0}
        v_mul_f32 v{m1}, s{sL2E}, v{m1}
        v_exp_f32 v{m0}, v{m0}
        v_exp_f32 v{m1}, v{m1}
        v_mul_f32 v102, v{m0}, v{l0}
        v_fma_f32 v102, v{m1}, v{l1}, v102
        v_rcp_f32 v102, v102
        v_mul_f32 v104, v{m0}, v{dP+2*i}
        v_fma_f32 v104, v{m1}, v{dP+2*i+1}, v104
        v_fma_f32 v{acc}, v104, v102, v{acc}
        """)
    p(f"""
    v_add_f32 v{dQ}, v{dQ}, v{dQ+1}
    v_add_f32 v{dQ+2}, v{dQ+2}, v{dQ+3}
    v_add_f32 v{dQ+4}, v{dQ+4}, v{dQ+5}
    v_add_f32 v{dQ}, v{dQ}, v{dQ+2}
    v_add_f32 v{dQ+4}, v{dQ+4}, v{dQ+6}
    v_add_f32 v{accq}, v{dQ}, v{dQ+4}
    ds_write_b32 v125, v{acc} offset:5120
    ds_write_b32 v125, v{accq} offset:6144
    s_waitcnt lgkmcnt(0)
    s_barrier
    s_cmp_lg_u32 s{sWAVE}, 0
    s_cbranch_scc1 L_fin
    """)
    for g in range(8):
        p(f"ds_read_b32 v{dP+g}, v126 offset:{5120 + g*128}")
        p(f"ds_read_b32 v{dML+g}, v126 offset:{6144 + g*128}")
    p("s_waitcnt lgkmcnt(0)")
    for pair in ((0, 1), (2, 3), (4, 5), (6, 7), (0, 2), (4, 6), (0, 4)):
        for base in (dP, dML):
            p(f"v_add_f32 v{base+pair[0]}, v{base+pair[0]}, v{base+pair[1]}")
    p(f"""
    v_cvt_pk_bf16_f32 v106, v{dP}, v{dML}
    v_lshlrev_b32 v107, 16, v106
    v_and_b32 v106, s{sHI}, v106
    v_mul_f32 v107, v122, v107
    v_mul_f32 v106, v123, v106
    v_cvt_pk_bf16_f32 v106, v107, v106
    v_lshlrev_b32 v107, 16, v106
    v_and_b32 v106, s{sHI}, v106
    v_add_f32 v106, v106, v107
    v_cvt_pk_bf16_f32 v106, v106, v106
    s_mov_b64 exec, 0xffffffff
    buffer_store_short v106, v124, s[{srdK}:{srdK+3}], 0 offen
    s_mov_b64 exec, -1
    """)

def ffn(p):
    sF, sFS, sRR = sH, sB, sR
    vXP, vSEL, vD0, vD1 = 50, 4, 12, 16
    vG1, vWD, vH = 64, 96, 112
    srdG = srdK
    vBC = 30
    p.vmq = []
    p("L_ffn:")
    if O.prio: p("s_setprio 3")
    constants_and_masks(p)
    p("s_waitcnt lgkmcnt(0)")
    stamp(p, 1)
    p(f"s_load_dwordx2 s[{sTAG}:{sTAG+1}], s[{sWS}:{sWS+1}], {hex(WS_EPOCH)}")
    p(f"""
    s_sub_u32 s{sF}, s2, {NATT}
    s_lshr_b32 s{sFS}, s{sF}, 4
    s_and_b32 s{sRR}, s{sF}, 15
    """)
    srd(p, srdX, sX, None, 4096)
    p(f"""
    s_and_b32 s{sT0}, s{sRR}, 7
    s_lshl_b32 s{sT0}, s{sT0}, 6
    s_lshl_b32 s{sT1}, s{sWAVE}, 4
    s_add_u32 s{sT0}, s{sT0}, s{sT1}
    v_lshl_add_u32 v{vT+5}, v{vT+4}, 2, s{sT0}
    v_and_b32 v{vT}, 3, v{vLANE}
    v_add_u32 v{vT}, v{vT}, v{vT+5}
    v_lshlrev_b32 v{vT}, 1, v{vT}
    v_bfe_u32 v{vT+1}, v{vLANE}, 2, 2
    v_lshl_add_u32 v{vT}, v{vT+1}, 10, v{vT}
    """)
    xr = 22
    p.vm(f"buffer_load_ushort v{xr}, v{vT}, s[{srdX}:{srdX+3}], 0 offen", "x")
    p(f"""
    s_cmp_lt_u32 s{sRR}, 8
    s_cselect_b32 s{srdG}, s{sWG}, s{sWU}
    s_cselect_b32 s{srdG+1}, s{sWG+1}, s{sWU+1}
    s_lshl_b32 s{sT0}, s{sFS}, 8
    s_add_u32 s{srdG}, s{srdG}, s{sT0}
    s_addc_u32 s{srdG+1}, s{srdG+1}, 0
    s_and_b32 s{srdG+1}, s{srdG+1}, 0xffff
    s_sub_u32 s{srdG+2}, {512 * 3584}, s{sT0}
    s_mov_b32 s{srdG+3}, 0x20000
    v_mul_u32_u24 v20, 3584, v{vT+5}
    v_add_u32 v20, v20, v{vT+3}
    """)
    for t in range(4):
        p(f"s_mov_b32 s{sT2}, {t * 3584}")
        p.vm(f"buffer_load_dwordx4 {r4(vG1 + 4*t)}, v20, s[{srdG}:{srdG+3}], s{sT2} offen {O.fpol}", ("W", t))
    srd(p, srdW, sWD, None, 1792 * 1024)
    p(f"""
    s_lshl_b32 s{sT0}, s{sFS}, 7
    s_lshr_b32 s{sT1}, s{sRR}, 2
    s_lshl_b32 s{sT1}, s{sT1}, 5
    s_add_u32 s{sT0}, s{sT0}, s{sT1}
    s_lshl_b32 s{sT1}, s{sWAVE}, 3
    s_add_u32 s{sT0}, s{sT0}, s{sT1}
    v_lshl_add_u32 v{vW}, v{vT+4}, 1, s{sT0}
    v_lshlrev_b32 v{vW}, 10, v{vW}
    s_and_b32 s{sT0}, s{sRR}, 3
    s_lshl_b32 s{sT0}, s{sT0}, 8
    v_add3_u32 v{vW}, v{vW}, v{vT+3}, s{sT0}
    """)
    for t in range(2):
        p.vm(f"buffer_load_dwordx4 {r4(vWD + 4*t)}, v{vW}, s[{srdW}:{srdW+3}], 0 offen offset:{t * 1024} {O.fpol}", ("D", t))
    p(f"""
    v_and_b32 v{vT+5}, 8, v{vLANE}
    v_mov_b32 v{vT+6}, 0x0100
    v_mov_b32 v{vT+7}, 0x0302
    v_cmp_eq_u32 vcc, 0, v{vT+5}
    v_cndmask_b32 v{vT+6}, v{vT+7}, v{vT+6}, vcc
    v_lshlrev_b32 v{vT+7}, 16, v{vT+6}
    v_or_b32 v{vT+7}, 0x0c0c, v{vT+7}
    v_or_b32 v{vT+6}, 0x0c0c0000, v{vT+6}
    v_and_b32 v{vT+5}, 1, v{vLANE}
    v_cmp_eq_u32 vcc, 0, v{vT+5}
    v_cndmask_b32 v{vT+6}, v{vT+7}, v{vT+6}, vcc
    v_bfe_u32 v{vT+5}, v{vLANE}, 1, 2
    v_mov_b32 v{vT+7}, 0x0c0c0c0c
    """)
    for j in range(4):
        p(f"v_cmp_eq_u32 vcc, {j}, v{vT+5}")
        p(f"v_cndmask_b32 v{vSEL+j}, v{vT+7}, v{vT+6}, vcc")
    srd(p, srdWS, sWS, None, WS_BYTES)
    vRD = 54
    p(f"""
    s_lshr_b32 s{sT0}, s{sWAVE}, 1
    s_lshl_b32 s{sT0}, s{sT0}, 10
    s_and_b32 s{sT1}, s{sWAVE}, 1
    s_lshl_b32 s{sT1}, s{sT1}, 9
    s_add_u32 s{sT0}, s{sT0}, s{sT1}
    v_bfe_u32 v{vRD}, v{vLANE}, 1, 1
    v_lshlrev_b32 v{vRD}, 8, v{vRD}
    v_lshrrev_b32 v{vT+5}, 2, v{vLANE}
    v_lshl_add_u32 v{vRD}, v{vT+5}, 4, v{vRD}
    v_and_b32 v{vT+5}, 1, v{vLANE}
    v_lshl_add_u32 v{vRD}, v{vT+5}, 3, v{vRD}
    v_add_u32 v{vRD}, s{sT0}, v{vRD}
    """)
    def step(src_of_pair, lane, lane_step=0):
        for pr in range(2):
            p(f"v_mov_b32_dpp v{vBC+pr}, v{src_of_pair(pr)} row_newbcast:{lane + lane_step * pr} row_mask:0xf bank_mask:0xf")
        for pr in range(2):
            for j in range(4):
                p(f"v_perm_b32 v{vA + 4*pr + j}, v{vBC+pr}, v{vBC+pr}, v{vSEL+j}")
    def cross_wave_sum(dst):
        p(f"""
        s_lshl_b32 s{sT0}, s{sWAVE}, 11
        v_lshlrev_b32 v{vT}, 4, v{vLANE}
        v_add_u32 v{vT}, s{sT0}, v{vT}
        ds_write_b128 v{vT}, {r4(vD0)}
        ds_write_b128 v{vT}, {r4(vD1)} offset:1024
        s_waitcnt lgkmcnt(0)
        s_barrier
        """)
        for w in range(4):
            p(f"ds_read_b64 v[{vP+2*w}:{vP+2*w+1}], v{vRD} offset:{w*2048}")
        p("s_waitcnt lgkmcnt(0)")
        for e in range(2):
            p(f"v_add_f32 v{vP+e}, v{vP+e}, v{vP+2+e}")
            p(f"v_add_f32 v{vP+4+e}, v{vP+4+e}, v{vP+6+e}")
        for e in range(2):
            p(f"v_add_f32 v{dst+e}, v{vP+e}, v{vP+4+e}")
    p.wait_vm("x")
    p(f"v_mov_b32_dpp v{xr+1}, v{xr} row_shl:4 row_mask:0xf bank_mask:0xf bound_ctrl:0")
    p(f"v_lshl_or_b32 v{vXP}, v{xr+1}, 16, v{xr}")
    for r in range(8): p(f"v_mov_b32 v{vD0 + r}, 0")
    stamp(p, 2)
    for t in range(4):
        step(lambda pr: vXP, t, 8)
        p.wait_vm(("W", t))
        p(f"v_mfma_f32_16x16x32_bf16 {r4(vD0)}, {r4(vA)}, {r4(vG1 + 4*t)}, {r4(vD0)}")
        p(f"v_mfma_f32_16x16x32_bf16 {r4(vD1)}, {r4(vA+4)}, {r4(vG1 + 4*t)}, {r4(vD1)}")
    cross_wave_sum(26)
    p(f"""
    s_lshl_b32 s{sT0}, s{sF}, 11
    s_lshl_b32 s{sT1}, s{sWAVE}, 9
    s_add_u32 s{sT0}, s{sT0}, s{sT1}
    s_add_u32 s{sT0}, s{sT0}, {WS_H}
    v_lshl_add_u32 v{vT}, v{vLANE}, 3, s{sT0}
    buffer_store_dwordx2 v[26:27], v{vT}, s[{srdWS}:{srdWS+3}], 0 offen sc1
    s_lshl_b32 s{sT0}, s{sF}, 3
    s_add_u32 s{sT0}, s{sT0}, {WS_F1}
    v_mov_b32 v{vT+1}, s{sT0}
    s_add_u32 s{sTAG}, s{sTAG}, 1
    s_addc_u32 s{sTAG+1}, s{sTAG+1}, 0
    v_mov_b32 v28, s{sTAG}
    v_mov_b32 v29, s{sTAG+1}
    s_lshl_b32 s{sT0}, s{sFS}, 7
    s_add_u32 s{sT0}, s{sT0}, {WS_F1}
    v_lshl_add_u32 v{vT+2}, v{vLANE}, 3, s{sT0}
    s_waitcnt vmcnt(0)
    s_barrier
    """)
    p.vmq = []
    stamp(p, 4)
    p(f"""
    s_cmp_lg_u32 s{sWAVE}, {99 if O.fnosync else 0}
    s_cbranch_scc1 L_f1ok
    s_mov_b64 exec, 1
    buffer_store_dwordx2 v[28:29], v{vT+1}, s[{srdWS}:{srdWS+3}], 0 offen sc1
    s_mov_b64 exec, 0xffff
    s_mov_b32 s{sSPIN}, 0
    L_f1poll:
    s_sleep {O.fsleep}
    buffer_load_dwordx2 v[{vT+6}:{vT+7}], v{vT+2}, s[{srdWS}:{srdWS+3}], 0 offen sc1
    s_waitcnt vmcnt(0)
    v_cmp_ne_u64 vcc, s[{sTAG}:{sTAG+1}], v[{vT+6}:{vT+7}]
    s_cmp_eq_u64 vcc, 0
    s_cbranch_scc1 L_f1seen
    s_add_u32 s{sSPIN}, s{sSPIN}, 1
    s_cmp_ge_u32 s{sSPIN}, {SPIN_MAX}
    s_cbranch_scc1 L_fin
    s_branch L_f1poll
    L_f1seen:
    s_mov_b64 exec, -1
    L_f1ok:
    s_barrier
    """)
    p(f"""
    s_lshl_b32 s{sT0}, s{sFS}, 4
    s_lshl_b32 s{sT1}, s{sWAVE}, 2
    s_add_u32 s{sT0}, s{sT0}, s{sT1}
    v_lshrrev_b32 v{vT}, 5, v{vLANE}
    v_add_u32 v{vT}, s{sT0}, v{vT}
    v_lshlrev_b32 v{vT}, 11, v{vT}
    v_bfe_u32 v{vT+1}, v{vLANE}, 3, 2
    v_lshl_add_u32 v{vT}, v{vT+1}, 9, v{vT}
    v_and_b32 v{vT+2}, 7, v{vLANE}
    v_lshl_add_u32 v{vT}, v{vT+2}, 4, v{vT}
    s_lshr_b32 s{sT1}, s{sRR}, 2
    s_lshl_b32 s{sT1}, s{sT1}, 7
    s_add_u32 s{sT1}, s{sT1}, {WS_H}
    v_add_u32 v{vT}, s{sT1}, v{vT}
    s_mov_b32 s{sT2}, 4096
    buffer_load_dwordx4 {r4(vH)}, v{vT}, s[{srdWS}:{srdWS+3}], 0 offen sc1
    buffer_load_dwordx4 {r4(vH+4)}, v{vT}, s[{srdWS}:{srdWS+3}], s{sT2} offen sc1
    s_lshl_b32 s{sT0}, s{sWAVE}, 11
    v_lshrrev_b32 v{vT+5}, 5, v{vLANE}
    v_lshlrev_b32 v{vT+5}, 9, v{vT+5}
    v_lshl_add_u32 v{vT+5}, v{vT+1}, 7, v{vT+5}
    v_lshl_add_u32 v{vT+5}, v{vT+2}, 4, v{vT+5}
    v_add_u32 v{vT+5}, s{sT0}, v{vT+5}
    s_waitcnt vmcnt(0)
    ds_write_b128 v{vT+5}, {r4(vH)} offset:8192
    ds_write_b128 v{vT+5}, {r4(vH+4)} offset:9216
    v_and_b32 v{vT}, 127, v0
    v_lshlrev_b32 v{vT}, 2, v{vT}
    s_waitcnt lgkmcnt(0)
    s_barrier
    """)
    for pi in range(16):
        p(f"ds_read_b32 v{vG1+pi}, v{vT} offset:{8192 + pi*512}")
    p("s_waitcnt lgkmcnt(0)")
    for base in (vG1, vG1 + 8):
        p(f"""
        v_add_f32 v{base}, v{base}, v{base+1}
        v_add_f32 v{base+2}, v{base+2}, v{base+3}
        v_add_f32 v{base+4}, v{base+4}, v{base+5}
        v_add_f32 v{base+6}, v{base+6}, v{base+7}
        v_add_f32 v{base}, v{base}, v{base+2}
        v_add_f32 v{base+4}, v{base+4}, v{base+6}
        v_add_f32 v{base}, v{base}, v{base+4}
        """)
    h1, h2, t0, t1 = vP, vP+4, vP+1, vP+2
    C0 = 0x3F4C422A
    C1 = 0x3D372713
    p(f"""
    v_cvt_pk_bf16_f32 v{t0}, v{vG1}, v{vG1+8}
    v_lshlrev_b32 v{h1}, 16, v{t0}
    v_and_b32 v{h2}, s{sHI}, v{t0}
    v_mul_f32 v{t0}, v{h1}, v{h1}
    v_mul_f32 v{t0}, v{t0}, v{h1}
    v_mov_b32 v{t1}, {hex(C1)}
    v_fma_f32 v{t0}, v{t0}, v{t1}, v{h1}
    v_mul_f32 v{t0}, {hex(C0)}, v{t0}
    v_mul_f32 v{t0}, s{sL2E}, v{t0}
    v_mul_f32 v{t0}, -2.0, v{t0}
    v_exp_f32 v{t0}, v{t0}
    v_add_f32 v{t0}, 1.0, v{t0}
    v_rcp_f32 v{t0}, v{t0}
    v_mul_f32 v{t0}, v{h1}, v{t0}
    v_cvt_pk_bf16_f32 v{t0}, v{t0}, v{t0}
    v_lshlrev_b32 v{t0}, 16, v{t0}
    v_mul_f32 v{t0}, v{t0}, v{h2}
    v_cvt_pk_bf16_f32 v{t0}, v{t0}, v{t0}
    v_bfe_u32 v{vT+1}, v0, 6, 1
    v_lshlrev_b32 v{vT+1}, 7, v{vT+1}
    v_and_b32 v{vT+2}, 31, v0
    v_lshl_add_u32 v{vT+1}, v{vT+2}, 2, v{vT+1}
    v_bfe_u32 v{vT+2}, v0, 5, 1
    v_lshl_add_u32 v{vT+1}, v{vT+2}, 1, v{vT+1}
    ds_write_b16 v{vT+1}, v{t0} offset:16384
    s_lshl_b32 s{sT0}, s{sWAVE}, 3
    v_lshl_add_u32 v{vT+2}, v{vT+4}, 1, s{sT0}
    v_and_b32 v{vT+5}, 1, v{vLANE}
    v_add_u32 v{vT+2}, v{vT+2}, v{vT+5}
    v_lshlrev_b32 v{vT+2}, 2, v{vT+2}
    s_waitcnt lgkmcnt(0)
    s_barrier
    ds_read_b32 v{vXP}, v{vT+2} offset:16384
    ds_read_b32 v{vXP+1}, v{vT+2} offset:16512
    """)
    for r in range(8): p(f"v_mov_b32 v{vD0 + r}, 0")
    p("s_waitcnt lgkmcnt(0)")
    stamp(p, 5)
    for t in range(2):
        step(lambda pr: vXP + pr, t)
        p(f"v_mfma_f32_16x16x32_bf16 {r4(vD0)}, {r4(vA)}, {r4(vWD + 4*t)}, {r4(vD0)}")
        p(f"v_mfma_f32_16x16x32_bf16 {r4(vD1)}, {r4(vA+4)}, {r4(vWD + 4*t)}, {r4(vD1)}")
    cross_wave_sum(26)
    stamp(p, 6)
    p(f"""
    s_lshl_b32 s{sT0}, s{sFS}, 2
    s_lshr_b32 s{sT1}, s{sRR}, 2
    s_add_u32 s{sT0}, s{sT0}, s{sT1}
    s_lshl_b32 s{sT0}, s{sT0}, 13
    s_lshl_b32 s{sT1}, s{sWAVE}, 11
    s_add_u32 s{sT0}, s{sT0}, s{sT1}
    s_and_b32 s{sT1}, s{sRR}, 3
    s_lshl_b32 s{sT1}, s{sT1}, 9
    s_add_u32 s{sT0}, s{sT0}, s{sT1}
    s_add_u32 s{sT0}, s{sT0}, {WS_Q}
    v_lshl_add_u32 v{vT}, v{vLANE}, 3, s{sT0}
    buffer_store_dwordx2 v[26:27], v{vT}, s[{srdWS}:{srdWS+3}], 0 offen sc1
    s_and_b32 s{sT0}, s{sRR}, 3
    s_lshl_b32 s{sT0}, s{sT0}, 6
    s_lshl_b32 s{sT1}, s{sFS}, 2
    s_add_u32 s{sT0}, s{sT0}, s{sT1}
    s_lshr_b32 s{sT1}, s{sRR}, 2
    s_add_u32 s{sT0}, s{sT0}, s{sT1}
    s_lshl_b32 s{sT0}, s{sT0}, 3
    s_add_u32 s{sT0}, s{sT0}, {WS_F2}
    v_mov_b32 v{vT+1}, s{sT0}
    s_waitcnt vmcnt(0)
    s_barrier
    s_cmp_lg_u32 s{sWAVE}, {99 if O.fnosync else 0}
    s_cbranch_scc1 L_fin
    s_mov_b64 exec, 1
    buffer_store_dwordx2 v[28:29], v{vT+1}, s[{srdWS}:{srdWS+3}], 0 offen sc1
    s_mov_b64 exec, -1
    """)

def kernel1():
    p = Prog()
    common_prologue(p)
    p(f"""
    s_cmp_ge_u32 s2, {NATT}
    s_cbranch_scc1 L_ffn
    """)
    routine = attention(p)
    p.ins += routine
    ffn(p)
    p("L_fin:")
    if O.dbgtime:
        p(f"""
        s_cmp_lg_u32 s{sWAVE}, 0
        s_cbranch_scc1 L_end
        s_and_b32 s74, s2, 0x1f
        s_cmp_lg_u32 s74, 0
        s_cbranch_scc1 L_end
        s_waitcnt vmcnt(0)
        s_memrealtime s[72:73]
        s_mov_b64 exec, 1
        s_mov_b32 s64, s38
        s_and_b32 s65, s39, 0xffff
        s_mov_b32 s66, 256
        s_mov_b32 s67, 0x20000
        s_waitcnt lgkmcnt(0)
        s_not_b32 s70, s70
        v_mov_b32 v60, s70
        v_mov_b32 v61, s72
        v_mov_b32 v62, 16
        buffer_atomic_umax v60, v62, s[64:67], 0 offen sc1
        buffer_atomic_umax v61, v62, s[64:67], 0 offen offset:4 sc1
        """)
    if O.stamps:
        p("s_waitcnt vmcnt(0)")
        stamp(p, 8)
        write_stamps(p, 9)
    p("L_end:")
    p("s_endpgm")
    p.finish()
    p.check_loop("L_kloop", "s_cbranch_scc1 L_kloop")
    p.check_loop("L_vloop", "s_cbranch_scc1 L_vloop")
    if any(i.text.strip() == "L_vloop2:" for i in p.ins): p.check_loop("L_vloop2", "s_cbranch_scc1 L_vloop2")
    return p

def desc(name, vgpr, sgpr):
    acc = (vgpr + 3) // 4 * 4
    return f""".amdhsa_kernel {name}
  .amdhsa_next_free_vgpr {vgpr}
  .amdhsa_next_free_sgpr {sgpr}
  .amdhsa_accum_offset {acc}
  .amdhsa_group_segment_fixed_size 0
  .amdhsa_kernarg_size 104
  .amdhsa_user_sgpr_count 2
  .amdhsa_user_sgpr_kernarg_segment_ptr 1
  .amdhsa_system_sgpr_workgroup_id_x 1
  .amdhsa_float_denorm_mode_32 3
.end_amdhsa_kernel
"""

def gen():
    k1 = NAME + "_kernel"
    out = HEADER
    out += f"; @launch grid=({nwg()},1,1) block=(256,1,1) lds=49152\n" + DOC
    out += '.amdgcn_target "amdgcn-amd-amdhsa--gfx950"\n.text\n'
    out += f".globl {k1}\n.p2align 8\n.type {k1},@function\n{k1}:\n" + kernel1().text()
    out += '.section .rodata,"a"\n.p2align 6\n' + desc(k1, 256, 102 if O.stamps else 96)
    return out

if __name__ == "__main__":
    for a in sys.argv[2:]:
        if "=" in a:
            k, v = a.split("=", 1); setattr(O, k, v.replace("_", " ").replace("def", "") if k.endswith("pol") else (v if k == "pat" else eval(v)))
        else: setattr(O, a, True)
    open(sys.argv[1], "w").write(gen())
```
